```python
import torch

def _softmax(x, axis=-1):
    return torch.softmax(x, dim=axis)
def _gelu(x):
    return torch.nn.functional.gelu(x, approximate="tanh")
def _silu(x):
    return torch.nn.functional.silu(x)
def _sigmoid(x):
    return torch.sigmoid(x)
def _layernorm(x, axis=-1, eps=1e-5):
    m = x.mean(dim=axis, keepdim=True)
    v = x.var(dim=axis, keepdim=True, unbiased=False)
    return (x - m) / torch.sqrt(v + eps)
def _scatter_add(tgt, idx, src, axis=0):
    return tgt.clone().index_add_(axis, idx, src)
def _segment_sum(src, seg, n):
    out = torch.zeros((n,) + src.shape[1:], dtype=src.dtype)
    return out.index_add_(0, seg, src)
def _pad(x, pw):
    flat = tuple(v for pair in reversed(pw) for v in pair)
    return torch.nn.functional.pad(x, flat)

kernel_name = 'sequential_preLN__gqa_block_cached__geglu_ffn__decode'

def setup_inputs():

    _w = (lambda a: (lambda t: t.to(torch.bfloat16) if t.is_floating_point() else t)(torch.as_tensor(a)))
    def _A_setup():
        B, Sq, D = 8, 1, 512
        Hq, Hkv, Sk, Dh = 32, 8, 8192, 128
        assert Hq % Hkv == 0, (Hq, Hkv)
        return {
            "x": _w((lambda *s: torch.randn(*s, dtype=torch.bfloat16) * 0.05)(B, Sq, D)),
            "k_cache": _w((lambda *s: torch.randn(*s, dtype=torch.bfloat16) * 3.2)(B, Hkv, Sk, Dh)),
            "v_cache": _w((lambda *s: torch.randn(*s, dtype=torch.bfloat16) * 0.4)(B, Hkv, Sk, Dh)),
            "wq": _w((lambda *s: torch.randn(*s, dtype=torch.bfloat16) * 3.2)(D, Hq * Dh) * (D ** -0.5)),
            "wo": _w((lambda *s: torch.randn(*s, dtype=torch.bfloat16) * 0.4)(Hq * Dh, D) * ((Hq * Dh) ** -0.5)),
        }
    _A_in = _A_setup()

    def _B_setup():
        B, S, D, F = 8, 1, 512, 1792
        return {
            "x": _w((lambda *s: torch.randn(*s, dtype=torch.bfloat16) * 0.05)(B, S, D)),
            "w_gate": _w((lambda *s: torch.randn(*s, dtype=torch.bfloat16) * 0.05)(D, F)),
            "w_up": _w((lambda *s: torch.randn(*s, dtype=torch.bfloat16) * 0.05)(D, F)),
            "w_down": _w((lambda *s: torch.randn(*s, dtype=torch.bfloat16) * 0.05)(F, D)),
        }
    _B_in = _B_setup()

    return {
        "A_x": _A_in["x"],
        "A_k_cache": _A_in["k_cache"],
        "A_v_cache": _A_in["v_cache"],
        "A_wq": _A_in["wq"],
        "A_wo": _A_in["wo"],
        "B_x": _B_in["x"],
        "B_w_gate": _B_in["w_gate"],
        "B_w_up": _B_in["w_up"],
        "B_w_down": _B_in["w_down"],
    }

def reference(A_x, A_k_cache, A_v_cache, A_wq, A_wo, B_x, B_w_gate, B_w_up, B_w_down):
    def _A_ref(x, k_cache, v_cache, wq, wo):
        B, Sq, D = x.shape
        Hq, Dh = 32, 128
        Hkv = k_cache.shape[1]
        rep = Hq // Hkv
        q = (lambda x, *d: x.permute(*d))((x @ wq).reshape(B, Sq, Hq, Dh), 0, 2, 1, 3)
        k = (lambda x, n, axis: torch.repeat_interleave(x, n, dim=axis))(k_cache, rep, axis=1)
        v = (lambda x, n, axis: torch.repeat_interleave(x, n, dim=axis))(v_cache, rep, axis=1)
        scores = torch.einsum("bhqd,bhkd->bhqk", q, k) * (Dh ** -0.5)
        p = _softmax(scores, axis=-1)
        o = torch.einsum("bhqk,bhkd->bhqd", p, v)
        return (lambda x, *d: x.permute(*d))(o, 0, 2, 1, 3).reshape(B, Sq, Hq * Dh) @ wo

    def _B_ref(x, w_gate, w_up, w_down):
        return (_gelu(x @ w_gate) * (x @ w_up)) @ w_down

    x = A_x
    h = x + _A_ref(_layernorm(x, axis=-1), A_k_cache, A_v_cache, A_wq, A_wo)
    h2 = h + _B_ref(_layernorm(h, axis=-1), B_w_gate, B_w_up, B_w_down)
    return h2
```

```python
import re
TRANS = ("v_exp_f32", "v_log_f32", "v_rcp_f32", "v_rsq_f32", "v_sqrt_f32", "v_sin_f32", "v_cos_f32")
def regs(tok):
    tok = tok.strip()
    tok = tok.lstrip("-")
    m = re.fullmatch(r"abs\((.*)\)", tok)
    if m: tok = m.group(1)
    m = re.fullmatch(r"\|(.*)\|", tok)
    if m: tok = m.group(1)
    m = re.fullmatch(r"([vas])\[(\d+):(\d+)\]", tok)
    if m: return {f"{m.group(1)}{i}" for i in range(int(m.group(2)), int(m.group(3)) + 1)}
    if re.fullmatch(r"[vas]\d+", tok): return {tok}
    if tok in ("vcc", "exec", "m0"): return {tok}
    if tok in ("vcc_lo", "vcc_hi"): return {"vcc"}
    if tok in ("exec_lo", "exec_hi"): return {"exec"}
    return set()
class Ins:
    def __init__(s, text):
        s.text = text
        t = text.split(";")[0].strip()
        p = t.split(None, 1)
        s.op = p[0]; rest = p[1] if len(p) > 1 else ""
        ops = [o.strip() for o in rest.split(",")]
        m = re.search(r"\s(quad_perm:|row_|offen|offset|sc0|sc1|nt|lds|op_sel|glc|dst_sel|src0_sel|bitop3|neg_lo|neg_hi|clamp|off\b)", " " + rest)
        body = rest if not m else (" " + rest)[:m.start()]
        s.mods = "" if not m else (" " + rest)[m.start():]
        ops = [o.strip() for o in body.split(",") if o.strip()]
        s.ops = ops
        R = [regs(o) for o in ops]
        U = lambda l: set().union(*l) if l else set()
        op = s.op
        s.cls = "other"; s.w = set(); s.r = set(); s.rA = set(); s.rC = set(); s.dpp = False; s.states = 1
        if op == "s_nop": s.states = int(ops[0]) + 1; s.cls = "nop"
        elif op.startswith("v_mfma"):
            s.cls = "mfma"; s.w = R[0]; s.rA = R[1] | R[2]; s.rC = R[3]; s.r = s.rA | s.rC
            s.passes = 8 if ("32x32" in op or "16x16x4_f32" in op) else 4
            s.sgemm = op.endswith("_f32") and ("x4_f32" in op or "x2_f32" in op)
        elif op.startswith("v_"):
            s.cls = "valu"; s.dpp = ("quad_perm" in s.mods or "row_" in s.mods)
            s.trans = any(op.startswith(x) for x in TRANS)
            if "permlane" in op: s.w = R[0] | R[1]; s.r = set(s.w); s.cls2 = "perml"
            else:
                s.w = R[0]; s.r = U(R[1:])
                if op.startswith(("v_fmac", "v_dot2c", "v_writelane")) or s.dpp: s.r |= R[0]
                if op.startswith(("v_add_co", "v_addc_co", "v_sub_co")): s.w = R[0] | R[1]; s.r = U(R[2:])
        elif op.startswith(("buffer_load", "global_load")):
            s.cls = "vmem"
            if " lds" in s.mods or "_lds_" in op: s.r = U(R) | {"m0"}; s.ldsdma = True
            else: s.w = R[0]; s.r = U(R[1:])
        elif op.startswith(("buffer_store", "global_store", "buffer_atomic", "global_atomic")):
            s.cls = "vmem"; s.r = U(R); s.store = True
            s.wide = op.endswith(("x3", "x4"))
            s.data = R[0] if op.startswith("buffer") else R[1]
        elif op.startswith(("ds_read", "ds_bpermute", "ds_swizzle")):
            s.cls = "ds"; s.w = R[0]; s.r = U(R[1:])
        elif op.startswith("ds_"):
            s.cls = "ds"; s.r = U(R)
        elif op.startswith("s_"):
            s.cls = "salu"
            if ops and not op.startswith(("s_cmp", "s_cbranch", "s_branch", "s_waitcnt", "s_barrier", "s_setprio", "s_endpgm", "s_sleep")):
                s.w = R[0]; s.r = U(R[1:])
def need(p, c):
    n = 0
    isv = lambda S: {x for x in S if x[0] in "va" and x != "vcc"}
    iss = lambda S: {x for x in S if x[0] == "s" or x == "vcc"}
    if p.cls == "valu":
        if c.cls == "mfma" and isv(p.w) & c.r: n = max(n, 2)
        if c.cls == "valu":
            if (c.dpp or "permlane" in c.op) and isv(p.w) & c.r: n = max(n, 2)
            if p.trans and not c.trans and p.w & c.r: n = max(n, 1)
            if p.trans and c.trans and p.w & c.r: n = max(n, 1)
            if iss(p.w) & c.r: n = max(n, 4 if c.op.startswith(("v_readlane", "v_writelane")) else 2)
            if c.op.startswith(("v_readfirstlane", "v_readlane")) and isv(p.w) & c.r: n = max(n, 1)
            if "exec" in p.w: n = max(n, 5)
            if ("sdwa" in p.op or "op_sel" in p.mods) and p.w & (c.r | c.w): n = max(n, 1)
        if c.cls == "vmem" and iss(p.w) & c.r: n = max(n, 5)
        if p.trans and c.cls in ("vmem", "ds", "mfma") and p.w & c.r: n = max(n, 2)
    if p.cls == "mfma":
        big = {4: 8, 8: 12}[p.passes]; ov = {4: 6, 8: 10}[p.passes]
        if c.cls == "mfma":
            if p.w & c.rA: n = max(n, big)
            if p.w & c.rC and not (p.w == c.rC and p.op == c.op): n = max(n, ov)
            if p.w & c.w and not (p.w == c.rC and p.op == c.op): n = max(n, big)
        elif c.cls in ("valu", "vmem", "ds"):
            if p.w & (c.r | c.w): n = max(n, big)
            if c.cls == "valu" and p.rC & c.w: n = max(n, {4: 3, 8: 7}[p.passes])
    if p.cls == "vmem" and getattr(p, "store", False) and p.wide:
        if p.data & c.w: n = max(n, 2)
    if p.cls == "salu" and "m0" in p.w and getattr(c, "ldsdma", False): n = max(n, 1)
    return n
class Asm:
    def __init__(s): s.lines = []; s.hist = []; s.count = 0
    def raw(s, t): s.lines.append(t)
    def label(s, l): s.lines.append(l + ":")
    def __call__(s, text):
        for t in text.split("\n"):
            t = t.strip()
            if not t: continue
            if t.startswith(";") or t.startswith(".") or t.endswith(":"):
                s.lines.append(t); continue
            c = Ins(t)
            dist = 0; pad = 0
            for p in reversed(s.hist):
                k = need(p, c)
                if k > dist: pad = max(pad, k - dist)
                dist += p.states
                if dist >= 20: break
            if pad:
                n = Ins(f"s_nop {pad-1}"); s.lines.append("    " + n.text); s.hist.append(n); s.count += 1
            s.lines.append("    " + t); s.hist.append(c); s.count += 1
            s.hist = s.hist[-24:]
    def text(s): return "\n".join(s.lines) + "\n"
```

```python
import sys, json
sys.path.insert(0, "work")
from asmlib import Asm
NAME = "sequential_preLN__gqa_block_cached__geglu_ffn__decode"

Q_OFF = 0x0
CLR = 0x100000
YP = CLR; OP = CLR + 0x80000; ML = CLR + 0xC0000; HB = CLR + 0xC8000; ACT = CLR + 0xCA000; WS_END = CLR + 0xD1000
XN_L = 0; XN_S = 1040
WQ_L = 8448
P_L = WQ_L + 16384
WO_L = P_L + 16384
W2_L = WO_L + 16384
T0_L = 0
R4_L = WQ_L
LDS_SZ = W2_L + 32768

def mask(f):
    v = 0
    for l in range(64):
        if f(l): v |= 1 << l
    return v

def gen(D=6, D0=10, IF=34, budget=44, stamps=False, wnt="nt", IW=18, IML=232, cap=200000, kvflag="nt", codewarm=True):
    A = Asm()
    hdr = [l for l in open("cdna_kernels/" + NAME + ".s.ref").read().split("\n") if l.startswith(";") and "@launch" not in l]
    for l in hdr: A.raw(l)
    A.raw(f"; @launch grid=(256,1,1) block=(256,1,1) lds={LDS_SZ}")
    A.raw('.amdgcn_target "amdgcn-amd-amdhsa--gfx950"')
    A.raw(".text"); A.raw(f".globl {NAME}_kernel"); A.raw(".p2align 8"); A.raw(f".type {NAME}_kernel,@function")
    A.label(f"{NAME}_kernel")
    sK, sV, sW, sX, sQ, sO, sG, sU, sD, sOut, sDbg = [f"s[{b}:{b+3}]" for b in range(28, 72, 4)]
    sKV = "s72"; sROLE = "s73"; sCNT = "s74"; sLOG = "s75"; sMV = "s[76:77]"; sM8 = "s[78:79]"
    sSCALE = "s4"; sHI = "s5"; sF0 = "s6"; sT = "s7"; sT2 = "s8"; sT3 = "s9"; sCT = "s10"; sLG = "s11"; sPOS = "s12"
    vL = "v1"; vKa = "v2"; vKb = "v3"; vVo = "v4"; vPw = "v5"; vPr = "v6"; vN64 = "v7"
    SEL = 8; QA = 16; S = 32; DS = 64; PP = 80; A0 = 96; A1 = 100; O0 = 104; O1 = 108
    m01, m23, l01, l23, nm01, nm23, f01, f23 = [f"v{i}" for i in range(112, 120)]
    vXR = "v120"; T = 121
    BIG = 140
    vN = "v137"; vG = "v138"
    v = lambda i, n=1: f"v{i}" if n == 1 else f"v[{i}:{i+n-1}]"
    a = lambda i, n=4: f"a[{i}:{i+n-1}]"
    nst = [0]
    def stamp(k):
        if stamps: A(f"s_memrealtime s[{80+2*k}:{81+2*k}]")
    def smov64(dst, val):
        lo = int(dst[2:dst.index(":")]) if dst.startswith("s[") else None
        if dst == "exec":
            A(f"s_mov_b32 exec_lo, 0x{val & 0xffffffff:x}"); A(f"s_mov_b32 exec_hi, 0x{val >> 32:x}")
        else:
            A(f"s_mov_b32 s{lo}, 0x{val & 0xffffffff:x}"); A(f"s_mov_b32 s{lo+1}, 0x{val >> 32:x}")
    ops = []
    known = [-1]
    def vm(text, mandatory=True):
        A(text); ops.append(mandatory); return len(ops) - 1
    def wait_for(idx, upd=True):
        if idx <= known[0]: return
        n = sum(1 for m in ops[idx+1:] if m)
        assert n <= 63
        A(f"s_waitcnt vmcnt({n})")
        if upd: known[0] = idx
    ool = []

    A("s_cmp_ge_u32 s2, 256\n s_cbranch_scc1 L_end")
    if stamps:
        for k in range(1, 10): A(f"s_mov_b32 s{80+2*k}, 0")
    stamp(0)
    A("s_load_dwordx8 s[4:11], s[0:1], 0\n s_load_dwordx8 s[12:19], s[0:1], 32\n s_load_dwordx8 s[20:27], s[0:1], 64")
    A(f"v_lshrrev_b32 {v(T)}, 6, v0\n v_and_b32 {vL}, 63, v0\n v_readfirstlane_b32 s3, {v(T)}")
    A(f"v_and_b32 {vN}, 15, v0\n v_lshrrev_b32 {vG}, 4, {vL}")
    A(f"""v_lshrrev_b32 {v(T)}, 5, v0
          v_lshlrev_b32 {v(T)}, 10, {v(T)}
          v_and_b32 {v(T+3)}, 31, v0
          v_lshl_or_b32 {v(T)}, {v(T+3)}, 4, {v(T)}
          v_lshrrev_b32 {v(T+1)}, 1, {vL}
          v_lshlrev_b32 {v(T+1)}, 13, {v(T+1)}
          v_and_b32 {v(T+3)}, 1, v0
          v_lshl_or_b32 {v(T+1)}, {v(T+3)}, 4, {v(T+1)}
          v_lshlrev_b32 {v(T+2)}, 4, v0
          v_lshlrev_b32 {vVo}, 4, {vL}
          v_and_b32 {v(T+3)}, 7, v0
          v_lshlrev_b32 {vKa}, 8, {v(T+3)}
          v_lshl_or_b32 {vKa}, {vG}, 4, {vKa}
          v_and_b32 {v(T+3)}, 8, v0
          v_lshl_or_b32 {vKa}, {v(T+3)}, 3, {vKa}
          v_xor_b32 {vKb}, 64, {vKa}
          v_mov_b32 {v(T+4)}, -1
          v_mov_b32 {v(T+5)}, -1
          v_mov_b32 {v(T+6)}, -1
          v_mov_b32 {v(T+7)}, -1
          v_mov_b32 {v(T+8)}, -1""")
    CL = T + 5 if (T + 5) % 2 == 0 else T + 4
    for b in range(28, 72, 4): A(f"s_mov_b32 s{b+3}, 0x20000")
    A(f"s_mov_b32 s38, {WS_END}\n s_mov_b32 s42, 8192\n s_mov_b32 s46, {512*4096*2}\n s_mov_b32 s50, {4096*512*2}")
    A(f"s_mov_b32 s54, {512*1792*2}\n s_mov_b32 s58, {512*1792*2}\n s_mov_b32 s62, {1792*512*2}\n s_mov_b32 s66, 8192\n s_mov_b32 s70, 256")
    A("s_lshl_b32 s72, s3, 12\n s_sub_u32 s30, 0x80000, s72\n s_mov_b32 s34, s30\n s_lshl_b32 s73, s2, 19\n s_add_u32 s72, s72, s73")
    A("s_waitcnt lgkmcnt(0)")
    A("s_mov_b32 s40, s4\n s_and_b32 s41, s5, 0xffff")
    op_x0 = vm(f"buffer_load_dwordx4 {v(BIG,4)}, {v(T)}, {sX}, 0 offen")
    op_x1 = vm(f"buffer_load_dwordx4 {v(BIG+4,4)}, {v(T)}, {sX}, 0 offen offset:512")
    A("s_mov_b32 s36, s26\n s_and_b32 s37, s27, 0xffff\n s_mov_b32 s44, s10\n s_and_b32 s45, s11, 0xffff")
    A(f"s_lshl_b32 s74, s2, 12\n s_add_u32 s74, s74, {CLR}")
    vm(f"buffer_store_dwordx4 {v(CL,4)}, {v(T+2)}, {sW}, s74 offen sc1")
    A(f"""s_and_b32 s74, s2, 31
          s_lshl_b32 s74, s74, 8
          s_lshr_b32 s75, s2, 5
          s_lshl_b32 s75, s75, 5
          s_add_u32 s74, s74, s75
          s_lshl_b32 s75, s3, 20
          s_add_u32 s74, s74, s75
          s_lshl_b32 s75, s3, 12
          s_add_u32 m0, s75, {WQ_L}""")
    for j in range(4):
        op_wq = vm(f"buffer_load_dwordx4 {v(T+1)}, {sQ}, s74 offen {wnt} lds")
        if j < 3: A(f"s_add_u32 s74, s74, {32*8192}\n s_add_u32 m0, m0, 1024")
    A("s_add_u32 s28, s6, s72\n s_addc_u32 s29, s7, 0\n s_and_b32 s29, s29, 0xffff")
    A("s_add_u32 s32, s8, s72\n s_addc_u32 s33, s9, 0\n s_and_b32 s33, s33, 0xffff")
    kv = []
    cur = [None]
    def issue(i):
        t = (i & 127) >> 2
        if cur[0] != t: A(f"s_mov_b32 {sKV}, {t*16384}"); cur[0] = t
        dst = a((i % 64) * 4)
        if i < 128:
            va = vKb if (i >> 2) & 1 else vKa
            kv.append(vm(f"buffer_load_dwordx4 {dst}, {va}, {sK}, {sKV} offen offset:{((i>>1)&1)*2048 + (i&1)*128} {kvflag}"))
        else:
            kv.append(vm(f"buffer_load_dwordx4 {dst}, {vVo}, {sV}, {sKV} offen offset:{(i&3)*1024} {kvflag}"))
    for i in range(D0): issue(i)
    for (b, p) in ((48, 12), (52, 16), (56, 18), (60, 20), (64, 22), (68, 24)):
        A(f"s_mov_b32 s{b}, s{p}\n s_and_b32 s{b+1}, s{p+1}, 0xffff")
    A(f"s_mov_b32 {sLOG}, 0x3fb8aa3b\n s_mov_b32 {sSCALE}, 0x3db504f3\n s_mov_b32 {sHI}, 0xffff0000\n s_mov_b32 {sCNT}, 0")
    smov64(sMV, mask(lambda l: ((l >> 3) & 1) == ((l >> 4) & 1)))
    smov64(sM8, mask(lambda l: (l >> 3) & 1))
    A(f"""s_and_b32 {sLG}, s2, 7
          s_lshr_b32 {sT}, s2, 5
          s_lshl_b32 {sT}, {sT}, 3
          s_add_u32 {sLG}, {sLG}, {sT}
          s_lshr_b32 {sPOS}, s2, 3
          s_and_b32 {sCT}, {sPOS}, 7
          s_and_b32 {sPOS}, {sPOS}, 3
          s_and_b32 {sT}, s2, 7
          s_lshl_b32 {sT}, {sT}, 3
          s_add_u32 {sCT}, {sCT}, {sT}
          s_lshl_b32 {sF0}, {sLG}, 6
          s_lshl_b32 {sT}, {sPOS}, 4
          s_add_u32 {sF0}, {sF0}, {sT}
          s_cmp_lt_u32 {sLG}, 28
          s_cselect_b32 {sROLE}, 1, 0
          s_lshr_b32 {sT}, s2, 6
          s_cmp_eq_u32 {sT}, 2
          s_cselect_b32 {sROLE}, 2, {sROLE}""")
    A(f"""v_lshrrev_b32 {v(T+2)}, 5, v0
          v_mul_u32_u24 {v(T+2)}, {XN_S}, {v(T+2)}
          v_and_b32 {v(T+3)}, 31, v0
          v_lshl_add_u32 {v(T+2)}, {v(T+3)}, 4, {v(T+2)}""")
    F = BIG + 8
    def rowsum32(r, t):
        for k in (8, 4, 2, 1): A(f"v_add_f32_dpp {r}, {r}, {r} row_ror:{k} row_mask:0xf bank_mask:0xf")
        A(f"v_mov_b32 {t}, {r}\n v_permlane16_swap_b32 {r}, {t}\n v_add_f32 {r}, {r}, {t}")
    def ln_scalars(mean, var, mb, rinv):
        A(f"""v_cvt_pk_bf16_f32 {rinv}, {mean}, {var}
              v_lshlrev_b32 {mb}, 16, {rinv}
              v_and_b32 {rinv}, {sHI}, {rinv}
              v_add_f32 {rinv}, 0x3727c5ac, {rinv}
              v_cvt_pk_bf16_f32 {rinv}, {rinv}, {rinv}
              v_lshlrev_b32 {rinv}, 16, {rinv}
              v_sqrt_f32 {rinv}, {rinv}
              v_cvt_pk_bf16_f32 {rinv}, {rinv}, {rinv}
              v_lshlrev_b32 {rinv}, 16, {rinv}
              v_rcp_f32 {rinv}, {rinv}""")
    wait_for(op_x1)
    stamp(1)
    for i in range(8):
        A(f"v_lshlrev_b32 {v(F+2*i)}, 16, {v(BIG+i)}\n v_and_b32 {v(F+2*i+1)}, {sHI}, {v(BIG+i)}")
    G = F + 16
    for i in range(8): A(f"v_add_f32 {v(G+i)}, {v(F+i)}, {v(F+8+i)}")
    for i in range(4): A(f"v_add_f32 {v(G+i)}, {v(G+i)}, {v(G+4+i)}")
    A(f"v_add_f32 {v(G)}, {v(G)}, {v(G+2)}\n v_add_f32 {v(G+1)}, {v(G+1)}, {v(G+3)}\n v_add_f32 {v(T+4)}, {v(G)}, {v(G+1)}")
    rowsum32(v(T+4), v(T+5))
    A(f"v_mul_f32 {v(T+4)}, 0x3b000000, {v(T+4)}")
    for i in range(16): A(f"v_sub_f32 {v(G+i)}, {v(F+i)}, {v(T+4)}")
    A(f"v_mul_f32 {v(T+6)}, {v(G)}, {v(G)}\n v_mul_f32 {v(T+7)}, {v(G+1)}, {v(G+1)}")
    for i in range(2, 16): A(f"v_fmac_f32 {v(T+6+(i&1))}, {v(G+i)}, {v(G+i)}")
    A(f"v_add_f32 {v(T+6)}, {v(T+6)}, {v(T+7)}")
    rowsum32(v(T+6), v(T+5))
    A(f"v_mul_f32 {v(T+6)}, 0x3b000000, {v(T+6)}")
    ln_scalars(v(T+4), v(T+6), v(T+7), v(T+8))
    for i in range(16): A(f"v_sub_f32 {v(F+i)}, {v(F+i)}, {v(T+7)}")
    for i in range(8): A(f"v_cvt_pk_bf16_f32 {v(BIG+i)}, {v(F+2*i)}, {v(F+2*i+1)}")
    for i in range(8):
        A(f"v_lshlrev_b32 {v(F+2*i)}, 16, {v(BIG+i)}\n v_and_b32 {v(F+2*i+1)}, {sHI}, {v(BIG+i)}")
    for i in range(16): A(f"v_mul_f32 {v(F+i)}, {v(F+i)}, {v(T+8)}")
    for i in range(8): A(f"v_cvt_pk_bf16_f32 {v(BIG+i)}, {v(F+2*i)}, {v(F+2*i+1)}")
    A(f"ds_write_b128 {v(T+2)}, {v(BIG,4)} offset:{XN_L}\n ds_write_b128 {v(T+2)}, {v(BIG+4,4)} offset:{XN_L+512}")
    A(f"""v_and_b32 {v(T)}, 7, v0
          v_mul_u32_u24 {v(T)}, {XN_S}, {v(T)}
          v_lshl_add_u32 {v(T)}, {vG}, 4, {v(T)}
          v_lshrrev_b32 {v(T+1)}, 2, {vN}
          v_lshl_add_u32 {v(T+1)}, {vG}, 3, {v(T+1)}
          v_lshlrev_b32 {v(T+1)}, 5, {v(T+1)}
          v_and_b32 {v(T+3)}, 3, v0
          v_lshl_add_u32 {v(T+1)}, {v(T+3)}, 3, {v(T+1)}
          v_lshlrev_b32 {v(T+2)}, 13, {vN}
          v_lshl_add_u32 {v(T+2)}, {vG}, 3, {v(T+2)}""")
    wait_for(op_wq)
    A("s_waitcnt lgkmcnt(0)\n s_barrier")
    A("s_cmp_lg_u32 s3, 0\n s_cbranch_scc1 L_noq")
    XF = 32; WF = BIG
    for ks in range(16):
        A(f"ds_read_b128 {v(XF+4*ks,4)}, {v(T)} offset:{XN_L + ks*64}")
        A(f"ds_read_b64_tr_b16 {v(WF+4*ks,2)}, {v(T+1)} offset:{WQ_L + ks*1024}")
        A(f"ds_read_b64_tr_b16 {v(WF+4*ks+2,2)}, {v(T+1)} offset:{WQ_L + ks*1024 + 128}")
        if ks % 2 == 1 and ks >= 3:
            A("s_waitcnt lgkmcnt(6)")
            for k2 in range(ks - 3, ks - 1):
                A(f"v_mfma_f32_16x16x32_bf16 {v(O0,4)}, {v(WF+4*k2,4)}, {v(XF+4*k2,4)}, {v(O0,4) if k2 else 0}")
    A("s_waitcnt lgkmcnt(0)")
    for k2 in range(14, 16):
        A(f"v_mfma_f32_16x16x32_bf16 {v(O0,4)}, {v(WF+4*k2,4)}, {v(XF+4*k2,4)}, {v(O0,4)}")
    A(f"""s_and_b32 {sT}, s2, 31
          s_lshl_b32 {sT}, {sT}, 8
          s_lshr_b32 {sT2}, s2, 5
          s_lshl_b32 {sT2}, {sT2}, 5
          s_add_u32 {sT}, {sT}, {sT2}""")
    A(f"v_cvt_pk_bf16_f32 {v(O1)}, {v(O0)}, {v(O0+1)}\n v_cvt_pk_bf16_f32 {v(O1+1)}, {v(O0+2)}, {v(O0+3)}")
    A(f"s_not_b64 exec, {sM8}")
    op_qst = vm(f"buffer_store_dwordx2 {v(O1,2)}, {v(T+2)}, {sW}, {sT} offen sc1", False)
    A("s_mov_b64 exec, -1")
    A.label("L_noq")
    stamp(2)

    items = []
    consumed = [-1]
    def item(cost, fn, req=None, minstep=0): items.append((cost, req, minstep, fn))
    extras = {}
    def extra(step, fn): extras.setdefault(step, []).append(fn)

    def consts1():
        A(f"""v_and_b32 {v(T)}, 1, v0
              v_cmp_eq_u32 vcc, 1, {v(T)}
              v_mov_b32 {v(T+1)}, 0x0c0c0100
              v_mov_b32 {v(T+2)}, 0x01000c0c
              v_cndmask_b32 {v(T+1)}, {v(T+1)}, {v(T+2)}, vcc
              v_mov_b32 {v(T+2)}, 0x0c0c0302
              v_mov_b32 {v(T+3)}, 0x03020c0c
              v_cndmask_b32 {v(T+2)}, {v(T+2)}, {v(T+3)}, vcc
              v_bfe_u32 {v(T)}, v0, 1, 1
              v_bfe_u32 {v(T+3)}, v0, 3, 1
              v_lshl_or_b32 {v(T)}, {v(T+3)}, 1, {v(T)}
              v_mov_b32 {v(T+3)}, 0x0c0c0c0c""")
        for r in range(4):
            A(f"""v_cmp_eq_u32 vcc, {r}, {v(T)}
                  v_cndmask_b32 {v(SEL+r)}, {v(T+3)}, {v(T+1)}, vcc
                  v_cndmask_b32 {v(SEL+4+r)}, {v(T+3)}, {v(T+2)}, vcc""")
    def consts2():
        A(f"s_lshl_b32 {sT}, s3, 12\n s_add_u32 {sT}, {sT}, {P_L}")
        A(f"""v_bfe_u32 {v(T)}, v0, 4, 1
              v_lshlrev_b32 {vPw}, 7, {v(T)}
              v_and_b32 {v(T)}, 3, v0
              v_lshl_or_b32 {vPw}, {v(T)}, 5, {vPw}
              v_bfe_u32 {v(T)}, v0, 3, 1
              v_lshl_or_b32 {vPw}, {v(T)}, 4, {vPw}
              v_bfe_u32 {v(T)}, v0, 5, 1
              v_lshl_or_b32 {vPw}, {v(T)}, 3, {vPw}
              v_and_b32 {v(T)}, 4, v0
              v_or_b32 {vPw}, {v(T)}, {vPw}
              v_add_u32 {vPw}, {sT}, {vPw}
              v_lshlrev_b32 {vPr}, 5, {v(T)}
              v_lshl_or_b32 {vPr}, {vG}, 5, {vPr}
              v_add_u32 {vPr}, {sT}, {vPr}
              v_lshlrev_b32 {vN64}, 6, {vN}
              v_lshl_or_b32 {vN64}, {vG}, 4, {vN64}
              v_mov_b32 {m01}, 0xff800000
              v_mov_b32 {m23}, 0xff800000
              v_mov_b32 {l01}, 0
              v_mov_b32 {l23}, 0""")
    item(26, consts1); item(22, consts2)

    def flagstore():
        A("s_cmp_lg_u32 s3, 0\n s_cbranch_scc1 L_nofl")
        n = sum(1 for m in ops[op_qst+1:] if m)
        A(f"s_waitcnt vmcnt({n})")
        A(f"v_mov_b32 {v(T+10)}, 1\n v_mov_b32 {v(T+11)}, 0\n s_mov_b64 exec, 1")
        vm(f"buffer_store_byte {v(T+10)}, {v(T+11)}, {sDbg}, s2 offen sc1", False)
        A("s_mov_b64 exec, -1")
        A.label("L_nofl")
        stamp(3)
    extra(D0 + D - 2, flagstore)
    def xr():
        A(f"""v_and_b32 {v(T+10)}, 3, v0
              v_lshl_add_u32 {v(T+10)}, {v(T+10)}, 2, {vG}
              v_lshlrev_b32 {v(T+10)}, 1, {v(T+10)}
              s_and_b32 {sT}, s2, 7
              s_lshl_b32 {sT}, {sT}, 10
              s_lshr_b32 {sT2}, s2, 3
              s_lshl_b32 {sT2}, {sT2}, 5
              s_add_u32 {sT}, {sT}, {sT2}""")
        vm(f"buffer_load_ushort {vXR}, {v(T+10)}, {sX}, {sT} offen")
    def wo_dma():
        A(f"""v_lshrrev_b32 {v(T+10)}, 3, {vL}
              v_lshlrev_b32 {v(T+10)}, 10, {v(T+10)}
              v_and_b32 {v(T+11)}, 7, v0
              v_lshl_or_b32 {v(T+10)}, {v(T+11)}, 4, {v(T+10)}
              s_lshr_b32 {sT}, s2, 3
              s_lshl_b32 {sT}, {sT}, 17
              s_and_b32 {sT2}, s2, 7
              s_lshl_b32 {sT2}, {sT2}, 7
              s_add_u32 {sT}, {sT}, {sT2}
              s_lshl_b32 {sT2}, s3, 15
              s_add_u32 {sT}, {sT}, {sT2}
              s_lshl_b32 {sT2}, s3, 12
              s_add_u32 m0, {sT2}, {WO_L}""")
        for j in range(4):
            vm(f"buffer_load_dwordx4 {v(T+10)}, {sO}, {sT} offen nt lds")
            if j < 3: A(f"s_add_u32 {sT}, {sT}, 8192\n s_add_u32 m0, m0, 1024")
    def w2_dma(part):
        def f():
            A(f"s_cmp_eq_u32 {sROLE}, 1\n s_cbranch_scc0 L_ngu{part}")
            A(f"""v_lshrrev_b32 {v(T+10)}, 1, {vL}
                  v_mul_u32_u24 {v(T+10)}, 3584, {v(T+10)}
                  v_and_b32 {v(T+11)}, 1, v0
                  v_lshl_add_u32 {v(T+10)}, {v(T+11)}, 4, {v(T+10)}
                  s_mul_i32 {sT}, s3, {128*3584}
                  s_lshl_b32 {sT2}, {sF0}, 1
                  s_add_u32 {sT}, {sT}, {sT2}
                  s_lshl_b32 {sT2}, s3, 12
                  s_add_u32 m0, {sT2}, {W2_L + part*16384}""")
            for j in range(4):
                vm(f"buffer_load_dwordx4 {v(T+10)}, {sU if part else sG}, {sT} offen {wnt} lds", False)
                if j < 3: A(f"s_add_u32 {sT}, {sT}, {32*3584}\n s_add_u32 m0, m0, 1024")
            A.label(f"L_ngu{part}")
            A(f"s_cmp_eq_u32 {sROLE}, 2\n s_cbranch_scc0 L_nwd{part}")
            A(f"""v_lshlrev_b32 {v(T+10)}, 10, {vL}
                  s_mul_i32 {sT}, s3, {448*1024}
                  s_lshl_b32 {sT2}, {sCT}, 4
                  s_add_u32 {sT}, {sT}, {sT2}
                  s_add_u32 {sT}, {sT}, {part*4*65536}
                  s_mul_i32 {sT2}, s3, {448*16}
                  s_add_u32 m0, {sT2}, {W2_L + part*4096}""")
            nj = 3 if part else 4
            for j in range(nj):
                vm(f"buffer_load_dwordx4 {v(T+10)}, {sD}, {sT} offen {wnt} lds", False)
                if j < nj - 1: A(f"s_add_u32 {sT}, {sT}, 65536\n s_add_u32 m0, m0, 1024")
            A.label(f"L_nwd{part}")
        return f
    extra(IW, xr); extra(IW, wo_dma); extra(IW + 4, w2_dma(0)); extra(IW + 8, w2_dma(1))
    st = {}
    def retry_guard(back):
        A(f"s_add_u32 {sCNT}, {sCNT}, 1\n s_cmp_ge_u32 {sCNT}, {cap}\n s_cbranch_scc1 {back}")
    FL = T + 12; FA = T + 13
    def flagload():
        A(f"v_lshlrev_b32 {v(FA)}, 2, {vL}")
        st["fl"] = vm(f"buffer_load_dword {v(FL)}, {v(FA)}, {sDbg}, 0 offen sc1")
    QT = BIG
    def flagcheck():
        wait_for(st["fl"])
        A.label("L_flchk")
        A(f"v_cmp_ne_u32 vcc, 0x01010101, {v(FL)}\n s_cbranch_vccnz L_flretry")
        A.label("L_flok")
        def o():
            A.label("L_flretry"); retry_guard("L_flok")
            A(f"buffer_load_dword {v(FL)}, {v(FA)}, {sDbg}, 0 offen sc1\n s_waitcnt vmcnt(0)\n s_branch L_flchk")
        ool.append(o)
        stamp(4)
        A(f"""v_and_b32 {v(T+10)}, 3, v0
              v_lshlrev_b32 {v(T+10)}, 8, {v(T+10)}
              v_and_b32 {v(T+11)}, 4, v0
              v_add_u32 {v(T+11)}, {v(T+11)}, {vG}
              v_lshl_or_b32 {v(T+10)}, {v(T+11)}, 4, {v(T+10)}
              s_lshr_b32 {sT}, s2, 2
              s_lshl_b32 {sT}, {sT}, 10""")
        vm(f"buffer_load_dwordx4 {v(QT,4)}, {v(T+10)}, {sW}, {sT} offen sc1")
        st["q"] = vm(f"buffer_load_dwordx4 {v(QT+4,4)}, {v(T+10)}, {sW}, {sT} offen offset:128 sc1")
    extra(IF, flagload); extra(IF + D, flagcheck)
    def qprep():
        wait_for(st["q"])
        for c in range(2):
            for r in range(4):
                A(f"v_cndmask_b32 {v(QA+8*c+r)}, {v(QT+4*c+r)}, 0, {sM8}\n v_cndmask_b32 {v(QA+8*c+4+r)}, 0, {v(QT+4*c+r)}, {sM8}")
    item(17, qprep, minstep=IF + 2 * D + 1)
    def kitem(i):
        def f():
            u = i >> 3; d = DS + 8 * (u & 1) + 4 * ((i >> 2) & 1); o = (i >> 1) & 1; c = i & 1
            A(f"v_mfma_f32_16x16x32_bf16 {v(d,4)}, {v(QA+8*c+4*o,4)}, {a((i%64)*4)}, {v(d,4) if i & 3 else 0}")
            consumed[0] = i
        return f
    def post(u):
        def f():
            d = DS + 8 * (u & 1)
            for r in range(4): A(f"v_cndmask_b32 {v(T+r)}, {v(d+4+r)}, {v(d+r)}, {sMV}")
            A(f"""v_permlane16_swap_b32 {v(T)}, {v(T+1)}
                  v_permlane16_swap_b32 {v(T+2)}, {v(T+3)}
                  v_add_f32_dpp {v(T)}, {v(T+1)}, {v(T)} row_ror:8 row_mask:0xf bank_mask:0xf
                  v_add_f32_dpp {v(T+2)}, {v(T+3)}, {v(T+2)} row_ror:8 row_mask:0xf bank_mask:0xf
                  v_cvt_pk_bf16_f32 {v(T)}, {v(T)}, {v(T+2)}
                  v_and_b32 {v(T+1)}, {sHI}, {v(T)}
                  v_lshlrev_b32 {v(T)}, 16, {v(T)}
                  v_mul_f32 {v(T+1)}, {sSCALE}, {v(T+1)}
                  v_mul_f32 {v(T)}, {sSCALE}, {v(T)}
                  v_cvt_pk_bf16_f32 {v(T)}, {v(T)}, {v(T+1)}
                  v_lshlrev_b32 {v(S+2*u)}, 16, {v(T)}
                  v_and_b32 {v(S+2*u+1)}, {sHI}, {v(T)}
                  v_max_f32 {m01}, {m01}, {v(S+2*u)}
                  v_max_f32 {m23}, {m23}, {v(S+2*u+1)}""")
        return f
    for u in range(16):
        for i in range(8 * u, 8 * u + 8):
            item(3, kitem(i), req=i)
            if u > 0 and i == 8 * u + 3: item(20, post(u - 1))
    item(22, post(15))
    def allred2(op, x, y):
        for k in (8, 4, 2, 1):
            A(f"{op}_dpp {x}, {x}, {x} row_ror:{k} row_mask:0xf bank_mask:0xf\n {op}_dpp {y}, {y}, {y} row_ror:{k} row_mask:0xf bank_mask:0xf")
    def half2(op, x, y):
        A(f"""v_mov_b32 {v(T)}, {x}
              v_mov_b32 {v(T+1)}, {y}
              v_permlane32_swap_b32 {x}, {v(T)}
              v_permlane32_swap_b32 {y}, {v(T+1)}
              {op} {x}, {x}, {v(T)}
              {op} {y}, {y}, {v(T+1)}""")
    def maxred():
        stamp(5)
        allred2("v_max_f32", m01, m23); half2("v_max_f32", m01, m23)
        A(f"v_mul_f32 {nm01}, {sLOG}, {m01}\n v_mul_f32 {nm23}, {sLOG}, {m23}")
    item(22, maxred)
    def expi(u):
        def f():
            A(f"""v_fma_f32 {v(T)}, {v(S+2*u)}, {sLOG}, -{nm01}
                  v_fma_f32 {v(T+1)}, {v(S+2*u+1)}, {sLOG}, -{nm23}
                  v_exp_f32 {v(T)}, {v(T)}
                  v_exp_f32 {v(T+1)}, {v(T+1)}
                  v_add_f32 {l01}, {l01}, {v(T)}
                  v_add_f32 {l23}, {l23}, {v(T+1)}
                  v_cvt_pk_bf16_f32 {v(T+2)}, {v(T)}, {v(T+1)}
                  ds_write_b32 {vPw}, {v(T+2)} offset:{u*256}""")
        return f
    def rdi(u):
        def f():
            p = PP + 8 * (u & 1)
            A(f"ds_read_b128 {v(p,4)}, {vPr} offset:{u*256}\n ds_read_b128 {v(p+4,4)}, {vPr} offset:{u*256+16}")
        return f
    def vperm(j):
        def f():
            u = j >> 3; t = j & 7; p = PP + 8 * (u & 1) + t
            if t == 0: A("s_waitcnt lgkmcnt(0)")
            for uu in range(2):
                for r in range(4):
                    A(f"v_perm_b32 {v((A0,A1)[uu]+r)}, {v(p)}, {v(p)}, {v(SEL+4*uu+r)}")
        return f
    def vmm(j):
        def f():
            i = 128 + j
            A(f"v_mfma_f32_16x16x32_bf16 {v(O0,4)}, {v(A0,4)}, {a((i%64)*4)}, {v(O0,4) if j else 0}")
            A(f"v_mfma_f32_16x16x32_bf16 {v(O1,4)}, {v(A1,4)}, {a((i%64)*4)}, {v(O1,4) if j else 0}")
            consumed[0] = i
        return f
    def mlpub():
        allred2("v_add_f32", l01, l23); half2("v_add_f32", l01, l23)
        A(f"""v_and_b32 {v(T+2)}, 16, v0
              s_lshl_b32 {sT}, s2, 2
              s_add_u32 {sT}, {sT}, s3
              s_lshl_b32 {sT}, {sT}, 5
              s_add_u32 {sT}, {sT}, {ML}
              s_mov_b64 exec, 0x10001""")
        vm(f"buffer_store_dwordx4 v[112:115], {v(T+2)}, {sW}, {sT} offen sc1")
        A("s_mov_b64 exec, -1")
    GM = BIG
    GA = T + 14
    def mlload():
        A(f"""v_and_b32 {v(GA)}, 16, v0
              v_lshl_or_b32 {v(GA)}, {vN}, 5, {v(GA)}
              s_lshr_b32 {sT3}, s2, 2
              s_lshl_b32 {sT3}, {sT3}, 9
              s_add_u32 {sT3}, {sT3}, {ML}""")
        st["ml"] = vm(f"buffer_load_dwordx4 {v(GM,4)}, {v(GA)}, {sW}, {sT3} offen sc1")
    def mlfac1():
        wait_for(st["ml"])
        A.label("L_mlchk")
        A(f"""v_max3_u32 {v(T)}, {v(GM)}, {v(GM+1)}, {v(GM+2)}
              v_max_u32 {v(T)}, {v(T)}, {v(GM+3)}
              v_cmp_eq_u32 vcc, -1, {v(T)}
              s_cbranch_vccnz L_mlretry""")
        A.label("L_mlok")
        def o():
            A.label("L_mlretry"); retry_guard("L_mlok")
            A(f"buffer_load_dwordx4 {v(GM,4)}, {v(GA)}, {sW}, {sT3} offen sc1\n s_waitcnt vmcnt(0)\n s_branch L_mlchk")
        ool.append(o)
        A(f"v_mov_b32 {v(GM+4)}, {v(GM)}\n v_mov_b32 {v(GM+5)}, {v(GM+1)}")
        allred2("v_max_f32", v(GM+4), v(GM+5))
        A(f"""v_sub_f32 {v(GM)}, {v(GM)}, {v(GM+4)}
              v_sub_f32 {v(GM+1)}, {v(GM+1)}, {v(GM+5)}
              v_sub_f32 {f01}, {m01}, {v(GM+4)}
              v_sub_f32 {f23}, {m23}, {v(GM+5)}
              v_mul_f32 {v(GM)}, {sLOG}, {v(GM)}
              v_mul_f32 {v(GM+1)}, {sLOG}, {v(GM+1)}
              v_mul_f32 {f01}, {sLOG}, {f01}
              v_mul_f32 {f23}, {sLOG}, {f23}""")
    def mlfac2():
        A(f"""v_exp_f32 {v(GM)}, {v(GM)}
              v_exp_f32 {v(GM+1)}, {v(GM+1)}
              v_exp_f32 {f01}, {f01}
              v_exp_f32 {f23}, {f23}
              v_mul_f32 {v(GM)}, {v(GM)}, {v(GM+2)}
              v_mul_f32 {v(GM+1)}, {v(GM+1)}, {v(GM+3)}""")
        allred2("v_add_f32", v(GM), v(GM+1))
        A(f"""v_rcp_f32 {v(GM)}, {v(GM)}
              v_rcp_f32 {v(GM+1)}, {v(GM+1)}
              v_mul_f32 {f01}, {f01}, {v(GM)}
              v_mul_f32 {f23}, {f23}, {v(GM+1)}""")
    vT0w, vT0r, vOPs, vWOr, vYs, vHs, vW2r, vAs, vR4w, vR4r, vHl, vOs = [f"v{i}" for i in range(232, 244)]
    MK = 244
    ONE = 248
    sOPs, sOPl, sOPl2, sYs, sYl, sHs, sHl, sHl2, sAs, sAl, sAl2, sHr, sOs = [f"s{i}" for i in range(13, 26)]
    def tc1():
        A(f"""s_lshl_b32 {sT}, s3, 11
              s_add_u32 {sT}, {sT}, {T0_L}
              v_bfe_u32 {v(T)}, v0, 4, 1
              v_lshlrev_b32 {vT0w}, 9, {v(T)}
              v_lshl_or_b32 {vT0w}, {vN}, 5, {vT0w}
              v_bfe_u32 {v(T)}, v0, 5, 1
              v_lshl_or_b32 {vT0w}, {v(T)}, 4, {vT0w}
              v_add_u32 {vT0w}, {sT}, {vT0w}
              v_lshlrev_b32 {vT0r}, 3, v0
              v_lshlrev_b32 {vOPs}, 11, {vG}
              v_and_b32 {v(T)}, 12, v0
              v_lshl_or_b32 {vOPs}, {v(T)}, 2, {vOPs}
              s_and_b32 {sT}, s2, 28
              s_add_u32 {sT}, {sT}, s3
              s_lshl_b32 {sOPs}, {sT}, 13
              s_and_b32 {sT}, s2, 3
              s_lshl_b32 {sT}, {sT}, 9
              s_add_u32 {sOPs}, {sOPs}, {sT}
              s_lshr_b32 {sT}, s2, 5
              s_lshl_b32 {sT}, {sT}, 6
              s_add_u32 {sOPs}, {sOPs}, {sT}
              s_add_u32 {sOPs}, {sOPs}, {OP}
              s_lshr_b32 {sT}, s2, 3
              s_lshl_b32 {sOPl}, {sT}, 13
              s_add_u32 {sOPl}, {sOPl}, {OP}
              s_add_u32 {sOPl2}, {sOPl}, 4096""")
    def tc2():
        A(f"""v_lshrrev_b32 {v(T)}, 2, {vN}
              v_lshl_add_u32 {v(T)}, {vG}, 3, {v(T)}
              v_and_b32 {v(T+1)}, 3, v0
              v_lshlrev_b32 {vWOr}, 7, {v(T)}
              v_lshl_or_b32 {vWOr}, {v(T+1)}, 3, {vWOr}
              s_lshl_b32 {sT}, s3, 5
              s_add_u32 {sT}, {sT}, {WO_L}
              v_add_u32 {vWOr}, {sT}, {vWOr}
              v_lshlrev_b32 {vYs}, 11, {vN}
              v_lshl_or_b32 {vYs}, {vG}, 4, {vYs}
              s_and_b32 {sT}, s2, 7
              s_lshl_b32 {sT}, {sT}, 2
              s_add_u32 {sT}, {sT}, s3
              s_lshl_b32 {sYs}, {sT}, 14
              s_lshr_b32 {sT}, s2, 3
              s_lshl_b32 {sT}, {sT}, 6
              s_add_u32 {sYs}, {sYs}, {sT}
              s_add_u32 {sYs}, {sYs}, {YP}
              s_lshl_b32 {sYl}, s2, 11
              s_add_u32 {sYl}, {sYl}, {YP}
              v_lshl_add_u32 {vHs}, {v(T+1)}, 2, {vG}
              v_lshlrev_b32 {vHs}, 1, {vHs}
              s_bfe_u32 {sT}, s2, 0x30004
              s_lshl_b32 {sHs}, {sT}, 10
              s_lshr_b32 {sT}, s2, 7
              s_lshl_b32 {sT}, {sT}, 9
              s_add_u32 {sHs}, {sHs}, {sT}
              s_and_b32 {sT}, s2, 7
              s_lshl_b32 {sT}, {sT}, 6
              s_add_u32 {sHs}, {sHs}, {sT}
              s_and_b32 {sT}, s2, 8
              s_lshl_b32 {sT}, {sT}, 2
              s_add_u32 {sHs}, {sHs}, {sT}
              s_add_u32 {sHs}, {sHs}, {HB}
              s_mov_b32 {sHl}, {HB}
              s_mov_b32 {sHl2}, {HB+4096}""")
    def tc3():
        A(f"""v_lshrrev_b32 {v(T)}, 2, {vN}
              v_lshl_add_u32 {v(T)}, {vG}, 3, {v(T)}
              v_and_b32 {v(T+1)}, 1, v0
              v_bfe_u32 {v(T+2)}, v0, 1, 1
              v_lshl_add_u32 {v(T+3)}, {v(T+2)}, 8, {v(T)}
              v_lshlrev_b32 {v(T+3)}, 5, {v(T+3)}
              v_lshl_add_u32 {v(T+3)}, {v(T+1)}, 14, {v(T+3)}
              s_lshl_b32 {sT}, s3, 3
              s_add_u32 {sT}, {sT}, {W2_L}
              v_add_u32 {v(T+3)}, {sT}, {v(T+3)}
              v_lshl_add_u32 {v(T+4)}, {v(T+2)}, 5, {v(T)}
              v_lshlrev_b32 {v(T+4)}, 4, {v(T+4)}
              v_lshl_add_u32 {v(T+4)}, {v(T+1)}, 3, {v(T+4)}
              s_mul_i32 {sT}, s3, {448*16}
              s_add_u32 {sT}, {sT}, {W2_L}
              v_add_u32 {v(T+4)}, {sT}, {v(T+4)}
              s_cmp_eq_u32 {sROLE}, 2
              s_cselect_b64 vcc, -1, 0
              v_cndmask_b32 {vW2r}, {v(T+3)}, {v(T+4)}, vcc
              v_lshlrev_b32 {vAs}, 6, {vN}
              v_lshl_or_b32 {vAs}, {vG}, 1, {vAs}
              s_lshl_b32 {sAs}, {sLG}, 10
              s_lshr_b32 {sT}, {sPOS}, 1
              s_lshl_b32 {sT}, {sT}, 9
              s_add_u32 {sAs}, {sAs}, {sT}
              s_and_b32 {sT}, {sPOS}, 1
              s_lshl_b32 {sT}, {sT}, 5
              s_add_u32 {sAs}, {sAs}, {sT}
              s_lshl_b32 {sT}, s3, 3
              s_add_u32 {sAs}, {sAs}, {sT}
              s_add_u32 {sAs}, {sAs}, {ACT}
              s_mul_i32 {sAl}, s3, 7168
              s_add_u32 {sAl}, {sAl}, {ACT}
              s_add_u32 {sAl2}, {sAl}, 4096""")
    def tc4():
        A(f"""v_and_b32 {v(T)}, 16, v0
              v_lshl_or_b32 {vR4w}, {vN}, 5, {v(T)}
              s_lshl_b32 {sT}, s3, 9
              s_add_u32 {sT}, {sT}, {R4_L}
              v_add_u32 {vR4w}, {sT}, {vR4w}
              v_lshlrev_b32 {vR4r}, 2, {vL}
              v_add_u32 {vR4r}, {R4_L}, {vR4r}
              v_lshrrev_b32 {v(T)}, 3, {vL}
              v_and_b32 {v(T+1)}, 7, v0
              v_lshlrev_b32 {v(T+1)}, 1, {v(T+1)}
              v_lshl_or_b32 {vHl}, {v(T)}, 6, {v(T+1)}
              v_lshl_or_b32 {vOs}, {v(T)}, 10, {v(T+1)}
              s_lshl_b32 {sOs}, {sCT}, 4
              s_bfe_u32 {sT}, {sCT}, 0x30002
              s_lshl_b32 {sHr}, {sT}, 10
              s_lshr_b32 {sT}, {sCT}, 5
              s_lshl_b32 {sT}, {sT}, 9
              s_add_u32 {sHr}, {sHr}, {sT}
              s_and_b32 {sT}, {sCT}, 3
              s_lshl_b32 {sT}, {sT}, 4
              s_add_u32 {sHr}, {sHr}, {sT}
              s_add_u32 {sHr}, {sHr}, {HB}
              v_lshlrev_b32 {v(T)}, 2, {vG}
              v_sub_u32 {v(T)}, {vN}, {v(T)}""")
        for r in range(4):
            A(f"v_cmp_eq_u32 vcc, {r}, {v(T)}\n v_mov_b32 {v(ONE+r)}, 0x3f803f80\n v_cndmask_b32 {v(MK+r)}, 0, 1.0, vcc")
    items[2:2] = [(27, None, 0, tc1), (37, None, 0, tc2), (35, None, 0, tc3), (40, None, 0, tc4)]
    item(9, expi(0)); item(2, rdi(0)); item(9, expi(1))
    ne = 2
    for u in range(16):
        for t in range(8):
            j = 8 * u + t
            item(9, vperm(j)); item(5, vmm(j), req=128 + j)
            if t == 1 and u < 15: item(2, rdi(u + 1))
            if t in (2, 4, 6) and ne < 16:
                item(9, expi(ne)); ne += 1
                if ne == 16: item(24, mlpub)
            if 128 + j + D == IML + D + 2: item(28, mlfac1)
            if 128 + j + D == IML + D + 4: item(22, mlfac2)
    extra(IML, mlload)
    if codewarm:
        def cw():
            A(f"s_getpc_b64 s[0:1]")
            A.label("L_pc")
            A(f"s_add_u32 s0, s0, L_tail-L_pc\n s_addc_u32 s1, s1, 0")
            A(f"v_lshlrev_b32 {v(T+10)}, 4, v0")
            vm(f"global_load_dwordx4 {v(BIG+8,4)}, {v(T+10)}, s[0:1]")
        extra(IML - 8, cw)

    qi = [0]
    def run_items(step, bud):
        while qi[0] < len(items):
            cost, req, ms, fn = items[qi[0]]
            if cost > bud or step < ms: break
            if req is not None and (req >= len(kv) or kv[req] > known[0]): break
            fn(); bud -= cost; qi[0] += 1
    for i in range(D0, 256):
        wait_for(kv[i - D])
        assert consumed[0] >= i - 64, (i, consumed[0])
        issue(i)
        for fn in extras.pop(i, []): fn()
        run_items(i, budget)
    assert not extras, extras
    lag = 255 - consumed[0]
    while qi[0] < len(items):
        cost, req, ms, fn = items[qi[0]]
        if req is not None: wait_for(kv[req])
        fn(); qi[0] += 1
    A.label("L_tail")
    stamp(6)
    for r in range(4): A(f"v_mul_f32 {v(O0+r)}, {v(O0+r)}, {f01}")
    A(f"ds_write_b128 {vT0w}, {v(O0,4)}")
    for r in range(4): A(f"v_mul_f32 {v(O1+r)}, {v(O1+r)}, {f23}")
    A(f"ds_write_b128 {vT0w}, {v(O1,4)} offset:1024")
    A("s_waitcnt vmcnt(0) lgkmcnt(0)\n s_barrier")
    X = 188
    for k in range(4): A(f"ds_read_b64 {v(X+2*k,2)}, {vT0r} offset:{T0_L + k*2048}")
    A(f"s_waitcnt lgkmcnt(2)\n v_pk_add_f32 {v(X,2)}, {v(X,2)}, {v(X+2,2)}")
    A(f"s_waitcnt lgkmcnt(0)\n v_pk_add_f32 {v(X+4,2)}, {v(X+4,2)}, {v(X+6,2)}\n v_pk_add_f32 {v(X,2)}, {v(X,2)}, {v(X+4,2)}")
    A(f"v_cvt_pk_bf16_f32 {v(X+8)}, {v(X)}, {v(X+1)}")
    for k in range(1, 4): A(f"v_mov_b32_dpp {v(X+8+k)}, {v(X+8)} quad_perm:[{k},{k},{k},{k}] row_mask:0xf bank_mask:0xf")
    A("s_mov_b32 exec_lo, 0x11111111\n s_mov_b32 exec_hi, 0x11111111")
    A(f"buffer_store_dwordx4 {v(X+8,4)}, {vOPs}, {sW}, {sOPs} offen sc1")
    A("s_mov_b64 exec, -1")
    WOF = 140; W2F = 156; DM = 220; DSU = 224; DQ = 228
    def t1loads():
        for k in range(8):
            A(f"buffer_load_dwordx4 {v(X+4*k,4)}, {vN64}, {sW}, {sOPl if k < 4 else sOPl2} offen offset:{(k&3)*1024} sc1")
    t1loads()
    for ks in range(4):
        for t in range(2): A(f"ds_read_b64_tr_b16 {v(WOF+4*ks+2*t,2)}, {vWOr} offset:{ks*4096 + t*512}")
    A("s_waitcnt lgkmcnt(0)")
    A.label("L_t1")
    for k in range(8):
        A(f"s_waitcnt vmcnt({7-k})")
        A(f"v_mfma_f32_16x16x32_bf16 {v(DM,4)}, {v(WOF+4*(k>>1),4)}, {v(X+4*k,4)}, {v(DM,4) if k else 0}")
    A(f"v_cmp_u_f32 vcc, {v(DM)}, {v(DM)}\n s_cbranch_vccnz L_t1retry")
    A.label("L_t1ok")
    def o():
        A.label("L_t1retry"); retry_guard("L_t1ok"); t1loads(); A("s_branch L_t1")
    ool.append(o)
    for r in range(4): A(f"v_add_f32_dpp {v(DM+r)}, {v(DM+r)}, {v(DM+r)} row_ror:8 row_mask:0xf bank_mask:0xf")
    A(f"s_not_b64 exec, {sM8}")
    A(f"buffer_store_dwordx4 {v(DM,4)}, {vYs}, {sW}, {sYs} offen sc1")
    A("s_mov_b64 exec, -1")
    stamp(7)
    A("s_cmp_lg_u32 s3, 3\n s_cbranch_scc1 L_nor")
    A(f"v_lshlrev_b32 {vXR}, 16, {vXR}")
    A.label("L_r")
    A(f"buffer_load_dwordx4 {v(X,4)}, {vVo}, {sW}, {sYl} offen sc1\n buffer_load_dwordx4 {v(X+4,4)}, {vVo}, {sW}, {sYl} offen offset:1024 sc1")
    A(f"""s_waitcnt vmcnt(0)
          v_pk_add_f32 {v(X,2)}, {v(X,2)}, {v(X+4,2)}
          v_pk_add_f32 {v(X+2,2)}, {v(X+2,2)}, {v(X+6,2)}
          v_permlane32_swap_b32 {v(X)}, {v(X+2)}
          v_permlane32_swap_b32 {v(X+1)}, {v(X+3)}
          v_pk_add_f32 {v(X,2)}, {v(X,2)}, {v(X+2,2)}
          v_permlane16_swap_b32 {v(X)}, {v(X+1)}
          v_add_f32 {v(X)}, {v(X)}, {v(X+1)}
          v_add_f32_dpp {v(X)}, {v(X)}, {v(X)} row_ror:4 row_mask:0xf bank_mask:0xf
          v_add_f32_dpp {v(X)}, {v(X)}, {v(X)} row_ror:8 row_mask:0xf bank_mask:0xf
          v_cmp_u_f32 vcc, {v(X)}, {v(X)}
          v_cvt_pk_bf16_f32 {v(X)}, {v(X)}, {v(X)}
          s_cbranch_vccnz L_rretry""")
    A.label("L_rok")
    def o():
        A.label("L_rretry"); retry_guard("L_rok"); A("s_branch L_r")
    ool.append(o)
    A(f"""v_lshlrev_b32 {v(X)}, 16, {v(X)}
          v_add_f32 {v(X)}, {v(X)}, {vXR}
          v_cvt_pk_bf16_f32 {v(X)}, {v(X)}, {v(X)}
          s_mov_b32 exec_lo, 0x000f000f
          s_mov_b32 exec_hi, 0x000f000f
          buffer_store_short {v(X)}, {vHs}, {sW}, {sHs} offen sc1
          s_mov_b64 exec, -1""")
    A.label("L_nor")
    stamp(8)
    A(f"s_cmp_eq_u32 {sROLE}, 2\n s_cbranch_scc1 L_t4\n s_cmp_eq_u32 {sROLE}, 0\n s_cbranch_scc1 L_fin")
    for j in range(8):
        for t in range(2): A(f"ds_read_b64_tr_b16 {v(W2F+4*j+2*t,2)}, {vW2r} offset:{j*1024 + t*128}")
        if j == 3: A("s_waitcnt lgkmcnt(0)")
    def scat(d):
        A(f"""v_permlane32_swap_b32 {v(d)}, {v(d+2)}
              v_permlane32_swap_b32 {v(d+1)}, {v(d+3)}
              v_add_f32_dpp {v(d)}, {v(d+2)}, {v(d)} row_ror:8 row_mask:0xf bank_mask:0xf
              v_add_f32_dpp {v(d+1)}, {v(d+3)}, {v(d+1)} row_ror:8 row_mask:0xf bank_mask:0xf
              v_permlane16_swap_b32 {v(d)}, {v(d+1)}""")
    def t3loads():
        for k in range(8):
            A(f"buffer_load_dwordx4 {v(X+4*k,4)}, {vN64}, {sW}, {sHl if k < 4 else sHl2} offen offset:{(k&3)*1024} sc1")
    t3loads()
    A("s_waitcnt lgkmcnt(0)")
    CS = 140
    for j in range(8): A(f"v_mfma_f32_16x16x32_bf16 {v(CS,4)}, {v(W2F+4*j,4)}, {v(ONE,4)}, {v(CS,4) if j else 0}")
    scat(CS)
    A.label("L_t3")
    for k in range(8):
        A(f"s_waitcnt vmcnt({7-k})")
        A(f"v_mfma_f32_16x16x32_bf16 {v(DQ,4)}, {v(X+4*k,4)}, {v(X+4*k,4)}, {v(DQ,4) if k else 0}")
        A(f"v_mfma_f32_16x16x32_bf16 {v(DSU,4)}, {v(ONE,4)}, {v(X+4*k,4)}, {v(DSU,4) if k else 0}")
        A(f"v_mfma_f32_16x16x32_bf16 {v(DM,4)}, {v(W2F+4*k,4)}, {v(X+4*k,4)}, {v(DM,4) if k else 0}")
    z = v(T); z2 = v(T+1); mean = v(T+2); mb = v(T+3); rinv = v(T+4)
    A(f"v_mul_f32 {z}, {v(DQ)}, {v(MK)}")
    for r in range(1, 4): A(f"v_fmac_f32 {z}, {v(DQ+r)}, {v(MK+r)}")
    A(f"v_cmp_u_f32 vcc, {v(DSU)}, {v(DSU)}\n s_cbranch_vccnz L_t3retry")
    A.label("L_t3ok")
    def o():
        A.label("L_t3retry"); retry_guard("L_t3ok"); t3loads(); A("s_branch L_t3")
    ool.append(o)
    A(f"""v_add_f32_dpp {mean}, {v(DSU)}, {v(DSU)} row_ror:8 row_mask:0xf bank_mask:0xf
          v_add_f32_dpp {z}, {z}, {z} row_ror:8 row_mask:0xf bank_mask:0xf
          v_permlane32_swap_b32 {v(DM)}, {v(DM+2)}
          v_mov_b32 {z2}, {z}
          v_permlane32_swap_b32 {v(DM+1)}, {v(DM+3)}
          v_mul_f32 {mean}, 0x3b000000, {mean}
          v_permlane32_swap_b32 {z}, {z2}
          v_add_f32_dpp {v(DM)}, {v(DM+2)}, {v(DM)} row_ror:8 row_mask:0xf bank_mask:0xf
          v_add_f32 {z}, {z}, {z2}
          v_mov_b32 {z2}, {z}
          v_add_f32_dpp {v(DM+1)}, {v(DM+3)}, {v(DM+1)} row_ror:8 row_mask:0xf bank_mask:0xf
          v_mul_f32 {mb}, {mean}, {mean}
          v_permlane16_swap_b32 {z}, {z2}
          v_permlane16_swap_b32 {v(DM)}, {v(DM+1)}
          v_add_f32 {z}, {z}, {z2}
          v_mul_f32 {z}, 0x3b000000, {z}
          v_sub_f32 {z}, {z}, {mb}
          v_max_f32 {z}, 0, {z}""")
    ln_scalars(mean, z, mb, rinv)
    g_, u_ = v(DM), v(DM+1)
    A(f"""v_fma_f32 {g_}, -{mb}, {v(CS)}, {g_}
          v_fma_f32 {u_}, -{mb}, {v(CS+1)}, {u_}
          v_mul_f32 {g_}, {g_}, {rinv}
          v_mul_f32 {u_}, {u_}, {rinv}
          v_cvt_pk_bf16_f32 {u_}, {g_}, {u_}
          v_lshlrev_b32 {g_}, 16, {u_}
          v_and_b32 {u_}, {sHI}, {u_}
          v_mul_f32 {z}, {g_}, {g_}
          v_mov_b32 {z2}, 0xc0135761
          v_fmac_f32 {z2}, 0xbdd2d3e8, {z}
          v_mul_f32 {z}, {z2}, {g_}
          v_exp_f32 {z}, {z}
          v_add_f32 {z}, 1.0, {z}
          v_rcp_f32 {z}, {z}
          v_mul_f32 {z}, {z}, {g_}
          v_cvt_pk_bf16_f32 {z}, {z}, {z}
          v_lshlrev_b32 {z}, 16, {z}
          v_mul_f32 {z}, {z}, {u_}
          v_cvt_pk_bf16_f32 {z}, {z}, {z}
          s_not_b64 exec, {sM8}
          buffer_store_short {z}, {vAs}, {sW}, {sAs} offen sc1
          s_mov_b64 exec, -1
          s_branch L_fin""")
    A.label("L_t4")
    for j in range(7):
        for t in range(2): A(f"ds_read_b64_tr_b16 {v(W2F+4*j+2*t,2)}, {vW2r} offset:{j*1024 + t*64}")
    HV = X + 28
    def t4loads():
        for k in range(7):
            A(f"buffer_load_dwordx4 {v(X+4*k,4)}, {vN64}, {sW}, {sAl if k < 4 else sAl2} offen offset:{(k&3)*1024} sc1")
        A(f"buffer_load_ushort {v(HV)}, {vHl}, {sW}, {sHr} offen sc1")
    t4loads()
    A("s_waitcnt lgkmcnt(0)")
    A.label("L_t4l")
    for k in range(7):
        A(f"s_waitcnt vmcnt({7-k})")
        A(f"v_mfma_f32_16x16x32_bf16 {v(DM,4)}, {v(W2F+4*k,4)}, {v(X+4*k,4)}, {v(DM,4) if k else 0}")
    A(f"s_waitcnt vmcnt(0)\n v_lshlrev_b32 {v(HV)}, 16, {v(HV)}")
    A(f"v_cmp_u_f32 vcc, {v(DM)}, {v(HV)}\n s_cbranch_vccnz L_t4retry")
    A.label("L_t4ok")
    def o():
        A.label("L_t4retry"); retry_guard("L_t4ok"); t4loads(); A("s_branch L_t4l")
    ool.append(o)
    smov64("exec", mask(lambda l: ((l >> 3) & 1) == ((l >> 5) & 1)))
    A(f"ds_write_b128 {vR4w}, {v(DM,4)}\n s_mov_b64 exec, -1\n s_waitcnt lgkmcnt(0)\n s_barrier")
    A("s_cmp_lg_u32 s3, 0\n s_cbranch_scc1 L_fin")
    for k in range(4): A(f"ds_read2st64_b32 {v(X+2*k,2)}, {vR4r} offset0:{2*k} offset1:{2*k+1}")
    A(f"s_waitcnt lgkmcnt(2)\n v_pk_add_f32 {v(X,2)}, {v(X,2)}, {v(X+2,2)}")
    A(f"s_waitcnt lgkmcnt(0)\n v_pk_add_f32 {v(X+4,2)}, {v(X+4,2)}, {v(X+6,2)}\n v_pk_add_f32 {v(X,2)}, {v(X,2)}, {v(X+4,2)}")
    A(f"""v_add_f32 {v(X)}, {v(X)}, {v(X+1)}
          v_cvt_pk_bf16_f32 {v(X)}, {v(X)}, {v(X)}
          v_lshlrev_b32 {v(X)}, 16, {v(X)}
          v_add_f32 {v(X)}, {v(X)}, {v(HV)}
          v_cvt_pk_bf16_f32 {v(X)}, {v(X)}, {v(X)}
          buffer_store_short {v(X)}, {vOs}, {sOut}, {sOs} offen""")
    A.label("L_fin")
    if stamps:
        A("s_waitcnt vmcnt(0)")
        stamp(9)
        A("s_getreg_b32 s0, hwreg(HW_REG_XCC_ID)\n s_waitcnt lgkmcnt(0)\n v_mov_b32 v8, 0")
        for k in range(10): A(f"v_writelane_b32 v8, s{80+2*k}, {k}")
        A(f"v_writelane_b32 v8, s0, 10\n v_writelane_b32 v8, {sCNT}, 11\n v_writelane_b32 v8, {sROLE}, 12")
        A(f"s_lshl_b32 s0, s2, 2\n s_add_u32 s0, s0, s3\n s_lshl_b32 s0, s0, 8\n s_add_u32 s0, s0, 0x10000000\n s_add_u32 s26, s26, s0\n s_addc_u32 s27, s27, 0")
        A(f"v_lshlrev_b32 v9, 2, {vL}\n global_store_dword v9, v8, s[26:27]")
    A.label("L_end")
    A("s_endpgm")
    for o in ool: o()
    A.raw(".rept 1024\n s_endpgm\n.endr" if codewarm else "")
    A.raw('.section .rodata,"a"\n.p2align 6')
    A.raw(f".amdhsa_kernel {NAME}_kernel")
    A.raw("""  .amdhsa_next_free_vgpr 512
  .amdhsa_next_free_sgpr 102
  .amdhsa_accum_offset 256
  .amdhsa_group_segment_fixed_size 0
  .amdhsa_kernarg_size 96
  .amdhsa_user_sgpr_count 2
  .amdhsa_user_sgpr_kernarg_segment_ptr 1
  .amdhsa_system_sgpr_workgroup_id_x 1
  .amdhsa_float_denorm_mode_32 3
.end_amdhsa_kernel""")
    return A.text()

if __name__ == "__main__":
    if len(sys.argv) > 1:
        cfgs = json.loads(sys.argv[1])
        for k, c in cfgs.items(): open(f"k_{k}.s", "w").write(gen(**c))
        print(" ".join(f"work/k_{k}.s" for k in cfgs))
    else:
        open(f"cdna_kernels/{NAME}.s", "w").write(gen())
```

```python
import re
TRANS = ("v_exp_f32", "v_log_f32", "v_rcp_f32", "v_rsq_f32", "v_sqrt_f32", "v_sin_f32", "v_cos_f32")
def regs(tok):
    tok = tok.strip()
    tok = tok.lstrip("-")
    m = re.fullmatch(r"abs\((.*)\)", tok)
    if m: tok = m.group(1)
    m = re.fullmatch(r"\|(.*)\|", tok)
    if m: tok = m.group(1)
    m = re.fullmatch(r"([vas])\[(\d+):(\d+)\]", tok)
    if m: return {f"{m.group(1)}{i}" for i in range(int(m.group(2)), int(m.group(3)) + 1)}
    if re.fullmatch(r"[vas]\d+", tok): return {tok}
    if tok in ("vcc", "exec", "m0"): return {tok}
    if tok in ("vcc_lo", "vcc_hi"): return {"vcc"}
    if tok in ("exec_lo", "exec_hi"): return {"exec"}
    return set()
class Ins:
    def __init__(s, text):
        s.text = text
        t = text.split(";")[0].strip()
        p = t.split(None, 1)
        s.op = p[0]; rest = p[1] if len(p) > 1 else ""
        ops = [o.strip() for o in rest.split(",")]
        m = re.search(r"\s(quad_perm:|row_|offen|offset|sc0|sc1|nt|lds|op_sel|glc|dst_sel|src0_sel|bitop3|neg_lo|neg_hi|clamp|off\b)", " " + rest)
        body = rest if not m else (" " + rest)[:m.start()]
        s.mods = "" if not m else (" " + rest)[m.start():]
        ops = [o.strip() for o in body.split(",") if o.strip()]
        s.ops = ops
        R = [regs(o) for o in ops]
        U = lambda l: set().union(*l) if l else set()
        op = s.op
        s.cls = "other"; s.w = set(); s.r = set(); s.rA = set(); s.rC = set(); s.dpp = False; s.states = 1
        if op == "s_nop": s.states = int(ops[0]) + 1; s.cls = "nop"
        elif op.startswith("v_mfma"):
            s.cls = "mfma"; s.w = R[0]; s.rA = R[1] | R[2]; s.rC = R[3]; s.r = s.rA | s.rC
            s.passes = 8 if ("32x32" in op or "16x16x4_f32" in op) else 4
            s.sgemm = op.endswith("_f32") and ("x4_f32" in op or "x2_f32" in op)
        elif op.startswith("v_"):
            s.cls = "valu"; s.dpp = ("quad_perm" in s.mods or "row_" in s.mods)
            s.trans = any(op.startswith(x) for x in TRANS)
            if "permlane" in op: s.w = R[0] | R[1]; s.r = set(s.w); s.cls2 = "perml"
            else:
                s.w = R[0]; s.r = U(R[1:])
                if op.startswith(("v_fmac", "v_dot2c", "v_writelane")) or s.dpp: s.r |= R[0]
                if op.startswith(("v_add_co", "v_addc_co", "v_sub_co")): s.w = R[0] | R[1]; s.r = U(R[2:])
        elif op.startswith(("buffer_load", "global_load")):
            s.cls = "vmem"
            if " lds" in s.mods or "_lds_" in op: s.r = U(R) | {"m0"}; s.ldsdma = True
            else: s.w = R[0]; s.r = U(R[1:])
        elif op.startswith(("buffer_store", "global_store", "buffer_atomic", "global_atomic")):
            s.cls = "vmem"; s.r = U(R); s.store = True
            s.wide = op.endswith(("x3", "x4"))
            s.data = R[0] if op.startswith("buffer") else R[1]
        elif op.startswith(("ds_read", "ds_bpermute", "ds_swizzle", "ds_add_rtn")):
            s.cls = "ds"; s.w = R[0]; s.r = U(R[1:])
        elif op.startswith("ds_"):
            s.cls = "ds"; s.r = U(R)
        elif op.startswith("s_"):
            s.cls = "salu"
            if ops and not op.startswith(("s_cmp", "s_cbranch", "s_branch", "s_waitcnt", "s_barrier", "s_setprio", "s_endpgm", "s_sleep")):
                s.w = R[0]; s.r = U(R[1:])
def need(p, c):
    n = 0
    isv = lambda S: {x for x in S if x[0] in "va" and x != "vcc"}
    iss = lambda S: {x for x in S if x[0] == "s" or x == "vcc"}
    if p.cls == "valu":
        if c.cls == "mfma" and isv(p.w) & c.r: n = max(n, 2)
        if c.cls == "valu":
            if (c.dpp or "permlane" in c.op) and isv(p.w) & c.r: n = max(n, 2)
            if p.trans and not c.trans and p.w & c.r: n = max(n, 1)
            if p.trans and c.trans and p.w & c.r: n = max(n, 1)
            if iss(p.w) & c.r: n = max(n, 4 if c.op.startswith(("v_readlane", "v_writelane")) else 2)
            if c.op.startswith(("v_readfirstlane", "v_readlane")) and isv(p.w) & c.r: n = max(n, 1)
            if "exec" in p.w: n = max(n, 5)
            if ("sdwa" in p.op or "op_sel" in p.mods) and p.w & (c.r | c.w): n = max(n, 1)
        if c.cls == "vmem" and iss(p.w) & c.r: n = max(n, 5)
        if p.trans and c.cls in ("vmem", "ds", "mfma") and p.w & c.r: n = max(n, 2)
    if p.cls == "mfma":
        big = {4: 8, 8: 12}[p.passes]; ov = {4: 6, 8: 10}[p.passes]
        if c.cls == "mfma":
            if p.w & c.rA: n = max(n, big)
            if p.w & c.rC and not (p.w == c.rC and p.op == c.op): n = max(n, ov)
            if p.w & c.w and not (p.w == c.rC and p.op == c.op): n = max(n, big)
        elif c.cls in ("valu", "vmem", "ds"):
            if p.w & (c.r | c.w): n = max(n, big)
            if c.cls == "valu" and p.rC & c.w: n = max(n, {4: 3, 8: 7}[p.passes])
    if p.cls == "vmem" and getattr(p, "store", False) and p.wide:
        if p.data & c.w: n = max(n, 2)
    if p.cls == "salu" and "m0" in p.w and getattr(c, "ldsdma", False): n = max(n, 1)
    return n
class Asm:
    def __init__(s): s.lines = []; s.hist = []; s.count = 0; s.fwd = {}
    def raw(s, t): s.lines.append(t)
    def label(s, l):
        s.lines.append(l + ":")
        if l in s.fwd:
            snap, cnt = s.fwd.pop(l)
            nskip = s.count - cnt
            sk = s.hist[-nskip:] if nskip else []
            import copy
            z = []
            for p in sk:
                q = copy.copy(p); q.states = 0; z.append(q)
            s.hist = snap + z
    def __call__(s, text):
        for t in text.split("\n"):
            t = t.strip()
            if not t: continue
            if t.endswith(":"):
                s.label(t[:-1]); continue
            if t.startswith(";") or t.startswith("."):
                s.lines.append(t); continue
            c = Ins(t)
            dist = 0; pad = 0
            for p in reversed(s.hist):
                k = need(p, c)
                if k > dist: pad = max(pad, k - dist)
                dist += p.states
                if dist >= 20: break
            if pad:
                n = Ins(f"s_nop {pad-1}"); s.lines.append("    " + n.text); s.hist.append(n); s.count += 1
            s.lines.append("    " + t); s.hist.append(c); s.count += 1
            s.hist = s.hist[-60:]
            if c.op.startswith(("s_cbranch", "s_branch")) and (c.ops[0] + ":") not in s.lines and c.ops[0] not in s.fwd:
                s.fwd[c.ops[0]] = (list(s.hist), s.count)
    def text(s): return "\n".join(s.lines) + "\n"
```

```python
import sys, json
sys.path.insert(0, "work")
from asmlib import Asm
NAME = "sequential_preLN__gqa_block_cached__geglu_ffn__decode"

Q_OFF = 0x0
EPOCH = 0x40000
CLR = 0x100000
YP = CLR
OP = CLR + 0x80000
ML = CLR + 0x100000
HB = CLR + 0x108000
PD = CLR + 0x10C000
WS_END = PD + 64 * 7168
XL = 0x50000
PG = 0x60000
XN_L = 0; XN_S = 1056
P_L = 8448
WO_L = P_L + 4 * 4608
GU_L = WO_L + 16384
WD_L = GU_L + 65536
WQ_L = GU_L
LDS_SZ = WD_L + 32768
T0_L = 0; O_L = P_L; Z_L = P_L + 4096; R_L = 0
H_L = 0; ST_L = P_L + 8192; A_L = P_L + 8192 + 768

def mask(f):
    v = 0
    for l in range(64):
        if f(l): v |= 1 << l
    return v

def gen(D=6, D0=8, IQ=52, budget=44, stamps=False, wnt="", IML=214, cap=200000, kvflag="nt",
        sleep=0, IEND=999, DEND=8, IWO=100, sdiag=False, warm0=False, warm1=False, abl="", kpat="p8", dbg=False, tdiag=False, bal="def",
        touch=False, osc="", vflag=None, ES=0, WOS=4, perm=True, VS=2, V0=1, rot=0, pre=True, NS_=(1, 1, 1, 1), tau=(0, 0, 0, 0), gate=0, adum=True, EA=1, kpair=0, vpair=0, GW=8, GE=3, rsh=0, mp=(12, 13, 14, 16), padto=0, padwg=None, ldsx=0, mpoll=(0, 0, 0, 0), otouch=None, loc=(1, 1, 1), XJ=1, stouch="", PB=8, pert=None, IS=0, DST=8):
    A = Asm()
    if bal == "def": bal = None if dbg else dict(lo=5, first=46, per=16, last=241, th=5, off=270, lag=8, one=1, aoff=1, sep=16)
    hdr = [l for l in open("cdna_kernels/" + NAME + ".s.ref").read().split("\n") if l.startswith(";") and "@launch" not in l]
    for l in hdr: A.raw(l)
    A.raw(f"; @launch grid=(256,1,1) block=(256,1,1) lds={LDS_SZ + ldsx}")
    for l in """
; One persistent launch, 256 workgroups x 4 waves (one workgroup per CU, all co-resident).
;   ids: x = wg&7 = kv head, b = wg>>5, split = (wg>>3)&3; the 4 workgroups of a (b, kv head) share its 8192 keys.
;   class A (one per group) first computes LN(x) @ wq for 64 columns and takes 26 of the 128 key rows, the others 34.
;   K phase: 8-key x 128-byte loads straight into an AGPR ring, QK^T by MFMA, scores rounded like the reference.
;   V phase: exact per-wave max, P in LDS, PV by MFMA with a diagonal A operand; (max, sum) exchanged per group.
;   tail: o partials -> o @ wo (per head, 64 columns) -> sum over heads + x -> LN folded into gate/up -> gelu*up
;         -> @ w_down partials -> final sum + h.  Every hand-off word carries a tag (previous tag in d_ws + 1) that is
;         stripped again by the reader; plain stores are used only when all readers reported the same XCC id.
;   loads in flight per wave are 6, or 5 while the workgroup is ahead of most of its sampled peers.""".strip().split("\n"): A.raw(l)
    A.raw('.amdgcn_target "amdgcn-amd-amdhsa--gfx950"')
    A.raw(".text"); A.raw(f".globl {NAME}_kernel"); A.raw(".p2align 8"); A.raw(f".type {NAME}_kernel,@function")
    A.label(f"{NAME}_kernel")
    NK = 136; NS = 2 * NK; NO = 32
    if dbg: stamps = True
    sK, sV, sW, sX, sQ, sO, sG, sU, sD, sOut, sDbg = [f"s[{b}:{b+3}]" for b in range(28, 72, 4)]
    sKV = "s72"; sROLE = "s73"; sCNT = "s74"; sLOG = "s75"; sMV = "s[76:77]"; sM8 = "s[78:79]"
    sSCALE = "s4"; sHI = "s5"; sTAG = "s6"; sT = "s7"; sT2 = "s8"; sT3 = "s9"; sGI = "s10"; sHEAD = "s11"; sCS = "s12"
    sOPs, sOPl, sOPl2, sYs, sA, sB, sC, sDd = [f"s{i}" for i in range(13, 21)]
    sYs = "s23"
    sOPT = "s[24:25]"; sINC = "s20"; sXV = "s95" if not stamps else "s93"; sLOC = "s96" if not stamps else "s83"; sLC = "s1"; sCLS = "s100" if not stamps else "s99"; sE = "s101" if not stamps else "s97"; sE0 = "s98" if not stamps else "s95"; sWV = "s99" if not stamps else "s81"
    sWo, sWm, sW2o, sW2m = "s44", "s45", "s46", "s47"
    vL = "v1"; vKa = "v2"; vKb = "v3"; vVo = "v4"; vPw = "v5"; vPr = "v6"
    SEL = 8; QA = 16; S = 32; vNINF = "v252"; DS = 68; PP = 156; A0 = 100; A1 = 104; O0 = 108; O1 = 112
    m01, m23, l01, l23, nm01, nm23, f01, f23 = [f"v{i}" for i in range(116, 124)]
    vXR = "v124"; T = 125
    vN = "v141"; vG = "v142"
    BIG = 156; WOF = 144
    vT0w, vT0r, vL4, vL8, vOw, vBl, vBh, vYs = [f"v{i}" for i in range(232, 240)]
    vTAG = "v7"; vWOr = "v143"; sFF = "s15"
    vWa, vWb, vWc = "v240", "v241", "v242"; vWa2, vWb2, vWc2, vWOr2 = "v244", "v245", "v246", "v67"; vTB, vEM = "v250", "v251"
    v = lambda i, n=1: f"v{i}" if n == 1 else f"v[{i}:{i+n-1}]"
    a = lambda i, n=4: f"a[{i}:{i+n-1}]"
    def stamp(k, diag=False):
        if diag == "t":
            if not tdiag: return
        elif tdiag and k in (1, 2, 3, 4, 5, 8): return
        elif sdiag and k in (5, 6, 7, 8) and not diag: return
        elif diag and not sdiag: return
        if stamps: A(f"s_memrealtime s[{80+2*k}:{81+2*k}]")
    def smov64(dst, val):
        lo = int(dst[2:dst.index(":")])
        A(f"s_mov_b32 s{lo}, 0x{val & 0xffffffff:x}\n s_mov_b32 s{lo+1}, 0x{val >> 32:x}")
    ops = []; known = [-1]
    def vm(text, mandatory=True):
        A(text); ops.append(mandatory); return len(ops) - 1
    def after(idx, r1=False): return sum(1 for m in ops[idx+1:] if m is True or (r1 and m == 'r1'))
    def wait_for(idx):
        if idx <= known[0]: return
        n = after(idx); assert n <= 63
        A(f"s_waitcnt vmcnt({n})"); known[0] = idx
    ool = []
    def mfma(d, x, y, c): A(f"v_mfma_f32_16x16x32_bf16 {d}, {x}, {y}, {c}")
    DPPM = "row_mask:0xf bank_mask:0xf"

    A("s_cmp_ge_u32 s2, 256\n s_cbranch_scc1 L_end")
    A("s_load_dwordx8 s[4:11], s[0:1], 0\n s_load_dwordx8 s[12:19], s[0:1], 32\n s_load_dwordx8 s[20:27], s[0:1], 64")
    if stamps:
        for k in range(1, 11): A(f"s_mov_b32 s{80+2*k}, 0")
        A("s_mov_b32 s101, 0")
    stamp(0)
    if stamps: A("s_waitcnt lgkmcnt(0)")
    if padto: A("s_memrealtime s[80:81]")
    A(f"""v_lshrrev_b32 {v(T)}, 6, v0
          v_and_b32 {vL}, 63, v0
          v_readfirstlane_b32 s3, {v(T)}
          v_lshrrev_b32 {vG}, 4, {vL}
          v_and_b32 {v(T+3)}, 14, v0
          v_lshlrev_b32 {vKa}, 7, {v(T+3)}
          v_lshl_or_b32 {vKa}, {vG}, 4, {vKa}
          v_and_b32 {v(T+4)}, 1, v0
          v_lshl_or_b32 {vKa}, {v(T+4)}, 6, {vKa}
          {"v_lshlrev_b32 " + vKa + ", 4, " + vL if kpat == "c" else ""}
          v_xor_b32 {vKb}, 64, {vKa}
          s_mov_b32 s31, 0x20000
          s_and_b32 {sWV}, s2, 7
          s_lshl_b32 {sWV}, {sWV}, 2
          s_bfe_u32 s75, s2, 0x20003
          s_or_b32 {sWV}, {sWV}, s75
          s_and_b32 s74, s2, 0xe0
          s_or_b32 {sWV}, {sWV}, s74
          s_lshr_b32 s74, s2, 5
          s_add_u32 s74, s75, s74
          s_and_b32 {sCLS}, s74, 3
          s_add_u32 s74, s74, 3
          s_and_b32 s74, s74, 3
          s_mov_b32 {sE0}, s74
          s_lshl_b32 {sE}, s74, {mp[2]}
          s_and_b32 s73, s3, 1
          s_lshl_b32 s73, s73, {mp[0]}
          s_lshr_b32 s74, s3, 1
          s_lshl_b32 s74, s74, {mp[1]}
          s_add_u32 s73, s73, s74
          s_lshr_b32 s75, {sWV}, 2
          s_lshl_b32 s75, s75, 21
          s_sub_u32 s30, 0x200000, s73
          s_add_u32 s73, s73, s75
          s_waitcnt lgkmcnt(0)
          s_add_u32 s28, s6, s73
          s_addc_u32 s29, s7, 0
          s_and_b32 s29, s29, 0xffff
          s_load_dword {sTAG}, s[26:27], {EPOCH}""")
    stamp(5, True)
    kv = []; st = {}; uid = [0]
    def lstore(text, on, f=A):
        if not on: return f(text + " sc1")
        uid[0] += 1; u = uid[0]
        A(f"s_cmp_eq_u32 {sLOC}, 0\n s_cbranch_scc1 L_ls{u}")
        r = f(text)
        A.label(f"L_le{u}")
        def o():
            A.label(f"L_ls{u}"); A(text + " sc1"); A(f"s_branch L_le{u}")
        ool.append(o)
        return r
    def xl_pub(f):
        uid[0] += 1; u = uid[0]
        A(f"""s_getreg_b32 {sXV}, hwreg(HW_REG_XCC_ID, 0, 3)
              s_lshl_b32 {sT}, {sTAG}, 3
              s_or_b32 {sXV}, {sXV}, {sT}
              s_cmp_lg_u32 s3, 1
              s_cbranch_scc1 L_xp{u}
              s_and_b32 {sT}, s2, 7
              s_lshl_b32 {sT}, {sT}, 7
              s_lshr_b32 s0, s2, 3
              s_lshl_b32 s0, s0, 2
              s_add_u32 {sT}, {sT}, s0
              s_add_u32 {sT}, {sT}, {XL}
              v_mov_b32 {v(T+10)}, {sXV}
              v_mov_b32 {v(T+11)}, 0
              s_mov_b64 exec, 1""")
        f(f"buffer_store_dword {v(T+10)}, {v(T+11)}, {sW}, {sT} offen")
        A("s_mov_b64 exec, -1")
        A.label(f"L_xp{u}")
    def xl_load(f, dst):
        A(f"""v_and_b32 {v(T+10)}, 31, v0
              v_lshlrev_b32 {v(T+10)}, 2, {v(T+10)}
              s_and_b32 {sT2}, s2, 7
              s_lshl_b32 {sT2}, {sT2}, 7
              s_add_u32 {sT2}, {sT2}, {XL}""")
        return f(f"buffer_load_dword {dst}, {v(T+10)}, {sW}, {sT2} offen sc1")
    def xl_eval(src):
        A(f"v_cmp_ne_u32 s[0:1], {sXV}, {src}\n s_cmp_eq_u64 s[0:1], 0\n s_cselect_b32 {sLOC}, 1, 0")
    def tagfin(f):
        A(f"s_waitcnt lgkmcnt(0)\n s_add_u32 {sTAG}, {sTAG}, 1\n v_mov_b32 {vTAG}, {sTAG}")
        xl_pub(f)
    slot = lambda i: (i % 64) * 4 if i < NK else ((i - NK + 8) % 32) * 4
    def prevocc(i):
        for j in range(i - 1, -1, -1):
            if slot(j) == slot(i): return j
        return -1
    rowoff = lambda p: (3 * p if p < 8 else 24 + 4 * (p - 8)) * 16384
    vorder = list(range(8, 34))
    vorder += list(range(8))
    tileof = lambda i: i >> 2 if i < NK else vorder[(i - NK) >> 2]
    isopt = lambda i: tileof(i) < 8
    def issue(i):
        p = tileof(i)
        dst = a(slot(i))
        if (i & 3) == 0:
            if p >= 8:
                q = p - 8 + 6
                A(f"s_add_u32 {sKV}, {sE}, {((q & 1) << mp[3]) + ((q >> 1) << 17)}")
            else:
                A(f"""s_add_u32 s0, {sE0}, {3 * p}
                      s_and_b32 {sKV}, s0, 3
                      s_lshl_b32 {sKV}, {sKV}, {mp[2]}
                      s_bfe_u32 s1, s0, 0x10002
                      s_lshl_b32 s1, s1, {mp[3]}
                      s_add_u32 {sKV}, {sKV}, s1
                      s_lshr_b32 s1, s0, 3
                      s_lshl_b32 s1, s1, 17
                      s_add_u32 {sKV}, {sKV}, s1""")
        if i < NK:
            va = vKb if p & 1 else vKa
            kv.append(vm(f"buffer_load_dwordx4 {dst}, {va}, {sK}, {sKV} offen offset:{(i&3)*1024 if kpat == 'c' else ((i>>1)&1)*2048 + (i&1)*128} {kvflag}"))
        else:
            kv.append(vm(f"buffer_load_dwordx4 {dst}, {vVo}, {sV}, {sKV} offen offset:{(i&3)*1024} {kvflag if vflag is None else vflag}"))
    A(f"s_cmp_eq_u32 {sCLS}, 0\n s_cbranch_scc1 L_A")
    for i in range(D0): issue(i)
    stamp(6, True)
    A("s_branch L_B")
    A.label("L_A")
    A(f"""s_mov_b32 s40, s4
          s_and_b32 s41, s5, 0xffff
          s_mov_b32 s42, 8192
          s_mov_b32 s43, 0x20000
          v_lshrrev_b32 {v(T+2)}, 5, v0
          v_and_b32 {v(T+4)}, 31, v0
          v_lshlrev_b32 {v(T+4)}, 4, {v(T+4)}
          v_lshl_or_b32 {v(T)}, {v(T+2)}, 10, {v(T+4)}
          buffer_load_dwordx4 {v(BIG,4)}, {v(T)}, {sX}, 0 offen
          buffer_load_dwordx4 {v(BIG+4,4)}, {v(T)}, {sX}, 0 offen offset:512
          s_mov_b32 s44, s10
          s_and_b32 s45, s11, 0xffff
          s_mov_b32 s46, {0 if 'q' in abl else 512*4096*2}
          s_mov_b32 s47, 0x20000
          v_and_b32 {v(T+3)}, 7, v0
          v_lshrrev_b32 {v(T+1)}, 3, {vL}
          v_and_b32 {v(T+5)}, 2, {v(T+1)}
          v_xor_b32 {v(T+3)}, {v(T+3)}, {v(T+5)}
          v_lshlrev_b32 {v(T+1)}, 13, {v(T+1)}
          v_lshl_or_b32 {v(T+1)}, {v(T+3)}, 4, {v(T+1)}
          v_xor_b32 {v(T+3)}, 64, {v(T+1)}
          s_and_b32 s74, s2, 7
          s_lshl_b32 s74, s74, 3
          s_lshr_b32 s75, s2, 5
          s_add_u32 {sLC}, s74, s75
          {"s_xor_b32 " + sLC + ", " + sLC + ", 4" if perm else ""}
          s_lshl_b32 s74, {sLC}, 7
          s_lshl_b32 s75, s3, 20
          s_add_u32 s74, s74, s75
          s_lshl_b32 s75, s3, 14
          s_add_u32 m0, s75, {WQ_L}""")
    for j in range(16):
        A(f"buffer_load_dwordx4 {v(T+3) if j & 1 else v(T+1)}, {sQ}, s74 offen nt lds")
        if j < 15: A(f"s_add_u32 s74, s74, {8*8192}\n s_add_u32 m0, m0, 1024")
        if j == XJ:
            A(f"s_mov_b32 s36, s26\n s_and_b32 s37, s27, 0xffff\n s_mov_b32 s38, {WS_END}\n s_mov_b32 s39, 0x20000")
            tagfin(A)
    stamp(7, True)
    def setupA():
        A(f"v_lshlrev_b32 {vVo}, 4, {vL}\n v_and_b32 {vN}, 15, v0")
        A("s_add_u32 s32, s8, s73\n s_addc_u32 s33, s9, 0\n s_and_b32 s33, s33, 0xffff\n s_mov_b32 s34, s30")
        for b in (32, 36, 40, 48, 52, 56, 60) + ((68,) if dbg else ()): A(f"s_mov_b32 s{b+3}, 0x20000")
        A(f"s_mov_b32 s40, s4\n s_and_b32 s41, s5, 0xffff\n s_mov_b32 s42, 8192")
        A(f"s_mov_b32 s36, s26\n s_and_b32 s37, s27, 0xffff\n s_mov_b32 s38, {WS_END}\n s_mov_b32 {sHI}, 0xffff0000")
        smov64(sM8, mask(lambda l: (l >> 3) & 1))
        A(f"""s_lshr_b32 {sT2}, s2, 5
              s_cmp_lt_u32 {sT2}, 7
              s_cselect_b32 {sROLE}, 1, 0
              s_cmp_eq_u32 {sCLS}, 3
              s_cselect_b32 {sROLE}, 0, {sROLE}
              s_cmp_eq_u32 {sCLS}, 2
              s_cselect_b32 {sROLE}, 2, {sROLE}
              s_cmp_eq_u32 {sCLS}, 1
              s_cselect_b32 {sROLE}, 3, {sROLE}""")
    sMODE = "s21"; PGA = "v243"
    def pgsetup():
        if bal: A(f"s_mov_b32 {sMODE}, 0\n v_mov_b32 {PGA}, {P_L + 4352}\n v_mov_b32 {v(T)}, 0\n ds_write_b32 {PGA}, {v(T)}")
    def setup0(isB=True):
        for (b, p, sz) in ((48, 12, 0 if 'o' in abl else 4096*512*2), (52, 16, 0 if 'g' in abl else 512*1792*2), (56, 18, 0 if 'g' in abl else 512*1792*2), (60, 20, 0 if 'd' in abl else 1792*512*2)) + (((68, 24, 256),) if dbg else ()):
            A(f"s_mov_b32 s{b}, s{p}\n s_and_b32 s{b+1}, s{p+1}, 0xffff\n s_mov_b32 s{b+2}, {sz}")
        A(f"""s_mov_b64 s[18:19], s[22:23]
              s_mov_b32 {sLOG}, 0x3fb8aa3b
              s_mov_b32 {sSCALE}, 0x3db504f3
              s_mov_b32 {sCNT}, 0
              s_mov_b32 {sFF}, 0xff
              s_bfe_u32 {sCS}, s2, 0x30003
              s_and_b32 {sT}, s2, 7
              s_mul_i32 {sGI}, {sT}, 7
              s_add_u32 {sGI}, {sGI}, {sT2}
              s_lshl_b32 {sHEAD}, {sT}, 2
              s_lshr_b32 {sT}, s2, 6
              s_add_u32 {sHEAD}, {sHEAD}, {sT}""")
        smov64(sMV, mask(lambda l: (l & 1) == ((l >> 4) & 1)))
        A(f"""s_cmp_eq_u32 {sROLE}, 1
              s_cselect_b32 s54, s54, 0
              s_cselect_b32 s58, s58, 0
              s_cselect_b32 s62, s62, 0
              s_cmp_eq_u32 {sCLS}, 0
              s_cselect_b32 s24, -1, 0
              s_mov_b32 s25, s24""")
        if touch and isB:
            A(f"s_cmp_lg_u32 s3, 1\n s_cbranch_scc1 L_nt0\n s_mov_b64 exec, 1\n s_mov_b32 {sT}, 0x100000\n s_mov_b32 {sT2}, 0x200000\n s_lshl_b32 {sT3}, {sHEAD}, 17")
            for (srd, so) in ((sV, "0"), (sOut, "0"), (sW, sT), (sW, sT2), (sO, sT3), (sG, "0"), (sU, "0"), (sD, "0")):
                vm(f"buffer_load_dword v231, {vVo}, {srd}, {so} offen nt", False)
            A("s_mov_b64 exec, -1")
            A.label("L_nt0")
        if warm0 and isB:
            A("s_getpc_b64 s[0:1]")
            A(f"s_lshl_b32 {sT}, {sCS}, 2\n s_add_u32 {sT}, {sT}, s3\n s_lshl_b32 {sT}, {sT}, 10\n s_add_u32 s0, s0, {sT}\n s_addc_u32 s1, s1, 0")
            A(f"s_cmp_ge_u32 s2, 128\n s_cbranch_scc1 L_nw0")
            vm(f"global_load_dwordx4 {v(228,4)}, {vVo}, s[0:1]", False)
            A.label("L_nw0")
    def wsetup():
        A(f"""v_lshrrev_b32 {vWa}, 3, {vL}
              v_and_b32 {v(T+1)}, 2, {vWa}
              v_lshlrev_b32 {vWa}, 10, {vWa}
              v_and_b32 {v(T)}, 7, v0
              v_xor_b32 {v(T)}, {v(T)}, {v(T+1)}
              v_lshl_or_b32 {vWa}, {v(T)}, 4, {vWa}
              v_xor_b32 {vWa2}, 64, {vWa}
              v_lshrrev_b32 {v(T)}, 2, {vL}
              v_mul_u32_u24 {vWb}, 3584, {v(T)}
              v_and_b32 {v(T+1)}, 3, v0
              v_and_b32 {v(T)}, 2, {vG}
              v_xor_b32 {v(T+1)}, {v(T+1)}, {v(T)}
              v_lshl_add_u32 {vWb}, {v(T+1)}, 4, {vWb}
              v_xor_b32 {vWb2}, 16, {vWb}
              v_lshlrev_b32 {vWc}, 10, {vG}
              v_lshlrev_b32 {v(T)}, 1, {vG}
              v_xor_b32 {v(T)}, {v(T)}, {vN}
              v_lshl_or_b32 {vWc}, {v(T)}, 4, {vWc}
              v_xor_b32 {vWc2}, 128, {vWc}
              s_mul_i32 {sW2o}, s3, {128*3584}
              s_lshl_b32 {sT2}, {sGI}, 6
              s_add_u32 {sW2o}, {sW2o}, {sT2}
              s_lshl_b32 {sW2m}, s3, 14
              s_add_u32 {sW2m}, {sW2m}, {GU_L}
              s_lshl_b32 {sWo}, {sHEAD}, 17
              s_lshl_b32 {sT2}, {sCS}, 7
              s_add_u32 {sWo}, {sWo}, {sT2}
              s_lshl_b32 {sT2}, s3, 15
              s_add_u32 {sWo}, {sWo}, {sT2}
              s_lshl_b32 {sWm}, s3, 12
              s_add_u32 {sWm}, {sWm}, {WO_L}""")
    def consts1():
        A(f"""v_and_b32 {v(T)}, 1, v0
              v_cmp_eq_u32 vcc, 1, {v(T)}
              v_mov_b32 {v(T+1)}, 0x0c0c0100
              v_mov_b32 {v(T+2)}, 0x01000c0c
              v_cndmask_b32 {v(T+1)}, {v(T+1)}, {v(T+2)}, vcc
              v_mov_b32 {v(T+2)}, 0x0c0c0302
              v_mov_b32 {v(T+3)}, 0x03020c0c
              v_cndmask_b32 {v(T+2)}, {v(T+2)}, {v(T+3)}, vcc
              v_bfe_u32 {v(T)}, v0, 1, 1
              v_bfe_u32 {v(T+3)}, v0, 3, 1
              v_lshl_or_b32 {v(T)}, {v(T+3)}, 1, {v(T)}
              v_mov_b32 {v(T+3)}, 0x0c0c0c0c""")
        for r in range(4):
            A(f"""v_cmp_eq_u32 vcc, {r}, {v(T)}
                  v_cndmask_b32 {v(SEL+r)}, {v(T+3)}, {v(T+1)}, vcc
                  v_cndmask_b32 {v(SEL+4+r)}, {v(T+3)}, {v(T+2)}, vcc""")
    def consts2():
        A(f"s_mul_i32 {sT}, s3, 4608\n s_add_u32 {sT}, {sT}, {P_L}\n v_mov_b32 {vNINF}, 0xff800000")
        A(f"""v_bfe_u32 {v(T)}, v0, 4, 1
              v_lshlrev_b32 {vPw}, 7, {v(T)}
              v_and_b32 {v(T)}, 7, v0
              v_lshl_or_b32 {vPw}, {v(T)}, 4, {vPw}
              v_bfe_u32 {v(T)}, v0, 5, 1
              v_lshl_or_b32 {vPw}, {v(T)}, 3, {vPw}
              v_bfe_u32 {v(T)}, v0, 3, 1
              v_lshl_or_b32 {vPw}, {v(T)}, 2, {vPw}
              v_add_u32 {vPw}, {sT}, {vPw}
              v_and_b32 {v(T)}, 4, v0
              v_lshlrev_b32 {vPr}, 5, {v(T)}
              v_lshl_or_b32 {vPr}, {vG}, 5, {vPr}
              v_add_u32 {vPr}, {sT}, {vPr}
              v_mov_b32 {m01}, 0xff800000
              v_mov_b32 {m23}, 0xff800000
              v_mov_b32 {l01}, 0
              v_mov_b32 {l23}, 0""")
    def tc1():
        A(f"""s_lshl_b32 {sT}, s3, 11
              s_add_u32 {sT}, {sT}, {T0_L}
              v_bfe_u32 {v(T)}, v0, 4, 1
              v_lshlrev_b32 {vT0w}, 9, {v(T)}
              v_lshl_or_b32 {vT0w}, {vN}, 5, {vT0w}
              v_bfe_u32 {v(T)}, v0, 5, 1
              v_lshl_or_b32 {vT0w}, {v(T)}, 4, {vT0w}
              v_add_u32 {vT0w}, {sT}, {vT0w}
              v_lshlrev_b32 {vT0r}, 3, v0
              v_lshlrev_b32 {vL4}, 2, {vL}
              v_lshlrev_b32 {vL8}, 3, {vL}
              s_and_b32 {sT}, {sWV}, 28
              s_add_u32 {sT}, {sT}, s3
              s_lshl_b32 {sOPs}, {sT}, 14
              s_lshr_b32 {sT}, {sWV}, 6
              s_lshl_b32 {sT}, {sT}, 12
              s_add_u32 {sOPs}, {sOPs}, {sT}
              s_and_b32 {sT}, {sWV}, 3
              s_lshl_b32 {sT}, {sT}, 10
              s_add_u32 {sOPs}, {sOPs}, {sT}
              s_and_b32 {sT}, {sWV}, 32
              s_lshl_b32 {sT}, {sT}, 4
              s_add_u32 {sOPs}, {sOPs}, {sT}
              s_add_u32 {sOPs}, {sOPs}, {OP}
              s_lshl_b32 {sOPl}, {sHEAD}, 14
              s_lshl_b32 {sT}, s3, 12
              s_add_u32 {sOPl}, {sOPl}, {sT}
              s_add_u32 {sOPl}, {sOPl}, {OP}""")
    def tc2():
        A(f"""v_lshrrev_b32 {v(T)}, 5, v0
              v_and_b32 {v(T+1)}, 31, v0
              v_mul_u32_u24 {vOw}, 272, {v(T)}
              v_lshl_add_u32 {vOw}, {v(T+1)}, 3, {vOw}
              v_and_b32 {v(T)}, 7, v0
              v_mul_u32_u24 {v(T+1)}, 272, {v(T)}
              v_lshl_add_u32 {v(T+1)}, {vG}, 4, {v(T+1)}
              v_add_u32 {v(T+1)}, {O_L}, {v(T+1)}
              v_mov_b32 {v(T+2)}, {Z_L}
              v_cndmask_b32 {vBl}, {v(T+1)}, {v(T+2)}, {sM8}
              v_cndmask_b32 {vBh}, {v(T+2)}, {v(T+1)}, {sM8}
              v_lshlrev_b32 {vYs}, 4, {v(T)}
              v_and_b32 {v(T+1)}, 16, v0
              v_lshl_or_b32 {vYs}, {v(T+1)}, 3, {vYs}
              v_and_b32 {v(T+1)}, 32, v0
              v_lshl_or_b32 {vYs}, {v(T+1)}, 8, {vYs}
              v_and_b32 {v(T+1)}, 8, v0
              v_lshl_or_b32 {vYs}, {v(T+1)}, 11, {vYs}
              s_lshl_b32 {sYs}, {sCS}, 16
              s_lshl_b32 {sT}, {sHEAD}, 8
              s_add_u32 {sYs}, {sYs}, {sT}
              s_lshl_b32 {sT}, s3, 15
              s_add_u32 {sYs}, {sYs}, {sT}
              s_add_u32 {sYs}, {sYs}, {YP}
              v_lshrrev_b32 {v(T)}, 2, {vN}
              v_lshl_add_u32 {v(T)}, {vG}, 3, {v(T)}
              v_and_b32 {v(T+1)}, 3, v0
              v_lshlrev_b32 {vWOr}, 7, {v(T)}
              v_lshl_or_b32 {vWOr}, {v(T+1)}, 3, {vWOr}
              s_and_b32 {sT}, s3, 1
              s_lshl_b32 {sT}, {sT}, 1
              v_bfe_u32 {v(T+1)}, v0, 3, 2
              v_xor_b32 {v(T+1)}, {sT}, {v(T+1)}
              v_lshl_or_b32 {vWOr}, {v(T+1)}, 5, {vWOr}
              v_xor_b32 {vWOr2}, 32, {vWOr}
              v_add_u32 {vWOr}, {WO_L}, {vWOr}
              v_add_u32 {vWOr2}, {WO_L}, {vWOr2}
              v_and_b32 {vTB}, {sFF}, {vTAG}
              v_and_b32 {vEM}, 1, v0
              v_add_u32 {vEM}, {sFF}, {vEM}
              v_and_b32 {vEM}, {sFF}, {vEM}
""")
    setupA(); A(f"s_mov_b32 s75, {sT2}")
    A(f"v_mul_u32_u24 {v(T+2)}, {XN_S}, {v(T+2)}\n v_add_u32 {v(T+2)}, {v(T+2)}, {v(T+4)}")
    F = BIG + 8; G = F + 16
    def rowsum32(r, t):
        for k in (8, 4, 2, 1): A(f"v_add_f32_dpp {r}, {r}, {r} row_ror:{k} {DPPM}")
        A(f"v_mov_b32 {t}, {r}\n v_permlane16_swap_b32 {r}, {t}\n v_add_f32 {r}, {r}, {t}")
    def ln_scalars(mean, var, mb, rinv):
        A(f"""v_cvt_pk_bf16_f32 {rinv}, {mean}, {var}
              v_lshlrev_b32 {mb}, 16, {rinv}
              v_and_b32 {rinv}, {sHI}, {rinv}
              v_add_f32 {rinv}, 0x3727c5ac, {rinv}
              v_cvt_pk_bf16_f32 {rinv}, {rinv}, {rinv}
              v_lshlrev_b32 {rinv}, 16, {rinv}
              v_sqrt_f32 {rinv}, {rinv}
              v_cvt_pk_bf16_f32 {rinv}, {rinv}, {rinv}
              v_lshlrev_b32 {rinv}, 16, {rinv}
              v_rcp_f32 {rinv}, {rinv}""")
    A("s_waitcnt vmcnt(16)")
    stamp(1)
    for i in range(8): A(f"v_lshlrev_b32 {v(F+2*i)}, 16, {v(BIG+i)}\n v_and_b32 {v(F+2*i+1)}, {sHI}, {v(BIG+i)}")
    for i in range(4): A(f"v_pk_add_f32 {v(G+2*i,2)}, {v(F+2*i,2)}, {v(F+8+2*i,2)}")
    for i in range(2): A(f"v_pk_add_f32 {v(G+2*i,2)}, {v(G+2*i,2)}, {v(G+4+2*i,2)}")
    A(f"v_pk_add_f32 {v(G,2)}, {v(G,2)}, {v(G+2,2)}\n v_add_f32 {v(T+5)}, {v(G)}, {v(G+1)}")
    rowsum32(v(T+5), v(T+6))
    A(f"v_mul_f32 {v(T+5)}, 0x3b000000, {v(T+5)}")
    for i in range(16): A(f"v_sub_f32 {v(G+i)}, {v(F+i)}, {v(T+5)}")
    A(f"v_pk_mul_f32 {v(T+7,2)}, {v(G,2)}, {v(G,2)}")
    for i in range(1, 8): A(f"v_pk_fma_f32 {v(T+7,2)}, {v(G+2*i,2)}, {v(G+2*i,2)}, {v(T+7,2)}")
    A(f"v_add_f32 {v(T+7)}, {v(T+7)}, {v(T+8)}")
    rowsum32(v(T+7), v(T+6))
    A(f"v_mul_f32 {v(T+7)}, 0x3b000000, {v(T+7)}")
    ln_scalars(v(T+5), v(T+7), v(T+8), v(T+9))
    for i in range(16): A(f"v_sub_f32 {v(F+i)}, {v(F+i)}, {v(T+8)}")
    for i in range(8): A(f"v_cvt_pk_bf16_f32 {v(BIG+i)}, {v(F+2*i)}, {v(F+2*i+1)}")
    for i in range(8): A(f"v_lshlrev_b32 {v(F+2*i)}, 16, {v(BIG+i)}\n v_and_b32 {v(F+2*i+1)}, {sHI}, {v(BIG+i)}")
    for i in range(16): A(f"v_mul_f32 {v(F+i)}, {v(F+i)}, {v(T+9)}")
    for i in range(8): A(f"v_cvt_pk_bf16_f32 {v(BIG+i)}, {v(F+2*i)}, {v(F+2*i+1)}")
    A(f"ds_write_b128 {v(T+2)}, {v(BIG,4)} offset:{XN_L}\n ds_write_b128 {v(T+2)}, {v(BIG+4,4)} offset:{XN_L+512}")
    A(f"""v_and_b32 {v(T+3)}, 7, v0
          v_mul_u32_u24 {v(T)}, {XN_S}, {v(T+3)}
          v_lshl_add_u32 {v(T)}, {vG}, 4, {v(T)}
          v_lshrrev_b32 {v(T+1)}, 2, {vN}
          v_lshl_add_u32 {v(T+1)}, {vG}, 3, {v(T+1)}
          v_lshlrev_b32 {v(T+1)}, 7, {v(T+1)}
          v_and_b32 {v(T+3)}, 3, v0
          v_lshl_add_u32 {v(T+1)}, {v(T+3)}, 3, {v(T+1)}
          v_bfe_u32 {v(T+3)}, v0, 3, 2
          v_xor_b32 {v(T+3)}, s3, {v(T+3)}
          v_lshl_add_u32 {v(T+1)}, {v(T+3)}, 5, {v(T+1)}
          v_add_u32 {v(T+1)}, {WQ_L}, {v(T+1)}
          v_lshlrev_b32 {v(T+2)}, 14, {vN}
          v_lshl_add_u32 {v(T+2)}, {vG}, 4, {v(T+2)}
          s_lshl_b32 {sT}, s3, 6
          s_lshl_b32 {sT3}, {sLC}, 8
          s_add_u32 {sT}, {sT}, {sT3}
          v_mov_b32 {v(O1+1)}, {vTAG}
          v_mov_b32 {v(O1+3)}, {vTAG}
          s_waitcnt vmcnt(0) lgkmcnt(0)""")
    if loc[0]: xl_load(A, v(T+12))
    stamp(8, True)
    A("s_barrier")
    XF = 0; WF = 64
    for ks in range(16):
        A(f"ds_read_b128 {a(XF+4*ks)}, {v(T)} offset:{XN_L + ks*64}")
        A(f"ds_read_b64_tr_b16 {a(WF+4*ks,2)}, {v(T+1)} offset:{ks*4096}")
        A(f"ds_read_b64_tr_b16 {a(WF+4*ks+2,2)}, {v(T+1)} offset:{ks*4096 + 512}")
        if ks % 2 == 1 and ks >= 3:
            A("s_waitcnt lgkmcnt(6)")
            for k2 in range(ks - 3, ks - 1): mfma(v(O0,4), a(WF+4*k2), a(XF+4*k2), v(O0,4) if k2 else 0)
    A("s_waitcnt lgkmcnt(0)")
    for k2 in range(14, 16): mfma(v(O0,4), a(WF+4*k2), a(XF+4*k2), v(O0,4))
    A(f"v_cvt_pk_bf16_f32 {v(O1)}, {v(O0)}, {v(O0+1)}\n v_cvt_pk_bf16_f32 {v(O1+2)}, {v(O0+2)}, {v(O0+3)}")
    if loc[0]:
        A("s_waitcnt vmcnt(0)"); xl_eval(v(T+12))
        if stamps: A(f"s_mov_b32 s101, {sLOC}")
    A(f"s_not_b64 exec, {sM8}")
    lstore(f"buffer_store_dwordx4 {v(O1,4)}, {v(T+2)}, {sW}, {sT} offen", loc[0])
    A(f"s_mov_b64 exec, -1\n s_mov_b32 {sT2}, s75")
    stamp(2)
    setup0(False); wsetup()
    def wdloads(thr=None):
        A(f"""s_lshl_b32 {sT2}, {sGI}, 15
              s_lshl_b32 {sT}, s3, 8
              s_add_u32 {sT2}, {sT2}, {sT}
              s_lshl_b32 {sT}, s3, 13
              s_add_u32 m0, {sT}, {WD_L}""")
        for k in range(8):
            if thr: A(f"s_waitcnt vmcnt({thr - 1})")
            A(f"buffer_load_dwordx4 {vWc2 if k & 2 else vWc}, {sD}, {sT2} offen nt lds")
            if k < 7: A(f"s_add_u32 {sT2}, {sT2}, 4096\n s_add_u32 m0, m0, 1024")
    for f in (consts1, consts2, tc1, tc2, pgsetup): f()
    A("s_barrier\n s_branch L_J")
    A.label("L_B")
    items = []; consumed = [-1]; extras = {}
    def item(cost, fn, req=None, minstep=0): items.append((cost, req, minstep, fn))
    def extra(step, fn): extras.setdefault(step, []).append(fn)
    def retry_guard(back):
        A(f"s_add_u32 {sCNT}, {sCNT}, 1\n s_cmp_ge_u32 {sCNT}, {cap}\n s_cbranch_scc1 {back}")
        if sleep: A(f"s_sleep {sleep}")

    item(36, setupA); item(44, setup0); item(4, pgsetup); item(20, lambda: tagfin(lambda t: vm(t, False))); item(33, wsetup); item(26, consts1); item(22, consts2); item(28, tc1); item(44, tc2)

    def xr():
        A(f"""v_bfe_u32 {v(T+10)}, v0, 2, 3
              v_lshlrev_b32 {v(T+10)}, 10, {v(T+10)}
              v_and_b32 {v(T+11)}, 3, v0
              v_lshl_or_b32 {v(T+10)}, {v(T+11)}, 1, {v(T+10)}
              v_bfe_u32 {v(T+11)}, v0, 5, 1
              v_lshl_or_b32 {v(T+10)}, {v(T+11)}, 3, {v(T+10)}
              s_lshr_b32 {sT}, {sWV}, 2
              s_lshl_b32 {sT}, {sT}, 4""")
        vm(f"buffer_load_ushort {vXR}, {v(T+10)}, {sX}, {sT} offen")
    def gu_op(j, f):
        A(f"s_add_u32 m0, {sW2m}, {(j&1)*8192 + (j>>1)*1024}")
        f(f"buffer_load_dwordx4 {vWb2 if j & 1 else vWb}, {sU if j & 1 else sG}, {sW2o} offen {wnt} lds")
        if j & 1: A(f"s_add_u32 {sW2o}, {sW2o}, {16*3584}")
    def wo_dma(f):
        for j in range(4):
            A(f"s_add_u32 m0, {sWm}, {j*1024}")
            f(f"buffer_load_dwordx4 {vWa2 if j & 1 else vWa}, {sO}, {sWo} offen nt lds")
            A(f"s_add_u32 {sWo}, {sWo}, 8192")
        if pre:
            A(f"""s_lshr_b32 {sT2}, {sWV}, 2
                  s_lshl_b32 {sT2}, {sT2}, 13
                  s_lshl_b32 {sT}, s3, 11
                  s_add_u32 {sT2}, {sT2}, {sT}
                  s_add_u32 {sT2}, {sT2}, {YP}
                  s_cmp_eq_u32 {sROLE}, 3
                  s_cselect_b32 {sT2}, {sT2}, 0x7f000000""")
            f(f"buffer_load_dwordx4 {v(224,4)}, {vVo}, {sW}, {sT2} offen sc1")
            f(f"buffer_load_dwordx4 {v(228,4)}, {vVo}, {sW}, {sT2} offen offset:1024 sc1")
    extra(IWO - 1, xr)
    GUF = 128; WDF = 192
    QT = 188; QAD = T + 13
    def qloads(f):
        for k in range(4):
            r = f(f"buffer_load_dwordx4 {v(QT+4*k,4)}, {v(QAD)}, {sW}, {sT3} offen offset:{(k>>1)*256 + (k&1)*16} sc1")
        return r
    def qload():
        A(f"""v_and_b32 {v(QAD)}, 3, v0
              v_lshlrev_b32 {v(QAD)}, 9, {v(QAD)}
              v_and_b32 {v(T+11)}, 4, v0
              v_add_u32 {v(T+11)}, {v(T+11)}, {vG}
              v_lshl_or_b32 {v(QAD)}, {v(T+11)}, 5, {v(QAD)}
              s_lshr_b32 {sT3}, {sWV}, 2
              s_lshl_b32 {sT3}, {sT3}, 11""")
        xl_load(vm, v(QT+16))
        st["q"] = qloads(vm)
    extra(IQ, qload)
    def qprep():
        wait_for(st["q"])
        A.label("L_qchk")
        A(f"""v_max3_u32 {v(T)}, {v(QT+1)}, {v(QT+3)}, {v(QT+5)}
              v_min3_u32 {v(T+1)}, {v(QT+1)}, {v(QT+3)}, {v(QT+5)}
              v_max3_u32 {v(T)}, {v(T)}, {v(QT+7)}, {v(QT+9)}
              v_min3_u32 {v(T+1)}, {v(T+1)}, {v(QT+7)}, {v(QT+9)}
              v_max3_u32 {v(T)}, {v(T)}, {v(QT+11)}, {v(QT+13)}
              v_min3_u32 {v(T+1)}, {v(T+1)}, {v(QT+11)}, {v(QT+13)}
              v_max3_u32 {v(T)}, {v(T)}, {v(QT+15)}, {sTAG}
              v_min3_u32 {v(T+1)}, {v(T+1)}, {v(QT+15)}, {sTAG}
              v_cmp_ne_u32 vcc, {v(T)}, {v(T+1)}
              s_cbranch_vccnz L_qretry""")
        A.label("L_qok")
        if bal: A(f"s_cmp_lg_u32 {sMODE}, 0\n s_cselect_b64 vcc, -1, 0")
        def o():
            A.label("L_qretry"); retry_guard("L_qok"); qloads(A); A("s_waitcnt vmcnt(0)\n s_branch L_qchk")
        ool.append(o)
        xl_eval(v(QT+16))
        stamp(4)
        if stamps and not bal: A(f"s_mov_b32 s100, {sCNT}")
        for c in range(2):
            for r in range(4):
                A(f"v_cndmask_b32 {v(QA+8*c+r)}, {v(QT+8*c+2*r)}, 0, {sM8}\n v_cndmask_b32 {v(QA+8*c+4+r)}, 0, {v(QT+8*c+2*r)}, {sM8}")
    item(32, qprep, minstep=IQ + D + ES + 1)
    def kitem(i):
        def f():
            u = i >> 3; d = DS + 8 * (u & 1) + 4 * ((i >> 2) & 1); o = (i >> 1) & 1; c = i & 1
            if 'm' not in abl: mfma(v(d,4), v(QA+8*c+4*o,4), a(slot(i)), v(d,4) if i & 3 else 0)
            consumed[0] = i
        return f
    def post(u):
        def f():
            d = DS + 8 * (u & 1)
            if 'x' in abl: return
            for r in range(4): A(f"v_cndmask_b32 {v(T+r)}, {v(d+4+r)}, {v(d+r)}, {sMV}")
            A(f"""v_permlane16_swap_b32 {v(T)}, {v(T+1)}
                  v_permlane16_swap_b32 {v(T+2)}, {v(T+3)}
                  v_add_f32_dpp {v(T)}, {v(T+1)}, {v(T)} quad_perm:[1,0,3,2] {DPPM}
                  v_add_f32_dpp {v(T+2)}, {v(T+3)}, {v(T+2)} quad_perm:[1,0,3,2] {DPPM}
                  v_cvt_pk_bf16_f32 {v(T)}, {v(T)}, {v(T+2)}
                  v_and_b32 {v(T+1)}, {sHI}, {v(T)}
                  v_lshlrev_b32 {v(T)}, 16, {v(T)}
                  v_mul_f32 {v(T+1)}, {sSCALE}, {v(T+1)}
                  v_mul_f32 {v(T)}, {sSCALE}, {v(T)}
                  v_cvt_pk_bf16_f32 {v(T)}, {v(T)}, {v(T+1)}
                  v_lshlrev_b32 {v(S+2*u)}, 16, {v(T)}
                  v_and_b32 {v(S+2*u+1)}, {sHI}, {v(T)}""")
            if 8 * u < NO:
                A(f"v_cndmask_b32 {v(S+2*u)}, {v(S+2*u)}, {vNINF}, {sOPT}\n v_cndmask_b32 {v(S+2*u+1)}, {v(S+2*u+1)}, {vNINF}, {sOPT}")
            A(f"""v_max_f32 {m01}, {m01}, {v(S+2*u)}
                  v_max_f32 {m23}, {m23}, {v(S+2*u+1)}""")
        return f
    for i in range(NK):
        item(3, kitem(i), req=i)
        if i >= 8 and (i & 7) == 3: item(22, post((i >> 3) - 1))
    item(26, post(16))
    def allred2(op, x, y):
        for k in (8, 4, 2, 1): A(f"{op}_dpp {x}, {x}, {x} row_ror:{k} {DPPM}\n {op}_dpp {y}, {y}, {y} row_ror:{k} {DPPM}")
    def half2(op, x, y):
        A(f"""v_mov_b32 {v(T)}, {x}
              v_mov_b32 {v(T+1)}, {y}
              v_permlane32_swap_b32 {x}, {v(T)}
              v_permlane32_swap_b32 {y}, {v(T+1)}
              {op} {x}, {x}, {v(T)}
              {op} {y}, {y}, {v(T+1)}""")
    def maxred():
        stamp(5)
        allred2("v_max_f32", m01, m23); half2("v_max_f32", m01, m23)
        A(f"v_mul_f32 {nm01}, {sLOG}, {m01}\n v_mul_f32 {nm23}, {sLOG}, {m23}")
    item(22, maxred)
    done = set()
    def expi(u):
        def f():
            done.add(u)
            A(f"""v_fma_f32 {v(T)}, {v(S+2*u)}, {sLOG}, -{nm01}
                  v_fma_f32 {v(T+1)}, {v(S+2*u+1)}, {sLOG}, -{nm23}
                  v_exp_f32 {v(T)}, {v(T)}
                  v_exp_f32 {v(T+1)}, {v(T+1)}
                  v_add_f32 {l01}, {l01}, {v(T)}
                  v_add_f32 {l23}, {l23}, {v(T+1)}
                  v_cvt_pk_bf16_f32 {v(T+2)}, {v(T)}, {v(T+1)}
                  ds_write_b32 {vPw}, {v(T+2)} offset:{u*256}""")
        return f
    def areg(j):
        k = j - (NK - PB)
        return A0 if k < 0 else (32 + 8 * k if k < 4 else 68 + 8 * (k - 4))
    def rdi(k):
        def f():
            p = vorder[k]; assert (p >> 1) in done
            A(f"ds_read_b128 {v(PP + 4 * (k & 7),4)}, {vPr} offset:{(p >> 1) * 256 + (p & 1) * 16}")
        return f
    def vperm(j):
        def f():
            p = PP + (j & 31)
            if 'x' in abl: return
            if (j & 15) == 0: A("s_waitcnt lgkmcnt(0)")
            for uu in range(2):
                for r in range(4): A(f"v_perm_b32 {v(areg(j)+4*uu+r)}, {v(p)}, {v(p)}, {v(SEL+4*uu+r)}")
        return f
    def vmm(j):
        def f():
            i = NK + j
            if 'm' in abl:
                consumed[0] = i; return
            mfma(v(O0,4), v(areg(j),4), a(slot(i)), v(O0,4) if j else 0)
            mfma(v(O1,4), v(areg(j)+4,4), a(slot(i)), v(O1,4) if j else 0)
            consumed[0] = i
        return f
    def mlpub():
        allred2("v_add_f32", l01, l23); half2("v_add_f32", l01, l23)
        A(f"""v_and_b32 {v(T+2)}, 16, v0
              s_lshl_b32 {sT}, {sWV}, 2
              s_add_u32 {sT}, {sT}, s3
              s_lshl_b32 {sT}, {sT}, 5
              s_add_u32 {sT}, {sT}, {ML}
              v_bfi_b32 {v(220)}, {sHI}, {m01}, {vTAG}
              v_bfi_b32 {v(221)}, {sHI}, {m23}, {vTAG}
              v_bfi_b32 {v(222)}, {sFF}, {vTAG}, {l01}
              v_bfi_b32 {v(223)}, {sFF}, {vTAG}, {l23}
              s_mov_b64 exec, 0x10001""")
        lstore(f"buffer_store_dwordx4 {v(220,4)}, {v(T+2)}, {sW}, {sT} offen", loc[1], vm)
        A("s_mov_b64 exec, -1")
    GM = 188; GA = T + 14
    def mlload():
        A(f"""v_and_b32 {v(GA)}, 16, v0
              v_lshl_or_b32 {v(GA)}, {vN}, 5, {v(GA)}
              s_lshr_b32 {sT3}, {sWV}, 2
              s_lshl_b32 {sT3}, {sT3}, 9
              s_add_u32 {sT3}, {sT3}, {ML}""")
        st["ml"] = vm(f"buffer_load_dwordx4 {v(GM,4)}, {v(GA)}, {sW}, {sT3} offen sc1")
    def mlfac1():
        wait_for(st["ml"])
        A.label("L_mlchk")
        A(f"""v_bitop3_b32 {v(T)}, {v(GM)}, {v(GM+1)}, {vTAG} bitop3:0x7e
              v_bitop3_b32 {v(T+1)}, {v(GM+2)}, {v(GM+3)}, {vTAG} bitop3:0x7e
              v_lshlrev_b32 {v(T)}, 16, {v(T)}
              v_and_or_b32 {v(T)}, {v(T+1)}, {sFF}, {v(T)}
              v_cmp_ne_u32 vcc, 0, {v(T)}
              s_cbranch_vccnz L_mlretry""")
        A.label("L_mlok")
        if bal: A(f"s_cmp_lg_u32 {sMODE}, 0\n s_cselect_b64 vcc, -1, 0")
        def o():
            A.label("L_mlretry"); retry_guard("L_mlok")
            A(f"buffer_load_dwordx4 {v(GM,4)}, {v(GA)}, {sW}, {sT3} offen sc1\n s_waitcnt vmcnt(0)\n s_branch L_mlchk")
        ool.append(o)
        A(f"v_and_b32 {v(GM)}, {sHI}, {v(GM)}\n v_and_b32 {v(GM+1)}, {sHI}, {v(GM+1)}\n v_xor_b32 {v(GM+2)}, {v(GM+2)}, {vTB}\n v_xor_b32 {v(GM+3)}, {v(GM+3)}, {vTB}\n v_mov_b32 {v(GM+4)}, {v(GM)}\n v_mov_b32 {v(GM+5)}, {v(GM+1)}")
        allred2("v_max_f32", v(GM+4), v(GM+5))
        A(f"""v_sub_f32 {v(GM)}, {v(GM)}, {v(GM+4)}
              v_sub_f32 {v(GM+1)}, {v(GM+1)}, {v(GM+5)}
              v_sub_f32 {f01}, {m01}, {v(GM+4)}
              v_sub_f32 {f23}, {m23}, {v(GM+5)}
              v_mul_f32 {v(GM)}, {sLOG}, {v(GM)}
              v_mul_f32 {v(GM+1)}, {sLOG}, {v(GM+1)}
              v_mul_f32 {f01}, {sLOG}, {f01}
              v_mul_f32 {f23}, {sLOG}, {f23}""")
    def mlfac2():
        A(f"""v_exp_f32 {v(GM)}, {v(GM)}
              v_exp_f32 {v(GM+1)}, {v(GM+1)}
              v_exp_f32 {f01}, {f01}
              v_exp_f32 {f23}, {f23}
              v_mul_f32 {v(GM)}, {v(GM)}, {v(GM+2)}
              v_mul_f32 {v(GM+1)}, {v(GM+1)}, {v(GM+3)}""")
        allred2("v_add_f32", v(GM), v(GM+1))
        A(f"""v_rcp_f32 {v(GM)}, {v(GM)}
              v_rcp_f32 {v(GM+1)}, {v(GM+1)}
              v_mul_f32 {f01}, {f01}, {v(GM)}
              v_mul_f32 {f23}, {f23}, {v(GM+1)}""")
    uorder = list(dict.fromkeys(p >> 1 for p in vorder))
    for k in range(3): item(9, expi(uorder[k]))
    for k in range(4): item(1, rdi(k))
    ne = 3
    for j in range(NK):
        t = j & 7
        if j < NK - PB: item(9, vperm(j))
        if PB and NK - PB - 4 <= j < NK - PB: item(9, vperm(NK - PB + 2 * (j - (NK - PB - 4)))); item(9, vperm(NK - PB + 2 * (j - (NK - PB - 4)) + 1))
        item(5, vmm(j), req=NK + j)
        if (j & 15) == (12 if j < 112 or not PB else 4):
            for k in range(4 * (j >> 4) + 4, min(34, 4 * (j >> 4) + 8)): item(1, rdi(k))
        if t in (0, 2, 4, 6) and ne < 17:
            item(9, expi(uorder[ne])); ne += 1
            if ne == 17: item(28, mlpub)
        if NK + j == IML + 2: item(36, mlfac1)
        if NK + j == IML + 4: item(22, mlfac2)
    extra(IML, mlload)
    if warm1:
        def cw():
            A("s_getpc_b64 s[0:1]")
            A.label("L_pc")
            A(f"s_add_u32 s0, s0, L_tail-L_pc\n s_addc_u32 s1, s1, 0\n v_lshlrev_b32 {v(T+10)}, 4, v0")
            vm(f"global_load_dwordx4 {v(228,4)}, {v(T+10)}, s[0:1]")
        extra(IML - 8, cw)

    sMODE = "s21"; sPG = "s22"; PGV = T + 12; PGA = "v243"
    if bal:
        assert not dbg
        one = bal.get("one")
        def ck(k, stp):
            def f():
                c = (5 + 3 * k) % 32
                if one: A(f"s_cmp_lg_u32 s3, {k & 3}\n s_cbranch_scc1 L_np{k}")
                A(f"""s_and_b32 {sT}, s2, 7
                      s_mul_i32 {sT2}, {sT}, {c}
                      s_lshr_b32 {sPG}, s2, 3
                      s_add_u32 {sPG}, {sPG}, {sT2}
                      s_add_u32 {sPG}, {sPG}, {(11 * k) % 32}
                      s_and_b32 s0, {sPG}, 31
                      s_and_b32 {sPG}, {sPG}, {bal.get("ns", 32) - 1}
                      s_lshl_b32 {sPG}, {sPG}, 7
                      s_add_u32 {sPG}, {sPG}, {PG + k * 4096}
                      s_load_dwordx8 s[64:71], s[26:27], {sPG} {bal.get("glc", "glc")}""")
                if k == 2 and "v" in stouch: A("s_load_dword s16, s[32:33], 0 glc")
                if k == 8 and "w" in stouch: A(f"s_load_dword s16, s[48:49], {sWo} glc\n s_load_dword s17, s[18:19], {sCS} glc")
                if k == 9 and "w" in stouch: A(f"s_load_dword s16, s[52:53], {sW2o} glc\n s_load_dword s17, s[56:57], {sW2o} glc\n s_load_dword s20, s[60:61], {sW2o} glc")
                if k == 10 and "x" in stouch: A(f"s_lshl_b32 s16, s2, 8\n s_add_u32 s16, s16, 0x210000\n s_load_dword s16, s[26:27], s16 glc")
                if not one: A(f"s_cmp_lg_u32 s3, {k & 3}\n s_cbranch_scc1 L_np{k}")
                if bal.get("ns", 32) < 32: A(f"s_cmp_ge_u32 s0, {bal['ns']}\n s_cbranch_scc1 L_np{k}")
                A(f"""s_lshl_b32 {sT}, {sT}, 2
                      s_xor_b32 {sPG}, {sPG}, {bal.get("sep", 0) * 128}
                      s_add_u32 {sPG}, {sPG}, {sT}
                      s_atomic_swap {sTAG}, s[26:27], {sPG}""")
                A.label(f"L_np{k}")
            def setmode():
                if bal.get("noA"): A(f"s_min_u32 {sMODE}, {sMODE}, {sCLS}")
                A(f"s_cmp_lg_u32 {sMODE}, 0\n s_cselect_b64 vcc, -1, 0")
                if stamps: A(f"s_add_u32 s100, s100, {sMODE}")
            def g():
                if one: A(f"s_cmp_lg_u32 s3, {k & 3}\n s_cbranch_scc1 L_ng{k}")
                A(f"s_waitcnt lgkmcnt(0)\n s_cmp_eq_u32 {sCLS}, 0\n s_cselect_b32 {sT}, {bal.get('aoff', 0)}, 0")
                for r in range(64, 72): A(f"s_cmp_eq_u32 s{r}, {sTAG}\n s_addc_u32 {sT}, {sT}, 0")
                A(f"s_cmp_lt_u32 {sT}, {bal['th']}\n s_cselect_b32 {sMODE}, 1, 0")
                if one:
                    A(f"v_mov_b32 {v(PGV)}, {sMODE}\n ds_write_b32 {PGA}, {v(PGV)}")
                    A.label(f"L_ng{k}")
                else: setmode()
            def h1(): A(f"ds_read_b32 {v(PGV)}, {PGA}")
            def h2():
                A(f"s_waitcnt lgkmcnt(0)\n v_readfirstlane_b32 {sMODE}, {v(PGV)}\n s_and_b32 {sMODE}, {sMODE}, 1"); setmode()
            return f, g, h1, h2
        k = 0
        for stp in range(bal["first"], bal["last"] + 1, bal["per"]):
            f, g, h1, h2 = ck(k, stp); lg_ = bal.get("lag", 7)
            extra(stp, f); extra(stp + lg_, g)
            if one: extra(stp + lg_ + 2, h1); extra(stp + lg_ + 3, h2)
            k += 1
        assert k <= 32
    qi = [0]
    def run_items(step, bud):
        while qi[0] < len(items):
            cost, req, ms, fn = items[qi[0]]
            if cost > bud or step < ms: break
            if req is not None and (req >= len(kv) or kv[req] > known[0]): break
            fn(); bud -= cost; qi[0] += 1
    run_items(0, 104)
    nsetup = 9
    def tgt(i, d):
        kvs = set(kv)
        j = i - d
        lo = max(j - ES, NO + D)
        for k in range(lo, j):
            if any(o not in kvs for o in range(kv[k] + 1, kv[k + 1])): return kv[k]
        return kv[j]
    stubs = []
    ool.append(lambda: A.lines.extend(stubs))
    def drain(limit):
        q = qi[0]
        while q < len(items):
            cost, req, ms, fn = items[q]
            if req is not None:
                if req >= limit: break
                wait_for(kv[req])
            fn(); q += 1
    for i in range(D0, NS):
        if i == NO:
            assert qi[0] == nsetup and all(k >= NO for k in extras)
            A.label("L_J")
        if i == NS - NO:
            assert "L_mlok:" in A.lines
            A(f"s_cmp_eq_u32 {sCLS}, 0\n s_cbranch_scc1 L_adrain")
            sv = (list(ops), known[0], consumed[0], list(A.hist), len(A.lines))
            A.label("L_adrain")
            for j in range(GE): gu_op(j, vm)
            drain(i)
            for j in range(GE, 16):
                A(f"s_waitcnt vmcnt({GW - 1})"); gu_op(j, A)
            wo_dma(A)
            A("s_nop 7"); A.raw("    s_branch L_tail")
            cut = A.lines[sv[4]:]; del A.lines[sv[4]:]
            ool.append(lambda: A.lines.extend(cut))
            ops[:] = sv[0]; known[0] = sv[1]; consumed[0] = sv[2]; A.hist = sv[3]
        if bal and bal["first"] + bal.get("lag", 7) + 3 < i < bal["off"]:
            A.raw(f"    s_cbranch_vccnz L_s{i}"); A.raw(f"L_b{i}:")
            stubs.append(f"L_s{i}:\n    s_waitcnt vmcnt({after(kv[i - bal['lo']])})\n    s_branch L_b{i}")
        wait_for(tgt(i, DEND if i >= IEND else DST if i < IS else D))
        assert consumed[0] >= prevocc(i), (i, consumed[0])
        issue(i)
        for fn in extras.pop(i, []): fn()
        run_items(i, budget)
    assert not extras, extras
    lag = NS - 1 - consumed[0]
    wo_dma(vm); drain(NS)
    A(f"; end lag {lag}")

    A.label("L_tail")
    stamp(6)
    X = 96; DM = 88; BL = 8; PS = 176
    for r in range(4): A(f"v_mul_f32 {v(O0+r)}, {v(O0+r)}, {f01}")
    A(f"ds_write_b128 {vT0w}, {v(O0,4)}")
    for r in range(4): A(f"v_mul_f32 {v(O1+r)}, {v(O1+r)}, {f23}")
    A(f"ds_write_b128 {vT0w}, {v(O1,4)} offset:1024")
    A("s_waitcnt lgkmcnt(0)\n s_barrier")
    A(f"""ds_read2st64_b64 {v(DM,4)}, {vT0r} offset0:0 offset1:4
          ds_read2st64_b64 {v(DM+4,4)}, {vT0r} offset0:8 offset1:12
          s_waitcnt lgkmcnt(1)
          v_pk_add_f32 {v(DM,2)}, {v(DM,2)}, {v(DM+2,2)}
          s_waitcnt lgkmcnt(0)
          v_pk_add_f32 {v(DM+4,2)}, {v(DM+4,2)}, {v(DM+6,2)}
          v_pk_add_f32 {v(DM,2)}, {v(DM,2)}, {v(DM+4,2)}
          v_bfi_b32 {v(DM)}, {vEM}, {vTAG}, {v(DM)}
""")
    lstore(f"buffer_store_dwordx2 {v(DM,2)}, {vL8}, {sW}, {sOPs} offen", loc[2])
    stamp(1, "t")
    def poll(name, n, loads, body, S, tau, fail=None):
        for k in range(S):
            if k and tau: A(f"s_sleep {tau}")
            loads(PS + 16 * k)
        A.label(f"L_{name}")
        for k in range(S):
            body(PS + 16 * k, (S - 1) * n)
            A(f"s_cbranch_vccz L_{name}ok")
            if tau: A(f"s_sleep {tau}")
            if fail: fail()
            loads(PS + 16 * k)
        A(f"s_add_u32 {sCNT}, {sCNT}, 1\n s_cmp_lt_u32 {sCNT}, {cap}\n s_cbranch_scc1 L_{name}")
        A.label(f"L_{name}ok")
    MK = ["s[28:29]", "s[30:31]", "s[32:33]", "s[34:35]"]
    def mpl(name, n, ld, chk, sel, spec, init=None):
        p = PS
        for k in range(n): A(f"s_mov_b64 {MK[k]}, -1")
        if init: init()
        A.label(f"L_{name}")
        for k in range(n): A(f"s_wqm_b64 exec, {MK[k]}\n {ld(p, k)}")
        A("s_mov_b64 exec, -1")
        for k in range(n):
            if k == 0: A("s_waitcnt vmcnt(0)")
            A(chk(p, k))
            A(f"v_cmp_ne_u32_sdwa {MK[k]}, {v(T+k)}, {v(T+15)} src0_sel:{sel} src1_sel:DWORD")
            if k % 2 == 1:
                spec(p, k)
                A(f"s_or_b64 vcc, {MK[k-1]}, {MK[k]}" if k == 1 else f"s_or_b64 vcc, vcc, {MK[k-1]}\n s_or_b64 vcc, vcc, {MK[k]}")
        A(f"s_cbranch_scc0 L_{name}ok\n s_add_u32 {sCNT}, {sCNT}, 1\n s_cmp_lt_u32 {sCNT}, {cap}\n s_cbranch_scc1 L_{name}")
        A.label(f"L_{name}ok")
    def cmp_tag(reg, sel): A(f"v_cmp_ne_u32_sdwa vcc, {reg}, {v(T+15)} src0_sel:{sel} src1_sel:DWORD")
    A(f"v_mov_b32 {v(T+15)}, 0\n ds_write_b32 {vL4}, {v(T+15)} offset:{Z_L}")
    A(f"s_waitcnt vmcnt({3 if pre else 1})")
    stamp(3)
    A("s_barrier")
    for ks in range(4):
        for t in range(2):
            for t2 in range(2): A(f"ds_read_b64_tr_b16 {v(WOF+8*ks+4*t+2*t2,2)}, {vWOr2 if t else vWOr} offset:{ks*4096 + t2*512}")
        if ks == 2: A("s_waitcnt lgkmcnt(8)")
    A.label("L_t1s")
    def l1(p):
        for k in range(4): A(f"buffer_load_dwordx4 {v(p+4*k,4)}, {vVo}, {sW}, {sOPl} offen offset:{k*1024} sc1")
    def b1(p, n):
        A(f"""s_waitcnt vmcnt({n+2})
              v_xor_b32 {v(p)}, {v(p)}, {vTB}
              v_xor_b32 {v(p+4)}, {v(p+4)}, {vTB}
              v_pk_add_f32 {v(X+2,2)}, {v(p+2,2)}, {v(p+6,2)}
              v_pk_add_f32 {v(X,2)}, {v(p,2)}, {v(p+4,2)}
              v_or_b32 {v(T)}, {v(p)}, {v(p+4)}
              s_waitcnt vmcnt({n})
              v_xor_b32 {v(p+8)}, {v(p+8)}, {vTB}
              v_xor_b32 {v(p+12)}, {v(p+12)}, {vTB}
              v_or3_b32 {v(T)}, {v(T)}, {v(p+8)}, {v(p+12)}""")
        cmp_tag(v(T), "BYTE_0")
        A(f"v_pk_add_f32 {v(X+4,2)}, {v(p+8,2)}, {v(p+12,2)}\n v_pk_add_f32 {v(X+6,2)}, {v(p+10,2)}, {v(p+14,2)}")
    if mpoll[0]:
        mpl("t1", 4, lambda p, k: f"buffer_load_dwordx4 {v(p+4*k,4)}, {vVo}, {sW}, {sOPl} offen offset:{k*1024} sc1",
            lambda p, k: f"v_bitop3_b32 {v(T+k)}, {v(p+4*k)}, {v(p+4*k+2)}, {vTAG} bitop3:0x7e", "BYTE_0",
            lambda p, k: A(f"v_pk_add_f32 {v(X+2*k-2,2)}, {v(p+4*k-4,2)}, {v(p+4*k,2)}\n v_pk_add_f32 {v(X+2*k,2)}, {v(p+4*k-2,2)}, {v(p+4*k+2,2)}"))
    else:
        poll("t1", 4, l1, b1, NS_[0], tau[0])
    A(f"""v_pk_add_f32 {v(X,2)}, {v(X,2)}, {v(X+4,2)}
          v_pk_add_f32 {v(X+2,2)}, {v(X+2,2)}, {v(X+6,2)}
          v_cvt_pk_bf16_f32 {v(X)}, {v(X)}, {v(X+1)}
          v_cvt_pk_bf16_f32 {v(X+1)}, {v(X+2)}, {v(X+3)}
          ds_write_b64 {vOw}, {v(X,2)} offset:{O_L}""")
    stamp(2, "t")
    A("s_waitcnt lgkmcnt(0)\n s_barrier\n s_cmp_lt_u32 s3, " + ("1" if 'Y' in abl else "2") + "\n s_cbranch_scc0 L_t1done")
    for ks in range(4): A(f"ds_read_b128 {v(BL+8*ks,4)}, {vBl} offset:{ks*64}\n ds_read_b128 {v(BL+8*ks+4,4)}, {vBh} offset:{ks*64}")
    for ks in range(4):
        A(f"s_waitcnt lgkmcnt({6-2*ks})")
        for t in range(2): mfma(v(DM+4,4), v(WOF+8*ks+4*t,4), v(BL+8*ks+4*t,4), v(DM+4,4) if ks or t else 0)
    A(f"v_bfi_b32 {v(DM+4)}, {sFF}, {vTAG}, {v(DM+4)}\n buffer_store_dwordx4 {v(DM+4,4)}, {vYs}, {sW}, {sYs} offen sc1")
    A.label("L_t1done")

    stamp(7)

    A(f"s_cmp_eq_u32 {sROLE}, 3\n s_cbranch_scc0 L_notr")
    Y = X
    vRa, vRb, vRc, vRd, vRe, vRf, vRg, vRh = [v(i) for i in range(240, 248)]
    A(f"""s_lshr_b32 {sT2}, {sWV}, 2
          s_andn2_b32 {sA}, {sT2}, {4 if 'Y' in abl else 0}
          s_lshl_b32 {sA}, {sA}, 13
          s_lshl_b32 {sT}, s3, 11
          s_add_u32 {sA}, {sA}, {sT}
          s_add_u32 {sA}, {sA}, {YP}
          s_lshl_b32 {sB}, {sT2}, 8
          s_add_u32 {sB}, {sB}, {HB}
          v_lshl_add_u32 {vRb}, {vN}, 2, {vG}
          v_lshlrev_b32 {vRb}, 2, {vRb}
          s_lshl_b32 {sT}, s3, 8
          v_add_u32 {vRb}, {sT}, {vRb}
          v_lshlrev_b32 {vXR}, 16, {vXR}""")
    def b2(p, n, tb2=vTB):
        A(f"""s_waitcnt vmcnt({n})
              v_xor_b32 {v(p)}, {v(p)}, {vTB}
              v_xor_b32 {v(p+4)}, {v(p+4)}, {tb2}
              v_pk_add_f32 {v(Y+2,2)}, {v(p+2,2)}, {v(p+6,2)}
              v_or_b32 {v(T)}, {v(p)}, {v(p+4)}
              v_pk_add_f32 {v(Y,2)}, {v(p,2)}, {v(p+4,2)}""")
        cmp_tag(v(T), "BYTE_0")
    def red_b():
        A(f"""v_permlane32_swap_b32 {v(Y)}, {v(Y+2)}
              v_permlane32_swap_b32 {v(Y+1)}, {v(Y+3)}
              v_pk_add_f32 {v(Y,2)}, {v(Y,2)}, {v(Y+2,2)}
              v_permlane16_swap_b32 {v(Y)}, {v(Y+1)}
              v_add_f32 {v(Y)}, {v(Y)}, {v(Y+1)}""")
    def l2(p): A(f"buffer_load_dwordx4 {v(p,4)}, {vVo}, {sW}, {sA} offen sc1\n buffer_load_dwordx4 {v(p+4,4)}, {vVo}, {sW}, {sA} offen offset:1024 sc1")
    ld2 = lambda p, k: f"buffer_load_dwordx4 {v(p+4*k,4)}, {vVo}, {sW}, {sA} offen offset:{k*1024} sc1"
    ck2 = lambda p, k: f"v_xor_b32 {v(T+k)}, {v(p+4*k)}, {vTAG}"
    sp2 = lambda p, k: A(f"v_pk_add_f32 {v(Y,2)}, {v(p,2)}, {v(p+4,2)}\n v_pk_add_f32 {v(Y+2,2)}, {v(p+2,2)}, {v(p+6,2)}")
    if mpoll[1]: mpl("r", 2, ld2, ck2, "BYTE_0", sp2)
    else: poll("r", 2, l2, b2, NS_[1], tau[1])
    red_b()
    stamp(3, "t")
    A(f"""ds_write_b32 {vRb}, {v(Y)} offset:{R_L}
          s_waitcnt lgkmcnt(0)
          s_barrier
          s_cmp_lg_u32 s3, 0
          s_cbranch_scc1 L_fin
          ds_read2st64_b32 {v(Y,2)}, {vL4} offset0:{R_L//256} offset1:{R_L//256+1}
          ds_read2st64_b32 {v(Y+2,2)}, {vL4} offset0:{R_L//256+2} offset1:{R_L//256+3}
          s_waitcnt lgkmcnt(0)
          v_pk_add_f32 {v(Y,2)}, {v(Y,2)}, {v(Y+2,2)}
          v_add_f32 {v(Y)}, {v(Y)}, {v(Y+1)}
          v_cvt_pk_bf16_f32 {v(Y)}, {v(Y)}, {v(Y)}
          v_and_b32 {v(Y)}, {sHI}, {v(Y)}
          v_add_f32 {v(Y)}, {v(Y)}, {vXR}
          v_cvt_pk_bf16_f32 {v(Y)}, {v(Y)}, {v(Y)}
          v_bfi_b32 {v(Y)}, {sHI}, {v(Y)}, {vTAG}
          buffer_store_dword {v(Y)}, {vL4}, {sW}, {sB} offen sc1""")
    stamp(4, "t")
    A(f"""s_cmp_lg_u32 {sWV}, 1
          s_cbranch_scc1 L_fin
          v_mov_b32 {v(Y+2)}, {EPOCH}
          s_mov_b64 exec, 1
          buffer_store_dword {vTAG}, {v(Y+2)}, {sW}, 0 offen sc1
          s_mov_b64 exec, -1
          s_branch L_fin""")
    A.label("L_notr")
    A(f"s_cmp_eq_u32 {sROLE}, 1\n s_cbranch_scc1 L_t3\n s_cmp_eq_u32 {sROLE}, 0\n s_cbranch_scc1 L_fin")
    HV = X + 8; SA = 104 + 4; sM11 = sB
    def t2bits(dst):
        A(f"s_and_b32 {sT}, {sTAG}, 1\n s_bfe_u32 {sT3}, {sTAG}, 0x10001\n s_lshl_b32 {sT3}, {sT3}, 16\n s_or_b32 {sT}, {sT}, {sT3}\n v_mov_b32 {dst}, {sT}")
    A(f"s_mov_b32 s64, s18\n s_and_b32 s65, s19, 0xffff\n s_mov_b32 s66, {0 if 'O' in abl else 8192}\n s_mov_b32 s67, 0x20000")
    vT2, vT2b, vK1, vK2 = vRa, vRf, vRg, vRh
    A(f"""s_lshr_b32 {sT2}, {sWV}, 2
          s_mul_i32 {sA}, {sT2}, 7168
          s_mul_i32 {sT}, s3, 1792
          s_add_u32 {sA}, {sA}, {sT}
          s_add_u32 {sA}, {sA}, {PD}
          v_cmp_gt_u32 vcc, 48, {vL}
          v_cndmask_b32 {vRe}, {vNINF}, {vVo}, vcc""")
    def l5(p):
        A(f"""buffer_load_dwordx4 {v(p,4)}, {vVo}, {sW}, {sA} offen sc1
              buffer_load_dwordx4 {v(p+4,4)}, {vRe}, {sW}, {sA} offen offset:1024 sc1""")
    l5(PS)
    t2bits(vT2)
    A(f"""s_lshl_b32 {sDd}, {sT2}, 4
          s_lshl_b32 {sC}, {sT2}, 8
          s_add_u32 {sC}, {sC}, {HB}
          s_mov_b32 {sM11}, 0x10001
          v_and_b32 {v(T)}, 16, v0
          v_lshl_or_b32 {vRb}, {vN}, 5, {v(T)}
          s_lshl_b32 {sT}, s3, 9
          v_add_u32 {vRb}, {sT}, {vRb}
          v_lshrrev_b32 {v(T)}, 3, {vL}
          v_and_b32 {v(T+1)}, 7, v0
          v_lshlrev_b32 {vRc}, 10, {v(T)}
          v_lshl_or_b32 {vRc}, {v(T+1)}, 1, {vRc}
          v_lshlrev_b32 {vRd}, 4, {v(T)}
          v_and_b32 {v(T+2)}, 3, v0
          v_lshl_or_b32 {vRd}, {v(T+2)}, 2, {vRd}
          v_and_b32 {v(T+2)}, 4, v0
          v_lshl_or_b32 {vRd}, {v(T+2)}, 5, {vRd}
          v_cndmask_b32 {vT2b}, 0, {vT2}, vcc
          v_xor_b32 {v(T+2)}, {sM11}, {vT2}
          v_cndmask_b32 {vK1}, {vT2}, {v(T+2)}, {sM8}
          v_cndmask_b32 {vK2}, 0, {vK1}, vcc
          v_and_b32 {v(T+2)}, 1, v0
          v_lshlrev_b32 {v(T+2)}, 4, {v(T+2)}
          v_mov_b32 {v(T+3)}, 0x3f80
          v_lshlrev_b32 {v(T+3)}, {v(T+2)}, {v(T+3)}
          v_lshrrev_b32 {v(T+1)}, 1, {v(T+1)}""")
    for r in range(4): A(f"v_cmp_eq_u32 vcc, {r}, {v(T+1)}\n v_cndmask_b32 {v(SA+r)}, 0, {v(T+3)}, vcc")
    A.label("L_t5h")
    A(f"""buffer_load_dword {v(HV)}, {vRd}, {sW}, {sC} offen sc1
          s_waitcnt vmcnt(0)
          v_xor_b32 {v(T)}, {v(HV)}, {vTAG}""")
    cmp_tag(v(T), "WORD_0")
    A(f"s_cbranch_vccz L_t5hok\n s_add_u32 {sCNT}, {sCNT}, 1\n s_cmp_lt_u32 {sCNT}, {cap}\n s_cbranch_scc1 L_t5h")
    A.label("L_t5hok")
    A(f"v_and_b32 {v(HV)}, {sHI}, {v(HV)}")
    def b5(p, n):
        A(f"""s_waitcnt vmcnt({n+1})
              v_bitop3_b32 {v(T)}, {v(p)}, {v(p+2)}, {vT2} bitop3:0x7e
              v_xor_b32 {v(p)}, {v(p)}, {vK1}
              v_xor_b32 {v(p+2)}, {v(p+2)}, {vK1}
              s_waitcnt vmcnt({n})
              v_bitop3_b32 {v(T+1)}, {v(p+4)}, {v(p+6)}, {vT2b} bitop3:0x7e""")
        mfma(v(Y,4), v(SA,4), v(p,4), 0)
        A(f"""v_xor_b32 {v(p+4)}, {v(p+4)}, {vK2}
              v_xor_b32 {v(p+6)}, {v(p+6)}, {vK2}
              v_bitop3_b32 {v(T)}, {v(T)}, {v(T+1)}, {sM11} bitop3:0xa8
              v_cmp_ne_u32 vcc, 0, {v(T)}""")
        mfma(v(Y,4), v(SA,4), v(p+4,4), v(Y,4))
    poll("t5", 2, l5, b5, 1, 0)
    stamp(3, "t")
    A(f"""s_mov_b32 exec_hi, 0
          ds_write_b128 {vRb}, {v(Y,4)} offset:{R_L}
          s_mov_b32 exec_hi, -1
          s_waitcnt lgkmcnt(0)
          s_barrier
          s_cmp_lg_u32 s3, 0
          s_cbranch_scc1 L_fin""")
    for k in range(4): A(f"ds_read2st64_b32 {v(Y+2*k,2)}, {vL4} offset0:{R_L//256+2*k} offset1:{R_L//256+2*k+1}")
    A(f"""s_waitcnt lgkmcnt(2)
          v_pk_add_f32 {v(Y,2)}, {v(Y,2)}, {v(Y+2,2)}
          s_waitcnt lgkmcnt(0)
          v_pk_add_f32 {v(Y+4,2)}, {v(Y+4,2)}, {v(Y+6,2)}
          v_pk_add_f32 {v(Y,2)}, {v(Y,2)}, {v(Y+4,2)}
          v_add_f32 {v(Y)}, {v(Y)}, {v(Y+1)}
          v_cvt_pk_bf16_f32 {v(Y)}, {v(Y)}, {v(Y)}
          v_and_b32 {v(Y)}, {sHI}, {v(Y)}
          v_add_f32 {v(Y)}, {v(Y)}, {v(HV)}""")
    if pert:
        import struct
        h_ = hex(struct.unpack("<I", struct.pack("<f", pert[0]))[0])
        if pert[1]: A(f"s_cmp_eq_u32 {sT2}, 5\n s_cselect_b64 exec, 1, 0")
        A(f"v_add_f32 {v(Y)}, {h_}, {v(Y)}\n s_mov_b64 exec, -1")
    A(f"""v_cvt_pk_bf16_f32 {v(Y)}, {v(Y)}, {v(Y)}
          buffer_store_short {v(Y)}, {vRc}, {sOut}, {sDd} offen {osc}""")
    stamp(4, "t")
    A("s_branch L_fin")
    A.label("L_t3")
    wdloads()
    vWd = "v248"
    A(f"""v_lshrrev_b32 {v(T)}, 2, {vN}
          v_lshl_add_u32 {v(T)}, {vG}, 3, {v(T)}
          v_lshlrev_b32 {vWd}, 8, {v(T)}
          v_lshlrev_b32 {v(T)}, 6, {v(T)}
          v_bfe_u32 {v(T+1)}, v0, 1, 1
          v_lshl_add_u32 {v(T)}, {v(T+1)}, 13, {v(T)}
          v_bfe_u32 {v(T+2)}, v0, 4, 1
          v_lshl_or_b32 {v(T+1)}, {v(T+2)}, 1, {v(T+1)}
          v_xor_b32 {v(T+1)}, s3, {v(T+1)}
          v_lshl_add_u32 {v(T)}, {v(T+1)}, 4, {v(T)}
          v_and_b32 {v(T+1)}, 1, v0
          v_lshl_add_u32 {v(T)}, {v(T+1)}, 3, {v(T)}
          v_add_u32 {v(T+9)}, {GU_L}, {v(T)}""")
    for k in range(16):
        for t2 in range(2): A(f"ds_read_b64_tr_b16 {a(GUF+4*k+2*t2,2)}, {v(T+9)} offset:{(k>>2)*16384 + (k&3)*2048 + t2*256}")
        if k % 4 == 3: A("s_waitcnt lgkmcnt(4)")
    t2bits(vRa)
    A(f"""v_and_b32 {v(T+1)}, 1, v0
          v_lshl_or_b32 {vWd}, {v(T+1)}, 4, {vWd}
          v_bfe_u32 {v(T+1)}, v0, 2, 3
          v_bfe_u32 {v(T+2)}, v0, 1, 1
          v_xor_b32 {v(T+1)}, {v(T+1)}, {v(T+2)}
          v_lshl_or_b32 {vWd}, {v(T+1)}, 5, {vWd}
          s_lshl_b32 {sWm}, s3, 13
          s_add_u32 {sWm}, {sWm}, {WD_L}""")
    PK = 96; HF = 8; DG = 144; CS = 116; SS = 120; SR = 72; sSEL = sOPl; sONE = sYs
    A(f"""v_and_b32 {v(T)}, 7, v0
          v_bfe_u32 {v(T+1)}, v0, 3, 1
          v_mul_u32_u24 {vRc}, {XN_S}, {v(T)}
          v_and_b32 {v(T+2)}, 56, v0
          v_add_u32 {vRb}, {vRc}, {v(T+2)}
          s_lshl_b32 {sT}, s3, 8
          v_add_u32 {vRb}, {sT}, {vRb}
          v_lshl_add_u32 {vRc}, {vG}, 4, {vRc}
          v_mul_u32_u24 {vRe}, 80, {v(T)}
          v_lshl_add_u32 {vRd}, {vG}, 2, {vRe}
          s_lshl_b32 {sT}, s3, 4
          v_add_u32 {vRd}, {sT}, {vRd}
          v_lshlrev_b32 {vRf}, 6, {v(T)}
          v_lshl_or_b32 {v(T+3)}, {vG}, 4, {vRf}
          v_lshl_or_b32 {vRf}, {v(T+1)}, 2, {vRf}
          v_bfe_u32 {v(T+2)}, v0, 4, 1
          v_lshl_or_b32 {vRf}, {v(T+2)}, 3, {vRf}
          v_bfe_u32 {v(T+2)}, v0, 5, 1
          v_lshl_or_b32 {vRf}, {v(T+2)}, 1, {vRf}
          s_lshl_b32 {sT}, s3, 4
          v_add_u32 {vRf}, {sT}, {vRf}
          v_lshl_add_u32 {vRh}, {v(T+1)}, 2, {vG}
          v_mul_u32_u24 {vRh}, 7168, {vRh}
          v_lshl_add_u32 {vRh}, {v(T)}, 4, {vRh}
          s_mul_i32 {sB}, s3, {16*7168}
          s_lshl_b32 {sT}, {sGI}, 7
          s_add_u32 {sB}, {sB}, {sT}
          s_add_u32 {sB}, {sB}, {PD}
          s_add_u32 {sDd}, {sB}, {8*7168}
          s_mov_b32 {sT3}, 0x10001
          v_add_u32 {v(T+3)}, {A_L}, {v(T+3)}
          v_mov_b32 {v(T+4)}, {Z_L}
          v_cndmask_b32 {vBl}, {v(T+3)}, {v(T+4)}, {sM8}
          v_cndmask_b32 {vBh}, {v(T+4)}, {v(T+3)}, {sM8}
          s_lshl_b32 {sA}, s3, 12
          s_add_u32 {sA}, {sA}, {HB}
          s_mov_b32 {sSEL}, 0x07060302
          s_mov_b32 {sONE}, 0x3f803f80
          s_mov_b32 {sC}, 0""")
    for i in range(8): A(f"v_mov_b32 {v(PK+i)}, {sONE}")
    A("s_branch L_t3lok")
    A.label("L_t3s")
    def l3(p):
        for k in range(4): A(f"buffer_load_dwordx4 {v(p+4*k,4)}, {vNINF if 'H' in abl and k >= 2 else vVo}, {sW}, {sA} offen offset:{k*1024} sc1")
    def pk(p, k): A(f"v_perm_b32 {v(PK+2*k)}, {v(p+4*k+1)}, {v(p+4*k)}, {sSEL}\n v_perm_b32 {v(PK+2*k+1)}, {v(p+4*k+3)}, {v(p+4*k+2)}, {sSEL}")
    def b3(p, n):
        A(f"s_waitcnt vmcnt({n+2})\n v_bitop3_b32 {v(T)}, {v(p)}, {v(p+4)}, {vTAG} bitop3:0x7e")
        pk(p, 0); pk(p, 1)
        A(f"s_waitcnt vmcnt({n})\n v_bitop3_b32 {v(T+1)}, {v(p+8)}, {v(p+12)}, {vTAG} bitop3:0x7e\n v_or_b32 {v(T)}, {v(T)}, {v(T) if 'H' in abl else v(T+1)}")
        cmp_tag(v(T), "WORD_0")
        pk(p, 2); pk(p, 3)
    if mpoll[2]: mpl("t3l", 4, ld2, ck2, "WORD_0", lambda p, k: (pk(p, k - 1), pk(p, k)))
    else: poll("t3l", 4, l3, b3, NS_[2], tau[2])
    stamp(3, "t")
    for k in range(4): A(f"ds_write_b64 {vRb}, {v(PK+2*k,2)} offset:{H_L + k*64}")
    for i in range(8):
        A(f"v_dot2_f32_bf16 {v(SS)}, {v(PK+i)}, {sONE}, {v(SS) if i else 0}\n v_dot2_f32_bf16 {v(SS+1)}, {v(PK+i)}, {v(PK+i)}, {v(SS+1) if i else 0}")
    A(f"""s_nop 2
          v_permlane16_swap_b32 {v(SS)}, {v(SS+1)}
          v_add_f32 {v(SS)}, {v(SS)}, {v(SS+1)}
          v_add_f32_dpp {v(SS)}, {v(SS)}, {v(SS)} row_ror:8 {DPPM}
          ds_write_b32 {vRd}, {v(SS)} offset:{ST_L}
          s_waitcnt lgkmcnt(0)
          s_barrier""")
    stamp(4, "t")
    for ks in range(2): A(f"ds_read_b128 {v(HF+4*ks,4)}, {vRc} offset:{H_L + ks*64}")
    for k in range(4): A(f"ds_read_b128 {v(SR+4*k,4)}, {vRe} offset:{ST_L + k*16}")
    for ks in range(2, 10): A(f"ds_read_b128 {v(HF+4*ks,4)}, {vRc} offset:{H_L + ks*64}")
    z = v(T); z2 = v(T+1); mean = v(T+2); mb = v(T+3); rinv = v(T+4)
    sc = f"""v_pk_add_f32 {v(SR,2)}, {v(SR,2)}, {v(SR+2,2)}
          v_pk_add_f32 {v(SR+4,2)}, {v(SR+4,2)}, {v(SR+6,2)}
          v_pk_add_f32 {v(SR+8,2)}, {v(SR+8,2)}, {v(SR+10,2)}
          v_pk_add_f32 {v(SR+12,2)}, {v(SR+12,2)}, {v(SR+14,2)}
          v_pk_add_f32 {v(SR,2)}, {v(SR,2)}, {v(SR+4,2)}
          v_pk_add_f32 {v(SR+8,2)}, {v(SR+8,2)}, {v(SR+12,2)}
          v_pk_add_f32 {v(SR,2)}, {v(SR,2)}, {v(SR+8,2)}
          v_mul_f32 {mean}, 0x3b000000, {v(SR)}
          v_mul_f32 {z}, 0x3b000000, {v(SR+1)}
          v_fma_f32 {z}, -{mean}, {mean}, {z}
          v_max_f32 {z}, 0, {z}
          v_cvt_pk_bf16_f32 {rinv}, {mean}, {z}
          v_lshlrev_b32 {mb}, 16, {rinv}
          v_and_b32 {rinv}, {sHI}, {rinv}
          v_add_f32 {rinv}, 0x3727c5ac, {rinv}
          v_cvt_pk_bf16_f32 {rinv}, {rinv}, {rinv}
          v_lshlrev_b32 {rinv}, 16, {rinv}
          v_sqrt_f32 {rinv}, {rinv}
          v_cvt_pk_bf16_f32 {rinv}, {rinv}, {rinv}
          v_lshlrev_b32 {rinv}, 16, {rinv}
          v_rcp_f32 {rinv}, {rinv}
          v_mul_f32 {mb}, {mb}, {rinv}
          v_mul_f32 {v(T+5)}, {mb}, {v(CS)}
          v_mul_f32 {v(T+6)}, {mb}, {v(CS+1)}""".split("\n")
    if tdiag: A("s_waitcnt lgkmcnt(0)")
    order = [0, 1, "s", "s", "s", "s"] + list(range(2, 10))
    si = 0
    for ks in range(16):
        upto = {0: 1, 2: 5, 6: 9, 10: 12, 13: 15}
        if ks in upto: A(f"s_waitcnt lgkmcnt({len(order) - 1 - order.index(upto[ks])})")
        mfma(v(DG,4), a(GUF+4*ks), v(HF+4*ks,4), v(DG,4) if ks else 0)
        if ks < 6:
            A(f"ds_read_b128 {v(HF+4*(ks+10),4)}, {vRc} offset:{H_L + (ks+10)*64}"); order.append(ks + 10)
        if ks >= 2:
            for _ in range(1 if ks < 6 else 2):
                if si < len(sc): A(sc[si]); si += 1
    while si < len(sc): A(sc[si]); si += 1
    g_, u_ = v(T+7), v(T+8)
    A(f"""v_mov_b32 {z2}, 0xc0135761
          v_permlane32_swap_b32 {v(DG)}, {v(DG+1)}
          v_permlane32_swap_b32 {v(DG+2)}, {v(DG+3)}
          v_cndmask_b32 {v(DG)}, {v(DG)}, {v(DG+2)}, {sM8}
          v_cndmask_b32 {v(DG+1)}, {v(DG+1)}, {v(DG+3)}, {sM8}
          v_fma_f32 {g_}, {v(DG)}, {rinv}, -{v(T+5)}
          v_fma_f32 {u_}, {v(DG+1)}, {rinv}, -{v(T+6)}
          v_cvt_pk_bf16_f32 {u_}, {g_}, {u_}
          v_lshlrev_b32 {g_}, 16, {u_}
          v_mul_f32 {z}, {g_}, {g_}
          v_fmac_f32 {z2}, 0xbdd2d3e8, {z}
          v_mul_f32 {z}, {z2}, {g_}
          v_exp_f32 {z}, {z}
          v_and_b32 {u_}, {sHI}, {u_}
          v_add_f32 {z}, 1.0, {z}
          v_rcp_f32 {z}, {z}
          s_cmp_eq_u32 {sC}, 0
          v_mul_f32 {z}, {z}, {g_}
          v_cvt_pk_bf16_f32 {z}, {z}, {z}
          v_lshlrev_b32 {z}, 16, {z}
          v_mul_f32 {z}, {z}, {u_}
          v_cvt_pk_bf16_f32 {z}, {z}, {z}
          ds_write_b16 {vRf}, {z} offset:{A_L}
          s_cselect_b32 s38, 0, {WS_END}
          s_waitcnt lgkmcnt(0)
          s_barrier
          ds_read_b128 {v(BL,4)}, {vBl}
          ds_read_b128 {v(BL+4,4)}, {vBh}""")
    stamp(5, "t")
    A("s_waitcnt lgkmcnt(0)")
    DP = 148
    for i in range(4):
        mfma(v(DP+4*i,4), a(WDF+8*i), v(BL,4), 0)
        mfma(v(DP+4*i,4), a(WDF+8*i+4), v(BL+4,4), v(DP+4*i,4))
    for p_ in range(2):
        for q_ in range(4): A(f"v_cvt_pk_bf16_f32 {v(164+4*p_+q_)}, {v(DP+8*p_+2*q_)}, {v(DP+8*p_+2*q_+1)}")
        for q_ in (0, 2): A(f"v_bfi_b32 {v(164+4*p_+q_)}, {sT3}, {vRa}, {v(164+4*p_+q_)}")
        A(f"buffer_store_dwordx4 {v(164+4*p_,4)}, {vRh}, {sW}, {(sB, sDd)[p_]} offen sc1")
    stamp(8, "t")
    A(f"""s_cbranch_scc0 L_fin
          s_mov_b32 {sC}, 1
          s_mov_b32 s38, {WS_END}
          v_mov_b32 {v(CS)}, {v(DG)}
          v_mov_b32 {v(CS+1)}, {v(DG+1)}
          s_waitcnt vmcnt(0)""")
    for k in range(8):
        A(f"v_xor_b32 {v(T)}, {(4*(k>>2) + 2*(k&1))*32}, {vWd}\n v_add_u32 {v(T)}, {sWm}, {v(T)}")
        for t2 in range(2): A(f"ds_read_b64_tr_b16 {a(WDF+4*k+2*t2,2)}, {v(T)} offset:{t2*1024 + ((k>>1)&1)*8}")
        if k == 5: A("s_waitcnt lgkmcnt(4)")
    stamp(8)
    A("s_branch L_t3s")
    A.label("L_fin")
    if padto:
        if padwg is not None: A(f"s_cmp_lg_u32 s2, {padwg}\n s_cbranch_scc1 L_end")
        A.label("L_pad")
        A(f"s_memrealtime s[82:83]\n s_waitcnt lgkmcnt(0)\n s_sub_u32 s82, s82, s80\n s_cmp_lt_u32 s82, {padto}\n s_cbranch_scc1 L_pad")
    if stamps:
        A("s_waitcnt vmcnt(0)")
        stamp(9)
        A("s_getreg_b32 s0, hwreg(HW_REG_XCC_ID)\n s_waitcnt lgkmcnt(0)\n v_mov_b32 v8, 0")
        for k in range(10): A(f"v_writelane_b32 v8, s{80+2*k}, {k}")
        A(f"v_writelane_b32 v8, s0, 10\n v_writelane_b32 v8, {sCNT}, 11\n v_writelane_b32 v8, {sROLE}, 12\n v_writelane_b32 v8, s100, 13\n v_writelane_b32 v8, s101, 14\n s_getreg_b32 s0, hwreg(HW_REG_HW_ID)\n v_writelane_b32 v8, s0, 15")
        if dbg:
            A(f"s_not_b32 s0, s80\n v_writelane_b32 v8, s0, 10\n s_mov_b64 exec, 0xffff\n buffer_atomic_umax v8, {vL4}, {sDbg}, 0 offen sc1\n s_endpgm")
        A(f"s_lshl_b32 s0, s2, 2\n s_add_u32 s0, s0, s3\n s_lshl_b32 s0, s0, 8\n s_add_u32 s0, s0, 0x10000000\n s_add_u32 s26, s26, s0\n s_addc_u32 s27, s27, 0")
        A(f"v_lshlrev_b32 v9, 2, {vL}\n global_store_dword v9, v8, s[26:27]")
    A.label("L_end")
    A("s_endpgm")
    for o in ool: o()
    if warm0 or warm1: A.raw(".rept 3000\n s_endpgm\n.endr")
    A.raw('.section .rodata,"a"\n.p2align 6')
    A.raw(f".amdhsa_kernel {NAME}_kernel")
    A.raw("""  .amdhsa_next_free_vgpr 512
  .amdhsa_next_free_sgpr 102
  .amdhsa_accum_offset 256
  .amdhsa_group_segment_fixed_size 0
  .amdhsa_kernarg_size 96
  .amdhsa_user_sgpr_count 2
  .amdhsa_user_sgpr_kernarg_segment_ptr 1
  .amdhsa_system_sgpr_workgroup_id_x 1
  .amdhsa_float_denorm_mode_32 3
.end_amdhsa_kernel""")
    return A.text()

if __name__ == "__main__":
    if len(sys.argv) > 1:
        cfgs = json.loads(sys.argv[1])
        for k, c in cfgs.items(): open(f"k_{k}.s", "w").write(gen(**c))
        print(" ".join(f"work/k_{k}.s" for k in cfgs))
    else:
        open(f"cdna_kernels/{NAME}.s", "w").write(gen())
```

```python
import sys, json
sys.path.insert(0, "work")
from asmlib import Asm
NAME = "sequential_preLN__gqa_block_cached__geglu_ffn__decode"

Q_OFF = 0x0
EPOCH = 0x40000
CLR = 0x100000
YP = CLR
OP = CLR + 0x80000
ML = CLR + 0x100000
HB = CLR + 0x108000
PD = CLR + 0x10C000
WS_END = PD + 64 * 7168
XL = 0x50000
PG = 0x60000
XN_L = 0; XN_S = 1056
P_L = 8448
WO_L = P_L + 4 * 4608
GU_L = WO_L + 16384
WD_L = GU_L + 65536
WQ_L = GU_L
LDS_SZ = WD_L + 32768
T0_L = 0; O_L = P_L; Z_L = P_L + 4096; R_L = 0
H_L = 0; ST_L = P_L + 8192; A_L = P_L + 8192 + 768

def mask(f):
    v = 0
    for l in range(64):
        if f(l): v |= 1 << l
    return v

def gen(D=6, D0=8, IQ=52, budget=44, stamps=False, wnt="", IML=214, cap=200000, kvflag="nt",
        sleep=0, IEND=256, DEND=9, IWO=100, sdiag=False, warm0=False, warm1=False, abl="", kpat="p8", dbg=False, tdiag=False, bal="def",
        touch=False, osc="", vflag=None, ES=0, WOS=4, perm=True, VS=2, V0=1, rot=0, pre=False, NS_=(1, 1, 1, 1), tau=(0, 0, 0, 0), gate=0, adum=True, EA=1, kpair=0, vpair=0, GW=8, GE=3, rsh=0, mp=(12, 13, 14, 16), padto=0, padwg=None, ldsx=0, mpoll=(0, 0, 0, 0), otouch=None, loc=(1, 1, 1), XJ=1, stouch="", PB=8, pert=None, IS=0, DST=8, dly=None, dlyr="ack", dlyb=None):
    A = Asm()
    if bal == "def": bal = None if dbg else dict(lo=5, first=46, per=16, last=241, th=5, off=272, lag=8, one=1, aoff=1, sep=16, lo2=7)
    hdr = [l for l in open("cdna_kernels/" + NAME + ".s.ref").read().split("\n") if l.startswith(";") and "@launch" not in l]
    for l in hdr: A.raw(l)
    A.raw(f"; @launch grid=(256,1,1) block=(256,1,1) lds={LDS_SZ + ldsx}")
    for l in """
; One persistent launch, 256 workgroups x 4 waves (one workgroup per CU, all co-resident).
;   ids: x = wg&7 = kv head, b = wg>>5, split = (wg>>3)&3; the 4 workgroups of a (b, kv head) share its 8192 keys.
;   class A (one per group) first computes LN(x) @ wq for 64 columns and takes 26 of the 128 key rows, the others 34.
;   K phase: 8-key x 128-byte loads straight into an AGPR ring, QK^T by MFMA, scores rounded like the reference.
;   V phase: exact per-wave max, P in LDS, PV by MFMA with a diagonal A operand; (max, sum) exchanged per group.
;   tail: o partials -> o @ wo (per head, 64 columns) -> sum over heads + x -> LN folded into gate/up -> gelu*up
;         -> @ w_down partials -> final sum + h.  Every hand-off word carries a tag (previous tag in d_ws + 1) that is
;         stripped again by the reader; plain stores are used only when all readers reported the same XCC id.
;   loads in flight per wave are 6, or 5 while the workgroup is ahead of most of its sampled peers.""".strip().split("\n"): A.raw(l)
    A.raw('.amdgcn_target "amdgcn-amd-amdhsa--gfx950"')
    A.raw(".text"); A.raw(f".globl {NAME}_kernel"); A.raw(".p2align 8"); A.raw(f".type {NAME}_kernel,@function")
    A.label(f"{NAME}_kernel")
    NK = 136; NS = 2 * NK; NO = 32
    if dbg: stamps = True
    sK, sV, sW, sX, sQ, sO, sG, sU, sD, sOut, sDbg = [f"s[{b}:{b+3}]" for b in range(28, 72, 4)]
    sKV = "s72"; sROLE = "s73"; sCNT = "s74"; sLOG = "s75"; sMV = "s[76:77]"; sM8 = "s[78:79]"
    sSCALE = "s4"; sHI = "s5"; sTAG = "s6"; sT = "s7"; sT2 = "s8"; sT3 = "s9"; sGI = "s10"; sHEAD = "s11"; sCS = "s12"
    sOPs, sOPl, sOPl2, sYs, sA, sB, sC, sDd = [f"s{i}" for i in range(13, 21)]
    sYs = "s23"
    sOPT = "s[24:25]"; sINC = "s20"; sXV = "s95" if not stamps else "s93"; sLOC = "s96" if not stamps else "s83"; sLC = "s1"; sCLS = "s100" if not stamps else "s99"; sE = "s101" if not stamps else "s97"; sE0 = "s98" if not stamps else "s95"; sWV = "s99" if not stamps else "s81"
    sWo, sWm, sW2o, sW2m = "s44", "s45", "s46", "s47"
    vL = "v1"; vKa = "v2"; vKb = "v3"; vVo = "v4"; vPw = "v5"; vPr = "v6"
    SEL = 8; QA = 16; S = 32; vNINF = "v252"; DS = 68; PP = 156; A0 = 100; A1 = 104; O0 = 108; O1 = 112
    m01, m23, l01, l23, nm01, nm23, f01, f23 = [f"v{i}" for i in range(116, 124)]
    vXR = "v124"; T = 125
    vN = "v141"; vG = "v142"
    BIG = 156; WOF = 144
    vT0w, vT0r, vL4, vL8, vOw, vBl, vBh, vYs = [f"v{i}" for i in range(232, 240)]
    vTAG = "v7"; vWOr = "v143"; sFF = "s15"
    vWa, vWb, vWc = "v240", "v241", "v242"; vWa2, vWb2, vWc2, vWOr2 = "v244", "v245", "v246", "v67"; vTB, vEM = "v250", "v251"
    v = lambda i, n=1: f"v{i}" if n == 1 else f"v[{i}:{i+n-1}]"
    a = lambda i, n=4: f"a[{i}:{i+n-1}]"
    def stamp(k, diag=False):
        if diag == "t":
            if not tdiag: return
        elif tdiag and k in (1, 2, 3, 4, 5, 8): return
        elif sdiag and k in (5, 6, 7, 8) and not diag: return
        elif diag and not sdiag: return
        if stamps: A(f"s_memrealtime s[{80+2*k}:{81+2*k}]")
    def smov64(dst, val):
        lo = int(dst[2:dst.index(":")])
        A(f"s_mov_b32 s{lo}, 0x{val & 0xffffffff:x}\n s_mov_b32 s{lo+1}, 0x{val >> 32:x}")
    ops = []; known = [-1]
    def vm(text, mandatory=True):
        A(text); ops.append(mandatory); return len(ops) - 1
    def after(idx, r1=False): return sum(1 for m in ops[idx+1:] if m is True or (r1 and m == 'r1'))
    def wait_for(idx):
        if idx <= known[0]: return
        n = after(idx); assert n <= 63
        A(f"s_waitcnt vmcnt({n})"); known[0] = idx
    ool = []
    def mfma(d, x, y, c): A(f"v_mfma_f32_16x16x32_bf16 {d}, {x}, {y}, {c}")
    DPPM = "row_mask:0xf bank_mask:0xf"

    A("s_cmp_ge_u32 s2, 256\n s_cbranch_scc1 L_end")
    A("s_load_dwordx8 s[4:11], s[0:1], 0\n s_load_dwordx8 s[12:19], s[0:1], 32\n s_load_dwordx8 s[20:27], s[0:1], 64")
    if stamps:
        for k in range(1, 11): A(f"s_mov_b32 s{80+2*k}, 0")
        A("s_mov_b32 s101, 0")
    stamp(0)
    if stamps: A("s_waitcnt lgkmcnt(0)")
    if padto: A("s_memrealtime s[80:81]")
    A(f"""v_lshrrev_b32 {v(T)}, 6, v0
          v_and_b32 {vL}, 63, v0
          v_readfirstlane_b32 s3, {v(T)}
          v_lshrrev_b32 {vG}, 4, {vL}
          v_and_b32 {v(T+3)}, 14, v0
          v_lshlrev_b32 {vKa}, 7, {v(T+3)}
          v_lshl_or_b32 {vKa}, {vG}, 4, {vKa}
          v_and_b32 {v(T+4)}, 1, v0
          v_lshl_or_b32 {vKa}, {v(T+4)}, 6, {vKa}
          {"v_lshlrev_b32 " + vKa + ", 4, " + vL if kpat == "c" else ""}
          v_xor_b32 {vKb}, 64, {vKa}
          s_mov_b32 s31, 0x20000
          s_and_b32 {sWV}, s2, 7
          s_lshl_b32 {sWV}, {sWV}, 2
          s_bfe_u32 s75, s2, 0x20003
          s_or_b32 {sWV}, {sWV}, s75
          s_and_b32 s74, s2, 0xe0
          s_or_b32 {sWV}, {sWV}, s74
          s_lshr_b32 s74, s2, 5
          s_add_u32 s74, s75, s74
          s_and_b32 {sCLS}, s74, 3
          s_add_u32 s74, s74, 3
          s_and_b32 s74, s74, 3
          s_mov_b32 {sE0}, s74
          s_lshl_b32 {sE}, s74, {mp[2]}
          s_and_b32 s73, s3, 1
          s_lshl_b32 s73, s73, {mp[0]}
          s_lshr_b32 s74, s3, 1
          s_lshl_b32 s74, s74, {mp[1]}
          s_add_u32 s73, s73, s74
          s_lshr_b32 s75, {sWV}, 2
          s_lshl_b32 s75, s75, 21
          s_sub_u32 s30, 0x200000, s73
          s_add_u32 s73, s73, s75
          s_waitcnt lgkmcnt(0)
          s_add_u32 s28, s6, s73
          s_addc_u32 s29, s7, 0
          s_and_b32 s29, s29, 0xffff
          s_load_dword {sTAG}, s[26:27], {EPOCH}""")
    stamp(5, True)
    kv = []; st = {}; uid = [0]
    def lstore(text, on, f=A):
        if not on: return f(text + " sc1")
        uid[0] += 1; u = uid[0]
        A(f"s_cmp_eq_u32 {sLOC}, 0\n s_cbranch_scc1 L_ls{u}")
        r = f(text)
        A.label(f"L_le{u}")
        def o():
            A.label(f"L_ls{u}"); A(text + " sc1"); A(f"s_branch L_le{u}")
        ool.append(o)
        return r
    def xl_pub(f):
        uid[0] += 1; u = uid[0]
        A(f"""s_getreg_b32 {sXV}, hwreg(HW_REG_XCC_ID, 0, 3)
              s_lshl_b32 {sT}, {sTAG}, 3
              s_or_b32 {sXV}, {sXV}, {sT}
              s_cmp_lg_u32 s3, 1
              s_cbranch_scc1 L_xp{u}
              s_and_b32 {sT}, s2, 7
              s_lshl_b32 {sT}, {sT}, 7
              s_lshr_b32 s0, s2, 3
              s_lshl_b32 s0, s0, 2
              s_add_u32 {sT}, {sT}, s0
              s_add_u32 {sT}, {sT}, {XL}
              v_mov_b32 {v(T+10)}, {sXV}
              v_mov_b32 {v(T+11)}, 0
              s_mov_b64 exec, 1""")
        f(f"buffer_store_dword {v(T+10)}, {v(T+11)}, {sW}, {sT} offen")
        A("s_mov_b64 exec, -1")
        A.label(f"L_xp{u}")
    def xl_load(f, dst):
        A(f"""v_and_b32 {v(T+10)}, 31, v0
              v_lshlrev_b32 {v(T+10)}, 2, {v(T+10)}
              s_and_b32 {sT2}, s2, 7
              s_lshl_b32 {sT2}, {sT2}, 7
              s_add_u32 {sT2}, {sT2}, {XL}""")
        return f(f"buffer_load_dword {dst}, {v(T+10)}, {sW}, {sT2} offen sc1")
    def xl_eval(src):
        A(f"v_cmp_ne_u32 s[0:1], {sXV}, {src}\n s_cmp_eq_u64 s[0:1], 0\n s_cselect_b32 {sLOC}, 1, 0")
    def tagfin(f):
        A(f"s_waitcnt lgkmcnt(0)\n s_add_u32 {sTAG}, {sTAG}, 1\n v_mov_b32 {vTAG}, {sTAG}")
        xl_pub(f)
    slot = lambda i: (i % 64) * 4 if i < NK else ((i - NK + 8) % 32) * 4
    def prevocc(i):
        for j in range(i - 1, -1, -1):
            if slot(j) == slot(i): return j
        return -1
    rowoff = lambda p: (3 * p if p < 8 else 24 + 4 * (p - 8)) * 16384
    vorder = list(range(8, 34))
    vorder += list(range(8))
    tileof = lambda i: i >> 2 if i < NK else vorder[(i - NK) >> 2]
    isopt = lambda i: tileof(i) < 8
    def issue(i):
        p = tileof(i)
        dst = a(slot(i))
        if (i & 3) == 0:
            if p >= 8:
                q = p - 8 + 6
                A(f"s_add_u32 {sKV}, {sE}, {((q & 1) << mp[3]) + ((q >> 1) << 17)}")
            else:
                A(f"""s_add_u32 s0, {sE0}, {3 * p}
                      s_and_b32 {sKV}, s0, 3
                      s_lshl_b32 {sKV}, {sKV}, {mp[2]}
                      s_bfe_u32 s1, s0, 0x10002
                      s_lshl_b32 s1, s1, {mp[3]}
                      s_add_u32 {sKV}, {sKV}, s1
                      s_lshr_b32 s1, s0, 3
                      s_lshl_b32 s1, s1, 17
                      s_add_u32 {sKV}, {sKV}, s1""")
        if i < NK:
            va = vKb if p & 1 else vKa
            kv.append(vm(f"buffer_load_dwordx4 {dst}, {va}, {sK}, {sKV} offen offset:{(i&3)*1024 if kpat == 'c' else ((i>>1)&1)*2048 + (i&1)*128} {kvflag}"))
        else:
            kv.append(vm(f"buffer_load_dwordx4 {dst}, {vVo}, {sV}, {sKV} offen offset:{(i&3)*1024} {kvflag if vflag is None else vflag}"))
    A(f"s_cmp_eq_u32 {sCLS}, 0\n s_cbranch_scc1 L_A")
    for i in range(D0): issue(i)
    stamp(6, True)
    A("s_branch L_B")
    A.label("L_A")
    A(f"""s_mov_b32 s40, s4
          s_and_b32 s41, s5, 0xffff
          s_mov_b32 s42, 8192
          s_mov_b32 s43, 0x20000
          v_lshrrev_b32 {v(T+2)}, 5, v0
          v_and_b32 {v(T+4)}, 31, v0
          v_lshlrev_b32 {v(T+4)}, 4, {v(T+4)}
          v_lshl_or_b32 {v(T)}, {v(T+2)}, 10, {v(T+4)}
          buffer_load_dwordx4 {v(BIG,4)}, {v(T)}, {sX}, 0 offen
          buffer_load_dwordx4 {v(BIG+4,4)}, {v(T)}, {sX}, 0 offen offset:512
          s_mov_b32 s44, s10
          s_and_b32 s45, s11, 0xffff
          s_mov_b32 s46, {0 if 'q' in abl else 512*4096*2}
          s_mov_b32 s47, 0x20000
          v_and_b32 {v(T+3)}, 7, v0
          v_lshrrev_b32 {v(T+1)}, 3, {vL}
          v_and_b32 {v(T+5)}, 2, {v(T+1)}
          v_xor_b32 {v(T+3)}, {v(T+3)}, {v(T+5)}
          v_lshlrev_b32 {v(T+1)}, 13, {v(T+1)}
          v_lshl_or_b32 {v(T+1)}, {v(T+3)}, 4, {v(T+1)}
          v_xor_b32 {v(T+3)}, 64, {v(T+1)}
          s_and_b32 s74, s2, 7
          s_lshl_b32 s74, s74, 3
          s_lshr_b32 s75, s2, 5
          s_add_u32 {sLC}, s74, s75
          {"s_xor_b32 " + sLC + ", " + sLC + ", 4" if perm else ""}
          s_lshl_b32 s74, {sLC}, 7
          s_lshl_b32 s75, s3, 20
          s_add_u32 s74, s74, s75
          s_lshl_b32 s75, s3, 14
          s_add_u32 m0, s75, {WQ_L}""")
    for j in range(16):
        A(f"buffer_load_dwordx4 {v(T+3) if j & 1 else v(T+1)}, {sQ}, s74 offen nt lds")
        if j < 15: A(f"s_add_u32 s74, s74, {8*8192}\n s_add_u32 m0, m0, 1024")
        if j == XJ:
            A(f"s_mov_b32 s36, s26\n s_and_b32 s37, s27, 0xffff\n s_mov_b32 s38, {WS_END}\n s_mov_b32 s39, 0x20000")
            tagfin(A)
    stamp(7, True)
    def setupA():
        A(f"v_lshlrev_b32 {vVo}, 4, {vL}\n v_and_b32 {vN}, 15, v0")
        A("s_add_u32 s32, s8, s73\n s_addc_u32 s33, s9, 0\n s_and_b32 s33, s33, 0xffff\n s_mov_b32 s34, s30")
        for b in (32, 36, 40, 48, 52, 56, 60) + ((68,) if dbg else ()): A(f"s_mov_b32 s{b+3}, 0x20000")
        A(f"s_mov_b32 s40, s4\n s_and_b32 s41, s5, 0xffff\n s_mov_b32 s42, 8192")
        A(f"s_mov_b32 s36, s26\n s_and_b32 s37, s27, 0xffff\n s_mov_b32 s38, {WS_END}\n s_mov_b32 {sHI}, 0xffff0000")
        smov64(sM8, mask(lambda l: (l >> 3) & 1))
        A(f"""s_lshr_b32 {sT2}, s2, 5
              s_cmp_lt_u32 {sT2}, 7
              s_cselect_b32 {sROLE}, 1, 0
              s_cmp_eq_u32 {sCLS}, 3
              s_cselect_b32 {sROLE}, 0, {sROLE}
              s_cmp_eq_u32 {sCLS}, 2
              s_cselect_b32 {sROLE}, 2, {sROLE}
              s_cmp_eq_u32 {sCLS}, 1
              s_cselect_b32 {sROLE}, 3, {sROLE}""")
    sMODE = "s21"; PGA = "v243"
    def pgsetup():
        if bal: A(f"s_mov_b32 {sMODE}, 0\n v_mov_b32 {PGA}, {P_L + 4352}\n v_mov_b32 {v(T)}, 0\n ds_write_b32 {PGA}, {v(T)}")
    def setup0(isB=True):
        for (b, p, sz) in ((48, 12, 0 if 'o' in abl else 4096*512*2), (52, 16, 0 if 'g' in abl else 512*1792*2), (56, 18, 0 if 'g' in abl else 512*1792*2), (60, 20, 0 if 'd' in abl else 1792*512*2)) + (((68, 24, 256),) if dbg else ()):
            A(f"s_mov_b32 s{b}, s{p}\n s_and_b32 s{b+1}, s{p+1}, 0xffff\n s_mov_b32 s{b+2}, {sz}")
        A(f"""s_mov_b64 s[18:19], s[22:23]
              s_mov_b32 {sLOG}, 0x3fb8aa3b
              s_mov_b32 {sSCALE}, 0x3db504f3
              s_mov_b32 {sCNT}, 0
              s_mov_b32 {sFF}, 0xff
              s_bfe_u32 {sCS}, s2, 0x30003
              s_and_b32 {sT}, s2, 7
              s_mul_i32 {sGI}, {sT}, 7
              s_add_u32 {sGI}, {sGI}, {sT2}
              s_lshl_b32 {sHEAD}, {sT}, 2
              s_lshr_b32 {sT}, s2, 6
              s_add_u32 {sHEAD}, {sHEAD}, {sT}""")
        smov64(sMV, mask(lambda l: (l & 1) == ((l >> 4) & 1)))
        A(f"""s_cmp_eq_u32 {sROLE}, 1
              s_cselect_b32 s54, s54, 0
              s_cselect_b32 s58, s58, 0
              s_cselect_b32 s62, s62, 0
              s_cmp_eq_u32 {sCLS}, 0
              s_cselect_b32 s24, -1, 0
              s_mov_b32 s25, s24""")
        if touch and isB:
            A(f"s_cmp_lg_u32 s3, 1\n s_cbranch_scc1 L_nt0\n s_mov_b64 exec, 1\n s_mov_b32 {sT}, 0x100000\n s_mov_b32 {sT2}, 0x200000\n s_lshl_b32 {sT3}, {sHEAD}, 17")
            for (srd, so) in ((sV, "0"), (sOut, "0"), (sW, sT), (sW, sT2), (sO, sT3), (sG, "0"), (sU, "0"), (sD, "0")):
                vm(f"buffer_load_dword v231, {vVo}, {srd}, {so} offen nt", False)
            A("s_mov_b64 exec, -1")
            A.label("L_nt0")
        if warm0 and isB:
            A("s_getpc_b64 s[0:1]")
            A(f"s_lshl_b32 {sT}, {sCS}, 2\n s_add_u32 {sT}, {sT}, s3\n s_lshl_b32 {sT}, {sT}, 10\n s_add_u32 s0, s0, {sT}\n s_addc_u32 s1, s1, 0")
            A(f"s_cmp_ge_u32 s2, 128\n s_cbranch_scc1 L_nw0")
            vm(f"global_load_dwordx4 {v(228,4)}, {vVo}, s[0:1]", False)
            A.label("L_nw0")
    def wsetup():
        A(f"""v_lshrrev_b32 {vWa}, 3, {vL}
              v_and_b32 {v(T+1)}, 2, {vWa}
              v_lshlrev_b32 {vWa}, 10, {vWa}
              v_and_b32 {v(T)}, 7, v0
              v_xor_b32 {v(T)}, {v(T)}, {v(T+1)}
              v_lshl_or_b32 {vWa}, {v(T)}, 4, {vWa}
              v_xor_b32 {vWa2}, 64, {vWa}
              v_lshrrev_b32 {v(T)}, 2, {vL}
              v_mul_u32_u24 {vWb}, 3584, {v(T)}
              v_and_b32 {v(T+1)}, 3, v0
              v_and_b32 {v(T)}, 2, {vG}
              v_xor_b32 {v(T+1)}, {v(T+1)}, {v(T)}
              v_lshl_add_u32 {vWb}, {v(T+1)}, 4, {vWb}
              v_xor_b32 {vWb2}, 16, {vWb}
              v_lshlrev_b32 {vWc}, 10, {vG}
              v_lshlrev_b32 {v(T)}, 1, {vG}
              v_xor_b32 {v(T)}, {v(T)}, {vN}
              v_lshl_or_b32 {vWc}, {v(T)}, 4, {vWc}
              v_xor_b32 {vWc2}, 128, {vWc}
              s_mul_i32 {sW2o}, s3, {128*3584}
              s_lshl_b32 {sT2}, {sGI}, 6
              s_add_u32 {sW2o}, {sW2o}, {sT2}
              s_lshl_b32 {sW2m}, s3, 14
              s_add_u32 {sW2m}, {sW2m}, {GU_L}
              s_lshl_b32 {sWo}, {sHEAD}, 17
              s_lshl_b32 {sT2}, {sCS}, 7
              s_add_u32 {sWo}, {sWo}, {sT2}
              s_lshl_b32 {sT2}, s3, 15
              s_add_u32 {sWo}, {sWo}, {sT2}
              s_lshl_b32 {sWm}, s3, 12
              s_add_u32 {sWm}, {sWm}, {WO_L}""")
    def consts1():
        A(f"""v_and_b32 {v(T)}, 1, v0
              v_cmp_eq_u32 vcc, 1, {v(T)}
              v_mov_b32 {v(T+1)}, 0x0c0c0100
              v_mov_b32 {v(T+2)}, 0x01000c0c
              v_cndmask_b32 {v(T+1)}, {v(T+1)}, {v(T+2)}, vcc
              v_mov_b32 {v(T+2)}, 0x0c0c0302
              v_mov_b32 {v(T+3)}, 0x03020c0c
              v_cndmask_b32 {v(T+2)}, {v(T+2)}, {v(T+3)}, vcc
              v_bfe_u32 {v(T)}, v0, 1, 1
              v_bfe_u32 {v(T+3)}, v0, 3, 1
              v_lshl_or_b32 {v(T)}, {v(T+3)}, 1, {v(T)}
              v_mov_b32 {v(T+3)}, 0x0c0c0c0c""")
        for r in range(4):
            A(f"""v_cmp_eq_u32 vcc, {r}, {v(T)}
                  v_cndmask_b32 {v(SEL+r)}, {v(T+3)}, {v(T+1)}, vcc
                  v_cndmask_b32 {v(SEL+4+r)}, {v(T+3)}, {v(T+2)}, vcc""")
    def consts2():
        A(f"s_mul_i32 {sT}, s3, 4608\n s_add_u32 {sT}, {sT}, {P_L}\n v_mov_b32 {vNINF}, 0xff800000")
        A(f"""v_bfe_u32 {v(T)}, v0, 4, 1
              v_lshlrev_b32 {vPw}, 7, {v(T)}
              v_and_b32 {v(T)}, 7, v0
              v_lshl_or_b32 {vPw}, {v(T)}, 4, {vPw}
              v_bfe_u32 {v(T)}, v0, 5, 1
              v_lshl_or_b32 {vPw}, {v(T)}, 3, {vPw}
              v_bfe_u32 {v(T)}, v0, 3, 1
              v_lshl_or_b32 {vPw}, {v(T)}, 2, {vPw}
              v_add_u32 {vPw}, {sT}, {vPw}
              v_and_b32 {v(T)}, 4, v0
              v_lshlrev_b32 {vPr}, 5, {v(T)}
              v_lshl_or_b32 {vPr}, {vG}, 5, {vPr}
              v_add_u32 {vPr}, {sT}, {vPr}
              v_mov_b32 {m01}, 0xff800000
              v_mov_b32 {m23}, 0xff800000
              v_mov_b32 {l01}, 0
              v_mov_b32 {l23}, 0""")
    def tc1():
        A(f"""s_lshl_b32 {sT}, s3, 11
              s_add_u32 {sT}, {sT}, {T0_L}
              v_bfe_u32 {v(T)}, v0, 4, 1
              v_lshlrev_b32 {vT0w}, 9, {v(T)}
              v_lshl_or_b32 {vT0w}, {vN}, 5, {vT0w}
              v_bfe_u32 {v(T)}, v0, 5, 1
              v_lshl_or_b32 {vT0w}, {v(T)}, 4, {vT0w}
              v_add_u32 {vT0w}, {sT}, {vT0w}
              v_lshlrev_b32 {vT0r}, 3, v0
              v_lshlrev_b32 {vL4}, 2, {vL}
              v_lshlrev_b32 {vL8}, 3, {vL}
              s_and_b32 {sT}, {sWV}, 28
              s_add_u32 {sT}, {sT}, s3
              s_lshl_b32 {sOPs}, {sT}, 14
              s_lshr_b32 {sT}, {sWV}, 6
              s_lshl_b32 {sT}, {sT}, 12
              s_add_u32 {sOPs}, {sOPs}, {sT}
              s_and_b32 {sT}, {sWV}, 3
              s_lshl_b32 {sT}, {sT}, 10
              s_add_u32 {sOPs}, {sOPs}, {sT}
              s_and_b32 {sT}, {sWV}, 32
              s_lshl_b32 {sT}, {sT}, 4
              s_add_u32 {sOPs}, {sOPs}, {sT}
              s_add_u32 {sOPs}, {sOPs}, {OP}
              s_lshl_b32 {sOPl}, {sHEAD}, 14
              s_lshl_b32 {sT}, s3, 12
              s_add_u32 {sOPl}, {sOPl}, {sT}
              s_add_u32 {sOPl}, {sOPl}, {OP}""")
    def tc2():
        A(f"""v_lshrrev_b32 {v(T)}, 5, v0
              v_and_b32 {v(T+1)}, 31, v0
              v_mul_u32_u24 {vOw}, 288, {v(T)}
              v_lshl_add_u32 {vOw}, {v(T+1)}, 3, {vOw}
              v_and_b32 {v(T)}, 7, v0
              v_mul_u32_u24 {v(T+1)}, 288, {v(T)}
              v_lshl_add_u32 {v(T+1)}, {vG}, 4, {v(T+1)}
              v_add_u32 {vBl}, {O_L}, {v(T+1)}
              v_lshlrev_b32 {vYs}, 4, {v(T)}
              v_and_b32 {v(T+1)}, 16, v0
              v_lshl_or_b32 {vYs}, {v(T+1)}, 3, {vYs}
              v_and_b32 {v(T+1)}, 32, v0
              v_lshl_or_b32 {vYs}, {v(T+1)}, 8, {vYs}
              v_cndmask_b32 {vYs}, {vYs}, {vNINF}, {sM8}
              s_lshl_b32 {sYs}, {sCS}, 16
              s_lshl_b32 {sT}, {sHEAD}, 8
              s_add_u32 {sYs}, {sYs}, {sT}
              s_lshl_b32 {sT}, s3, 14
              s_add_u32 {sYs}, {sYs}, {sT}
              s_add_u32 {sYs}, {sYs}, {YP}
              v_lshrrev_b32 {v(T)}, 2, {vN}
              v_lshl_add_u32 {v(T)}, {vG}, 3, {v(T)}
              v_and_b32 {v(T+1)}, 3, v0
              v_lshlrev_b32 {vWOr}, 7, {v(T)}
              v_lshl_or_b32 {vWOr}, {v(T+1)}, 3, {vWOr}
              v_bfe_u32 {v(T+1)}, v0, 3, 2
              v_xor_b32 {v(T+1)}, s3, {v(T+1)}
              v_lshl_or_b32 {vWOr}, {v(T+1)}, 5, {vWOr}
              v_add_u32 {vWOr}, {WO_L}, {vWOr}
              v_and_b32 {vTB}, {sFF}, {vTAG}
              v_and_b32 {vEM}, 1, v0
              v_add_u32 {vEM}, {sFF}, {vEM}
              v_and_b32 {vEM}, {sFF}, {vEM}
""")
    setupA(); A(f"s_mov_b32 s75, {sT2}")
    A(f"v_mul_u32_u24 {v(T+2)}, {XN_S}, {v(T+2)}\n v_add_u32 {v(T+2)}, {v(T+2)}, {v(T+4)}")
    F = BIG + 8; G = F + 16
    def rowsum32(r, t):
        for k in (8, 4, 2, 1): A(f"v_add_f32_dpp {r}, {r}, {r} row_ror:{k} {DPPM}")
        A(f"v_mov_b32 {t}, {r}\n v_permlane16_swap_b32 {r}, {t}\n v_add_f32 {r}, {r}, {t}")
    def ln_scalars(mean, var, mb, rinv):
        A(f"""v_cvt_pk_bf16_f32 {rinv}, {mean}, {var}
              v_lshlrev_b32 {mb}, 16, {rinv}
              v_and_b32 {rinv}, {sHI}, {rinv}
              v_add_f32 {rinv}, 0x3727c5ac, {rinv}
              v_cvt_pk_bf16_f32 {rinv}, {rinv}, {rinv}
              v_lshlrev_b32 {rinv}, 16, {rinv}
              v_sqrt_f32 {rinv}, {rinv}
              v_cvt_pk_bf16_f32 {rinv}, {rinv}, {rinv}
              v_lshlrev_b32 {rinv}, 16, {rinv}
              v_rcp_f32 {rinv}, {rinv}""")
    A("s_waitcnt vmcnt(16)")
    stamp(1)
    for i in range(8): A(f"v_lshlrev_b32 {v(F+2*i)}, 16, {v(BIG+i)}\n v_and_b32 {v(F+2*i+1)}, {sHI}, {v(BIG+i)}")
    for i in range(4): A(f"v_pk_add_f32 {v(G+2*i,2)}, {v(F+2*i,2)}, {v(F+8+2*i,2)}")
    for i in range(2): A(f"v_pk_add_f32 {v(G+2*i,2)}, {v(G+2*i,2)}, {v(G+4+2*i,2)}")
    A(f"v_pk_add_f32 {v(G,2)}, {v(G,2)}, {v(G+2,2)}\n v_add_f32 {v(T+5)}, {v(G)}, {v(G+1)}")
    rowsum32(v(T+5), v(T+6))
    A(f"v_mul_f32 {v(T+5)}, 0x3b000000, {v(T+5)}")
    for i in range(16): A(f"v_sub_f32 {v(G+i)}, {v(F+i)}, {v(T+5)}")
    A(f"v_pk_mul_f32 {v(T+7,2)}, {v(G,2)}, {v(G,2)}")
    for i in range(1, 8): A(f"v_pk_fma_f32 {v(T+7,2)}, {v(G+2*i,2)}, {v(G+2*i,2)}, {v(T+7,2)}")
    A(f"v_add_f32 {v(T+7)}, {v(T+7)}, {v(T+8)}")
    rowsum32(v(T+7), v(T+6))
    A(f"v_mul_f32 {v(T+7)}, 0x3b000000, {v(T+7)}")
    ln_scalars(v(T+5), v(T+7), v(T+8), v(T+9))
    for i in range(16): A(f"v_sub_f32 {v(F+i)}, {v(F+i)}, {v(T+8)}")
    for i in range(8): A(f"v_cvt_pk_bf16_f32 {v(BIG+i)}, {v(F+2*i)}, {v(F+2*i+1)}")
    for i in range(8): A(f"v_lshlrev_b32 {v(F+2*i)}, 16, {v(BIG+i)}\n v_and_b32 {v(F+2*i+1)}, {sHI}, {v(BIG+i)}")
    for i in range(16): A(f"v_mul_f32 {v(F+i)}, {v(F+i)}, {v(T+9)}")
    for i in range(8): A(f"v_cvt_pk_bf16_f32 {v(BIG+i)}, {v(F+2*i)}, {v(F+2*i+1)}")
    A(f"ds_write_b128 {v(T+2)}, {v(BIG,4)} offset:{XN_L}\n ds_write_b128 {v(T+2)}, {v(BIG+4,4)} offset:{XN_L+512}")
    A(f"""v_and_b32 {v(T+3)}, 7, v0
          v_mul_u32_u24 {v(T)}, {XN_S}, {v(T+3)}
          v_lshl_add_u32 {v(T)}, {vG}, 4, {v(T)}
          v_lshrrev_b32 {v(T+1)}, 2, {vN}
          v_lshl_add_u32 {v(T+1)}, {vG}, 3, {v(T+1)}
          v_lshlrev_b32 {v(T+1)}, 7, {v(T+1)}
          v_and_b32 {v(T+3)}, 3, v0
          v_lshl_add_u32 {v(T+1)}, {v(T+3)}, 3, {v(T+1)}
          v_bfe_u32 {v(T+3)}, v0, 3, 2
          v_xor_b32 {v(T+3)}, s3, {v(T+3)}
          v_lshl_add_u32 {v(T+1)}, {v(T+3)}, 5, {v(T+1)}
          v_add_u32 {v(T+1)}, {WQ_L}, {v(T+1)}
          v_lshlrev_b32 {v(T+2)}, 14, {vN}
          v_lshl_add_u32 {v(T+2)}, {vG}, 4, {v(T+2)}
          s_lshl_b32 {sT}, s3, 6
          s_lshl_b32 {sT3}, {sLC}, 8
          s_add_u32 {sT}, {sT}, {sT3}
          v_mov_b32 {v(O1+1)}, {vTAG}
          v_mov_b32 {v(O1+3)}, {vTAG}
          s_waitcnt vmcnt(0) lgkmcnt(0)""")
    if loc[0]: xl_load(A, v(T+12))
    stamp(8, True)
    A("s_barrier")
    XF = 0; WF = 64
    for ks in range(16):
        A(f"ds_read_b128 {a(XF+4*ks)}, {v(T)} offset:{XN_L + ks*64}")
        A(f"ds_read_b64_tr_b16 {a(WF+4*ks,2)}, {v(T+1)} offset:{ks*4096}")
        A(f"ds_read_b64_tr_b16 {a(WF+4*ks+2,2)}, {v(T+1)} offset:{ks*4096 + 512}")
        if ks % 2 == 1 and ks >= 3:
            A("s_waitcnt lgkmcnt(6)")
            for k2 in range(ks - 3, ks - 1): mfma(v(O0,4), a(WF+4*k2), a(XF+4*k2), v(O0,4) if k2 else 0)
    A("s_waitcnt lgkmcnt(0)")
    for k2 in range(14, 16): mfma(v(O0,4), a(WF+4*k2), a(XF+4*k2), v(O0,4))
    A(f"v_cvt_pk_bf16_f32 {v(O1)}, {v(O0)}, {v(O0+1)}\n v_cvt_pk_bf16_f32 {v(O1+2)}, {v(O0+2)}, {v(O0+3)}")
    if loc[0]:
        A("s_waitcnt vmcnt(0)"); xl_eval(v(T+12))
        if stamps: A(f"s_mov_b32 s101, {sLOC}")
    A(f"s_not_b64 exec, {sM8}")
    lstore(f"buffer_store_dwordx4 {v(O1,4)}, {v(T+2)}, {sW}, {sT} offen", loc[0])
    A(f"s_mov_b64 exec, -1\n s_mov_b32 {sT2}, s75")
    stamp(2)
    setup0(False); wsetup()
    def wdloads(thr=None):
        A(f"""s_lshl_b32 {sT2}, {sGI}, 15
              s_lshl_b32 {sT}, s3, 8
              s_add_u32 {sT2}, {sT2}, {sT}
              s_lshl_b32 {sT}, s3, 13
              s_add_u32 m0, {sT}, {WD_L}""")
        for k in range(8):
            if thr: A(f"s_waitcnt vmcnt({thr - 1})")
            A(f"buffer_load_dwordx4 {vWc2 if k & 2 else vWc}, {sD}, {sT2} offen nt lds")
            if k < 7: A(f"s_add_u32 {sT2}, {sT2}, 4096\n s_add_u32 m0, m0, 1024")
    for f in (consts1, consts2, tc1, tc2, pgsetup): f()
    A("s_barrier\n s_branch L_J")
    A.label("L_B")
    items = []; consumed = [-1]; extras = {}
    def item(cost, fn, req=None, minstep=0): items.append((cost, req, minstep, fn))
    def extra(step, fn): extras.setdefault(step, []).append(fn)
    def retry_guard(back):
        A(f"s_add_u32 {sCNT}, {sCNT}, 1\n s_cmp_ge_u32 {sCNT}, {cap}\n s_cbranch_scc1 {back}")
        if sleep: A(f"s_sleep {sleep}")

    item(36, setupA); item(44, setup0); item(4, pgsetup); item(20, lambda: tagfin(lambda t: vm(t, False))); item(33, wsetup); item(26, consts1); item(22, consts2); item(28, tc1); item(44, tc2)

    def xr():
        A(f"""v_bfe_u32 {v(T+10)}, v0, 2, 3
              v_lshlrev_b32 {v(T+10)}, 10, {v(T+10)}
              v_and_b32 {v(T+11)}, 3, v0
              v_lshl_or_b32 {v(T+10)}, {v(T+11)}, 1, {v(T+10)}
              v_bfe_u32 {v(T+11)}, v0, 5, 1
              v_lshl_or_b32 {v(T+10)}, {v(T+11)}, 3, {v(T+10)}
              s_lshr_b32 {sT}, {sWV}, 2
              s_lshl_b32 {sT}, {sT}, 4""")
        vm(f"buffer_load_ushort {vXR}, {v(T+10)}, {sX}, {sT} offen")
    def gu_op(j, f):
        A(f"s_add_u32 m0, {sW2m}, {(j&1)*8192 + (j>>1)*1024}")
        f(f"buffer_load_dwordx4 {vWb2 if j & 1 else vWb}, {sU if j & 1 else sG}, {sW2o} offen {wnt} lds")
        if j & 1: A(f"s_add_u32 {sW2o}, {sW2o}, {16*3584}")
    def wo_dma(f):
        for j in range(4):
            A(f"s_add_u32 m0, {sWm}, {j*1024}")
            f(f"buffer_load_dwordx4 {vWa2 if j & 1 else vWa}, {sO}, {sWo} offen nt lds")
            A(f"s_add_u32 {sWo}, {sWo}, 8192")
        if pre:
            A(f"""s_lshr_b32 {sT2}, {sWV}, 2
                  s_lshl_b32 {sT2}, {sT2}, 13
                  s_lshl_b32 {sT}, s3, 11
                  s_add_u32 {sT2}, {sT2}, {sT}
                  s_add_u32 {sT2}, {sT2}, {YP}
                  s_cmp_eq_u32 {sROLE}, 3
                  s_cselect_b32 {sT2}, {sT2}, 0x7f000000""")
            f(f"buffer_load_dwordx4 {v(224,4)}, {vVo}, {sW}, {sT2} offen sc1")
            f(f"buffer_load_dwordx4 {v(228,4)}, {vVo}, {sW}, {sT2} offen offset:1024 sc1")
    extra(IWO - 1, xr)
    GUF = 128; WDF = 192
    QT = 188; QAD = T + 13
    def qloads(f):
        for k in range(4):
            r = f(f"buffer_load_dwordx4 {v(QT+4*k,4)}, {v(QAD)}, {sW}, {sT3} offen offset:{(k>>1)*256 + (k&1)*16} sc1")
        return r
    def qload():
        A(f"""v_and_b32 {v(QAD)}, 3, v0
              v_lshlrev_b32 {v(QAD)}, 9, {v(QAD)}
              v_and_b32 {v(T+11)}, 4, v0
              v_add_u32 {v(T+11)}, {v(T+11)}, {vG}
              v_lshl_or_b32 {v(QAD)}, {v(T+11)}, 5, {v(QAD)}
              s_lshr_b32 {sT3}, {sWV}, 2
              s_lshl_b32 {sT3}, {sT3}, 11""")
        xl_load(vm, v(QT+16))
        st["q"] = qloads(vm)
    extra(IQ, qload)
    def qprep():
        wait_for(st["q"])
        A.label("L_qchk")
        A(f"""v_max3_u32 {v(T)}, {v(QT+1)}, {v(QT+3)}, {v(QT+5)}
              v_min3_u32 {v(T+1)}, {v(QT+1)}, {v(QT+3)}, {v(QT+5)}
              v_max3_u32 {v(T)}, {v(T)}, {v(QT+7)}, {v(QT+9)}
              v_min3_u32 {v(T+1)}, {v(T+1)}, {v(QT+7)}, {v(QT+9)}
              v_max3_u32 {v(T)}, {v(T)}, {v(QT+11)}, {v(QT+13)}
              v_min3_u32 {v(T+1)}, {v(T+1)}, {v(QT+11)}, {v(QT+13)}
              v_max3_u32 {v(T)}, {v(T)}, {v(QT+15)}, {sTAG}
              v_min3_u32 {v(T+1)}, {v(T+1)}, {v(QT+15)}, {sTAG}
              v_cmp_ne_u32 vcc, {v(T)}, {v(T+1)}
              s_cbranch_vccnz L_qretry""")
        A.label("L_qok")
        if bal: A(f"s_cmp_lg_u32 {sMODE}, 0\n s_cselect_b64 vcc, -1, 0")
        def o():
            A.label("L_qretry"); retry_guard("L_qok"); qloads(A); A("s_waitcnt vmcnt(0)\n s_branch L_qchk")
        ool.append(o)
        xl_eval(v(QT+16))
        stamp(4)
        if stamps and not bal: A(f"s_mov_b32 s100, {sCNT}")
        for c in range(2):
            for r in range(4):
                A(f"v_cndmask_b32 {v(QA+8*c+r)}, {v(QT+8*c+2*r)}, 0, {sM8}\n v_cndmask_b32 {v(QA+8*c+4+r)}, 0, {v(QT+8*c+2*r)}, {sM8}")
    item(32, qprep, minstep=IQ + D + ES + 1)
    def kitem(i):
        def f():
            u = i >> 3; d = DS + 8 * (u & 1) + 4 * ((i >> 2) & 1); o = (i >> 1) & 1; c = i & 1
            if 'm' not in abl: mfma(v(d,4), v(QA+8*c+4*o,4), a(slot(i)), v(d,4) if i & 3 else 0)
            consumed[0] = i
        return f
    def post(u):
        def f():
            d = DS + 8 * (u & 1)
            if 'x' in abl: return
            for r in range(4): A(f"v_cndmask_b32 {v(T+r)}, {v(d+4+r)}, {v(d+r)}, {sMV}")
            A(f"""v_permlane16_swap_b32 {v(T)}, {v(T+1)}
                  v_permlane16_swap_b32 {v(T+2)}, {v(T+3)}
                  v_add_f32_dpp {v(T)}, {v(T+1)}, {v(T)} quad_perm:[1,0,3,2] {DPPM}
                  v_add_f32_dpp {v(T+2)}, {v(T+3)}, {v(T+2)} quad_perm:[1,0,3,2] {DPPM}
                  v_cvt_pk_bf16_f32 {v(T)}, {v(T)}, {v(T+2)}
                  v_and_b32 {v(T+1)}, {sHI}, {v(T)}
                  v_lshlrev_b32 {v(T)}, 16, {v(T)}
                  v_mul_f32 {v(T+1)}, {sSCALE}, {v(T+1)}
                  v_mul_f32 {v(T)}, {sSCALE}, {v(T)}
                  v_cvt_pk_bf16_f32 {v(T)}, {v(T)}, {v(T+1)}
                  v_lshlrev_b32 {v(S+2*u)}, 16, {v(T)}
                  v_and_b32 {v(S+2*u+1)}, {sHI}, {v(T)}""")
            if 8 * u < NO:
                A(f"v_cndmask_b32 {v(S+2*u)}, {v(S+2*u)}, {vNINF}, {sOPT}\n v_cndmask_b32 {v(S+2*u+1)}, {v(S+2*u+1)}, {vNINF}, {sOPT}")
            A(f"""v_max_f32 {m01}, {m01}, {v(S+2*u)}
                  v_max_f32 {m23}, {m23}, {v(S+2*u+1)}""")
        return f
    for i in range(NK):
        item(3, kitem(i), req=i)
        if i >= 8 and (i & 7) == 3: item(22, post((i >> 3) - 1))
    item(26, post(16))
    def allred2(op, x, y):
        for k in (8, 4, 2, 1): A(f"{op}_dpp {x}, {x}, {x} row_ror:{k} {DPPM}\n {op}_dpp {y}, {y}, {y} row_ror:{k} {DPPM}")
    def half2(op, x, y):
        A(f"""v_mov_b32 {v(T)}, {x}
              v_mov_b32 {v(T+1)}, {y}
              v_permlane32_swap_b32 {x}, {v(T)}
              v_permlane32_swap_b32 {y}, {v(T+1)}
              {op} {x}, {x}, {v(T)}
              {op} {y}, {y}, {v(T+1)}""")
    def maxred():
        stamp(5)
        allred2("v_max_f32", m01, m23); half2("v_max_f32", m01, m23)
        A(f"v_mul_f32 {nm01}, {sLOG}, {m01}\n v_mul_f32 {nm23}, {sLOG}, {m23}")
    item(22, maxred)
    done = set()
    def expi(u):
        def f():
            done.add(u)
            A(f"""v_fma_f32 {v(T)}, {v(S+2*u)}, {sLOG}, -{nm01}
                  v_fma_f32 {v(T+1)}, {v(S+2*u+1)}, {sLOG}, -{nm23}
                  v_exp_f32 {v(T)}, {v(T)}
                  v_exp_f32 {v(T+1)}, {v(T+1)}
                  v_add_f32 {l01}, {l01}, {v(T)}
                  v_add_f32 {l23}, {l23}, {v(T+1)}
                  v_cvt_pk_bf16_f32 {v(T+2)}, {v(T)}, {v(T+1)}
                  ds_write_b32 {vPw}, {v(T+2)} offset:{u*256}""")
        return f
    def areg(j):
        k = j - (NK - PB)
        return A0 if k < 0 else (32 + 8 * k if k < 4 else 68 + 8 * (k - 4))
    def rdi(k):
        def f():
            p = vorder[k]; assert (p >> 1) in done
            A(f"ds_read_b128 {v(PP + 4 * (k & 7),4)}, {vPr} offset:{(p >> 1) * 256 + (p & 1) * 16}")
        return f
    def vperm(j):
        def f():
            p = PP + (j & 31)
            if 'x' in abl: return
            if (j & 15) == 0: A("s_waitcnt lgkmcnt(0)")
            for uu in range(2):
                for r in range(4): A(f"v_perm_b32 {v(areg(j)+4*uu+r)}, {v(p)}, {v(p)}, {v(SEL+4*uu+r)}")
        return f
    def vmm(j):
        def f():
            i = NK + j
            if 'm' in abl:
                consumed[0] = i; return
            mfma(v(O0,4), v(areg(j),4), a(slot(i)), v(O0,4) if j else 0)
            mfma(v(O1,4), v(areg(j)+4,4), a(slot(i)), v(O1,4) if j else 0)
            consumed[0] = i
        return f
    def mlpub():
        allred2("v_add_f32", l01, l23); half2("v_add_f32", l01, l23)
        A(f"""v_and_b32 {v(T+2)}, 16, v0
              s_lshl_b32 {sT}, {sWV}, 2
              s_add_u32 {sT}, {sT}, s3
              s_lshl_b32 {sT}, {sT}, 5
              s_add_u32 {sT}, {sT}, {ML}
              v_bfi_b32 {v(220)}, {sHI}, {m01}, {vTAG}
              v_bfi_b32 {v(221)}, {sHI}, {m23}, {vTAG}
              v_bfi_b32 {v(222)}, {sFF}, {vTAG}, {l01}
              v_bfi_b32 {v(223)}, {sFF}, {vTAG}, {l23}
              s_mov_b64 exec, 0x10001""")
        lstore(f"buffer_store_dwordx4 {v(220,4)}, {v(T+2)}, {sW}, {sT} offen", loc[1], vm)
        A("s_mov_b64 exec, -1")
    GM = 188; GA = T + 14
    def mlload():
        A(f"""v_and_b32 {v(GA)}, 16, v0
              v_lshl_or_b32 {v(GA)}, {vN}, 5, {v(GA)}
              s_lshr_b32 {sT3}, {sWV}, 2
              s_lshl_b32 {sT3}, {sT3}, 9
              s_add_u32 {sT3}, {sT3}, {ML}""")
        st["ml"] = vm(f"buffer_load_dwordx4 {v(GM,4)}, {v(GA)}, {sW}, {sT3} offen sc1")
    def mlfac1():
        wait_for(st["ml"])
        A.label("L_mlchk")
        A(f"""v_bitop3_b32 {v(T)}, {v(GM)}, {v(GM+1)}, {vTAG} bitop3:0x7e
              v_bitop3_b32 {v(T+1)}, {v(GM+2)}, {v(GM+3)}, {vTAG} bitop3:0x7e
              v_lshlrev_b32 {v(T)}, 16, {v(T)}
              v_and_or_b32 {v(T)}, {v(T+1)}, {sFF}, {v(T)}
              v_cmp_ne_u32 vcc, 0, {v(T)}
              s_cbranch_vccnz L_mlretry""")
        A.label("L_mlok")
        if bal: A(f"s_cmp_lg_u32 {sMODE}, 0\n s_cselect_b64 vcc, -1, 0")
        def o():
            A.label("L_mlretry"); retry_guard("L_mlok")
            A(f"buffer_load_dwordx4 {v(GM,4)}, {v(GA)}, {sW}, {sT3} offen sc1\n s_waitcnt vmcnt(0)\n s_branch L_mlchk")
        ool.append(o)
        A(f"v_and_b32 {v(GM)}, {sHI}, {v(GM)}\n v_and_b32 {v(GM+1)}, {sHI}, {v(GM+1)}\n v_xor_b32 {v(GM+2)}, {v(GM+2)}, {vTB}\n v_xor_b32 {v(GM+3)}, {v(GM+3)}, {vTB}\n v_mov_b32 {v(GM+4)}, {v(GM)}\n v_mov_b32 {v(GM+5)}, {v(GM+1)}")
        allred2("v_max_f32", v(GM+4), v(GM+5))
        A(f"""v_sub_f32 {v(GM)}, {v(GM)}, {v(GM+4)}
              v_sub_f32 {v(GM+1)}, {v(GM+1)}, {v(GM+5)}
              v_sub_f32 {f01}, {m01}, {v(GM+4)}
              v_sub_f32 {f23}, {m23}, {v(GM+5)}
              v_mul_f32 {v(GM)}, {sLOG}, {v(GM)}
              v_mul_f32 {v(GM+1)}, {sLOG}, {v(GM+1)}
              v_mul_f32 {f01}, {sLOG}, {f01}
              v_mul_f32 {f23}, {sLOG}, {f23}""")
    def mlfac2():
        A(f"""v_exp_f32 {v(GM)}, {v(GM)}
              v_exp_f32 {v(GM+1)}, {v(GM+1)}
              v_exp_f32 {f01}, {f01}
              v_exp_f32 {f23}, {f23}
              v_mul_f32 {v(GM)}, {v(GM)}, {v(GM+2)}
              v_mul_f32 {v(GM+1)}, {v(GM+1)}, {v(GM+3)}""")
        allred2("v_add_f32", v(GM), v(GM+1))
        A(f"""v_rcp_f32 {v(GM)}, {v(GM)}
              v_rcp_f32 {v(GM+1)}, {v(GM+1)}
              v_mul_f32 {f01}, {f01}, {v(GM)}
              v_mul_f32 {f23}, {f23}, {v(GM+1)}""")
    uorder = list(dict.fromkeys(p >> 1 for p in vorder))
    for k in range(3): item(9, expi(uorder[k]))
    for k in range(4): item(1, rdi(k))
    ne = 3
    for j in range(NK):
        t = j & 7
        if j < NK - PB: item(9, vperm(j))
        if PB and NK - PB - 4 <= j < NK - PB: item(9, vperm(NK - PB + 2 * (j - (NK - PB - 4)))); item(9, vperm(NK - PB + 2 * (j - (NK - PB - 4)) + 1))
        item(5, vmm(j), req=NK + j)
        if (j & 15) == (12 if j < 112 or not PB else 4):
            for k in range(4 * (j >> 4) + 4, min(34, 4 * (j >> 4) + 8)): item(1, rdi(k))
        if t in (0, 2, 4, 6) and ne < 17:
            item(9, expi(uorder[ne])); ne += 1
            if ne == 17: item(28, mlpub)
        if NK + j == IML + 2: item(36, mlfac1)
        if NK + j == IML + 4: item(22, mlfac2)
    extra(IML, mlload)
    if warm1:
        def cw():
            A("s_getpc_b64 s[0:1]")
            A.label("L_pc")
            A(f"s_add_u32 s0, s0, L_tail-L_pc\n s_addc_u32 s1, s1, 0\n v_lshlrev_b32 {v(T+10)}, 4, v0")
            vm(f"global_load_dwordx4 {v(228,4)}, {v(T+10)}, s[0:1]")
        extra(IML - 8, cw)

    sMODE = "s21"; sPG = "s22"; PGV = T + 12; PGA = "v243"
    if bal:
        assert not dbg
        one = bal.get("one")
        def ck(k, stp):
            def f():
                c = (5 + 3 * k) % 32
                if one: A(f"s_cmp_lg_u32 s3, {k & 3}\n s_cbranch_scc1 L_np{k}")
                A(f"""s_and_b32 {sT}, s2, 7
                      s_mul_i32 {sT2}, {sT}, {c}
                      s_lshr_b32 {sPG}, s2, 3
                      s_add_u32 {sPG}, {sPG}, {sT2}
                      s_add_u32 {sPG}, {sPG}, {(11 * k) % 32}
                      s_and_b32 s0, {sPG}, 31
                      s_and_b32 {sPG}, {sPG}, {bal.get("ns", 32) - 1}
                      s_lshl_b32 {sPG}, {sPG}, 7
                      s_add_u32 {sPG}, {sPG}, {PG + k * 4096}
                      s_load_dwordx8 s[64:71], s[26:27], {sPG} {bal.get("glc", "glc")}""")
                if k == 2 and "v" in stouch: A("s_load_dword s16, s[32:33], 0 glc")
                if k == 8 and "w" in stouch: A(f"s_load_dword s16, s[48:49], {sWo} glc\n s_load_dword s17, s[18:19], {sCS} glc")
                if k == 9 and "w" in stouch: A(f"s_load_dword s16, s[52:53], {sW2o} glc\n s_load_dword s17, s[56:57], {sW2o} glc\n s_load_dword s20, s[60:61], {sW2o} glc")
                if k == 10 and "x" in stouch: A(f"s_lshl_b32 s16, s2, 8\n s_add_u32 s16, s16, 0x210000\n s_load_dword s16, s[26:27], s16 glc")
                if not one: A(f"s_cmp_lg_u32 s3, {k & 3}\n s_cbranch_scc1 L_np{k}")
                if bal.get("ns", 32) < 32: A(f"s_cmp_ge_u32 s0, {bal['ns']}\n s_cbranch_scc1 L_np{k}")
                A(f"""s_lshl_b32 {sT}, {sT}, 2
                      s_xor_b32 {sPG}, {sPG}, {bal.get("sep", 0) * 128}
                      s_add_u32 {sPG}, {sPG}, {sT}
                      s_atomic_swap {sTAG}, s[26:27], {sPG}""")
                A.label(f"L_np{k}")
            def setmode():
                if bal.get("noA"): A(f"s_min_u32 {sMODE}, {sMODE}, {sCLS}")
                A(f"s_cmp_lg_u32 {sMODE}, 0\n s_cselect_b64 vcc, -1, 0")
                if stamps: A(f"s_add_u32 s100, s100, {sMODE}")
            def g():
                if one: A(f"s_cmp_lg_u32 s3, {k & 3}\n s_cbranch_scc1 L_ng{k}")
                A(f"s_waitcnt lgkmcnt(0)\n s_cmp_eq_u32 {sCLS}, 0\n s_cselect_b32 {sT}, {bal.get('aoff', 0)}, 0")
                for r in range(64, 72): A(f"s_cmp_eq_u32 s{r}, {sTAG}\n s_addc_u32 {sT}, {sT}, 0")
                A(f"s_cmp_lt_i32 {sT}, {bal['th']}\n s_cselect_b32 {sMODE}, 1, 0")
                if one:
                    A(f"v_mov_b32 {v(PGV)}, {sMODE}\n ds_write_b32 {PGA}, {v(PGV)}")
                    A.label(f"L_ng{k}")
                else: setmode()
            def h1(): A(f"ds_read_b32 {v(PGV)}, {PGA}")
            def h2():
                A(f"s_waitcnt lgkmcnt(0)\n v_readfirstlane_b32 {sMODE}, {v(PGV)}\n s_and_b32 {sMODE}, {sMODE}, 1"); setmode()
            return f, g, h1, h2
        k = 0
        for stp in range(bal["first"], bal["last"] + 1, bal["per"]):
            f, g, h1, h2 = ck(k, stp); lg_ = bal.get("lag", 7)
            extra(stp, f); extra(stp + lg_, g)
            if one: extra(stp + lg_ + 2, h1); extra(stp + lg_ + 3, h2)
            k += 1
        assert k <= 32
    qi = [0]
    def run_items(step, bud):
        while qi[0] < len(items):
            cost, req, ms, fn = items[qi[0]]
            if cost > bud or step < ms: break
            if req is not None and (req >= len(kv) or kv[req] > known[0]): break
            fn(); bud -= cost; qi[0] += 1
    run_items(0, 104)
    nsetup = 9
    def tgt(i, d):
        kvs = set(kv)
        j = i - d
        lo = max(j - ES, NO + D)
        for k in range(lo, j):
            if any(o not in kvs for o in range(kv[k] + 1, kv[k + 1])): return kv[k]
        return kv[j]
    stubs = []
    ool.append(lambda: A.lines.extend(stubs))
    def drain(limit):
        q = qi[0]
        while q < len(items):
            cost, req, ms, fn = items[q]
            if req is not None:
                if req >= limit: break
                wait_for(kv[req])
            fn(); q += 1
    for i in range(D0, NS):
        if i == NO:
            assert qi[0] == nsetup and all(k >= NO for k in extras)
            A.label("L_J")
        if i == NS - NO:
            assert "L_mlok:" in A.lines
            A(f"s_cmp_eq_u32 {sCLS}, 0\n s_cbranch_scc1 L_adrain")
            sv = (list(ops), known[0], consumed[0], list(A.hist), len(A.lines))
            A.label("L_adrain")
            for j in range(GE): gu_op(j, vm)
            drain(i)
            for j in range(GE, 16):
                A(f"s_waitcnt vmcnt({GW - 1})"); gu_op(j, A)
            wo_dma(A)
            A("s_nop 7"); A.raw("    s_branch L_tail")
            cut = A.lines[sv[4]:]; del A.lines[sv[4]:]
            ool.append(lambda: A.lines.extend(cut))
            ops[:] = sv[0]; known[0] = sv[1]; consumed[0] = sv[2]; A.hist = sv[3]
        if bal and bal["first"] + bal.get("lag", 7) + 3 < i < bal["off"]:
            A.raw(f"    s_cbranch_vccnz L_s{i}"); A.raw(f"L_b{i}:")
            stubs.append(f"L_s{i}:\n    s_waitcnt vmcnt({after(kv[i - (bal.get('lo2', bal['lo']) if i >= IEND else bal['lo'])])})\n    s_branch L_b{i}")
        wait_for(tgt(i, DEND if i >= IEND else DST if i < IS else D))
        assert consumed[0] >= prevocc(i), (i, consumed[0])
        issue(i)
        for fn in extras.pop(i, []): fn()
        run_items(i, budget)
    assert not extras, extras
    lag = NS - 1 - consumed[0]
    wo_dma(vm); drain(NS)
    A(f"; end lag {lag}")

    A.label("L_tail")
    stamp(6)
    X = 96; DM = 88; BL = 8; PS = 176
    for r in (0, 2): A(f"v_pk_mul_f32 {v(O0+r,2)}, {v(O0+r,2)}, {v(122,2)} op_sel_hi:[1,0]")
    A(f"ds_write_b128 {vT0w}, {v(O0,4)}")
    for r in (0, 2): A(f"v_pk_mul_f32 {v(O1+r,2)}, {v(O1+r,2)}, {v(122,2)} op_sel:[0,1]")
    A(f"ds_write_b128 {vT0w}, {v(O1,4)} offset:1024")
    A("s_waitcnt lgkmcnt(0)\n s_barrier")
    A(f"""ds_read2st64_b64 {v(DM,4)}, {vT0r} offset0:0 offset1:4
          ds_read2st64_b64 {v(DM+4,4)}, {vT0r} offset0:8 offset1:12
          s_waitcnt lgkmcnt(1)
          v_pk_add_f32 {v(DM,2)}, {v(DM,2)}, {v(DM+2,2)}
          s_waitcnt lgkmcnt(0)
          v_pk_add_f32 {v(DM+4,2)}, {v(DM+4,2)}, {v(DM+6,2)}
          v_pk_add_f32 {v(DM,2)}, {v(DM,2)}, {v(DM+4,2)}
          v_bfi_b32 {v(DM)}, {vEM}, {vTAG}, {v(DM)}
""")
    lstore(f"buffer_store_dwordx2 {v(DM,2)}, {vL8}, {sW}, {sOPs} offen", loc[2])
    stamp(1, "t")
    def poll(name, n, loads, body, S, tau, pre_issued=False):
        if pre_issued: A(f"s_branch L_{name}b")
        A.label(f"L_{name}")
        A(f"s_add_u32 {sCNT}, {sCNT}, 1\n s_cmp_lt_u32 {sCNT}, {cap}")
        A.raw(f"    s_cbranch_scc0 L_{name}ok")
        loads(PS)
        A.label(f"L_{name}b")
        body(PS, 0)
        A(f"s_cbranch_vccnz L_{name}")
        A.label(f"L_{name}ok")
    MK = ["s[28:29]", "s[30:31]", "s[32:33]", "s[34:35]"]
    def mpl(name, n, ld, chk, sel, spec, init=None):
        p = PS
        for k in range(n): A(f"s_mov_b64 {MK[k]}, -1")
        if init: init()
        A.label(f"L_{name}")
        for k in range(n): A(f"s_wqm_b64 exec, {MK[k]}\n {ld(p, k)}")
        A("s_mov_b64 exec, -1")
        for k in range(n):
            if k == 0: A("s_waitcnt vmcnt(0)")
            A(chk(p, k))
            A(f"v_cmp_ne_u32_sdwa {MK[k]}, {v(T+k)}, {v(T+15)} src0_sel:{sel} src1_sel:DWORD")
            if k % 2 == 1:
                spec(p, k)
                A(f"s_or_b64 vcc, {MK[k-1]}, {MK[k]}" if k == 1 else f"s_or_b64 vcc, vcc, {MK[k-1]}\n s_or_b64 vcc, vcc, {MK[k]}")
        A(f"s_cbranch_scc0 L_{name}ok\n s_add_u32 {sCNT}, {sCNT}, 1\n s_cmp_lt_u32 {sCNT}, {cap}\n s_cbranch_scc1 L_{name}")
        A.label(f"L_{name}ok")
    def cmp_tag(reg, sel): A(f"v_cmp_ne_u32_sdwa vcc, {reg}, {v(T+15)} src0_sel:{sel} src1_sel:DWORD")
    A(f"v_mov_b32 {v(T+15)}, 0\n ds_write_b32 {vL4}, {v(T+15)} offset:{Z_L}")
    def l1(p):
        for k in range(4): A(f"buffer_load_dwordx4 {v(p+4*k,4)}, {vVo}, {sW}, {sOPl} offen offset:{k*1024} sc1")
    l1(PS)
    A(f"s_waitcnt vmcnt({7 if pre else 5})")
    stamp(3)
    A("s_barrier")
    for ks in range(4):
        for t2 in range(2): A(f"ds_read_b64_tr_b16 {v(WOF+4*ks+2*t2,2)}, {vWOr} offset:{ks*4096 + t2*512}")
    A.label("L_t1s")
    def l1(p):
        for k in range(4): A(f"buffer_load_dwordx4 {v(p+4*k,4)}, {vVo}, {sW}, {sOPl} offen offset:{k*1024} sc1")
    def b1(p, n):
        A(f"""s_waitcnt vmcnt({n+2})
              v_xor_b32 {v(p)}, {v(p)}, {vTB}
              v_xor_b32 {v(p+4)}, {v(p+4)}, {vTB}
              v_pk_add_f32 {v(X+2,2)}, {v(p+2,2)}, {v(p+6,2)}
              v_pk_add_f32 {v(X,2)}, {v(p,2)}, {v(p+4,2)}
              v_or_b32 {v(T)}, {v(p)}, {v(p+4)}
              s_waitcnt vmcnt({n})
              v_xor_b32 {v(p+8)}, {v(p+8)}, {vTB}
              v_xor_b32 {v(p+12)}, {v(p+12)}, {vTB}
              v_or3_b32 {v(T)}, {v(T)}, {v(p+8)}, {v(p+12)}""")
        cmp_tag(v(T), "BYTE_0")
        A(f"v_pk_add_f32 {v(X+4,2)}, {v(p+8,2)}, {v(p+12,2)}\n v_pk_add_f32 {v(X+6,2)}, {v(p+10,2)}, {v(p+14,2)}")
    if mpoll[0]:
        mpl("t1", 4, lambda p, k: f"buffer_load_dwordx4 {v(p+4*k,4)}, {vVo}, {sW}, {sOPl} offen offset:{k*1024} sc1",
            lambda p, k: f"v_bitop3_b32 {v(T+k)}, {v(p+4*k)}, {v(p+4*k+2)}, {vTAG} bitop3:0x7e", "BYTE_0",
            lambda p, k: A(f"v_pk_add_f32 {v(X+2*k-2,2)}, {v(p+4*k-4,2)}, {v(p+4*k,2)}\n v_pk_add_f32 {v(X+2*k,2)}, {v(p+4*k-2,2)}, {v(p+4*k+2,2)}"))
    else:
        poll("t1", 4, l1, b1, NS_[0], tau[0], True)
    A(f"""v_pk_add_f32 {v(X,2)}, {v(X,2)}, {v(X+4,2)}
          v_pk_add_f32 {v(X+2,2)}, {v(X+2,2)}, {v(X+6,2)}
          v_cvt_pk_bf16_f32 {v(X)}, {v(X)}, {v(X+1)}
          v_cvt_pk_bf16_f32 {v(X+1)}, {v(X+2)}, {v(X+3)}
          ds_write_b64 {vOw}, {v(X,2)} offset:{O_L}""")
    stamp(2, "t")
    A("s_waitcnt lgkmcnt(0)\n s_barrier")
    for ks in range(4): A(f"ds_read_b128 {v(BL+4*ks,4)}, {vBl} offset:{ks*64}")
    for ks in range(4):
        if ks in (0, 2): A(f"s_waitcnt lgkmcnt({2-ks})")
        mfma(v(DM+4,4), v(WOF+4*ks,4), v(BL+4*ks,4), v(DM+4,4) if ks else 0)
    A(f"v_bfi_b32 {v(DM+4)}, {sFF}, {vTAG}, {v(DM+4)}\n buffer_store_dwordx4 {v(DM+4,4)}, {vYs}, {sW}, {sYs} offen sc1")
    A.label("L_t1done")

    stamp(7)

    A(f"s_cmp_eq_u32 {sROLE}, 3\n s_cbranch_scc0 L_notr")
    Y = X
    vRa, vRb, vRc, vRd, vRe, vRf, vRg, vRh = [v(i) for i in range(240, 248)]
    A(f"""s_lshr_b32 {sT2}, {sWV}, 2
          s_andn2_b32 {sA}, {sT2}, {4 if 'Y' in abl else 0}
          s_lshl_b32 {sA}, {sA}, 13
          s_lshl_b32 {sT}, s3, 11
          s_add_u32 {sA}, {sA}, {sT}
          s_add_u32 {sA}, {sA}, {YP}
          s_lshl_b32 {sB}, {sT2}, 8
          s_add_u32 {sB}, {sB}, {HB}
          v_lshl_add_u32 {vRb}, {vN}, 2, {vG}
          v_lshlrev_b32 {vRb}, 2, {vRb}
          s_lshl_b32 {sT}, s3, 8
          v_add_u32 {vRb}, {sT}, {vRb}
          v_lshlrev_b32 {vXR}, 16, {vXR}""")
    def b2(p, n, tb2=vTB):
        A(f"""s_waitcnt vmcnt({n})
              v_xor_b32 {v(p)}, {v(p)}, {vTB}
              v_xor_b32 {v(p+4)}, {v(p+4)}, {tb2}
              v_pk_add_f32 {v(Y+2,2)}, {v(p+2,2)}, {v(p+6,2)}
              v_or_b32 {v(T)}, {v(p)}, {v(p+4)}
              v_pk_add_f32 {v(Y,2)}, {v(p,2)}, {v(p+4,2)}""")
        cmp_tag(v(T), "BYTE_0")
    def red_b():
        A(f"""v_permlane32_swap_b32 {v(Y)}, {v(Y+2)}
              v_permlane32_swap_b32 {v(Y+1)}, {v(Y+3)}
              v_pk_add_f32 {v(Y,2)}, {v(Y,2)}, {v(Y+2,2)}
              v_permlane16_swap_b32 {v(Y)}, {v(Y+1)}
              v_add_f32 {v(Y)}, {v(Y)}, {v(Y+1)}""")
    def l2(p): A(f"buffer_load_dwordx4 {v(p,4)}, {vVo}, {sW}, {sA} offen sc1\n buffer_load_dwordx4 {v(p+4,4)}, {vVo}, {sW}, {sA} offen offset:1024 sc1")
    ld2 = lambda p, k: f"buffer_load_dwordx4 {v(p+4*k,4)}, {vVo}, {sW}, {sA} offen offset:{k*1024} sc1"
    ck2 = lambda p, k: f"v_xor_b32 {v(T+k)}, {v(p+4*k)}, {vTAG}"
    sp2 = lambda p, k: A(f"v_pk_add_f32 {v(Y,2)}, {v(p,2)}, {v(p+4,2)}\n v_pk_add_f32 {v(Y+2,2)}, {v(p+2,2)}, {v(p+6,2)}")
    if dlyr == "ack": A("s_waitcnt vmcnt(0)")
    elif dlyr: A(f"s_sleep {dlyr}")
    if mpoll[1]: mpl("r", 2, ld2, ck2, "BYTE_0", sp2)
    else: poll("r", 2, l2, b2, NS_[1], tau[1])
    red_b()
    stamp(3, "t")
    A(f"""ds_write_b32 {vRb}, {v(Y)} offset:{R_L}
          s_waitcnt lgkmcnt(0)
          s_barrier
          s_cmp_lg_u32 s3, 0
          s_cbranch_scc1 L_fin
          ds_read2st64_b32 {v(Y,2)}, {vL4} offset0:{R_L//256} offset1:{R_L//256+1}
          ds_read2st64_b32 {v(Y+2,2)}, {vL4} offset0:{R_L//256+2} offset1:{R_L//256+3}
          s_waitcnt lgkmcnt(0)
          v_pk_add_f32 {v(Y,2)}, {v(Y,2)}, {v(Y+2,2)}
          v_add_f32 {v(Y)}, {v(Y)}, {v(Y+1)}
          v_cvt_pk_bf16_f32 {v(Y)}, {v(Y)}, {v(Y)}
          v_and_b32 {v(Y)}, {sHI}, {v(Y)}
          v_add_f32 {v(Y)}, {v(Y)}, {vXR}
          v_cvt_pk_bf16_f32 {v(Y)}, {v(Y)}, {v(Y)}
          v_bfi_b32 {v(Y)}, {sHI}, {v(Y)}, {vTAG}
          buffer_store_dword {v(Y)}, {vL4}, {sW}, {sB} offen sc1""")
    stamp(4, "t")
    A(f"""s_cmp_lg_u32 {sWV}, 1
          s_cbranch_scc1 L_fin
          v_mov_b32 {v(Y+2)}, {EPOCH}
          s_mov_b64 exec, 1
          buffer_store_dword {vTAG}, {v(Y+2)}, {sW}, 0 offen sc1
          s_mov_b64 exec, -1
          s_branch L_fin""")
    A.label("L_notr")
    A(f"s_cmp_eq_u32 {sROLE}, 1\n s_cbranch_scc1 L_t3\n s_cmp_eq_u32 {sROLE}, 0\n s_cbranch_scc1 L_fin")
    HV = X + 8; SA = 104 + 4; sM11 = sB
    def t2bits(dst):
        A(f"s_and_b32 {sT}, {sTAG}, 1\n s_bfe_u32 {sT3}, {sTAG}, 0x10001\n s_lshl_b32 {sT3}, {sT3}, 16\n s_or_b32 {sT}, {sT}, {sT3}\n v_mov_b32 {dst}, {sT}")
    A(f"s_mov_b32 s64, s18\n s_and_b32 s65, s19, 0xffff\n s_mov_b32 s66, {0 if 'O' in abl else 8192}\n s_mov_b32 s67, 0x20000")
    vT2, vT2b, vK1, vK2 = vRa, vRf, vRg, vRh
    A(f"""s_lshr_b32 {sT2}, {sWV}, 2
          s_mul_i32 {sA}, {sT2}, 7168
          s_mul_i32 {sT}, s3, 1792
          s_add_u32 {sA}, {sA}, {sT}
          s_add_u32 {sA}, {sA}, {PD}
          v_cmp_gt_u32 vcc, 48, {vL}
          v_cndmask_b32 {vRe}, {vNINF}, {vVo}, vcc""")
    def l5(p):
        A(f"""buffer_load_dwordx4 {v(p,4)}, {vVo}, {sW}, {sA} offen sc1
              buffer_load_dwordx4 {v(p+4,4)}, {vRe}, {sW}, {sA} offen offset:1024 sc1""")
    if dly is None: l5(PS)
    t2bits(vT2)
    A(f"""s_lshl_b32 {sDd}, {sT2}, 4
          s_lshl_b32 {sC}, {sT2}, 8
          s_add_u32 {sC}, {sC}, {HB}
          s_mov_b32 {sM11}, 0x10001
          v_and_b32 {v(T)}, 16, v0
          v_lshl_or_b32 {vRb}, {vN}, 5, {v(T)}
          s_lshl_b32 {sT}, s3, 9
          v_add_u32 {vRb}, {sT}, {vRb}
          v_lshrrev_b32 {v(T)}, 3, {vL}
          v_and_b32 {v(T+1)}, 7, v0
          v_lshlrev_b32 {vRc}, 10, {v(T)}
          v_lshl_or_b32 {vRc}, {v(T+1)}, 1, {vRc}
          v_lshlrev_b32 {vRd}, 4, {v(T)}
          v_and_b32 {v(T+2)}, 3, v0
          v_lshl_or_b32 {vRd}, {v(T+2)}, 2, {vRd}
          v_and_b32 {v(T+2)}, 4, v0
          v_lshl_or_b32 {vRd}, {v(T+2)}, 5, {vRd}
          v_cndmask_b32 {vT2b}, 0, {vT2}, vcc
          v_xor_b32 {v(T+2)}, {sM11}, {vT2}
          v_cndmask_b32 {vK1}, {vT2}, {v(T+2)}, {sM8}
          v_cndmask_b32 {vK2}, 0, {vK1}, vcc
          v_and_b32 {v(T+2)}, 1, v0
          v_lshlrev_b32 {v(T+2)}, 4, {v(T+2)}
          v_mov_b32 {v(T+3)}, 0x3f80
          v_lshlrev_b32 {v(T+3)}, {v(T+2)}, {v(T+3)}
          v_lshrrev_b32 {v(T+1)}, 1, {v(T+1)}""")
    for r in range(4): A(f"v_cmp_eq_u32 vcc, {r}, {v(T+1)}\n v_cndmask_b32 {v(SA+r)}, 0, {v(T+3)}, vcc")
    A.label("L_t5h")
    A(f"""buffer_load_dword {v(HV)}, {vRd}, {sW}, {sC} offen sc1
          s_waitcnt vmcnt(0)
          v_xor_b32 {v(T)}, {v(HV)}, {vTAG}""")
    cmp_tag(v(T), "WORD_0")
    A(f"s_cbranch_vccz L_t5hok\n s_add_u32 {sCNT}, {sCNT}, 1\n s_cmp_lt_u32 {sCNT}, {cap}\n s_cbranch_scc1 L_t5h")
    A.label("L_t5hok")
    A(f"v_and_b32 {v(HV)}, {sHI}, {v(HV)}")
    if dly: A(f"s_sleep {dly}")
    def b5(p, n):
        A(f"""s_waitcnt vmcnt({n+1})
              v_bitop3_b32 {v(T)}, {v(p)}, {v(p+2)}, {vT2} bitop3:0x7e
              v_xor_b32 {v(p)}, {v(p)}, {vK1}
              v_xor_b32 {v(p+2)}, {v(p+2)}, {vK1}
              s_waitcnt vmcnt({n})
              v_bitop3_b32 {v(T+1)}, {v(p+4)}, {v(p+6)}, {vT2b} bitop3:0x7e""")
        mfma(v(Y,4), v(SA,4), v(p,4), 0)
        A(f"""v_xor_b32 {v(p+4)}, {v(p+4)}, {vK2}
              v_xor_b32 {v(p+6)}, {v(p+6)}, {vK2}
              v_bitop3_b32 {v(T)}, {v(T)}, {v(T+1)}, {sM11} bitop3:0xa8
              v_cmp_ne_u32 vcc, 0, {v(T)}""")
        mfma(v(Y,4), v(SA,4), v(p+4,4), v(Y,4))
    poll("t5", 2, l5, b5, 1, 0)
    stamp(3, "t")
    A(f"""s_mov_b32 exec_hi, 0
          ds_write_b128 {vRb}, {v(Y,4)} offset:{R_L}
          s_mov_b32 exec_hi, -1
          s_waitcnt lgkmcnt(0)
          s_barrier
          s_cmp_lg_u32 s3, 0
          s_cbranch_scc1 L_fin""")
    for k in range(4): A(f"ds_read2st64_b32 {v(Y+2*k,2)}, {vL4} offset0:{R_L//256+2*k} offset1:{R_L//256+2*k+1}")
    A(f"""s_waitcnt lgkmcnt(2)
          v_pk_add_f32 {v(Y,2)}, {v(Y,2)}, {v(Y+2,2)}
          s_waitcnt lgkmcnt(0)
          v_pk_add_f32 {v(Y+4,2)}, {v(Y+4,2)}, {v(Y+6,2)}
          v_pk_add_f32 {v(Y,2)}, {v(Y,2)}, {v(Y+4,2)}
          v_add_f32 {v(Y)}, {v(Y)}, {v(Y+1)}
          v_cvt_pk_bf16_f32 {v(Y)}, {v(Y)}, {v(Y)}
          v_and_b32 {v(Y)}, {sHI}, {v(Y)}
          v_add_f32 {v(Y)}, {v(Y)}, {v(HV)}""")
    if pert:
        import struct
        h_ = hex(struct.unpack("<I", struct.pack("<f", pert[0]))[0])
        if pert[1]: A(f"s_cmp_eq_u32 {sT2}, 5\n s_cselect_b64 exec, 1, 0")
        A(f"v_add_f32 {v(Y)}, {h_}, {v(Y)}\n s_mov_b64 exec, -1")
    A(f"""v_cvt_pk_bf16_f32 {v(Y)}, {v(Y)}, {v(Y)}
          buffer_store_short {v(Y)}, {vRc}, {sOut}, {sDd} offen {osc}""")
    stamp(4, "t")
    A("s_branch L_fin")
    A.label("L_t3")
    wdloads()
    vWd = "v248"
    A(f"""v_lshrrev_b32 {v(T)}, 2, {vN}
          v_lshl_add_u32 {v(T)}, {vG}, 3, {v(T)}
          v_lshlrev_b32 {vWd}, 8, {v(T)}
          v_lshlrev_b32 {v(T)}, 6, {v(T)}
          v_bfe_u32 {v(T+1)}, v0, 1, 1
          v_lshl_add_u32 {v(T)}, {v(T+1)}, 13, {v(T)}
          v_bfe_u32 {v(T+2)}, v0, 4, 1
          v_lshl_or_b32 {v(T+1)}, {v(T+2)}, 1, {v(T+1)}
          v_xor_b32 {v(T+1)}, s3, {v(T+1)}
          v_lshl_add_u32 {v(T)}, {v(T+1)}, 4, {v(T)}
          v_and_b32 {v(T+1)}, 1, v0
          v_lshl_add_u32 {v(T)}, {v(T+1)}, 3, {v(T)}
          v_add_u32 {v(T+9)}, {GU_L}, {v(T)}""")
    for k in range(16):
        for t2 in range(2): A(f"ds_read_b64_tr_b16 {a(GUF+4*k+2*t2,2)}, {v(T+9)} offset:{(k>>2)*16384 + (k&3)*2048 + t2*256}")
        if k % 4 == 3: A("s_waitcnt lgkmcnt(4)")
    t2bits(vRa)
    A(f"""v_and_b32 {v(T+1)}, 1, v0
          v_lshl_or_b32 {vWd}, {v(T+1)}, 4, {vWd}
          v_bfe_u32 {v(T+1)}, v0, 2, 3
          v_bfe_u32 {v(T+2)}, v0, 1, 1
          v_xor_b32 {v(T+1)}, {v(T+1)}, {v(T+2)}
          v_lshl_or_b32 {vWd}, {v(T+1)}, 5, {vWd}
          s_lshl_b32 {sWm}, s3, 13
          s_add_u32 {sWm}, {sWm}, {WD_L}""")
    PK = 96; HF = 8; DG = 144; CS = 116; SS = 120; SR = 72; sSEL = sOPl; sONE = sYs
    A(f"""v_and_b32 {v(T)}, 7, v0
          v_bfe_u32 {v(T+1)}, v0, 3, 1
          v_mul_u32_u24 {vRc}, {XN_S}, {v(T)}
          v_and_b32 {v(T+2)}, 56, v0
          v_add_u32 {vRb}, {vRc}, {v(T+2)}
          s_lshl_b32 {sT}, s3, 8
          v_add_u32 {vRb}, {sT}, {vRb}
          v_lshl_add_u32 {vRc}, {vG}, 4, {vRc}
          v_mul_u32_u24 {vRe}, 80, {v(T)}
          v_lshl_add_u32 {vRd}, {vG}, 2, {vRe}
          s_lshl_b32 {sT}, s3, 4
          v_add_u32 {vRd}, {sT}, {vRd}
          v_lshlrev_b32 {vRf}, 6, {v(T)}
          v_lshl_or_b32 {v(T+3)}, {vG}, 4, {vRf}
          v_lshl_or_b32 {vRf}, {v(T+1)}, 2, {vRf}
          v_bfe_u32 {v(T+2)}, v0, 4, 1
          v_lshl_or_b32 {vRf}, {v(T+2)}, 3, {vRf}
          v_bfe_u32 {v(T+2)}, v0, 5, 1
          v_lshl_or_b32 {vRf}, {v(T+2)}, 1, {vRf}
          s_lshl_b32 {sT}, s3, 4
          v_add_u32 {vRf}, {sT}, {vRf}
          v_lshl_add_u32 {vRh}, {v(T+1)}, 2, {vG}
          v_mul_u32_u24 {vRh}, 7168, {vRh}
          v_lshl_add_u32 {vRh}, {v(T)}, 4, {vRh}
          s_mul_i32 {sB}, s3, {16*7168}
          s_lshl_b32 {sT}, {sGI}, 7
          s_add_u32 {sB}, {sB}, {sT}
          s_add_u32 {sB}, {sB}, {PD}
          s_add_u32 {sDd}, {sB}, {8*7168}
          s_mov_b32 {sT3}, 0x10001
          v_add_u32 {v(T+3)}, {A_L}, {v(T+3)}
          v_mov_b32 {v(T+4)}, {Z_L}
          v_cndmask_b32 {vBl}, {v(T+3)}, {v(T+4)}, {sM8}
          v_cndmask_b32 {vBh}, {v(T+4)}, {v(T+3)}, {sM8}
          s_lshl_b32 {sA}, s3, 12
          s_add_u32 {sA}, {sA}, {HB}
          s_mov_b32 {sSEL}, 0x07060302
          s_mov_b32 {sONE}, 0x3f803f80
          s_mov_b32 {sC}, 0""")
    for i in range(8): A(f"v_mov_b32 {v(PK+i)}, {sONE}")
    A("s_branch L_t3lok")
    A.label("L_t3s")
    if dlyb: A(f"s_sleep {dlyb}")
    def l3(p):
        for k in range(4): A(f"buffer_load_dwordx4 {v(p+4*k,4)}, {vNINF if 'H' in abl and k >= 2 else vVo}, {sW}, {sA} offen offset:{k*1024} sc1")
    def pk(p, k): A(f"v_perm_b32 {v(PK+2*k)}, {v(p+4*k+1)}, {v(p+4*k)}, {sSEL}\n v_perm_b32 {v(PK+2*k+1)}, {v(p+4*k+3)}, {v(p+4*k+2)}, {sSEL}")
    def b3(p, n):
        A(f"s_waitcnt vmcnt({n+2})\n v_bitop3_b32 {v(T)}, {v(p)}, {v(p+4)}, {vTAG} bitop3:0x7e")
        pk(p, 0); pk(p, 1)
        A(f"s_waitcnt vmcnt({n})\n v_bitop3_b32 {v(T+1)}, {v(p+8)}, {v(p+12)}, {vTAG} bitop3:0x7e\n v_or_b32 {v(T)}, {v(T)}, {v(T) if 'H' in abl else v(T+1)}")
        cmp_tag(v(T), "WORD_0")
        pk(p, 2); pk(p, 3)
    if mpoll[2]: mpl("t3l", 4, ld2, ck2, "WORD_0", lambda p, k: (pk(p, k - 1), pk(p, k)))
    else: poll("t3l", 4, l3, b3, NS_[2], tau[2])
    stamp(3, "t")
    for k in range(4): A(f"ds_write_b64 {vRb}, {v(PK+2*k,2)} offset:{H_L + k*64}")
    for i in range(8):
        A(f"v_dot2_f32_bf16 {v(SS)}, {v(PK+i)}, {sONE}, {v(SS) if i else 0}\n v_dot2_f32_bf16 {v(SS+1)}, {v(PK+i)}, {v(PK+i)}, {v(SS+1) if i else 0}")
    A(f"""s_nop 2
          v_permlane16_swap_b32 {v(SS)}, {v(SS+1)}
          v_add_f32 {v(SS)}, {v(SS)}, {v(SS+1)}
          v_add_f32_dpp {v(SS)}, {v(SS)}, {v(SS)} row_ror:8 {DPPM}
          ds_write_b32 {vRd}, {v(SS)} offset:{ST_L}
          s_waitcnt lgkmcnt(0)
          s_barrier""")
    stamp(4, "t")
    for ks in range(2): A(f"ds_read_b128 {v(HF+4*ks,4)}, {vRc} offset:{H_L + ks*64}")
    for k in range(4): A(f"ds_read_b128 {v(SR+4*k,4)}, {vRe} offset:{ST_L + k*16}")
    for ks in range(2, 10): A(f"ds_read_b128 {v(HF+4*ks,4)}, {vRc} offset:{H_L + ks*64}")
    z = v(T); z2 = v(T+1); mean = v(T+2); mb = v(T+3); rinv = v(T+4)
    sc = f"""v_pk_add_f32 {v(SR,2)}, {v(SR,2)}, {v(SR+2,2)}
          v_pk_add_f32 {v(SR+4,2)}, {v(SR+4,2)}, {v(SR+6,2)}
          v_pk_add_f32 {v(SR+8,2)}, {v(SR+8,2)}, {v(SR+10,2)}
          v_pk_add_f32 {v(SR+12,2)}, {v(SR+12,2)}, {v(SR+14,2)}
          v_pk_add_f32 {v(SR,2)}, {v(SR,2)}, {v(SR+4,2)}
          v_pk_add_f32 {v(SR+8,2)}, {v(SR+8,2)}, {v(SR+12,2)}
          v_pk_add_f32 {v(SR,2)}, {v(SR,2)}, {v(SR+8,2)}
          v_mul_f32 {mean}, 0x3b000000, {v(SR)}
          v_mul_f32 {z}, 0x3b000000, {v(SR+1)}
          v_fma_f32 {z}, -{mean}, {mean}, {z}
          v_max_f32 {z}, 0, {z}
          v_cvt_pk_bf16_f32 {rinv}, {mean}, {z}
          v_lshlrev_b32 {mb}, 16, {rinv}
          v_and_b32 {rinv}, {sHI}, {rinv}
          v_add_f32 {rinv}, 0x3727c5ac, {rinv}
          v_cvt_pk_bf16_f32 {rinv}, {rinv}, {rinv}
          v_lshlrev_b32 {rinv}, 16, {rinv}
          v_sqrt_f32 {rinv}, {rinv}
          v_cvt_pk_bf16_f32 {rinv}, {rinv}, {rinv}
          v_lshlrev_b32 {rinv}, 16, {rinv}
          v_rcp_f32 {rinv}, {rinv}
          v_mul_f32 {mb}, {mb}, {rinv}
          v_mul_f32 {v(T+5)}, {mb}, {v(CS)}
          v_mul_f32 {v(T+6)}, {mb}, {v(CS+1)}""".split("\n")
    if tdiag: A("s_waitcnt lgkmcnt(0)")
    order = [0, 1, "s", "s", "s", "s"] + list(range(2, 10))
    si = 0
    for ks in range(16):
        upto = {0: 1, 2: 5, 6: 9, 10: 12, 13: 15}
        if ks in upto: A(f"s_waitcnt lgkmcnt({len(order) - 1 - order.index(upto[ks])})")
        mfma(v(DG,4), a(GUF+4*ks), v(HF+4*ks,4), v(DG,4) if ks else 0)
        if ks < 6:
            A(f"ds_read_b128 {v(HF+4*(ks+10),4)}, {vRc} offset:{H_L + (ks+10)*64}"); order.append(ks + 10)
        if ks >= 2:
            for _ in range(1 if ks < 6 else 2):
                if si < len(sc): A(sc[si]); si += 1
    while si < len(sc): A(sc[si]); si += 1
    g_, u_ = v(T+7), v(T+8)
    A(f"""v_mov_b32 {z2}, 0xc0135761
          v_permlane32_swap_b32 {v(DG)}, {v(DG+1)}
          v_permlane32_swap_b32 {v(DG+2)}, {v(DG+3)}
          v_cndmask_b32 {v(DG)}, {v(DG)}, {v(DG+2)}, {sM8}
          v_cndmask_b32 {v(DG+1)}, {v(DG+1)}, {v(DG+3)}, {sM8}
          v_fma_f32 {g_}, {v(DG)}, {rinv}, -{v(T+5)}
          v_fma_f32 {u_}, {v(DG+1)}, {rinv}, -{v(T+6)}
          v_cvt_pk_bf16_f32 {u_}, {g_}, {u_}
          v_lshlrev_b32 {g_}, 16, {u_}
          v_mul_f32 {z}, {g_}, {g_}
          v_fmac_f32 {z2}, 0xbdd2d3e8, {z}
          v_mul_f32 {z}, {z2}, {g_}
          v_exp_f32 {z}, {z}
          v_and_b32 {u_}, {sHI}, {u_}
          v_add_f32 {z}, 1.0, {z}
          v_rcp_f32 {z}, {z}
          s_cmp_eq_u32 {sC}, 0
          v_mul_f32 {z}, {z}, {g_}
          v_cvt_pk_bf16_f32 {z}, {z}, {z}
          v_lshlrev_b32 {z}, 16, {z}
          v_mul_f32 {z}, {z}, {u_}
          v_cvt_pk_bf16_f32 {z}, {z}, {z}
          ds_write_b16 {vRf}, {z} offset:{A_L}
          s_cselect_b32 s38, 0, {WS_END}
          s_waitcnt lgkmcnt(0)
          s_barrier
          ds_read_b128 {v(BL,4)}, {vBl}
          ds_read_b128 {v(BL+4,4)}, {vBh}""")
    stamp(5, "t")
    A("s_waitcnt lgkmcnt(0)")
    DP = 148
    for i in range(4):
        mfma(v(DP+4*i,4), a(WDF+8*i), v(BL,4), 0)
        mfma(v(DP+4*i,4), a(WDF+8*i+4), v(BL+4,4), v(DP+4*i,4))
    for p_ in range(2):
        for q_ in range(4): A(f"v_cvt_pk_bf16_f32 {v(164+4*p_+q_)}, {v(DP+8*p_+2*q_)}, {v(DP+8*p_+2*q_+1)}")
        for q_ in (0, 2): A(f"v_bfi_b32 {v(164+4*p_+q_)}, {sT3}, {vRa}, {v(164+4*p_+q_)}")
        A(f"buffer_store_dwordx4 {v(164+4*p_,4)}, {vRh}, {sW}, {(sB, sDd)[p_]} offen sc1")
    stamp(8, "t")
    A(f"""s_cbranch_scc0 L_fin
          s_mov_b32 {sC}, 1
          s_mov_b32 s38, {WS_END}
          v_mov_b32 {v(CS)}, {v(DG)}
          v_mov_b32 {v(CS+1)}, {v(DG+1)}
          s_waitcnt vmcnt(0)""")
    for k in range(8):
        A(f"v_xor_b32 {v(T)}, {(4*(k>>2) + 2*(k&1))*32}, {vWd}\n v_add_u32 {v(T)}, {sWm}, {v(T)}")
        for t2 in range(2): A(f"ds_read_b64_tr_b16 {a(WDF+4*k+2*t2,2)}, {v(T)} offset:{t2*1024 + ((k>>1)&1)*8}")
        if k == 5: A("s_waitcnt lgkmcnt(4)")
    stamp(8)
    A("s_branch L_t3s")
    A.label("L_fin")
    if padto:
        if padwg is not None: A(f"s_cmp_lg_u32 s2, {padwg}\n s_cbranch_scc1 L_end")
        A.label("L_pad")
        A(f"s_memrealtime s[82:83]\n s_waitcnt lgkmcnt(0)\n s_sub_u32 s82, s82, s80\n s_cmp_lt_u32 s82, {padto}\n s_cbranch_scc1 L_pad")
    if stamps:
        A("s_waitcnt vmcnt(0)")
        stamp(9)
        A("s_getreg_b32 s0, hwreg(HW_REG_XCC_ID)\n s_waitcnt lgkmcnt(0)\n v_mov_b32 v8, 0")
        for k in range(10): A(f"v_writelane_b32 v8, s{80+2*k}, {k}")
        A(f"v_writelane_b32 v8, s0, 10\n v_writelane_b32 v8, {sCNT}, 11\n v_writelane_b32 v8, {sROLE}, 12\n v_writelane_b32 v8, s100, 13\n v_writelane_b32 v8, s101, 14\n s_getreg_b32 s0, hwreg(HW_REG_HW_ID)\n v_writelane_b32 v8, s0, 15")
        if dbg:
            A(f"s_not_b32 s0, s80\n v_writelane_b32 v8, s0, 10\n s_mov_b64 exec, 0xffff\n buffer_atomic_umax v8, {vL4}, {sDbg}, 0 offen sc1\n s_endpgm")
        A(f"s_lshl_b32 s0, s2, 2\n s_add_u32 s0, s0, s3\n s_lshl_b32 s0, s0, 8\n s_add_u32 s0, s0, 0x10000000\n s_add_u32 s26, s26, s0\n s_addc_u32 s27, s27, 0")
        A(f"v_lshlrev_b32 v9, 2, {vL}\n global_store_dword v9, v8, s[26:27]")
    A.label("L_end")
    A("s_endpgm")
    for o in ool: o()
    if warm0 or warm1: A.raw(".rept 3000\n s_endpgm\n.endr")
    A.raw('.section .rodata,"a"\n.p2align 6')
    A.raw(f".amdhsa_kernel {NAME}_kernel")
    A.raw("""  .amdhsa_next_free_vgpr 512
  .amdhsa_next_free_sgpr 102
  .amdhsa_accum_offset 256
  .amdhsa_group_segment_fixed_size 0
  .amdhsa_kernarg_size 96
  .amdhsa_user_sgpr_count 2
  .amdhsa_user_sgpr_kernarg_segment_ptr 1
  .amdhsa_system_sgpr_workgroup_id_x 1
  .amdhsa_float_denorm_mode_32 3
.end_amdhsa_kernel""")
    return A.text()

if __name__ == "__main__":
    if len(sys.argv) > 1:
        cfgs = json.loads(sys.argv[1])
        for k, c in cfgs.items(): open(f"k_{k}.s", "w").write(gen(**c))
        print(" ".join(f"work/k_{k}.s" for k in cfgs))
    else:
        open(f"cdna_kernels/{NAME}.s", "w").write(gen())
```

```python
import sys, json
sys.path.insert(0, "work")
from asmlib import Asm
NAME = "sequential_preLN__gqa_block_cached__geglu_ffn__decode"

Q_OFF = 0x0
EPOCH = 0x40000
CLR = 0x100000
YP = CLR
OP = CLR + 0x80000
ML = CLR + 0x100000
HB = CLR + 0x108000
PD = CLR + 0x10C000
WS_END = PD + 64 * 7168
XL = 0x50000
PG = 0x60000
XN_L = 0; XN_S = 1056
P_L = 8448
WO_L = P_L + 4 * 4608
GU_L = WO_L + 16384
WD_L = GU_L + 65536
WQ_L = GU_L
LDS_SZ = WD_L + 32768
T0_L = 0; O_L = P_L; Z_L = P_L + 4096; R_L = 0
H_L = 0; ST_L = P_L + 8192; A_L = P_L + 8192 + 768

def mask(f):
    v = 0
    for l in range(64):
        if f(l): v |= 1 << l
    return v

def gen(D=6, D0=8, IQ=52, budget=44, stamps=False, wnt="", IML=214, cap=200000, kvflag="nt",
        sleep=0, IEND=256, DEND=9, IWO=100, sdiag=False, warm0=False, warm1=False, abl="", kpat="p8", dbg=False, tdiag=False, bal="def",
        touch=False, osc="", vflag=None, ES=0, WOS=4, perm=True, VS=2, V0=1, rot=0, pre=False, NS_=(1, 1, 1, 1), tau=(0, 0, 0, 0), gate=0, adum=True, EA=1, kpair=0, vpair=0, GW=8, GE=3, rsh=0, mp=(12, 13, 14, 16), padto=0, padwg=None, ldsx=0, mpoll=(0, 0, 0, 0), otouch=None, loc=(1, 1, 1), XJ=1, stouch="", PB=8, pert=None, IS=0, DST=8, dly=None, dlyr="ack", dlyb=None, early=False, AK=0, warmA=True, half=False):
    A = Asm()
    if bal == "def": bal = None if dbg else dict(lo=5, first=46, per=16, last=241, th=5, off=272, lag=8, one=1, aoff=1, sep=16, lo2=7)
    hdr = [l for l in open("cdna_kernels/" + NAME + ".s.ref").read().split("\n") if l.startswith(";") and "@launch" not in l]
    for l in hdr: A.raw(l)
    A.raw(f"; @launch grid=(256,1,1) block=(256,1,1) lds={LDS_SZ + ldsx}")
    for l in """
; One persistent launch, 256 workgroups x 4 waves (one workgroup per CU, all co-resident).
;   ids: x = wg&7 = kv head, b = wg>>5, split = (wg>>3)&3; the 4 workgroups of a (b, kv head) share its 8192 keys.
;   class A (one per group) first computes LN(x) @ wq for 64 columns and takes 26 of the 128 key rows, the others 34.
;   K phase: 8-key x 128-byte loads straight into an AGPR ring, QK^T by MFMA, scores rounded like the reference.
;   V phase: exact per-wave max, P in LDS, PV by MFMA with a diagonal A operand; (max, sum) exchanged per group.
;   tail: o partials -> o @ wo (per head, 64 columns) -> sum over heads + x -> LN folded into gate/up -> gelu*up
;         -> @ w_down partials -> final sum + h.  Every hand-off word carries a tag (previous tag in d_ws + 1) that is
;         stripped again by the reader; plain stores are used only when all readers reported the same XCC id.
;   loads in flight per wave are 6, or 5 while the workgroup is ahead of most of its sampled peers.""".strip().split("\n"): A.raw(l)
    A.raw('.amdgcn_target "amdgcn-amd-amdhsa--gfx950"')
    A.raw(".text"); A.raw(f".globl {NAME}_kernel"); A.raw(".p2align 8"); A.raw(f".type {NAME}_kernel,@function")
    A.label(f"{NAME}_kernel")
    NK = 136; NS = 2 * NK; NO = 32
    if dbg: stamps = True
    sK, sV, sW, sX, sQ, sO, sG, sU, sD, sOut, sDbg = [f"s[{b}:{b+3}]" for b in range(28, 72, 4)]
    sKV = "s72"; sROLE = "s73"; sCNT = "s74"; sLOG = "s75"; sMV = "s[76:77]"; sM8 = "s[78:79]"
    sSCALE = "s4"; sHI = "s5"; sTAG = "s6"; sT = "s7"; sT2 = "s8"; sT3 = "s9"; sGI = "s10"; sHEAD = "s11"; sCS = "s12"
    sOPs, sOPl, sOPl2, sYs, sA, sB, sC, sDd = [f"s{i}" for i in range(13, 21)]
    sYs = "s23"
    sOPT = "s[24:25]"; sINC = "s20"; sXV = "s95" if not stamps else "s93"; sLOC = "s96" if not stamps else "s83"; sLC = "s1"; sCLS = "s100" if not stamps else "s99"; sE = "s101" if not stamps else "s97"; sE0 = "s98" if not stamps else "s95"; sWV = "s99" if not stamps else "s81"
    sWo, sWm, sW2o, sW2m = "s44", "s45", "s46", "s47"
    vL = "v1"; vKa = "v2"; vKb = "v3"; vVo = "v4"; vPw = "v5"; vPr = "v6"
    SEL = 8; QA = 16; S = 32; vNINF = "v252"; DS = 68; PP = 156; A0 = 100; A1 = 104; O0 = 108; O1 = 112
    m01, m23, l01, l23, nm01, nm23, f01, f23 = [f"v{i}" for i in range(116, 124)]
    vXR = "v124"; T = 125
    vN = "v141"; vG = "v142"
    BIG = 156; WOF = 144
    vT0w, vT0r, vL4, vL8, vOw, vBl, vBh, vYs = [f"v{i}" for i in range(232, 240)]
    vTAG = "v7"; vWOr = "v143"; sFF = "s15"
    vWa, vWb, vWc = "v240", "v241", "v253"; vWa2, vWb2, vWc2 = "v244", "v245", "v254"; vB3 = "v249"; vTB, vEM = "v250", "v251"
    v = lambda i, n=1: f"v{i}" if n == 1 else f"v[{i}:{i+n-1}]"
    a = lambda i, n=4: f"a[{i}:{i+n-1}]"
    def stamp(k, diag=False):
        if diag == "t":
            if not tdiag: return
        elif tdiag and k in (1, 2, 3, 4, 5, 8): return
        elif sdiag and k in (5, 6, 7, 8) and not diag: return
        elif diag and not sdiag: return
        if stamps: A(f"s_memrealtime s[{80+2*k}:{81+2*k}]")
    def smov64(dst, val):
        lo = int(dst[2:dst.index(":")])
        A(f"s_mov_b32 s{lo}, 0x{val & 0xffffffff:x}\n s_mov_b32 s{lo+1}, 0x{val >> 32:x}")
    ops = []; known = [-1]
    def vm(text, mandatory=True):
        A(text); ops.append(mandatory); return len(ops) - 1
    def after(idx, r1=False): return sum(1 for m in ops[idx+1:] if m is True or (r1 and m == 'r1'))
    def wait_for(idx):
        if idx <= known[0]: return
        n = after(idx); assert n <= 63
        A(f"s_waitcnt vmcnt({n})"); known[0] = idx
    ool = []
    def mfma(d, x, y, c): A(f"v_mfma_f32_16x16x32_bf16 {d}, {x}, {y}, {c}")
    DPPM = "row_mask:0xf bank_mask:0xf"

    A("s_cmp_ge_u32 s2, 256\n s_cbranch_scc1 L_end")
    A("s_load_dwordx8 s[4:11], s[0:1], 0\n s_load_dwordx8 s[12:19], s[0:1], 32\n s_load_dwordx8 s[20:27], s[0:1], 64")
    if stamps:
        for k in range(1, 11): A(f"s_mov_b32 s{80+2*k}, 0")
        A("s_mov_b32 s101, 0")
    stamp(0)
    if stamps: A("s_waitcnt lgkmcnt(0)")
    if padto: A("s_memrealtime s[80:81]")
    A(f"""v_lshrrev_b32 {v(T)}, 6, v0
          v_and_b32 {vL}, 63, v0
          v_readfirstlane_b32 s3, {v(T)}
          v_lshrrev_b32 {vG}, 4, {vL}
          v_and_b32 {v(T+3)}, 14, v0
          v_lshlrev_b32 {vKa}, 7, {v(T+3)}
          v_lshl_or_b32 {vKa}, {vG}, 4, {vKa}
          v_and_b32 {v(T+4)}, 1, v0
          v_lshl_or_b32 {vKa}, {v(T+4)}, 6, {vKa}
          {"v_lshlrev_b32 " + vKa + ", 4, " + vL if kpat == "c" else ""}
          v_xor_b32 {vKb}, 64, {vKa}
          s_mov_b32 s31, 0x20000
          s_and_b32 {sWV}, s2, 7
          s_lshl_b32 {sWV}, {sWV}, 2
          s_bfe_u32 s75, s2, 0x20003
          s_or_b32 {sWV}, {sWV}, s75
          s_and_b32 s74, s2, 0xe0
          s_or_b32 {sWV}, {sWV}, s74
          s_lshr_b32 s74, s2, 5
          s_add_u32 s74, s75, s74
          s_and_b32 {sCLS}, s74, 3
          s_add_u32 s74, s74, 3
          s_and_b32 s74, s74, 3
          s_mov_b32 {sE0}, s74
          s_lshl_b32 {sE}, s74, {mp[2]}
          s_and_b32 s73, s3, 1
          s_lshl_b32 s73, s73, {mp[0]}
          s_lshr_b32 s74, s3, 1
          s_lshl_b32 s74, s74, {mp[1]}
          s_add_u32 s73, s73, s74
          s_lshr_b32 s75, {sWV}, 2
          s_lshl_b32 s75, s75, 21
          s_sub_u32 s30, 0x200000, s73
          s_add_u32 s73, s73, s75
          s_waitcnt lgkmcnt(0)
          s_add_u32 s28, s6, s73
          s_addc_u32 s29, s7, 0
          s_and_b32 s29, s29, 0xffff""")
    stamp(5, True)
    kv = []; st = {}; uid = [0]
    def lstore(text, on, f=A):
        if not on: return f(text + " sc1")
        uid[0] += 1; u = uid[0]
        A(f"s_cmp_eq_u32 {sLOC}, 0\n s_cbranch_scc1 L_ls{u}")
        r = f(text)
        A.label(f"L_le{u}")
        def o():
            A.label(f"L_ls{u}"); A(text + " sc1"); A(f"s_branch L_le{u}")
        ool.append(o)
        return r
    def xl_pub(f):
        uid[0] += 1; u = uid[0]
        A(f"""s_getreg_b32 {sXV}, hwreg(HW_REG_XCC_ID, 0, 3)
              s_lshl_b32 {sT}, {sTAG}, 3
              s_or_b32 {sXV}, {sXV}, {sT}
              s_cmp_lg_u32 s3, 1
              s_cbranch_scc1 L_xp{u}
              s_and_b32 {sT}, s2, 7
              s_lshl_b32 {sT}, {sT}, 7
              s_lshr_b32 s0, s2, 3
              s_lshl_b32 s0, s0, 2
              s_add_u32 {sT}, {sT}, s0
              s_add_u32 {sT}, {sT}, {XL}
              v_mov_b32 {v(T+10)}, {sXV}
              v_mov_b32 {v(T+11)}, 0
              s_mov_b64 exec, 1""")
        f(f"buffer_store_dword {v(T+10)}, {v(T+11)}, {sW}, {sT} offen")
        A("s_mov_b64 exec, -1")
        A.label(f"L_xp{u}")
    def xl_load(f, dst):
        A(f"""v_and_b32 {v(T+10)}, 31, v0
              v_lshlrev_b32 {v(T+10)}, 2, {v(T+10)}
              s_and_b32 {sT2}, s2, 7
              s_lshl_b32 {sT2}, {sT2}, 7
              s_add_u32 {sT2}, {sT2}, {XL}""")
        return f(f"buffer_load_dword {dst}, {v(T+10)}, {sW}, {sT2} offen sc1")
    def xl_eval(src):
        A(f"v_cmp_ne_u32 s[0:1], {sXV}, {src}\n s_cmp_eq_u64 s[0:1], 0\n s_cselect_b32 {sLOC}, 1, 0")
    def tagfin(f):
        A(f"s_waitcnt lgkmcnt(0)\n s_add_u32 {sTAG}, {sTAG}, 1\n v_mov_b32 {vTAG}, {sTAG}")
        xl_pub(f)
    slot = lambda i: (i % 64) * 4 if i < NK else ((i - NK + 8) % 32) * 4
    def prevocc(i):
        for j in range(i - 1, -1, -1):
            if slot(j) == slot(i): return j
        return -1
    rowoff = lambda p: (3 * p if p < 8 else 24 + 4 * (p - 8)) * 16384
    vorder = list(range(8, 34))
    vorder += list(range(8))
    tileof = lambda i: i >> 2 if i < NK else vorder[(i - NK) >> 2]
    isopt = lambda i: tileof(i) < 8
    def issue(i):
        p = tileof(i)
        dst = a(slot(i))
        if (i & 3) == 0:
            if p >= 8:
                q = p - 8 + 6
                A(f"s_add_u32 {sKV}, {sE}, {((q & 1) << mp[3]) + ((q >> 1) << 17)}")
            elif tuple(mp) == (12, 13, 14, 16): A(f"s_add_u32 {sKV}, {sE}, {3 * p * 16384}")
            else:
                A(f"""s_add_u32 s0, {sE0}, {3 * p}
                      s_and_b32 {sKV}, s0, 3
                      s_lshl_b32 {sKV}, {sKV}, {mp[2]}
                      s_bfe_u32 s1, s0, 0x10002
                      s_lshl_b32 s1, s1, {mp[3]}
                      s_add_u32 {sKV}, {sKV}, s1
                      s_lshr_b32 s1, s0, 3
                      s_lshl_b32 s1, s1, 17
                      s_add_u32 {sKV}, {sKV}, s1""")
        if i < NK:
            va = vKb if p & 1 else vKa
            kv.append(vm(f"buffer_load_dwordx4 {dst}, {va}, {sK}, {sKV} offen offset:{(i&3)*1024 if kpat == 'c' else ((i>>1)&1)*2048 + (i&1)*128} {kvflag}"))
        else:
            kv.append(vm(f"buffer_load_dwordx4 {dst}, {vVo}, {sV}, {sKV} offen offset:{(i&3)*1024} {kvflag if vflag is None else vflag}"))
    A(f"s_cmp_eq_u32 {sCLS}, 0\n s_cbranch_scc1 L_A")
    for i in range(D0):
        issue(i)
        if i == 1: A(f"s_load_dword {sTAG}, s[26:27], {EPOCH}")
    stamp(6, True)
    A("s_branch L_B")
    A.label("L_A")
    A(f"s_load_dword {sTAG}, s[26:27], {EPOCH}")
    A(f"""s_mov_b32 s40, s4
          s_and_b32 s41, s5, 0xffff
          s_mov_b32 s42, 8192
          s_mov_b32 s43, 0x20000
          v_lshrrev_b32 {v(T+2)}, 5, v0
          v_and_b32 {v(T+4)}, 31, v0
          v_lshlrev_b32 {v(T+4)}, 4, {v(T+4)}
          v_lshl_or_b32 {v(T)}, {v(T+2)}, 10, {v(T+4)}
          buffer_load_dwordx4 {v(BIG,4)}, {v(T)}, {sX}, 0 offen
          buffer_load_dwordx4 {v(BIG+4,4)}, {v(T)}, {sX}, 0 offen offset:512
          s_mov_b32 s44, s10
          s_and_b32 s45, s11, 0xffff
          s_mov_b32 s46, {0 if 'q' in abl else 512*4096*2}
          s_mov_b32 s47, 0x20000
          v_and_b32 {v(T+3)}, 7, v0
          v_lshrrev_b32 {v(T+1)}, 3, {vL}
          v_and_b32 {v(T+5)}, 2, {v(T+1)}
          v_xor_b32 {v(T+3)}, {v(T+3)}, {v(T+5)}
          v_lshlrev_b32 {v(T+1)}, 13, {v(T+1)}
          v_lshl_or_b32 {v(T+1)}, {v(T+3)}, 4, {v(T+1)}
          v_xor_b32 {v(T+3)}, 64, {v(T+1)}
          s_and_b32 s74, s2, 7
          s_lshl_b32 s74, s74, 3
          s_lshr_b32 s75, s2, 5
          s_add_u32 {sLC}, s74, s75
          {"s_xor_b32 " + sLC + ", " + sLC + ", 4" if perm else ""}
          s_lshl_b32 s74, {sLC}, 7
          s_lshl_b32 s75, s3, 20
          s_add_u32 s74, s74, s75
          s_lshl_b32 s75, s3, 14
          s_add_u32 m0, s75, {WQ_L}""")
    for j in range(16):
        A(f"buffer_load_dwordx4 {v(T+3) if j & 1 else v(T+1)}, {sQ}, s74 offen nt lds")
        if j < 15: A(f"s_add_u32 s74, s74, {8*8192}\n s_add_u32 m0, m0, 1024")
        if j == XJ:
            A(f"s_mov_b32 s36, s26\n s_and_b32 s37, s27, 0xffff\n s_mov_b32 s38, {WS_END}\n s_mov_b32 s39, 0x20000")
            tagfin(A)
    stamp(7, True)
    def setupA():
        A(f"v_lshlrev_b32 {vVo}, 4, {vL}\n v_and_b32 {vN}, 15, v0")
        A("s_add_u32 s32, s8, s73\n s_addc_u32 s33, s9, 0\n s_and_b32 s33, s33, 0xffff\n s_mov_b32 s34, s30")
        for b in (32, 36, 40, 48, 52, 56, 60) + ((68,) if dbg else ()): A(f"s_mov_b32 s{b+3}, 0x20000")
        A(f"s_mov_b32 s40, s4\n s_and_b32 s41, s5, 0xffff\n s_mov_b32 s42, 8192")
        A(f"s_mov_b32 s36, s26\n s_and_b32 s37, s27, 0xffff\n s_mov_b32 s38, {WS_END}\n s_mov_b32 {sHI}, 0xffff0000")
        smov64(sM8, mask(lambda l: (l >> 3) & 1))
        A(f"""s_lshr_b32 {sT2}, s2, 5
              s_cmp_lt_u32 {sT2}, 7
              s_cselect_b32 {sROLE}, 1, 0
              s_cmp_eq_u32 {sCLS}, 3
              s_cselect_b32 {sROLE}, 0, {sROLE}
              s_cmp_eq_u32 {sCLS}, 2
              s_cselect_b32 {sROLE}, 2, {sROLE}
              s_cmp_eq_u32 {sCLS}, 1
              s_cselect_b32 {sROLE}, 3, {sROLE}""")
    sMODE = "s21"; PGA = "v243"
    def pgsetup():
        if bal: A(f"s_mov_b32 {sMODE}, 0\n v_mov_b32 {PGA}, {P_L + 4352}\n v_mov_b32 {v(T)}, 0\n ds_write_b32 {PGA}, {v(T)}")
    def setup0(isB=True):
        for (b, p, sz) in ((48, 12, 0 if 'o' in abl else 4096*512*2), (52, 16, 0 if 'g' in abl else 512*1792*2), (56, 18, 0 if 'g' in abl else 512*1792*2), (60, 20, 0 if 'd' in abl else 1792*512*2)) + (((68, 24, 256),) if dbg else ()):
            A(f"s_mov_b32 s{b}, s{p}\n s_and_b32 s{b+1}, s{p+1}, 0xffff\n s_mov_b32 s{b+2}, {sz}")
        A(f"""s_mov_b64 s[18:19], s[22:23]
              s_mov_b32 {sLOG}, 0x3fb8aa3b
              s_mov_b32 {sSCALE}, 0x3db504f3
              s_mov_b32 {sCNT}, 0
              s_mov_b32 {sFF}, 0xff
              s_bfe_u32 {sCS}, s2, 0x30003
              s_and_b32 {sT}, s2, 7
              s_mul_i32 {sGI}, {sT}, 7
              s_add_u32 {sGI}, {sGI}, {sT2}
              s_lshl_b32 {sHEAD}, {sT}, 2
              s_lshr_b32 {sT}, s2, 6
              s_add_u32 {sHEAD}, {sHEAD}, {sT}""")
        smov64(sMV, mask(lambda l: (l & 1) == ((l >> 4) & 1)))
        A(f"""s_cmp_eq_u32 {sROLE}, 1
              s_cselect_b32 s54, s54, 0
              s_cselect_b32 s58, s58, 0
              s_cselect_b32 s62, s62, 0
              s_cmp_eq_u32 {sCLS}, 0
              s_cselect_b32 s24, -1, 0
              s_mov_b32 s25, s24""")
        if touch and isB:
            A(f"s_cmp_lg_u32 s3, 1\n s_cbranch_scc1 L_nt0\n s_mov_b64 exec, 1\n s_mov_b32 {sT}, 0x100000\n s_mov_b32 {sT2}, 0x200000\n s_lshl_b32 {sT3}, {sHEAD}, 17")
            for (srd, so) in ((sV, "0"), (sOut, "0"), (sW, sT), (sW, sT2), (sO, sT3), (sG, "0"), (sU, "0"), (sD, "0")):
                vm(f"buffer_load_dword v231, {vVo}, {srd}, {so} offen nt", False)
            A("s_mov_b64 exec, -1")
            A.label("L_nt0")
        if warm0 and isB:
            A("s_getpc_b64 s[0:1]")
            A(f"s_lshl_b32 {sT}, {sCS}, 2\n s_add_u32 {sT}, {sT}, s3\n s_lshl_b32 {sT}, {sT}, 10\n s_add_u32 s0, s0, {sT}\n s_addc_u32 s1, s1, 0")
            A(f"s_cmp_ge_u32 s2, 128\n s_cbranch_scc1 L_nw0")
            vm(f"global_load_dwordx4 {v(228,4)}, {vVo}, s[0:1]", False)
            A.label("L_nw0")
    def wsetup():
        A(f"""v_lshrrev_b32 {vWa}, 3, {vL}
              v_and_b32 {v(T+1)}, 2, {vWa}
              v_lshlrev_b32 {vWa}, 10, {vWa}
              v_and_b32 {v(T)}, 7, v0
              v_xor_b32 {v(T)}, {v(T)}, {v(T+1)}
              v_lshl_or_b32 {vWa}, {v(T)}, 4, {vWa}
              v_xor_b32 {vWa2}, 64, {vWa}
              v_lshrrev_b32 {v(T)}, 2, {vL}
              v_mul_u32_u24 {vWb}, 3584, {v(T)}
              v_and_b32 {v(T+1)}, 3, v0
              v_and_b32 {v(T)}, 2, {vG}
              v_xor_b32 {v(T+1)}, {v(T+1)}, {v(T)}
              v_lshl_add_u32 {vWb}, {v(T+1)}, 4, {vWb}
              v_xor_b32 {vWb2}, 16, {vWb}
              v_lshlrev_b32 {vWc}, 10, {vG}
              v_lshlrev_b32 {v(T)}, 1, {vG}
              v_xor_b32 {v(T)}, {v(T)}, {vN}
              v_lshl_or_b32 {vWc}, {v(T)}, 4, {vWc}
              v_xor_b32 {vWc2}, 128, {vWc}
              s_mul_i32 {sW2o}, s3, {128*3584}
              s_lshl_b32 {sT2}, {sGI}, 6
              s_add_u32 {sW2o}, {sW2o}, {sT2}
              s_lshl_b32 {sW2m}, s3, 14
              s_add_u32 {sW2m}, {sW2m}, {GU_L}
              s_lshl_b32 {sWo}, {sHEAD}, 17
              s_lshl_b32 {sT2}, {sCS}, 7
              s_add_u32 {sWo}, {sWo}, {sT2}
              s_lshl_b32 {sT2}, s3, 15
              s_add_u32 {sWo}, {sWo}, {sT2}
              s_lshl_b32 {sWm}, s3, 12
              s_add_u32 {sWm}, {sWm}, {WO_L}""")
    def consts1():
        A(f"""v_and_b32 {v(T)}, 1, v0
              v_cmp_eq_u32 vcc, 1, {v(T)}
              v_mov_b32 {v(T+1)}, 0x0c0c0100
              v_mov_b32 {v(T+2)}, 0x01000c0c
              v_cndmask_b32 {v(T+1)}, {v(T+1)}, {v(T+2)}, vcc
              v_mov_b32 {v(T+2)}, 0x0c0c0302
              v_mov_b32 {v(T+3)}, 0x03020c0c
              v_cndmask_b32 {v(T+2)}, {v(T+2)}, {v(T+3)}, vcc
              v_bfe_u32 {v(T)}, v0, 1, 1
              v_bfe_u32 {v(T+3)}, v0, 3, 1
              v_lshl_or_b32 {v(T)}, {v(T+3)}, 1, {v(T)}
              v_mov_b32 {v(T+3)}, 0x0c0c0c0c""")
        for r in range(4):
            A(f"""v_cmp_eq_u32 vcc, {r}, {v(T)}
                  v_cndmask_b32 {v(SEL+r)}, {v(T+3)}, {v(T+1)}, vcc
                  v_cndmask_b32 {v(SEL+4+r)}, {v(T+3)}, {v(T+2)}, vcc""")
    def consts2():
        A(f"s_mul_i32 {sT}, s3, 4608\n s_add_u32 {sT}, {sT}, {P_L}\n v_mov_b32 {vNINF}, 0xff800000")
        A(f"""v_bfe_u32 {v(T)}, v0, 4, 1
              v_lshlrev_b32 {vPw}, 7, {v(T)}
              v_and_b32 {v(T)}, 7, v0
              v_lshl_or_b32 {vPw}, {v(T)}, 4, {vPw}
              v_bfe_u32 {v(T)}, v0, 5, 1
              v_lshl_or_b32 {vPw}, {v(T)}, 3, {vPw}
              v_bfe_u32 {v(T)}, v0, 3, 1
              v_lshl_or_b32 {vPw}, {v(T)}, 2, {vPw}
              v_add_u32 {vPw}, {sT}, {vPw}
              v_and_b32 {v(T)}, 4, v0
              v_lshlrev_b32 {vPr}, 5, {v(T)}
              v_lshl_or_b32 {vPr}, {vG}, 5, {vPr}
              v_add_u32 {vPr}, {sT}, {vPr}
              v_mov_b32 {m01}, 0xff800000
              v_mov_b32 {m23}, 0xff800000
              v_mov_b32 {l01}, 0
              v_mov_b32 {l23}, 0""")
    def tc1():
        A(f"""s_lshl_b32 {sT}, s3, 11
              s_add_u32 {sT}, {sT}, {T0_L}
              v_bfe_u32 {v(T)}, v0, 4, 1
              v_lshlrev_b32 {vT0w}, 9, {v(T)}
              v_lshl_or_b32 {vT0w}, {vN}, 5, {vT0w}
              v_bfe_u32 {v(T)}, v0, 5, 1
              v_lshl_or_b32 {vT0w}, {v(T)}, 4, {vT0w}
              v_add_u32 {vT0w}, {sT}, {vT0w}
              v_lshlrev_b32 {vT0r}, 3, v0
              v_lshlrev_b32 {vL4}, 2, {vL}
              v_lshlrev_b32 {vL8}, 3, {vL}
              s_and_b32 {sT}, {sWV}, 28
              s_add_u32 {sT}, {sT}, s3
              s_lshl_b32 {sOPs}, {sT}, 14
              s_lshr_b32 {sT}, {sWV}, 6
              s_lshl_b32 {sT}, {sT}, 12
              s_add_u32 {sOPs}, {sOPs}, {sT}
              s_and_b32 {sT}, {sWV}, 3
              s_lshl_b32 {sT}, {sT}, 10
              s_add_u32 {sOPs}, {sOPs}, {sT}
              s_and_b32 {sT}, {sWV}, 32
              s_lshl_b32 {sT}, {sT}, 4
              s_add_u32 {sOPs}, {sOPs}, {sT}
              s_add_u32 {sOPs}, {sOPs}, {OP}
              s_lshl_b32 {sOPl}, {sHEAD}, 14
              s_lshl_b32 {sT}, s3, 12
              s_add_u32 {sOPl}, {sOPl}, {sT}
              s_add_u32 {sOPl}, {sOPl}, {OP}""")
    def tc2():
        A(f"""v_lshrrev_b32 {v(T)}, 5, v0
              v_and_b32 {v(T+1)}, 31, v0
              v_mul_u32_u24 {vOw}, 288, {v(T)}
              v_lshl_add_u32 {vOw}, {v(T+1)}, 3, {vOw}
              v_and_b32 {v(T)}, 7, v0
              v_mul_u32_u24 {v(T+1)}, 288, {v(T)}
              v_lshl_add_u32 {v(T+1)}, {vG}, 4, {v(T+1)}
              v_add_u32 {vBl}, {O_L}, {v(T+1)}
              v_lshlrev_b32 {vYs}, 4, {v(T)}
              v_and_b32 {v(T+1)}, 16, v0
              v_lshl_or_b32 {vYs}, {v(T+1)}, 3, {vYs}
              v_and_b32 {v(T+1)}, 32, v0
              v_lshl_or_b32 {vYs}, {v(T+1)}, 8, {vYs}
              v_cndmask_b32 {vYs}, {vYs}, {vNINF}, {sM8}
              s_lshl_b32 {sYs}, {sCS}, 16
              s_lshl_b32 {sT}, {sHEAD}, 8
              s_add_u32 {sYs}, {sYs}, {sT}
              s_lshl_b32 {sT}, s3, 14
              s_add_u32 {sYs}, {sYs}, {sT}
              s_add_u32 {sYs}, {sYs}, {YP}
              v_lshrrev_b32 {v(T)}, 2, {vN}
              v_lshl_add_u32 {v(T)}, {vG}, 3, {v(T)}
              v_and_b32 {v(T+1)}, 3, v0
              v_lshlrev_b32 {vWOr}, 7, {v(T)}
              v_lshl_or_b32 {vWOr}, {v(T+1)}, 3, {vWOr}
              v_bfe_u32 {v(T+1)}, v0, 3, 2
              v_xor_b32 {v(T+1)}, s3, {v(T+1)}
              v_lshl_or_b32 {vWOr}, {v(T+1)}, 5, {vWOr}
              v_add_u32 {vWOr}, {WO_L}, {vWOr}
              v_and_b32 {vTB}, {sFF}, {vTAG}
              v_and_b32 {vEM}, 1, v0
              v_add_u32 {vEM}, {sFF}, {vEM}
              v_and_b32 {vEM}, {sFF}, {vEM}
""")
    setupA(); A(f"s_mov_b32 s75, {sT2}")
    A(f"v_mul_u32_u24 {v(T+2)}, {XN_S}, {v(T+2)}\n v_add_u32 {v(T+2)}, {v(T+2)}, {v(T+4)}")
    F = BIG + 8; G = F + 16
    def rowsum32(r, t):
        for k in (8, 4, 2, 1): A(f"v_add_f32_dpp {r}, {r}, {r} row_ror:{k} {DPPM}")
        A(f"v_mov_b32 {t}, {r}\n v_permlane16_swap_b32 {r}, {t}\n v_add_f32 {r}, {r}, {t}")
    def ln_scalars(mean, var, mb, rinv):
        A(f"""v_cvt_pk_bf16_f32 {rinv}, {mean}, {var}
              v_lshlrev_b32 {mb}, 16, {rinv}
              v_and_b32 {rinv}, {sHI}, {rinv}
              v_add_f32 {rinv}, 0x3727c5ac, {rinv}
              v_cvt_pk_bf16_f32 {rinv}, {rinv}, {rinv}
              v_lshlrev_b32 {rinv}, 16, {rinv}
              v_sqrt_f32 {rinv}, {rinv}
              v_cvt_pk_bf16_f32 {rinv}, {rinv}, {rinv}
              v_lshlrev_b32 {rinv}, 16, {rinv}
              v_rcp_f32 {rinv}, {rinv}""")
    A("s_waitcnt vmcnt(16)")
    stamp(1)
    for i in range(8): A(f"v_lshlrev_b32 {v(F+2*i)}, 16, {v(BIG+i)}\n v_and_b32 {v(F+2*i+1)}, {sHI}, {v(BIG+i)}")
    for i in range(4): A(f"v_pk_add_f32 {v(G+2*i,2)}, {v(F+2*i,2)}, {v(F+8+2*i,2)}")
    for i in range(2): A(f"v_pk_add_f32 {v(G+2*i,2)}, {v(G+2*i,2)}, {v(G+4+2*i,2)}")
    A(f"v_pk_add_f32 {v(G,2)}, {v(G,2)}, {v(G+2,2)}\n v_add_f32 {v(T+5)}, {v(G)}, {v(G+1)}")
    rowsum32(v(T+5), v(T+6))
    A(f"v_mul_f32 {v(T+5)}, 0x3b000000, {v(T+5)}")
    for i in range(16): A(f"v_sub_f32 {v(G+i)}, {v(F+i)}, {v(T+5)}")
    A(f"v_pk_mul_f32 {v(T+7,2)}, {v(G,2)}, {v(G,2)}")
    for i in range(1, 8): A(f"v_pk_fma_f32 {v(T+7,2)}, {v(G+2*i,2)}, {v(G+2*i,2)}, {v(T+7,2)}")
    A(f"v_add_f32 {v(T+7)}, {v(T+7)}, {v(T+8)}")
    rowsum32(v(T+7), v(T+6))
    A(f"v_mul_f32 {v(T+7)}, 0x3b000000, {v(T+7)}")
    ln_scalars(v(T+5), v(T+7), v(T+8), v(T+9))
    for i in range(16): A(f"v_sub_f32 {v(F+i)}, {v(F+i)}, {v(T+8)}")
    for i in range(8): A(f"v_cvt_pk_bf16_f32 {v(BIG+i)}, {v(F+2*i)}, {v(F+2*i+1)}")
    for i in range(8): A(f"v_lshlrev_b32 {v(F+2*i)}, 16, {v(BIG+i)}\n v_and_b32 {v(F+2*i+1)}, {sHI}, {v(BIG+i)}")
    for i in range(16): A(f"v_mul_f32 {v(F+i)}, {v(F+i)}, {v(T+9)}")
    for i in range(8): A(f"v_cvt_pk_bf16_f32 {v(BIG+i)}, {v(F+2*i)}, {v(F+2*i+1)}")
    A(f"ds_write_b128 {v(T+2)}, {v(BIG,4)} offset:{XN_L}\n ds_write_b128 {v(T+2)}, {v(BIG+4,4)} offset:{XN_L+512}")
    A(f"""v_and_b32 {v(T+3)}, 7, v0
          v_mul_u32_u24 {v(T)}, {XN_S}, {v(T+3)}
          v_lshl_add_u32 {v(T)}, {vG}, 4, {v(T)}
          v_lshrrev_b32 {v(T+1)}, 2, {vN}
          v_lshl_add_u32 {v(T+1)}, {vG}, 3, {v(T+1)}
          v_lshlrev_b32 {v(T+1)}, 7, {v(T+1)}
          v_and_b32 {v(T+3)}, 3, v0
          v_lshl_add_u32 {v(T+1)}, {v(T+3)}, 3, {v(T+1)}
          v_bfe_u32 {v(T+3)}, v0, 3, 2
          v_xor_b32 {v(T+3)}, s3, {v(T+3)}
          v_lshl_add_u32 {v(T+1)}, {v(T+3)}, 5, {v(T+1)}
          v_add_u32 {v(T+1)}, {WQ_L}, {v(T+1)}
          v_lshlrev_b32 {v(T+2)}, 14, {vN}
          v_lshl_add_u32 {v(T+2)}, {vG}, 4, {v(T+2)}
          s_lshl_b32 {sT}, s3, 6
          s_lshl_b32 {sT3}, {sLC}, 8
          s_add_u32 {sT}, {sT}, {sT3}
          v_mov_b32 {v(O1+1)}, {vTAG}
          v_mov_b32 {v(O1+3)}, {vTAG}
          s_waitcnt vmcnt(0) lgkmcnt(0)""")
    if loc[0]: xl_load(A, v(T+12))
    for i in range(NO, NO + AK):
        n0 = len(ops); issue(i); del ops[n0:]; kv.pop()
    stamp(8, True)
    A("s_barrier")
    XF = 0; WF = 64
    for ks in range(16):
        A(f"ds_read_b128 {a(XF+4*ks)}, {v(T)} offset:{XN_L + ks*64}")
        A(f"ds_read_b64_tr_b16 {a(WF+4*ks,2)}, {v(T+1)} offset:{ks*4096}")
        A(f"ds_read_b64_tr_b16 {a(WF+4*ks+2,2)}, {v(T+1)} offset:{ks*4096 + 512}")
        if ks % 2 == 1 and ks >= 3:
            A("s_waitcnt lgkmcnt(6)")
            for k2 in range(ks - 3, ks - 1): mfma(v(O0,4), a(WF+4*k2), a(XF+4*k2), v(O0,4) if k2 else 0)
    A("s_waitcnt lgkmcnt(0)")
    for k2 in range(14, 16): mfma(v(O0,4), a(WF+4*k2), a(XF+4*k2), v(O0,4))
    A(f"v_cvt_pk_bf16_f32 {v(O1)}, {v(O0)}, {v(O0+1)}\n v_cvt_pk_bf16_f32 {v(O1+2)}, {v(O0+2)}, {v(O0+3)}")
    if loc[0]:
        A(f"s_waitcnt vmcnt({AK})"); xl_eval(v(T+12))
        if stamps: A(f"s_mov_b32 s101, {sLOC}")
    A(f"s_not_b64 exec, {sM8}")
    lstore(f"buffer_store_dwordx4 {v(O1,4)}, {v(T+2)}, {sW}, {sT} offen", loc[0])
    A(f"s_mov_b64 exec, -1\n s_mov_b32 {sT2}, s75")
    stamp(2)
    setup0(False); wsetup()
    def wdloads(thr=None):
        A(f"""s_lshl_b32 {sT2}, {sGI}, 15
              s_lshl_b32 {sT}, s3, 8
              s_add_u32 {sT2}, {sT2}, {sT}
              s_lshl_b32 {sT}, s3, 13
              s_add_u32 m0, {sT}, {WD_L}""")
        for k in range(8):
            if thr: A(f"s_waitcnt vmcnt({thr - 1})")
            A(f"buffer_load_dwordx4 {vWc2 if k & 2 else vWc}, {sD}, {sT2} offen nt lds")
            if k < 7: A(f"s_add_u32 {sT2}, {sT2}, 4096\n s_add_u32 m0, m0, 1024")
    for f in (consts1, consts2, tc1, tc2, pgsetup): f()
    A("s_barrier\n s_branch L_J")
    A.label("L_B")
    items = []; consumed = [-1]; extras = {}
    def item(cost, fn, req=None, minstep=0): items.append((cost, req, minstep, fn))
    def extra(step, fn): extras.setdefault(step, []).append(fn)
    def retry_guard(back):
        A(f"s_add_u32 {sCNT}, {sCNT}, 1\n s_cmp_ge_u32 {sCNT}, {cap}\n s_cbranch_scc1 {back}")
        if sleep: A(f"s_sleep {sleep}")

    item(36, setupA); item(44, setup0); item(4, pgsetup); item(20, lambda: tagfin(lambda t: vm(t, False))); item(33, wsetup); item(26, consts1); item(22, consts2); item(28, tc1); item(44, tc2)

    def xr():
        A(f"""v_bfe_u32 {v(T+10)}, v0, 2, 3
              v_lshlrev_b32 {v(T+10)}, 10, {v(T+10)}
              v_and_b32 {v(T+11)}, 3, v0
              v_lshl_or_b32 {v(T+10)}, {v(T+11)}, 1, {v(T+10)}
              v_bfe_u32 {v(T+11)}, v0, 5, 1
              v_lshl_or_b32 {v(T+10)}, {v(T+11)}, 3, {v(T+10)}
              s_lshr_b32 {sT}, {sWV}, 2
              s_lshl_b32 {sT}, {sT}, 4""")
        vm(f"buffer_load_ushort {vXR}, {v(T+10)}, {sX}, {sT} offen")
    def gu_op(j, f):
        A(f"s_add_u32 m0, {sW2m}, {(j&1)*8192 + (j>>1)*1024}")
        f(f"buffer_load_dwordx4 {vWb2 if j & 1 else vWb}, {sU if j & 1 else sG}, {sW2o} offen {wnt} lds")
        if j & 1: A(f"s_add_u32 {sW2o}, {sW2o}, {16*3584}")
    def wo_dma(f):
        for j in range(4):
            A(f"s_add_u32 m0, {sWm}, {j*1024}")
            f(f"buffer_load_dwordx4 {vWa2 if j & 1 else vWa}, {sO}, {sWo} offen nt lds")
            A(f"s_add_u32 {sWo}, {sWo}, 8192")
        if pre:
            A(f"""s_lshr_b32 {sT2}, {sWV}, 2
                  s_lshl_b32 {sT2}, {sT2}, 13
                  s_lshl_b32 {sT}, s3, 11
                  s_add_u32 {sT2}, {sT2}, {sT}
                  s_add_u32 {sT2}, {sT2}, {YP}
                  s_cmp_eq_u32 {sROLE}, 3
                  s_cselect_b32 {sT2}, {sT2}, 0x7f000000""")
            f(f"buffer_load_dwordx4 {v(224,4)}, {vVo}, {sW}, {sT2} offen sc1")
            f(f"buffer_load_dwordx4 {v(228,4)}, {vVo}, {sW}, {sT2} offen offset:1024 sc1")
    extra(IWO - 1, xr)
    GUF = 128; WDF = 192
    QT = 188; QAD = T + 13
    def qloads(f):
        for k in range(4):
            r = f(f"buffer_load_dwordx4 {v(QT+4*k,4)}, {v(QAD)}, {sW}, {sT3} offen offset:{(k>>1)*256 + (k&1)*16} sc1")
        return r
    def qload():
        A(f"""v_and_b32 {v(QAD)}, 3, v0
              v_lshlrev_b32 {v(QAD)}, 9, {v(QAD)}
              v_and_b32 {v(T+11)}, 4, v0
              v_add_u32 {v(T+11)}, {v(T+11)}, {vG}
              v_lshl_or_b32 {v(QAD)}, {v(T+11)}, 5, {v(QAD)}
              s_lshr_b32 {sT3}, {sWV}, 2
              s_lshl_b32 {sT3}, {sT3}, 11""")
        xl_load(vm, v(QT+16))
        st["q"] = qloads(vm)
    extra(IQ, qload)
    def qprep():
        wait_for(st["q"])
        A.label("L_qchk")
        A(f"""v_max3_u32 {v(T)}, {v(QT+1)}, {v(QT+3)}, {v(QT+5)}
              v_min3_u32 {v(T+1)}, {v(QT+1)}, {v(QT+3)}, {v(QT+5)}
              v_max3_u32 {v(T)}, {v(T)}, {v(QT+7)}, {v(QT+9)}
              v_min3_u32 {v(T+1)}, {v(T+1)}, {v(QT+7)}, {v(QT+9)}
              v_max3_u32 {v(T)}, {v(T)}, {v(QT+11)}, {v(QT+13)}
              v_min3_u32 {v(T+1)}, {v(T+1)}, {v(QT+11)}, {v(QT+13)}
              v_max3_u32 {v(T)}, {v(T)}, {v(QT+15)}, {sTAG}
              v_min3_u32 {v(T+1)}, {v(T+1)}, {v(QT+15)}, {sTAG}
              v_cmp_ne_u32 vcc, {v(T)}, {v(T+1)}
              s_cbranch_vccnz L_qretry""")
        A.label("L_qok")
        if bal: A(f"s_cmp_lg_u32 {sMODE}, 0\n s_cselect_b64 vcc, -1, 0")
        def o():
            A.label("L_qretry"); retry_guard("L_qok"); qloads(A); A("s_waitcnt vmcnt(0)\n s_branch L_qchk")
        ool.append(o)
        xl_eval(v(QT+16))
        stamp(4)
        if stamps and not bal: A(f"s_mov_b32 s100, {sCNT}")
        for c in range(2):
            for r in range(4):
                A(f"v_cndmask_b32 {v(QA+8*c+r)}, {v(QT+8*c+2*r)}, 0, {sM8}\n v_cndmask_b32 {v(QA+8*c+4+r)}, 0, {v(QT+8*c+2*r)}, {sM8}")
    item(32, qprep, minstep=IQ + D + ES + 1)
    def kitem(i):
        def f():
            u = i >> 3; d = DS + 8 * (u & 1) + 4 * ((i >> 2) & 1); o = (i >> 1) & 1; c = i & 1
            if 'm' not in abl: mfma(v(d,4), v(QA+8*c+4*o,4), a(slot(i)), v(d,4) if i & 3 else 0)
            consumed[0] = i
        return f
    def post(u):
        def f():
            d = DS + 8 * (u & 1)
            if 'x' in abl: return
            for r in range(4): A(f"v_cndmask_b32 {v(T+r)}, {v(d+4+r)}, {v(d+r)}, {sMV}")
            A(f"""v_permlane16_swap_b32 {v(T)}, {v(T+1)}
                  v_permlane16_swap_b32 {v(T+2)}, {v(T+3)}
                  v_add_f32_dpp {v(T)}, {v(T+1)}, {v(T)} quad_perm:[1,0,3,2] {DPPM}
                  v_add_f32_dpp {v(T+2)}, {v(T+3)}, {v(T+2)} quad_perm:[1,0,3,2] {DPPM}
                  v_cvt_pk_bf16_f32 {v(T)}, {v(T)}, {v(T+2)}
                  v_and_b32 {v(T+1)}, {sHI}, {v(T)}
                  v_lshlrev_b32 {v(T)}, 16, {v(T)}
                  v_mul_f32 {v(T+1)}, {sSCALE}, {v(T+1)}
                  v_mul_f32 {v(T)}, {sSCALE}, {v(T)}
                  v_cvt_pk_bf16_f32 {v(T)}, {v(T)}, {v(T+1)}
                  v_lshlrev_b32 {v(S+2*u)}, 16, {v(T)}
                  v_and_b32 {v(S+2*u+1)}, {sHI}, {v(T)}""")
            if 8 * u < NO:
                A(f"v_cndmask_b32 {v(S+2*u)}, {v(S+2*u)}, {vNINF}, {sOPT}\n v_cndmask_b32 {v(S+2*u+1)}, {v(S+2*u+1)}, {vNINF}, {sOPT}")
            A(f"""v_max_f32 {m01}, {m01}, {v(S+2*u)}
                  v_max_f32 {m23}, {m23}, {v(S+2*u+1)}""")
        return f
    for i in range(NK):
        item(3, kitem(i), req=i)
        if i >= 8 and (i & 7) == 3: item(22, post((i >> 3) - 1))
    item(26, post(16))
    def allred2(op, x, y):
        for k in (8, 4, 2, 1): A(f"{op}_dpp {x}, {x}, {x} row_ror:{k} {DPPM}\n {op}_dpp {y}, {y}, {y} row_ror:{k} {DPPM}")
    def half2(op, x, y):
        A(f"""v_mov_b32 {v(T)}, {x}
              v_mov_b32 {v(T+1)}, {y}
              v_permlane32_swap_b32 {x}, {v(T)}
              v_permlane32_swap_b32 {y}, {v(T+1)}
              {op} {x}, {x}, {v(T)}
              {op} {y}, {y}, {v(T+1)}""")
    def maxred():
        stamp(5)
        allred2("v_max_f32", m01, m23); half2("v_max_f32", m01, m23)
        A(f"v_mul_f32 {nm01}, {sLOG}, {m01}\n v_mul_f32 {nm23}, {sLOG}, {m23}")
    item(22, maxred)
    done = set()
    def expi(u):
        def f():
            done.add(u)
            A(f"""v_fma_f32 {v(T)}, {v(S+2*u)}, {sLOG}, -{nm01}
                  v_fma_f32 {v(T+1)}, {v(S+2*u+1)}, {sLOG}, -{nm23}
                  v_exp_f32 {v(T)}, {v(T)}
                  v_exp_f32 {v(T+1)}, {v(T+1)}
                  v_add_f32 {l01}, {l01}, {v(T)}
                  v_add_f32 {l23}, {l23}, {v(T+1)}
                  v_cvt_pk_bf16_f32 {v(T+2)}, {v(T)}, {v(T+1)}
                  ds_write_b32 {vPw}, {v(T+2)} offset:{u*256}""")
        return f
    def areg(j):
        k = j - (NK - PB)
        return A0 if k < 0 else (32 + 8 * k if k < 4 else 68 + 8 * (k - 4))
    def rdi(k):
        def f():
            p = vorder[k]; assert (p >> 1) in done
            A(f"ds_read_b128 {v(PP + 4 * (k & 7),4)}, {vPr} offset:{(p >> 1) * 256 + (p & 1) * 16}")
        return f
    def vperm(j):
        def f():
            p = PP + (j & 31)
            if 'x' in abl: return
            if (j & 15) == 0: A("s_waitcnt lgkmcnt(0)")
            for uu in range(2):
                for r in range(4): A(f"v_perm_b32 {v(areg(j)+4*uu+r)}, {v(p)}, {v(p)}, {v(SEL+4*uu+r)}")
        return f
    def vmm(j):
        def f():
            i = NK + j
            if 'm' in abl:
                consumed[0] = i; return
            mfma(v(O0,4), v(areg(j),4), a(slot(i)), v(O0,4) if j else 0)
            mfma(v(O1,4), v(areg(j)+4,4), a(slot(i)), v(O1,4) if j else 0)
            consumed[0] = i
        return f
    def mlpub():
        allred2("v_add_f32", l01, l23); half2("v_add_f32", l01, l23)
        A(f"""v_and_b32 {v(T+2)}, 16, v0
              s_lshl_b32 {sT}, {sWV}, 2
              s_add_u32 {sT}, {sT}, s3
              s_lshl_b32 {sT}, {sT}, 5
              s_add_u32 {sT}, {sT}, {ML}
              v_bfi_b32 {v(220)}, {sHI}, {m01}, {vTAG}
              v_bfi_b32 {v(221)}, {sHI}, {m23}, {vTAG}
              v_bfi_b32 {v(222)}, {sFF}, {vTAG}, {l01}
              v_bfi_b32 {v(223)}, {sFF}, {vTAG}, {l23}
              s_mov_b64 exec, 0x10001""")
        lstore(f"buffer_store_dwordx4 {v(220,4)}, {v(T+2)}, {sW}, {sT} offen", loc[1], vm)
        A("s_mov_b64 exec, -1")
    GM = 188; GA = T + 14
    def mlload():
        A(f"""v_and_b32 {v(GA)}, 16, v0
              v_lshl_or_b32 {v(GA)}, {vN}, 5, {v(GA)}
              s_lshr_b32 {sT3}, {sWV}, 2
              s_lshl_b32 {sT3}, {sT3}, 9
              s_add_u32 {sT3}, {sT3}, {ML}""")
        st["ml"] = vm(f"buffer_load_dwordx4 {v(GM,4)}, {v(GA)}, {sW}, {sT3} offen sc1")
    def mlfac1():
        wait_for(st["ml"])
        A.label("L_mlchk")
        A(f"""v_bitop3_b32 {v(T)}, {v(GM)}, {v(GM+1)}, {vTAG} bitop3:0x7e
              v_bitop3_b32 {v(T+1)}, {v(GM+2)}, {v(GM+3)}, {vTAG} bitop3:0x7e
              v_lshlrev_b32 {v(T)}, 16, {v(T)}
              v_and_or_b32 {v(T)}, {v(T+1)}, {sFF}, {v(T)}
              v_cmp_ne_u32 vcc, 0, {v(T)}
              s_cbranch_vccnz L_mlretry""")
        A.label("L_mlok")
        if bal: A(f"s_cmp_lg_u32 {sMODE}, 0\n s_cselect_b64 vcc, -1, 0")
        def o():
            A.label("L_mlretry"); retry_guard("L_mlok")
            A(f"buffer_load_dwordx4 {v(GM,4)}, {v(GA)}, {sW}, {sT3} offen sc1\n s_waitcnt vmcnt(0)\n s_branch L_mlchk")
        ool.append(o)
        A(f"v_and_b32 {v(GM)}, {sHI}, {v(GM)}\n v_and_b32 {v(GM+1)}, {sHI}, {v(GM+1)}\n v_xor_b32 {v(GM+2)}, {v(GM+2)}, {vTB}\n v_xor_b32 {v(GM+3)}, {v(GM+3)}, {vTB}\n v_mov_b32 {v(GM+4)}, {v(GM)}\n v_mov_b32 {v(GM+5)}, {v(GM+1)}")
        allred2("v_max_f32", v(GM+4), v(GM+5))
        A(f"""v_sub_f32 {v(GM)}, {v(GM)}, {v(GM+4)}
              v_sub_f32 {v(GM+1)}, {v(GM+1)}, {v(GM+5)}
              v_sub_f32 {f01}, {m01}, {v(GM+4)}
              v_sub_f32 {f23}, {m23}, {v(GM+5)}
              v_mul_f32 {v(GM)}, {sLOG}, {v(GM)}
              v_mul_f32 {v(GM+1)}, {sLOG}, {v(GM+1)}
              v_mul_f32 {f01}, {sLOG}, {f01}
              v_mul_f32 {f23}, {sLOG}, {f23}""")
    def mlfac2():
        A(f"""v_exp_f32 {v(GM)}, {v(GM)}
              v_exp_f32 {v(GM+1)}, {v(GM+1)}
              v_exp_f32 {f01}, {f01}
              v_exp_f32 {f23}, {f23}
              v_mul_f32 {v(GM)}, {v(GM)}, {v(GM+2)}
              v_mul_f32 {v(GM+1)}, {v(GM+1)}, {v(GM+3)}""")
        allred2("v_add_f32", v(GM), v(GM+1))
        A(f"""v_rcp_f32 {v(GM)}, {v(GM)}
              v_rcp_f32 {v(GM+1)}, {v(GM+1)}
              v_mul_f32 {f01}, {f01}, {v(GM)}
              v_mul_f32 {f23}, {f23}, {v(GM+1)}""")
    uorder = list(dict.fromkeys(p >> 1 for p in vorder))
    for k in range(3): item(9, expi(uorder[k]))
    for k in range(4): item(1, rdi(k))
    ne = 3
    for j in range(NK):
        t = j & 7
        if j < NK - PB: item(9, vperm(j))
        if PB and NK - PB - 4 <= j < NK - PB: item(9, vperm(NK - PB + 2 * (j - (NK - PB - 4)))); item(9, vperm(NK - PB + 2 * (j - (NK - PB - 4)) + 1))
        item(5, vmm(j), req=NK + j)
        if (j & 15) == (12 if j < 112 or not PB else 4):
            for k in range(4 * (j >> 4) + 4, min(34, 4 * (j >> 4) + 8)): item(1, rdi(k))
        if t in (0, 2, 4, 6) and ne < 17:
            item(9, expi(uorder[ne])); ne += 1
            if ne == 17: item(28, mlpub)
        if NK + j == IML + 2: item(36, mlfac1)
        if NK + j == IML + 4: item(22, mlfac2)
    extra(IML, mlload)
    if warm1:
        def cw():
            A("s_getpc_b64 s[0:1]")
            A.label("L_pc")
            A(f"s_add_u32 s0, s0, L_tail-L_pc\n s_addc_u32 s1, s1, 0\n v_lshlrev_b32 {v(T+10)}, 4, v0")
            vm(f"global_load_dwordx4 {v(228,4)}, {v(T+10)}, s[0:1]")
        extra(IML - 8, cw)

    sMODE = "s21"; sPG = "s22"; PGV = T + 12; PGA = "v243"
    if bal:
        assert not dbg
        one = bal.get("one")
        def ck(k, stp):
            def f():
                c = (5 + 3 * k) % 32
                if one: A(f"s_cmp_lg_u32 s3, {k & 3}\n s_cbranch_scc1 L_np{k}")
                A(f"""s_and_b32 {sT}, s2, 7
                      s_mul_i32 {sT2}, {sT}, {c}
                      s_lshr_b32 {sPG}, s2, 3
                      s_add_u32 {sPG}, {sPG}, {sT2}
                      s_add_u32 {sPG}, {sPG}, {(11 * k) % 32}
                      s_and_b32 s0, {sPG}, 31
                      s_and_b32 {sPG}, {sPG}, {bal.get("ns", 32) - 1}
                      s_lshl_b32 {sPG}, {sPG}, 7
                      s_add_u32 {sPG}, {sPG}, {PG + k * 4096}
                      s_load_dwordx8 s[64:71], s[26:27], {sPG} {bal.get("glc", "glc")}""")
                if k == 2 and "v" in stouch: A("s_load_dword s16, s[32:33], 0 glc")
                if k == 8 and "w" in stouch: A(f"s_load_dword s16, s[48:49], {sWo} glc\n s_load_dword s17, s[18:19], {sCS} glc")
                if k == 9 and "w" in stouch: A(f"s_load_dword s16, s[52:53], {sW2o} glc\n s_load_dword s17, s[56:57], {sW2o} glc\n s_load_dword s20, s[60:61], {sW2o} glc")
                if k == 10 and "x" in stouch: A(f"s_lshl_b32 s16, s2, 8\n s_add_u32 s16, s16, 0x210000\n s_load_dword s16, s[26:27], s16 glc")
                if not one: A(f"s_cmp_lg_u32 s3, {k & 3}\n s_cbranch_scc1 L_np{k}")
                if bal.get("ns", 32) < 32: A(f"s_cmp_ge_u32 s0, {bal['ns']}\n s_cbranch_scc1 L_np{k}")
                A(f"""s_lshl_b32 {sT}, {sT}, 2
                      s_xor_b32 {sPG}, {sPG}, {bal.get("sep", 0) * 128}
                      s_add_u32 {sPG}, {sPG}, {sT}
                      s_atomic_swap {sTAG}, s[26:27], {sPG}""")
                A.label(f"L_np{k}")
            def setmode():
                if bal.get("noA"): A(f"s_min_u32 {sMODE}, {sMODE}, {sCLS}")
                A(f"s_cmp_lg_u32 {sMODE}, 0\n s_cselect_b64 vcc, -1, 0")
                if stamps: A(f"s_add_u32 s100, s100, {sMODE}")
            def g():
                if one: A(f"s_cmp_lg_u32 s3, {k & 3}\n s_cbranch_scc1 L_ng{k}")
                A(f"s_waitcnt lgkmcnt(0)\n s_cmp_eq_u32 {sCLS}, 0\n s_cselect_b32 {sT}, {bal.get('aoff', 0)}, 0")
                for r in range(64, 72): A(f"s_cmp_eq_u32 s{r}, {sTAG}\n s_addc_u32 {sT}, {sT}, 0")
                A(f"s_cmp_lt_i32 {sT}, {bal['th']}\n s_cselect_b32 {sMODE}, 1, 0")
                if one:
                    A(f"v_mov_b32 {v(PGV)}, {sMODE}\n ds_write_b32 {PGA}, {v(PGV)}")
                    A.label(f"L_ng{k}")
                else: setmode()
            def h1(): A(f"ds_read_b32 {v(PGV)}, {PGA}")
            def h2():
                A(f"s_waitcnt lgkmcnt(0)\n v_readfirstlane_b32 {sMODE}, {v(PGV)}\n s_and_b32 {sMODE}, {sMODE}, 1"); setmode()
            return f, g, h1, h2
        k = 0
        for stp in range(bal["first"], bal["last"] + 1, bal["per"]):
            f, g, h1, h2 = ck(k, stp); lg_ = bal.get("lag", 7)
            extra(stp, f); extra(stp + lg_, g)
            if one: extra(stp + lg_ + 2, h1); extra(stp + lg_ + 3, h2)
            k += 1
        assert k <= 32
    qi = [0]
    def run_items(step, bud):
        while qi[0] < len(items):
            cost, req, ms, fn = items[qi[0]]
            if cost > bud or step < ms: break
            if req is not None and (req >= len(kv) or kv[req] > known[0]): break
            fn(); bud -= cost; qi[0] += 1
    run_items(0, 104)
    nsetup = 9
    def tgt(i, d):
        kvs = set(kv)
        j = i - d
        lo = max(j - ES, NO + D)
        for k in range(lo, j):
            if any(o not in kvs for o in range(kv[k] + 1, kv[k + 1])): return kv[k]
        return kv[j]
    stubs = []
    ool.append(lambda: A.lines.extend(stubs))
    def drain(limit):
        q = qi[0]
        while q < len(items):
            cost, req, ms, fn = items[q]
            if req is not None:
                if req >= limit: break
                wait_for(kv[req])
            fn(); q += 1
    for i in range(D0, NS):
        if i == NO + AK:
            assert qi[0] == nsetup and all(k >= NO + AK for k in extras) and AK % 4 == 0
            A.label("L_J")
        if i == NS - NO:
            assert "L_mlok:" in A.lines
            A(f"s_cmp_eq_u32 {sCLS}, 0\n s_cbranch_scc1 L_adrain")
            sv = (list(ops), known[0], consumed[0], list(A.hist), len(A.lines))
            A.label("L_adrain")
            for j in range(GE): gu_op(j, vm)
            drain(i)
            for j in range(GE, 16):
                A(f"s_waitcnt vmcnt({GW - 1})"); gu_op(j, A)
            if warmA:
                A("s_getpc_b64 s[0:1]")
                A.label("L_pca")
                A(f"s_sub_u32 s0, s0, L_pca-L_tail\n s_subb_u32 s1, s1, 0\n v_lshlrev_b32 {v(T+10)}, 4, v0")
                A(f"global_load_dwordx4 {v(228,4)}, {v(T+10)}, s[0:1]")
            wo_dma(A)
            A("s_nop 7"); A.raw("    s_branch L_tail")
            cut = A.lines[sv[4]:]; del A.lines[sv[4]:]
            ool.append(lambda: A.lines.extend(cut))
            ops[:] = sv[0]; known[0] = sv[1]; consumed[0] = sv[2]; A.hist = sv[3]
        if bal and bal["first"] + bal.get("lag", 7) + 3 < i < bal["off"]:
            A.raw(f"    s_cbranch_vccnz L_s{i}"); A.raw(f"L_b{i}:")
            stubs.append(f"L_s{i}:\n    s_waitcnt vmcnt({after(kv[i - (bal.get('lo2', bal['lo']) if i >= IEND else bal['lo'])])})\n    s_branch L_b{i}")
        wait_for(tgt(i, DEND if i >= IEND else DST if i < IS else D))
        assert consumed[0] >= prevocc(i), (i, consumed[0])
        issue(i)
        for fn in extras.pop(i, []): fn()
        run_items(i, budget)
    assert not extras, extras
    lag = NS - 1 - consumed[0]
    wo_dma(vm); drain(NS)
    A(f"; end lag {lag}")

    A.label("L_tail")
    stamp(6)
    X = 96; DM = 88; BL = 8; PS = 176
    for r in (0, 2): A(f"v_pk_mul_f32 {v(O0+r,2)}, {v(O0+r,2)}, {v(122,2)} op_sel_hi:[1,0]")
    A(f"ds_write_b128 {vT0w}, {v(O0,4)}")
    for r in (0, 2): A(f"v_pk_mul_f32 {v(O1+r,2)}, {v(O1+r,2)}, {v(122,2)} op_sel:[0,1]")
    A(f"ds_write_b128 {vT0w}, {v(O1,4)} offset:1024")
    A("s_waitcnt lgkmcnt(0)\n s_barrier")
    A(f"""ds_read2st64_b64 {v(DM,4)}, {vT0r} offset0:0 offset1:4
          ds_read2st64_b64 {v(DM+4,4)}, {vT0r} offset0:8 offset1:12
          s_waitcnt lgkmcnt(1)
          v_pk_add_f32 {v(DM,2)}, {v(DM,2)}, {v(DM+2,2)}
          s_waitcnt lgkmcnt(0)
          v_pk_add_f32 {v(DM+4,2)}, {v(DM+4,2)}, {v(DM+6,2)}
          v_pk_add_f32 {v(DM,2)}, {v(DM,2)}, {v(DM+4,2)}
          v_bfi_b32 {v(DM)}, {vEM}, {vTAG}, {v(DM)}
""")
    lstore(f"buffer_store_dwordx2 {v(DM,2)}, {vL8}, {sW}, {sOPs} offen", loc[2])
    stamp(1, "t")
    def poll(name, n, loads, body, S, tau, pre_issued=False):
        if pre_issued: A(f"s_branch L_{name}b")
        A.label(f"L_{name}")
        A(f"s_add_u32 {sCNT}, {sCNT}, 1\n s_cmp_lt_u32 {sCNT}, {cap}")
        A.raw(f"    s_cbranch_scc0 L_{name}ok")
        loads(PS)
        A.label(f"L_{name}b")
        body(PS, 0)
        A(f"s_cbranch_vccnz L_{name}")
        A.label(f"L_{name}ok")
    MK = ["s[28:29]", "s[30:31]", "s[32:33]", "s[34:35]"]
    def mpl(name, n, ld, chk, sel, spec, init=None):
        p = PS
        for k in range(n): A(f"s_mov_b64 {MK[k]}, -1")
        if init: init()
        A.label(f"L_{name}")
        for k in range(n): A(f"s_wqm_b64 exec, {MK[k]}\n {ld(p, k)}")
        A("s_mov_b64 exec, -1")
        for k in range(n):
            if k == 0: A("s_waitcnt vmcnt(0)")
            A(chk(p, k))
            A(f"v_cmp_ne_u32_sdwa {MK[k]}, {v(T+k)}, {v(T+15)} src0_sel:{sel} src1_sel:DWORD")
            if k % 2 == 1:
                spec(p, k)
                A(f"s_or_b64 vcc, {MK[k-1]}, {MK[k]}" if k == 1 else f"s_or_b64 vcc, vcc, {MK[k-1]}\n s_or_b64 vcc, vcc, {MK[k]}")
        A(f"s_cbranch_scc0 L_{name}ok\n s_add_u32 {sCNT}, {sCNT}, 1\n s_cmp_lt_u32 {sCNT}, {cap}\n s_cbranch_scc1 L_{name}")
        A.label(f"L_{name}ok")
    def cmp_tag(reg, sel): A(f"v_cmp_ne_u32_sdwa vcc, {reg}, {v(T+15)} src0_sel:{sel} src1_sel:DWORD")
    A(f"v_mov_b32 {v(T+15)}, 0\n ds_write_b32 {vL4}, {v(T+15)} offset:{Z_L}")
    def l1(p):
        for k in range(4): A(f"buffer_load_dwordx4 {v(p+4*k,4)}, {vVo}, {sW}, {sOPl} offen offset:{k*1024} sc1")
    l1(PS)
    A(f"s_waitcnt vmcnt({7 if pre else 5})")
    stamp(3)
    A("s_barrier")
    if early or half:
        A(f"s_cmp_eq_u32 {sROLE}, 1\n s_cbranch_scc1 L_prep")
        A.label("L_prepback")
    for ks in range(4):
        for t2 in range(2): A(f"ds_read_b64_tr_b16 {v(WOF+4*ks+2*t2,2)}, {vWOr} offset:{ks*4096 + t2*512}")
    A.label("L_t1s")
    def l1(p):
        for k in range(4): A(f"buffer_load_dwordx4 {v(p+4*k,4)}, {vVo}, {sW}, {sOPl} offen offset:{k*1024} sc1")
    def b1(p, n):
        A(f"""s_waitcnt vmcnt({n+2})
              v_xor_b32 {v(p)}, {v(p)}, {vTB}
              v_xor_b32 {v(p+4)}, {v(p+4)}, {vTB}
              v_pk_add_f32 {v(X+2,2)}, {v(p+2,2)}, {v(p+6,2)}
              v_pk_add_f32 {v(X,2)}, {v(p,2)}, {v(p+4,2)}
              v_or_b32 {v(T)}, {v(p)}, {v(p+4)}
              s_waitcnt vmcnt({n})
              v_xor_b32 {v(p+8)}, {v(p+8)}, {vTB}
              v_xor_b32 {v(p+12)}, {v(p+12)}, {vTB}
              v_or3_b32 {v(T)}, {v(T)}, {v(p+8)}, {v(p+12)}""")
        cmp_tag(v(T), "BYTE_0")
        A(f"v_pk_add_f32 {v(X+4,2)}, {v(p+8,2)}, {v(p+12,2)}\n v_pk_add_f32 {v(X+6,2)}, {v(p+10,2)}, {v(p+14,2)}")
    if mpoll[0]:
        mpl("t1", 4, lambda p, k: f"buffer_load_dwordx4 {v(p+4*k,4)}, {vVo}, {sW}, {sOPl} offen offset:{k*1024} sc1",
            lambda p, k: f"v_bitop3_b32 {v(T+k)}, {v(p+4*k)}, {v(p+4*k+2)}, {vTAG} bitop3:0x7e", "BYTE_0",
            lambda p, k: A(f"v_pk_add_f32 {v(X+2*k-2,2)}, {v(p+4*k-4,2)}, {v(p+4*k,2)}\n v_pk_add_f32 {v(X+2*k,2)}, {v(p+4*k-2,2)}, {v(p+4*k+2,2)}"))
    else:
        poll("t1", 4, l1, b1, NS_[0], tau[0], True)
    A(f"""v_pk_add_f32 {v(X,2)}, {v(X,2)}, {v(X+4,2)}
          v_pk_add_f32 {v(X+2,2)}, {v(X+2,2)}, {v(X+6,2)}
          v_cvt_pk_bf16_f32 {v(X)}, {v(X)}, {v(X+1)}
          v_cvt_pk_bf16_f32 {v(X+1)}, {v(X+2)}, {v(X+3)}
          ds_write_b64 {vOw}, {v(X,2)} offset:{O_L}""")
    stamp(2, "t")
    A("s_waitcnt lgkmcnt(0)\n s_barrier")
    for ks in range(4): A(f"ds_read_b128 {v(BL+4*ks,4)}, {vBl} offset:{ks*64}")
    for ks in range(4):
        if ks in (0, 2): A(f"s_waitcnt lgkmcnt({2-ks})")
        mfma(v(DM+4,4), v(WOF+4*ks,4), v(BL+4*ks,4), v(DM+4,4) if ks else 0)
    A(f"v_bfi_b32 {v(DM+4)}, {sFF}, {vTAG}, {v(DM+4)}\n buffer_store_dwordx4 {v(DM+4,4)}, {vYs}, {sW}, {sYs} offen sc1")
    A.label("L_t1done")

    stamp(7)

    A(f"s_cmp_eq_u32 {sROLE}, 3\n s_cbranch_scc0 L_notr")
    Y = X
    vRa, vRb, vRc, vRd, vRe, vRf, vRg, vRh = [v(i) for i in range(240, 248)]
    A(f"""s_lshr_b32 {sT2}, {sWV}, 2
          s_andn2_b32 {sA}, {sT2}, {4 if 'Y' in abl else 0}
          s_lshl_b32 {sA}, {sA}, 13
          s_lshl_b32 {sT}, s3, 11
          s_add_u32 {sA}, {sA}, {sT}
          s_add_u32 {sA}, {sA}, {YP}
          s_lshl_b32 {sB}, {sT2}, 8
          s_add_u32 {sB}, {sB}, {HB}
          v_lshl_add_u32 {vRb}, {vN}, 2, {vG}
          v_lshlrev_b32 {vRb}, 2, {vRb}
          s_lshl_b32 {sT}, s3, 8
          v_add_u32 {vRb}, {sT}, {vRb}
          v_lshlrev_b32 {vXR}, 16, {vXR}""")
    def b2(p, n, tb2=vTB):
        A(f"""s_waitcnt vmcnt({n})
              v_xor_b32 {v(p)}, {v(p)}, {vTB}
              v_xor_b32 {v(p+4)}, {v(p+4)}, {tb2}
              v_pk_add_f32 {v(Y+2,2)}, {v(p+2,2)}, {v(p+6,2)}
              v_or_b32 {v(T)}, {v(p)}, {v(p+4)}
              v_pk_add_f32 {v(Y,2)}, {v(p,2)}, {v(p+4,2)}""")
        cmp_tag(v(T), "BYTE_0")
    def red_b():
        A(f"""v_permlane32_swap_b32 {v(Y)}, {v(Y+2)}
              v_permlane32_swap_b32 {v(Y+1)}, {v(Y+3)}
              v_pk_add_f32 {v(Y,2)}, {v(Y,2)}, {v(Y+2,2)}
              v_permlane16_swap_b32 {v(Y)}, {v(Y+1)}
              v_add_f32 {v(Y)}, {v(Y)}, {v(Y+1)}""")
    def l2(p): A(f"buffer_load_dwordx4 {v(p,4)}, {vVo}, {sW}, {sA} offen sc1\n buffer_load_dwordx4 {v(p+4,4)}, {vVo}, {sW}, {sA} offen offset:1024 sc1")
    ld2 = lambda p, k: f"buffer_load_dwordx4 {v(p+4*k,4)}, {vVo}, {sW}, {sA} offen offset:{k*1024} sc1"
    ck2 = lambda p, k: f"v_xor_b32 {v(T+k)}, {v(p+4*k)}, {vTAG}"
    sp2 = lambda p, k: A(f"v_pk_add_f32 {v(Y,2)}, {v(p,2)}, {v(p+4,2)}\n v_pk_add_f32 {v(Y+2,2)}, {v(p+2,2)}, {v(p+6,2)}")
    if dlyr == "ack": A("s_waitcnt vmcnt(0)")
    elif dlyr: A(f"s_sleep {dlyr}")
    if mpoll[1]: mpl("r", 2, ld2, ck2, "BYTE_0", sp2)
    else: poll("r", 2, l2, b2, NS_[1], tau[1])
    red_b()
    stamp(3, "t")
    A(f"""ds_write_b32 {vRb}, {v(Y)} offset:{R_L}
          s_waitcnt lgkmcnt(0)
          s_barrier
          s_cmp_lg_u32 s3, 0
          s_cbranch_scc1 L_fin
          ds_read2st64_b32 {v(Y,2)}, {vL4} offset0:{R_L//256} offset1:{R_L//256+1}
          ds_read2st64_b32 {v(Y+2,2)}, {vL4} offset0:{R_L//256+2} offset1:{R_L//256+3}
          s_waitcnt lgkmcnt(0)
          v_pk_add_f32 {v(Y,2)}, {v(Y,2)}, {v(Y+2,2)}
          v_add_f32 {v(Y)}, {v(Y)}, {v(Y+1)}
          v_cvt_pk_bf16_f32 {v(Y)}, {v(Y)}, {v(Y)}
          v_and_b32 {v(Y)}, {sHI}, {v(Y)}
          v_add_f32 {v(Y)}, {v(Y)}, {vXR}
          v_cvt_pk_bf16_f32 {v(Y)}, {v(Y)}, {v(Y)}
          v_bfi_b32 {v(Y)}, {sHI}, {v(Y)}, {vTAG}
          buffer_store_dword {v(Y)}, {vL4}, {sW}, {sB} offen sc1""")
    stamp(4, "t")
    A(f"""s_cmp_lg_u32 {sWV}, 1
          s_cbranch_scc1 L_fin
          v_mov_b32 {v(Y+2)}, {EPOCH}
          s_mov_b64 exec, 1
          buffer_store_dword {vTAG}, {v(Y+2)}, {sW}, 0 offen sc1
          s_mov_b64 exec, -1
          s_branch L_fin""")
    A.label("L_notr")
    A(f"s_cmp_eq_u32 {sROLE}, 1\n s_cbranch_scc1 L_t3\n s_cmp_eq_u32 {sROLE}, 0\n s_cbranch_scc1 L_fin")
    HV = X + 8; SA = 104 + 4; sM11 = sB
    def t2bits(dst):
        A(f"s_and_b32 {sT}, {sTAG}, 1\n s_bfe_u32 {sT3}, {sTAG}, 0x10001\n s_lshl_b32 {sT3}, {sT3}, 16\n s_or_b32 {sT}, {sT}, {sT3}\n v_mov_b32 {dst}, {sT}")
    A(f"s_mov_b32 s64, s18\n s_and_b32 s65, s19, 0xffff\n s_mov_b32 s66, {0 if 'O' in abl else 8192}\n s_mov_b32 s67, 0x20000")
    vT2, vT2b, vK1, vK2 = vRa, vRf, vRg, vRh
    A(f"""s_lshr_b32 {sT2}, {sWV}, 2
          s_mul_i32 {sA}, {sT2}, 7168
          s_mul_i32 {sT}, s3, 1792
          s_add_u32 {sA}, {sA}, {sT}
          s_add_u32 {sA}, {sA}, {PD}
          v_cmp_gt_u32 vcc, 48, {vL}
          v_cndmask_b32 {vRe}, {vNINF}, {vVo}, vcc""")
    def l5(p):
        A(f"""buffer_load_dwordx4 {v(p,4)}, {vVo}, {sW}, {sA} offen sc1
              buffer_load_dwordx4 {v(p+4,4)}, {vRe}, {sW}, {sA} offen offset:1024 sc1""")
    if dly is None: l5(PS)
    t2bits(vT2)
    A(f"""s_lshl_b32 {sDd}, {sT2}, 4
          s_lshl_b32 {sC}, {sT2}, 8
          s_add_u32 {sC}, {sC}, {HB}
          s_mov_b32 {sM11}, 0x10001
          v_and_b32 {v(T)}, 16, v0
          v_lshl_or_b32 {vRb}, {vN}, 5, {v(T)}
          s_lshl_b32 {sT}, s3, 9
          v_add_u32 {vRb}, {sT}, {vRb}
          v_lshrrev_b32 {v(T)}, 3, {vL}
          v_and_b32 {v(T+1)}, 7, v0
          v_lshlrev_b32 {vRc}, 10, {v(T)}
          v_lshl_or_b32 {vRc}, {v(T+1)}, 1, {vRc}
          v_lshlrev_b32 {vRd}, 4, {v(T)}
          v_and_b32 {v(T+2)}, 3, v0
          v_lshl_or_b32 {vRd}, {v(T+2)}, 2, {vRd}
          v_and_b32 {v(T+2)}, 4, v0
          v_lshl_or_b32 {vRd}, {v(T+2)}, 5, {vRd}
          v_cndmask_b32 {vT2b}, 0, {vT2}, vcc
          v_xor_b32 {v(T+2)}, {sM11}, {vT2}
          v_cndmask_b32 {vK1}, {vT2}, {v(T+2)}, {sM8}
          v_cndmask_b32 {vK2}, 0, {vK1}, vcc
          v_and_b32 {v(T+2)}, 1, v0
          v_lshlrev_b32 {v(T+2)}, 4, {v(T+2)}
          v_mov_b32 {v(T+3)}, 0x3f80
          v_lshlrev_b32 {v(T+3)}, {v(T+2)}, {v(T+3)}
          v_lshrrev_b32 {v(T+1)}, 1, {v(T+1)}""")
    for r in range(4): A(f"v_cmp_eq_u32 vcc, {r}, {v(T+1)}\n v_cndmask_b32 {v(SA+r)}, 0, {v(T+3)}, vcc")
    A.label("L_t5h")
    A(f"""buffer_load_dword {v(HV)}, {vRd}, {sW}, {sC} offen sc1
          s_waitcnt vmcnt(0)
          v_xor_b32 {v(T)}, {v(HV)}, {vTAG}""")
    cmp_tag(v(T), "WORD_0")
    A(f"s_cbranch_vccz L_t5hok\n s_add_u32 {sCNT}, {sCNT}, 1\n s_cmp_lt_u32 {sCNT}, {cap}\n s_cbranch_scc1 L_t5h")
    A.label("L_t5hok")
    A(f"v_and_b32 {v(HV)}, {sHI}, {v(HV)}")
    if dly: A(f"s_sleep {dly}")
    def b5(p, n):
        A(f"""s_waitcnt vmcnt({n+1})
              v_bitop3_b32 {v(T)}, {v(p)}, {v(p+2)}, {vT2} bitop3:0x7e
              v_xor_b32 {v(p)}, {v(p)}, {vK1}
              v_xor_b32 {v(p+2)}, {v(p+2)}, {vK1}
              s_waitcnt vmcnt({n})
              v_bitop3_b32 {v(T+1)}, {v(p+4)}, {v(p+6)}, {vT2b} bitop3:0x7e""")
        mfma(v(Y,4), v(SA,4), v(p,4), 0)
        A(f"""v_xor_b32 {v(p+4)}, {v(p+4)}, {vK2}
              v_xor_b32 {v(p+6)}, {v(p+6)}, {vK2}
              v_bitop3_b32 {v(T)}, {v(T)}, {v(T+1)}, {sM11} bitop3:0xa8
              v_cmp_ne_u32 vcc, 0, {v(T)}""")
        mfma(v(Y,4), v(SA,4), v(p+4,4), v(Y,4))
    poll("t5", 2, l5, b5, 1, 0)
    stamp(3, "t")
    A(f"""s_mov_b32 exec_hi, 0
          ds_write_b128 {vRb}, {v(Y,4)} offset:{R_L}
          s_mov_b32 exec_hi, -1
          s_waitcnt lgkmcnt(0)
          s_barrier
          s_cmp_lg_u32 s3, 0
          s_cbranch_scc1 L_fin""")
    for k in range(4): A(f"ds_read2st64_b32 {v(Y+2*k,2)}, {vL4} offset0:{R_L//256+2*k} offset1:{R_L//256+2*k+1}")
    A(f"""s_waitcnt lgkmcnt(2)
          v_pk_add_f32 {v(Y,2)}, {v(Y,2)}, {v(Y+2,2)}
          s_waitcnt lgkmcnt(0)
          v_pk_add_f32 {v(Y+4,2)}, {v(Y+4,2)}, {v(Y+6,2)}
          v_pk_add_f32 {v(Y,2)}, {v(Y,2)}, {v(Y+4,2)}
          v_add_f32 {v(Y)}, {v(Y)}, {v(Y+1)}
          v_cvt_pk_bf16_f32 {v(Y)}, {v(Y)}, {v(Y)}
          v_and_b32 {v(Y)}, {sHI}, {v(Y)}
          v_add_f32 {v(Y)}, {v(Y)}, {v(HV)}""")
    if pert:
        import struct
        h_ = hex(struct.unpack("<I", struct.pack("<f", pert[0]))[0])
        if pert[1]: A(f"s_cmp_eq_u32 {sT2}, 5\n s_cselect_b64 exec, 1, 0")
        A(f"v_add_f32 {v(Y)}, {h_}, {v(Y)}\n s_mov_b64 exec, -1")
    A(f"""v_cvt_pk_bf16_f32 {v(Y)}, {v(Y)}, {v(Y)}
          buffer_store_short {v(Y)}, {vRc}, {sOut}, {sDd} offen {osc}""")
    stamp(4, "t")
    A("s_branch L_fin")
    if early or half: A.label("L_prep")
    else:
        A.label("L_t3")
        wdloads()
    vWd = "v248"
    A(f"""v_lshrrev_b32 {v(T)}, 2, {vN}
          v_lshl_add_u32 {v(T)}, {vG}, 3, {v(T)}
          v_lshlrev_b32 {vWd}, 8, {v(T)}
          v_lshlrev_b32 {v(T)}, 6, {v(T)}
          v_bfe_u32 {v(T+1)}, v0, 1, 1
          v_lshl_add_u32 {v(T)}, {v(T+1)}, 13, {v(T)}
          v_bfe_u32 {v(T+2)}, v0, 4, 1
          v_lshl_or_b32 {v(T+1)}, {v(T+2)}, 1, {v(T+1)}
          v_xor_b32 {v(T+1)}, s3, {v(T+1)}
          v_lshl_add_u32 {v(T)}, {v(T+1)}, 4, {v(T)}
          v_and_b32 {v(T+1)}, 1, v0
          v_lshl_add_u32 {v(T)}, {v(T+1)}, 3, {v(T)}
          v_add_u32 {v(T+9)}, {GU_L}, {v(T)}""")
    for k in range(16):
        for t2 in range(2): A(f"ds_read_b64_tr_b16 {a(GUF+4*k+2*t2,2)}, {v(T+9)} offset:{(k>>2)*16384 + (k&3)*2048 + t2*256}")
        if k % 4 == 3: A("s_waitcnt lgkmcnt(4)")
    t2bits(vRa)
    A(f"""v_and_b32 {v(T+1)}, 1, v0
          v_lshl_or_b32 {vWd}, {v(T+1)}, 4, {vWd}
          v_bfe_u32 {v(T+1)}, v0, 2, 3
          v_bfe_u32 {v(T+2)}, v0, 1, 1
          v_xor_b32 {v(T+1)}, {v(T+1)}, {v(T+2)}
          v_lshl_or_b32 {vWd}, {v(T+1)}, 5, {vWd}
          s_lshl_b32 {sWm}, s3, 13
          s_add_u32 {sWm}, {sWm}, {WD_L}""")
    PK = 96; HF = 8; DG = 144; CS = 116; SS = 120; SR = 72; sSEL = "s28"; sONE = "s29"
    A(f"""v_and_b32 {v(T)}, 7, v0
          v_bfe_u32 {v(T+1)}, v0, 3, 1
          v_mul_u32_u24 {vRc}, {XN_S}, {v(T)}
          v_and_b32 {v(T+2)}, 56, v0
          v_add_u32 {vRb}, {vRc}, {v(T+2)}
          s_lshl_b32 {sT}, s3, 8
          v_add_u32 {vRb}, {sT}, {vRb}
          v_lshl_add_u32 {vRc}, {vG}, 4, {vRc}
          v_mul_u32_u24 {vRe}, 80, {v(T)}
          v_lshl_add_u32 {vRd}, {vG}, 2, {vRe}
          s_lshl_b32 {sT}, s3, 4
          v_add_u32 {vRd}, {sT}, {vRd}
          v_lshlrev_b32 {vRf}, 6, {v(T)}
          v_lshl_or_b32 {v(T+3)}, {vG}, 4, {vRf}
          v_lshl_or_b32 {vRf}, {v(T+1)}, 2, {vRf}
          v_bfe_u32 {v(T+2)}, v0, 4, 1
          v_lshl_or_b32 {vRf}, {v(T+2)}, 3, {vRf}
          v_bfe_u32 {v(T+2)}, v0, 5, 1
          v_lshl_or_b32 {vRf}, {v(T+2)}, 1, {vRf}
          s_lshl_b32 {sT}, s3, 4
          v_add_u32 {vRf}, {sT}, {vRf}
          v_lshl_add_u32 {vRh}, {v(T+1)}, 2, {vG}
          v_mul_u32_u24 {vRh}, 7168, {vRh}
          v_lshl_add_u32 {vRh}, {v(T)}, 4, {vRh}
          s_mul_i32 {sB}, s3, {16*7168}
          s_lshl_b32 {sT}, {sGI}, 7
          s_add_u32 {sB}, {sB}, {sT}
          s_add_u32 {sB}, {sB}, {PD}
          s_add_u32 {sDd}, {sB}, {8*7168}
          s_mov_b32 {sT3}, 0x10001
          v_add_u32 {v(T+3)}, {A_L}, {v(T+3)}
          v_mov_b32 {v(T+4)}, {Z_L}
          v_cndmask_b32 {vB3}, {v(T+3)}, {v(T+4)}, {sM8}
          v_cndmask_b32 {vBh}, {v(T+4)}, {v(T+3)}, {sM8}
          s_lshl_b32 {sA}, s3, 12
          s_add_u32 {sA}, {sA}, {HB}
          s_mov_b32 {sSEL}, 0x07060302
          s_mov_b32 {sONE}, 0x3f803f80
          s_mov_b32 {sC}, 0""")
    if half:
        A("s_branch L_prepback")
        A.label("L_t3")
        wdloads()
    for i in range(8): A(f"v_mov_b32 {v(PK+i)}, {sONE}")
    A("s_branch L_t3lok")
    A.label("L_t3s")
    if dlyb: A(f"s_sleep {dlyb}")
    def l3(p):
        for k in range(4): A(f"buffer_load_dwordx4 {v(p+4*k,4)}, {vNINF if 'H' in abl and k >= 2 else vVo}, {sW}, {sA} offen offset:{k*1024} sc1")
    def pk(p, k): A(f"v_perm_b32 {v(PK+2*k)}, {v(p+4*k+1)}, {v(p+4*k)}, {sSEL}\n v_perm_b32 {v(PK+2*k+1)}, {v(p+4*k+3)}, {v(p+4*k+2)}, {sSEL}")
    def b3(p, n):
        A(f"s_waitcnt vmcnt({n+2})\n v_bitop3_b32 {v(T)}, {v(p)}, {v(p+4)}, {vTAG} bitop3:0x7e")
        pk(p, 0); pk(p, 1)
        A(f"s_waitcnt vmcnt({n})\n v_bitop3_b32 {v(T+1)}, {v(p+8)}, {v(p+12)}, {vTAG} bitop3:0x7e\n v_or_b32 {v(T)}, {v(T)}, {v(T) if 'H' in abl else v(T+1)}")
        cmp_tag(v(T), "WORD_0")
        pk(p, 2); pk(p, 3)
    if mpoll[2]: mpl("t3l", 4, ld2, ck2, "WORD_0", lambda p, k: (pk(p, k - 1), pk(p, k)))
    else: poll("t3l", 4, l3, b3, NS_[2], tau[2])
    stamp(3, "t")
    for k in range(4): A(f"ds_write_b64 {vRb}, {v(PK+2*k,2)} offset:{H_L + k*64}")
    for i in range(8):
        A(f"v_dot2_f32_bf16 {v(SS)}, {v(PK+i)}, {sONE}, {v(SS) if i else 0}\n v_dot2_f32_bf16 {v(SS+1)}, {v(PK+i)}, {v(PK+i)}, {v(SS+1) if i else 0}")
    A(f"""s_nop 2
          v_permlane16_swap_b32 {v(SS)}, {v(SS+1)}
          v_add_f32 {v(SS)}, {v(SS)}, {v(SS+1)}
          v_add_f32_dpp {v(SS)}, {v(SS)}, {v(SS)} row_ror:8 {DPPM}
          ds_write_b32 {vRd}, {v(SS)} offset:{ST_L}
          s_waitcnt lgkmcnt(0)
          s_barrier""")
    stamp(4, "t")
    for ks in range(2): A(f"ds_read_b128 {v(HF+4*ks,4)}, {vRc} offset:{H_L + ks*64}")
    for k in range(4): A(f"ds_read_b128 {v(SR+4*k,4)}, {vRe} offset:{ST_L + k*16}")
    for ks in range(2, 10): A(f"ds_read_b128 {v(HF+4*ks,4)}, {vRc} offset:{H_L + ks*64}")
    z = v(T); z2 = v(T+1); mean = v(T+2); mb = v(T+3); rinv = v(T+4)
    sc = f"""v_pk_add_f32 {v(SR,2)}, {v(SR,2)}, {v(SR+2,2)}
          v_pk_add_f32 {v(SR+4,2)}, {v(SR+4,2)}, {v(SR+6,2)}
          v_pk_add_f32 {v(SR+8,2)}, {v(SR+8,2)}, {v(SR+10,2)}
          v_pk_add_f32 {v(SR+12,2)}, {v(SR+12,2)}, {v(SR+14,2)}
          v_pk_add_f32 {v(SR,2)}, {v(SR,2)}, {v(SR+4,2)}
          v_pk_add_f32 {v(SR+8,2)}, {v(SR+8,2)}, {v(SR+12,2)}
          v_pk_add_f32 {v(SR,2)}, {v(SR,2)}, {v(SR+8,2)}
          v_mul_f32 {mean}, 0x3b000000, {v(SR)}
          v_mul_f32 {z}, 0x3b000000, {v(SR+1)}
          v_fma_f32 {z}, -{mean}, {mean}, {z}
          v_max_f32 {z}, 0, {z}
          v_cvt_pk_bf16_f32 {rinv}, {mean}, {z}
          v_lshlrev_b32 {mb}, 16, {rinv}
          v_and_b32 {rinv}, {sHI}, {rinv}
          v_add_f32 {rinv}, 0x3727c5ac, {rinv}
          v_cvt_pk_bf16_f32 {rinv}, {rinv}, {rinv}
          v_lshlrev_b32 {rinv}, 16, {rinv}
          v_sqrt_f32 {rinv}, {rinv}
          v_cvt_pk_bf16_f32 {rinv}, {rinv}, {rinv}
          v_lshlrev_b32 {rinv}, 16, {rinv}
          v_rcp_f32 {rinv}, {rinv}
          v_mul_f32 {mb}, {mb}, {rinv}
          v_mul_f32 {v(T+5)}, {mb}, {v(CS)}
          v_mul_f32 {v(T+6)}, {mb}, {v(CS+1)}""".split("\n")
    if tdiag: A("s_waitcnt lgkmcnt(0)")
    order = [0, 1, "s", "s", "s", "s"] + list(range(2, 10))
    si = 0
    for ks in range(16):
        upto = {0: 1, 2: 5, 6: 9, 10: 12, 13: 15}
        if ks in upto: A(f"s_waitcnt lgkmcnt({len(order) - 1 - order.index(upto[ks])})")
        mfma(v(DG,4), a(GUF+4*ks), v(HF+4*ks,4), v(DG,4) if ks else 0)
        if ks < 6:
            A(f"ds_read_b128 {v(HF+4*(ks+10),4)}, {vRc} offset:{H_L + (ks+10)*64}"); order.append(ks + 10)
        if ks >= 2:
            for _ in range(1 if ks < 6 else 2):
                if si < len(sc): A(sc[si]); si += 1
    while si < len(sc): A(sc[si]); si += 1
    g_, u_ = v(T+7), v(T+8)
    A(f"""v_mov_b32 {z2}, 0xc0135761
          v_permlane32_swap_b32 {v(DG)}, {v(DG+1)}
          v_permlane32_swap_b32 {v(DG+2)}, {v(DG+3)}
          v_cndmask_b32 {v(DG)}, {v(DG)}, {v(DG+2)}, {sM8}
          v_cndmask_b32 {v(DG+1)}, {v(DG+1)}, {v(DG+3)}, {sM8}
          v_fma_f32 {g_}, {v(DG)}, {rinv}, -{v(T+5)}
          v_fma_f32 {u_}, {v(DG+1)}, {rinv}, -{v(T+6)}
          v_cvt_pk_bf16_f32 {u_}, {g_}, {u_}
          v_lshlrev_b32 {g_}, 16, {u_}
          v_mul_f32 {z}, {g_}, {g_}
          v_fmac_f32 {z2}, 0xbdd2d3e8, {z}
          v_mul_f32 {z}, {z2}, {g_}
          v_exp_f32 {z}, {z}
          v_and_b32 {u_}, {sHI}, {u_}
          v_add_f32 {z}, 1.0, {z}
          v_rcp_f32 {z}, {z}
          s_cmp_eq_u32 {sC}, 0
          v_mul_f32 {z}, {z}, {g_}
          v_cvt_pk_bf16_f32 {z}, {z}, {z}
          v_lshlrev_b32 {z}, 16, {z}
          v_mul_f32 {z}, {z}, {u_}
          v_cvt_pk_bf16_f32 {z}, {z}, {z}
          ds_write_b16 {vRf}, {z} offset:{A_L}
          s_cselect_b32 s38, 0, {WS_END}
          s_waitcnt lgkmcnt(0)
          s_barrier
          ds_read_b128 {v(BL,4)}, {vB3}
          ds_read_b128 {v(BL+4,4)}, {vBh}""")
    stamp(5, "t")
    A("s_waitcnt lgkmcnt(0)")
    DP = 148
    for i in range(4):
        mfma(v(DP+4*i,4), a(WDF+8*i), v(BL,4), 0)
        mfma(v(DP+4*i,4), a(WDF+8*i+4), v(BL+4,4), v(DP+4*i,4))
    for p_ in range(2):
        for q_ in range(4): A(f"v_cvt_pk_bf16_f32 {v(164+4*p_+q_)}, {v(DP+8*p_+2*q_)}, {v(DP+8*p_+2*q_+1)}")
        for q_ in (0, 2): A(f"v_bfi_b32 {v(164+4*p_+q_)}, {sT3}, {vRa}, {v(164+4*p_+q_)}")
        A(f"buffer_store_dwordx4 {v(164+4*p_,4)}, {vRh}, {sW}, {(sB, sDd)[p_]} offen sc1")
    stamp(8, "t")
    A(f"""s_cbranch_scc0 L_fin
          s_mov_b32 {sC}, 1
          s_mov_b32 s38, {WS_END}
          v_mov_b32 {v(CS)}, {v(DG)}
          v_mov_b32 {v(CS+1)}, {v(DG+1)}""")
    if early:
        A("s_waitcnt vmcnt(0)\n s_nop 7\n s_branch L_prepback")
        A.label("L_t3")
        wdloads()
    A("s_waitcnt vmcnt(0)")
    for k in range(8):
        A(f"v_xor_b32 {v(T)}, {(4*(k>>2) + 2*(k&1))*32}, {vWd}\n v_add_u32 {v(T)}, {sWm}, {v(T)}")
        for t2 in range(2): A(f"ds_read_b64_tr_b16 {a(WDF+4*k+2*t2,2)}, {v(T)} offset:{t2*1024 + ((k>>1)&1)*8}")
        if k == 5: A("s_waitcnt lgkmcnt(4)")
    stamp(8)
    A("s_branch L_t3s")
    A.label("L_fin")
    if padto:
        if padwg is not None: A(f"s_cmp_lg_u32 s2, {padwg}\n s_cbranch_scc1 L_end")
        A.label("L_pad")
        A(f"s_memrealtime s[82:83]\n s_waitcnt lgkmcnt(0)\n s_sub_u32 s82, s82, s80\n s_cmp_lt_u32 s82, {padto}\n s_cbranch_scc1 L_pad")
    if stamps:
        A("s_waitcnt vmcnt(0)")
        stamp(9)
        A("s_getreg_b32 s0, hwreg(HW_REG_XCC_ID)\n s_waitcnt lgkmcnt(0)\n v_mov_b32 v8, 0")
        for k in range(10): A(f"v_writelane_b32 v8, s{80+2*k}, {k}")
        A(f"v_writelane_b32 v8, s0, 10\n v_writelane_b32 v8, {sCNT}, 11\n v_writelane_b32 v8, {sROLE}, 12\n v_writelane_b32 v8, s100, 13\n v_writelane_b32 v8, s101, 14\n s_getreg_b32 s0, hwreg(HW_REG_HW_ID)\n v_writelane_b32 v8, s0, 15")
        if dbg:
            A(f"s_not_b32 s0, s80\n v_writelane_b32 v8, s0, 10\n s_mov_b64 exec, 0xffff\n buffer_atomic_umax v8, {vL4}, {sDbg}, 0 offen sc1\n s_endpgm")
        A(f"s_lshl_b32 s0, s2, 2\n s_add_u32 s0, s0, s3\n s_lshl_b32 s0, s0, 8\n s_add_u32 s0, s0, 0x10000000\n s_add_u32 s26, s26, s0\n s_addc_u32 s27, s27, 0")
        A(f"v_lshlrev_b32 v9, 2, {vL}\n global_store_dword v9, v8, s[26:27]")
    A.label("L_end")
    A("s_endpgm")
    for o in ool: o()
    if warm0 or warm1: A.raw(".rept 3000\n s_endpgm\n.endr")
    A.raw('.section .rodata,"a"\n.p2align 6')
    A.raw(f".amdhsa_kernel {NAME}_kernel")
    A.raw("""  .amdhsa_next_free_vgpr 512
  .amdhsa_next_free_sgpr 102
  .amdhsa_accum_offset 256
  .amdhsa_group_segment_fixed_size 0
  .amdhsa_kernarg_size 96
  .amdhsa_user_sgpr_count 2
  .amdhsa_user_sgpr_kernarg_segment_ptr 1
  .amdhsa_system_sgpr_workgroup_id_x 1
  .amdhsa_float_denorm_mode_32 3
.end_amdhsa_kernel""")
    return A.text()

if __name__ == "__main__":
    if len(sys.argv) > 1:
        cfgs = json.loads(sys.argv[1])
        for k, c in cfgs.items(): open(f"k_{k}.s", "w").write(gen(**c))
        print(" ".join(f"work/k_{k}.s" for k in cfgs))
    else:
        open(f"cdna_kernels/{NAME}.s", "w").write(gen())
```

```python
import sys, json
sys.path.insert(0, "work")
from asmlib import Asm
NAME = "sequential_preLN__gqa_block_cached__geglu_ffn__decode"

Q_OFF = 0x0
EPOCH = 0x40000
CLR = 0x100000
YP = CLR
OP = CLR + 0x80000
ML = CLR + 0x100000
HB = CLR + 0x108000
PD = CLR + 0x10C000
WS_END = PD + 64 * 7168
XL = 0x50000
PG = 0x60000
XN_L = 0; XN_S = 1056
P_L = 8448
WO_L = P_L + 4 * 4608
GU_L = WO_L + 16384
WD_L = GU_L + 65536
WQ_L = GU_L
LDS_SZ = WD_L + 32768
T0_L = 0; O_L = P_L; Z_L = P_L + 4096; R_L = 0
H_L = 0; ST_L = P_L + 8192; A_L = P_L + 8192 + 768

def mask(f):
    v = 0
    for l in range(64):
        if f(l): v |= 1 << l
    return v

def gen(D=6, D0=8, IQ=52, budget=44, stamps=False, wnt="", IML=214, cap=200000, kvflag="nt",
        sleep=0, IEND=256, DEND=9, IWO=100, sdiag=False, warm0=False, warm1=False, abl="", kpat="p8", dbg=False, tdiag=False, bal="def",
        touch=False, osc="", vflag=None, ES=0, WOS=4, perm=True, VS=2, V0=1, rot=0, pre=False, NS_=(1, 1, 1, 1), tau=(0, 0, 0, 0), gate=0, adum=True, EA=1, kpair=0, vpair=0, GW=8, GE=3, rsh=0, mp=(12, 13, 14, 16), padto=0, padwg=None, ldsx=0, mpoll=(0, 0, 0, 0), otouch=None, loc=(1, 1, 1), XJ=1, stouch="", PB=8, pert=None, IS=0, DST=8, dly=None, dlyr="ack", dlyb=None, early=False, AK=0, warmA=True, half=False, roll=dict(mask=15, dist=1536, first=33, per=28, st=[35, 150]), roll0=15):
    A = Asm()
    if bal == "def": bal = None if dbg else dict(lo=5, first=46, per=16, last=241, th=6, off=272, lag=8, one=1, aoff=1, sep=16, lo2=7)
    hdr = [l for l in open("cdna_kernels/" + NAME + ".s.ref").read().split("\n") if l.startswith(";") and "@launch" not in l]
    for l in hdr: A.raw(l)
    A.raw(f"; @launch grid=(256,1,1) block=(256,1,1) lds={LDS_SZ + ldsx}")
    for l in """
; One persistent launch, 256 workgroups x 4 waves (one workgroup per CU, all co-resident).
;   ids: x = wg&7 = kv head, b = wg>>5, split = (wg>>3)&3; the 4 workgroups of a (b, kv head) share its 8192 keys.
;   class A (one per group) first computes LN(x) @ wq for 64 columns and takes 26 of the 128 key rows, the others 34.
;   K phase: 8-key x 128-byte loads straight into an AGPR ring, QK^T by MFMA, scores rounded like the reference.
;   V phase: exact per-wave max, P in LDS, PV by MFMA with a diagonal A operand; (max, sum) exchanged per group.
;   tail: o partials -> o @ wo (per head, 64 columns) -> sum over heads + x -> LN folded into gate/up -> gelu*up
;         -> @ w_down partials -> final sum + h.  Every hand-off word carries a tag (previous tag in d_ws + 1) that is
;         stripped again by the reader; plain stores are used only when all readers reported the same XCC id.
;   loads in flight per wave are 6, or 5 while the workgroup is ahead of most of its sampled peers.""".strip().split("\n"): A.raw(l)
    A.raw('.amdgcn_target "amdgcn-amd-amdhsa--gfx950"')
    A.raw(".text"); A.raw(f".globl {NAME}_kernel"); A.raw(".p2align 8"); A.raw(f".type {NAME}_kernel,@function")
    A.label(f"{NAME}_kernel")
    NK = 136; NS = 2 * NK; NO = 32
    if dbg: stamps = True
    sK, sV, sW, sX, sQ, sO, sG, sU, sD, sOut, sDbg = [f"s[{b}:{b+3}]" for b in range(28, 72, 4)]
    sKV = "s72"; sROLE = "s73"; sCNT = "s74"; sLOG = "s75"; sMV = "s[76:77]"; sM8 = "s[78:79]"
    sSCALE = "s4"; sHI = "s5"; sTAG = "s6"; sT = "s7"; sT2 = "s8"; sT3 = "s9"; sGI = "s10"; sHEAD = "s11"; sCS = "s12"
    sOPs, sOPl, sOPl2, sYs, sA, sB, sC, sDd = [f"s{i}" for i in range(13, 21)]
    sYs = "s23"
    sOPT = "s[24:25]"; sINC = "s20"; sXV = "s95" if not stamps else "s93"; sLOC = "s96" if not stamps else "s83"; sLC = "s1"; sCLS = "s100" if not stamps else "s99"; sE = "s101" if not stamps else "s97"; sE0 = "s98" if not stamps else "s95"; sWV = "s99" if not stamps else "s81"
    sWo, sWm, sW2o, sW2m = "s44", "s45", "s46", "s47"
    vL = "v1"; vKa = "v2"; vKb = "v3"; vVo = "v4"; vPw = "v5"; vPr = "v6"
    SEL = 8; QA = 16; S = 32; vNINF = "v252"; DS = 68; PP = 156; A0 = 100; A1 = 104; O0 = 108; O1 = 112
    m01, m23, l01, l23, nm01, nm23, f01, f23 = [f"v{i}" for i in range(116, 124)]
    vXR = "v124"; T = 125
    vN = "v141"; vG = "v142"
    BIG = 156; WOF = 144
    vT0w, vT0r, vL4, vL8, vOw, vBl, vBh, vYs = [f"v{i}" for i in range(232, 240)]
    vTAG = "v7"; vWOr = "v143"; sFF = "s15"
    vWa, vWb, vWc = "v240", "v241", "v253"; vWa2, vWb2, vWc2 = "v244", "v245", "v254"; vB3 = "v249"; vT16 = "v255"; vTB, vEM = "v250", "v251"
    v = lambda i, n=1: f"v{i}" if n == 1 else f"v[{i}:{i+n-1}]"
    a = lambda i, n=4: f"a[{i}:{i+n-1}]"
    def stamp(k, diag=False):
        if diag == "t":
            if not tdiag: return
        elif tdiag and k in (1, 2, 3, 4, 5, 8): return
        elif sdiag and k in (5, 6, 7, 8) and not diag: return
        elif diag and not sdiag: return
        if stamps: A(f"s_memrealtime s[{80+2*k}:{81+2*k}]")
    def smov64(dst, val):
        lo = int(dst[2:dst.index(":")])
        A(f"s_mov_b32 s{lo}, 0x{val & 0xffffffff:x}\n s_mov_b32 s{lo+1}, 0x{val >> 32:x}")
    ops = []; known = [-1]
    def vm(text, mandatory=True):
        A(text); ops.append(mandatory); return len(ops) - 1
    def after(idx, r1=False): return sum(1 for m in ops[idx+1:] if m is True or (r1 and m == 'r1'))
    def wait_for(idx):
        if idx <= known[0]: return
        n = after(idx); assert n <= 63
        A(f"s_waitcnt vmcnt({n})"); known[0] = idx
    ool = []
    def mfma(d, x, y, c): A(f"v_mfma_f32_16x16x32_bf16 {d}, {x}, {y}, {c}")
    DPPM = "row_mask:0xf bank_mask:0xf"

    A("s_cmp_ge_u32 s2, 256\n s_cbranch_scc1 L_end")
    A("s_load_dwordx8 s[4:11], s[0:1], 0\n s_load_dwordx8 s[12:19], s[0:1], 32\n s_load_dwordx8 s[20:27], s[0:1], 64")
    if stamps:
        for k in range(1, 11): A(f"s_mov_b32 s{80+2*k}, 0")
        A("s_mov_b32 s101, 0")
    stamp(0)
    if stamps: A("s_waitcnt lgkmcnt(0)")
    if padto: A("s_memrealtime s[80:81]")
    A(f"""v_lshrrev_b32 {v(T)}, 6, v0
          v_and_b32 {vL}, 63, v0
          v_readfirstlane_b32 s3, {v(T)}
          v_lshrrev_b32 {vG}, 4, {vL}
          v_and_b32 {v(T+3)}, 14, v0
          v_lshlrev_b32 {vKa}, 7, {v(T+3)}
          v_lshl_or_b32 {vKa}, {vG}, 4, {vKa}
          v_and_b32 {v(T+4)}, 1, v0
          v_lshl_or_b32 {vKa}, {v(T+4)}, 6, {vKa}
          {"v_lshlrev_b32 " + vKa + ", 4, " + vL if kpat == "c" else ""}
          v_xor_b32 {vKb}, 64, {vKa}
          s_mov_b32 s31, 0x20000
          s_and_b32 {sWV}, s2, 7
          s_lshl_b32 {sWV}, {sWV}, 2
          s_bfe_u32 s75, s2, 0x20003
          s_or_b32 {sWV}, {sWV}, s75
          s_and_b32 s74, s2, 0xe0
          s_or_b32 {sWV}, {sWV}, s74
          s_lshr_b32 s74, s2, 5
          s_add_u32 s74, s75, s74
          s_and_b32 {sCLS}, s74, 3
          s_add_u32 s74, s74, 3
          s_and_b32 s74, s74, 3
          s_mov_b32 {sE0}, s74
          s_lshl_b32 {sE}, s74, {mp[2]}
          s_and_b32 s73, s3, 1
          s_lshl_b32 s73, s73, {mp[0]}
          s_lshr_b32 s74, s3, 1
          s_lshl_b32 s74, s74, {mp[1]}
          s_add_u32 s73, s73, s74
          s_lshr_b32 s75, {sWV}, 2
          s_lshl_b32 s75, s75, 21
          s_sub_u32 s30, 0x200000, s73
          s_add_u32 s73, s73, s75
          s_waitcnt lgkmcnt(0)
          s_add_u32 s28, s6, s73
          s_addc_u32 s29, s7, 0
          s_and_b32 s29, s29, 0xffff""")
    stamp(5, True)
    kv = []; st = {}; uid = [0]
    def lstore(text, on, f=A):
        if not on: return f(text + " sc1")
        uid[0] += 1; u = uid[0]
        A(f"s_cmp_eq_u32 {sLOC}, 0\n s_cbranch_scc1 L_ls{u}")
        r = f(text)
        A.label(f"L_le{u}")
        def o():
            A.label(f"L_ls{u}"); A(text + " sc1"); A(f"s_branch L_le{u}")
        ool.append(o)
        return r
    def xl_pub(f):
        uid[0] += 1; u = uid[0]
        A(f"""s_getreg_b32 {sXV}, hwreg(HW_REG_XCC_ID, 0, 3)
              s_lshl_b32 {sT}, {sTAG}, 3
              s_or_b32 {sXV}, {sXV}, {sT}
              s_cmp_lg_u32 s3, 1
              s_cbranch_scc1 L_xp{u}
              s_and_b32 {sT}, s2, 7
              s_lshl_b32 {sT}, {sT}, 7
              s_lshr_b32 s0, s2, 3
              s_lshl_b32 s0, s0, 2
              s_add_u32 {sT}, {sT}, s0
              s_add_u32 {sT}, {sT}, {XL}
              v_mov_b32 {v(T+10)}, {sXV}
              v_mov_b32 {v(T+11)}, 0
              s_mov_b64 exec, 1""")
        f(f"buffer_store_dword {v(T+10)}, {v(T+11)}, {sW}, {sT} offen")
        A("s_mov_b64 exec, -1")
        A.label(f"L_xp{u}")
    def xl_load(f, dst):
        A(f"""v_and_b32 {v(T+10)}, 31, v0
              v_lshlrev_b32 {v(T+10)}, 2, {v(T+10)}
              s_and_b32 {sT2}, s2, 7
              s_lshl_b32 {sT2}, {sT2}, 7
              s_add_u32 {sT2}, {sT2}, {XL}""")
        return f(f"buffer_load_dword {dst}, {v(T+10)}, {sW}, {sT2} offen sc1")
    def xl_eval(src):
        A(f"v_cmp_ne_u32 s[0:1], {sXV}, {src}\n s_cmp_eq_u64 s[0:1], 0\n s_cselect_b32 {sLOC}, 1, 0")
    def tagfin(f):
        A(f"s_waitcnt lgkmcnt(0)\n s_add_u32 {sTAG}, {sTAG}, 1\n v_mov_b32 {vTAG}, {sTAG}")
        xl_pub(f)
    slot = lambda i: (i % 64) * 4 if i < NK else ((i - NK + 8) % 32) * 4
    def prevocc(i):
        for j in range(i - 1, -1, -1):
            if slot(j) == slot(i): return j
        return -1
    rowoff = lambda p: (3 * p if p < 8 else 24 + 4 * (p - 8)) * 16384
    vorder = list(range(8, 34))
    vorder += list(range(8))
    tileof = lambda i: i >> 2 if i < NK else vorder[(i - NK) >> 2]
    isopt = lambda i: tileof(i) < 8
    def issue(i):
        p = tileof(i)
        dst = a(slot(i))
        if (i & 3) == 0:
            if p >= 8:
                q = p - 8 + 6
                A(f"s_add_u32 {sKV}, {sE}, {((q & 1) << mp[3]) + ((q >> 1) << 17)}")
            elif tuple(mp) == (12, 13, 14, 16): A(f"s_add_u32 {sKV}, {sE}, {3 * p * 16384}")
            else:
                A(f"""s_add_u32 s0, {sE0}, {3 * p}
                      s_and_b32 {sKV}, s0, 3
                      s_lshl_b32 {sKV}, {sKV}, {mp[2]}
                      s_bfe_u32 s1, s0, 0x10002
                      s_lshl_b32 s1, s1, {mp[3]}
                      s_add_u32 {sKV}, {sKV}, s1
                      s_lshr_b32 s1, s0, 3
                      s_lshl_b32 s1, s1, 17
                      s_add_u32 {sKV}, {sKV}, s1""")
        if i < NK:
            va = vKb if p & 1 else vKa
            kv.append(vm(f"buffer_load_dwordx4 {dst}, {va}, {sK}, {sKV} offen offset:{(i&3)*1024 if kpat == 'c' else ((i>>1)&1)*2048 + (i&1)*128} {kvflag}"))
        else:
            kv.append(vm(f"buffer_load_dwordx4 {dst}, {vVo}, {sV}, {sKV} offen offset:{(i&3)*1024} {kvflag if vflag is None else vflag}"))
    A(f"s_cmp_eq_u32 {sCLS}, 0\n s_cbranch_scc1 L_A")
    for i in range(D0):
        issue(i)
        if i == 1: A(f"s_load_dword {sTAG}, s[26:27], {EPOCH}")
    stamp(6, True)
    if roll0 is not None:
        A(f"s_and_b32 s74, s2, {roll0 << 3}\n s_cmp_lg_u32 s74, 8\n s_cbranch_scc1 L_B\n s_getpc_b64 s[0:1]\n v_lshlrev_b32 {vT16}, 5, v0")
        vm(f"global_load_dword {v(228)}, {vT16}, s[0:1]", False)
    A("s_branch L_B")
    A.label("L_A")
    A(f"s_load_dword {sTAG}, s[26:27], {EPOCH}")
    A(f"""s_mov_b32 s40, s4
          s_and_b32 s41, s5, 0xffff
          s_mov_b32 s42, 8192
          s_mov_b32 s43, 0x20000
          v_lshrrev_b32 {v(T+2)}, 5, v0
          v_and_b32 {v(T+4)}, 31, v0
          v_lshlrev_b32 {v(T+4)}, 4, {v(T+4)}
          v_lshl_or_b32 {v(T)}, {v(T+2)}, 10, {v(T+4)}
          buffer_load_dwordx4 {v(BIG,4)}, {v(T)}, {sX}, 0 offen
          buffer_load_dwordx4 {v(BIG+4,4)}, {v(T)}, {sX}, 0 offen offset:512
          s_mov_b32 s44, s10
          s_and_b32 s45, s11, 0xffff
          s_mov_b32 s46, {0 if 'q' in abl else 512*4096*2}
          s_mov_b32 s47, 0x20000
          v_and_b32 {v(T+3)}, 7, v0
          v_lshrrev_b32 {v(T+1)}, 3, {vL}
          v_and_b32 {v(T+5)}, 2, {v(T+1)}
          v_xor_b32 {v(T+3)}, {v(T+3)}, {v(T+5)}
          v_lshlrev_b32 {v(T+1)}, 13, {v(T+1)}
          v_lshl_or_b32 {v(T+1)}, {v(T+3)}, 4, {v(T+1)}
          v_xor_b32 {v(T+3)}, 64, {v(T+1)}
          s_and_b32 s74, s2, 7
          s_lshl_b32 s74, s74, 3
          s_lshr_b32 s75, s2, 5
          s_add_u32 {sLC}, s74, s75
          {"s_xor_b32 " + sLC + ", " + sLC + ", 4" if perm else ""}
          s_lshl_b32 s74, {sLC}, 7
          s_lshl_b32 s75, s3, 20
          s_add_u32 s74, s74, s75
          s_lshl_b32 s75, s3, 14
          s_add_u32 m0, s75, {WQ_L}""")
    for j in range(16):
        A(f"buffer_load_dwordx4 {v(T+3) if j & 1 else v(T+1)}, {sQ}, s74 offen nt lds")
        if j < 15: A(f"s_add_u32 s74, s74, {8*8192}\n s_add_u32 m0, m0, 1024")
        if j == XJ:
            A(f"s_mov_b32 s36, s26\n s_and_b32 s37, s27, 0xffff\n s_mov_b32 s38, {WS_END}\n s_mov_b32 s39, 0x20000")
            tagfin(A)
    stamp(7, True)
    def setupA():
        A(f"v_lshlrev_b32 {vVo}, 4, {vL}\n v_and_b32 {vN}, 15, v0")
        A("s_add_u32 s32, s8, s73\n s_addc_u32 s33, s9, 0\n s_and_b32 s33, s33, 0xffff\n s_mov_b32 s34, s30")
        for b in (32, 36, 40, 48, 52, 56, 60) + ((68,) if dbg else ()): A(f"s_mov_b32 s{b+3}, 0x20000")
        A(f"s_mov_b32 s40, s4\n s_and_b32 s41, s5, 0xffff\n s_mov_b32 s42, 8192")
        A(f"s_mov_b32 s36, s26\n s_and_b32 s37, s27, 0xffff\n s_mov_b32 s38, {WS_END}\n s_mov_b32 {sHI}, 0xffff0000")
        smov64(sM8, mask(lambda l: (l >> 3) & 1))
        A(f"""s_lshr_b32 {sT2}, s2, 5
              s_cmp_lt_u32 {sT2}, 7
              s_cselect_b32 {sROLE}, 1, 0
              s_cmp_eq_u32 {sCLS}, 3
              s_cselect_b32 {sROLE}, 0, {sROLE}
              s_cmp_eq_u32 {sCLS}, 2
              s_cselect_b32 {sROLE}, 2, {sROLE}
              s_cmp_eq_u32 {sCLS}, 1
              s_cselect_b32 {sROLE}, 3, {sROLE}""")
    sMODE = "s21"; PGA = "v243"
    def pgsetup():
        if bal: A(f"s_mov_b32 {sMODE}, 0\n v_mov_b32 {PGA}, {P_L + 4352}\n v_mov_b32 {v(T)}, 0\n ds_write_b32 {PGA}, {v(T)}\n ds_write_b32 {PGA}, {v(T)} offset:4")
    def setup0(isB=True):
        for (b, p, sz) in ((48, 12, 0 if 'o' in abl else 4096*512*2), (52, 16, 0 if 'g' in abl else 512*1792*2), (56, 18, 0 if 'g' in abl else 512*1792*2), (60, 20, 0 if 'd' in abl else 1792*512*2)) + (((68, 24, 256),) if dbg else ()):
            A(f"s_mov_b32 s{b}, s{p}\n s_and_b32 s{b+1}, s{p+1}, 0xffff\n s_mov_b32 s{b+2}, {sz}")
        A(f"""s_mov_b64 s[18:19], s[22:23]
              s_mov_b32 {sLOG}, 0x3fb8aa3b
              s_mov_b32 {sSCALE}, 0x3db504f3
              s_mov_b32 {sCNT}, 0
              s_mov_b32 {sFF}, 0xff
              s_bfe_u32 {sCS}, s2, 0x30003
              s_and_b32 {sT}, s2, 7
              s_mul_i32 {sGI}, {sT}, 7
              s_add_u32 {sGI}, {sGI}, {sT2}
              s_lshl_b32 {sHEAD}, {sT}, 2
              s_lshr_b32 {sT}, s2, 6
              s_add_u32 {sHEAD}, {sHEAD}, {sT}""")
        smov64(sMV, mask(lambda l: (l & 1) == ((l >> 4) & 1)))
        A(f"""s_cmp_eq_u32 {sROLE}, 1
              s_cselect_b32 s54, s54, 0
              s_cselect_b32 s58, s58, 0
              s_cselect_b32 s62, s62, 0
              s_cmp_eq_u32 {sCLS}, 0
              s_cselect_b32 s24, -1, 0
              s_mov_b32 s25, s24""")
        if touch and isB:
            A(f"s_cmp_lg_u32 s3, 1\n s_cbranch_scc1 L_nt0\n s_mov_b64 exec, 1\n s_mov_b32 {sT}, 0x100000\n s_mov_b32 {sT2}, 0x200000\n s_lshl_b32 {sT3}, {sHEAD}, 17")
            for (srd, so) in ((sV, "0"), (sOut, "0"), (sW, sT), (sW, sT2), (sO, sT3), (sG, "0"), (sU, "0"), (sD, "0")):
                vm(f"buffer_load_dword v231, {vVo}, {srd}, {so} offen nt", False)
            A("s_mov_b64 exec, -1")
            A.label("L_nt0")
        if warm0 and isB:
            A("s_getpc_b64 s[0:1]")
            A(f"s_lshl_b32 {sT}, {sCS}, 2\n s_add_u32 {sT}, {sT}, s3\n s_lshl_b32 {sT}, {sT}, 10\n s_add_u32 s0, s0, {sT}\n s_addc_u32 s1, s1, 0")
            A(f"s_cmp_ge_u32 s2, 128\n s_cbranch_scc1 L_nw0")
            vm(f"global_load_dwordx4 {v(228,4)}, {vVo}, s[0:1]", False)
            A.label("L_nw0")
    def wsetup():
        A(f"""v_lshrrev_b32 {vWa}, 3, {vL}
              v_and_b32 {v(T+1)}, 2, {vWa}
              v_lshlrev_b32 {vWa}, 10, {vWa}
              v_and_b32 {v(T)}, 7, v0
              v_xor_b32 {v(T)}, {v(T)}, {v(T+1)}
              v_lshl_or_b32 {vWa}, {v(T)}, 4, {vWa}
              v_xor_b32 {vWa2}, 64, {vWa}
              v_lshrrev_b32 {v(T)}, 2, {vL}
              v_mul_u32_u24 {vWb}, 3584, {v(T)}
              v_and_b32 {v(T+1)}, 3, v0
              v_and_b32 {v(T)}, 2, {vG}
              v_xor_b32 {v(T+1)}, {v(T+1)}, {v(T)}
              v_lshl_add_u32 {vWb}, {v(T+1)}, 4, {vWb}
              v_xor_b32 {vWb2}, 16, {vWb}
              v_lshlrev_b32 {vWc}, 10, {vG}
              v_lshlrev_b32 {v(T)}, 1, {vG}
              v_xor_b32 {v(T)}, {v(T)}, {vN}
              v_lshl_or_b32 {vWc}, {v(T)}, 4, {vWc}
              v_xor_b32 {vWc2}, 128, {vWc}
              s_mul_i32 {sW2o}, s3, {128*3584}
              s_lshl_b32 {sT2}, {sGI}, 6
              s_add_u32 {sW2o}, {sW2o}, {sT2}
              s_lshl_b32 {sW2m}, s3, 14
              s_add_u32 {sW2m}, {sW2m}, {GU_L}
              s_lshl_b32 {sWo}, {sHEAD}, 17
              s_lshl_b32 {sT2}, {sCS}, 7
              s_add_u32 {sWo}, {sWo}, {sT2}
              s_lshl_b32 {sT2}, s3, 15
              s_add_u32 {sWo}, {sWo}, {sT2}
              s_lshl_b32 {sWm}, s3, 12
              s_add_u32 {sWm}, {sWm}, {WO_L}""")
    def consts1():
        A(f"""v_and_b32 {v(T)}, 1, v0
              v_cmp_eq_u32 vcc, 1, {v(T)}
              v_mov_b32 {v(T+1)}, 0x0c0c0100
              v_mov_b32 {v(T+2)}, 0x01000c0c
              v_cndmask_b32 {v(T+1)}, {v(T+1)}, {v(T+2)}, vcc
              v_mov_b32 {v(T+2)}, 0x0c0c0302
              v_mov_b32 {v(T+3)}, 0x03020c0c
              v_cndmask_b32 {v(T+2)}, {v(T+2)}, {v(T+3)}, vcc
              v_bfe_u32 {v(T)}, v0, 1, 1
              v_bfe_u32 {v(T+3)}, v0, 3, 1
              v_lshl_or_b32 {v(T)}, {v(T+3)}, 1, {v(T)}
              v_mov_b32 {v(T+3)}, 0x0c0c0c0c""")
        for r in range(4):
            A(f"""v_cmp_eq_u32 vcc, {r}, {v(T)}
                  v_cndmask_b32 {v(SEL+r)}, {v(T+3)}, {v(T+1)}, vcc
                  v_cndmask_b32 {v(SEL+4+r)}, {v(T+3)}, {v(T+2)}, vcc""")
    def consts2():
        A(f"s_mul_i32 {sT}, s3, 4608\n s_add_u32 {sT}, {sT}, {P_L}\n v_mov_b32 {vNINF}, 0xff800000")
        A(f"""v_bfe_u32 {v(T)}, v0, 4, 1
              v_lshlrev_b32 {vPw}, 7, {v(T)}
              v_and_b32 {v(T)}, 7, v0
              v_lshl_or_b32 {vPw}, {v(T)}, 4, {vPw}
              v_bfe_u32 {v(T)}, v0, 5, 1
              v_lshl_or_b32 {vPw}, {v(T)}, 3, {vPw}
              v_bfe_u32 {v(T)}, v0, 3, 1
              v_lshl_or_b32 {vPw}, {v(T)}, 2, {vPw}
              v_add_u32 {vPw}, {sT}, {vPw}
              v_and_b32 {v(T)}, 4, v0
              v_lshlrev_b32 {vPr}, 5, {v(T)}
              v_lshl_or_b32 {vPr}, {vG}, 5, {vPr}
              v_add_u32 {vPr}, {sT}, {vPr}
              v_mov_b32 {m01}, 0xff800000
              v_mov_b32 {m23}, 0xff800000
              v_mov_b32 {l01}, 0
              v_mov_b32 {l23}, 0""")
    def tc1():
        A(f"""s_lshl_b32 {sT}, s3, 11
              s_add_u32 {sT}, {sT}, {T0_L}
              v_bfe_u32 {v(T)}, v0, 4, 1
              v_lshlrev_b32 {vT0w}, 9, {v(T)}
              v_lshl_or_b32 {vT0w}, {vN}, 5, {vT0w}
              v_bfe_u32 {v(T)}, v0, 5, 1
              v_lshl_or_b32 {vT0w}, {v(T)}, 4, {vT0w}
              v_add_u32 {vT0w}, {sT}, {vT0w}
              v_lshlrev_b32 {vT0r}, 3, v0
              v_lshlrev_b32 {vL4}, 2, {vL}
              v_lshlrev_b32 {vL8}, 3, {vL}
              v_lshlrev_b32 {vT16}, 4, v0
              s_and_b32 {sT}, {sWV}, 28
              s_add_u32 {sT}, {sT}, s3
              s_lshl_b32 {sOPs}, {sT}, 14
              s_lshr_b32 {sT}, {sWV}, 6
              s_lshl_b32 {sT}, {sT}, 12
              s_add_u32 {sOPs}, {sOPs}, {sT}
              s_and_b32 {sT}, {sWV}, 3
              s_lshl_b32 {sT}, {sT}, 10
              s_add_u32 {sOPs}, {sOPs}, {sT}
              s_and_b32 {sT}, {sWV}, 32
              s_lshl_b32 {sT}, {sT}, 4
              s_add_u32 {sOPs}, {sOPs}, {sT}
              s_add_u32 {sOPs}, {sOPs}, {OP}
              s_lshl_b32 {sOPl}, {sHEAD}, 14
              s_lshl_b32 {sT}, s3, 12
              s_add_u32 {sOPl}, {sOPl}, {sT}
              s_add_u32 {sOPl}, {sOPl}, {OP}""")
    def tc2():
        A(f"""v_lshrrev_b32 {v(T)}, 5, v0
              v_and_b32 {v(T+1)}, 31, v0
              v_mul_u32_u24 {vOw}, 288, {v(T)}
              v_lshl_add_u32 {vOw}, {v(T+1)}, 3, {vOw}
              v_and_b32 {v(T)}, 7, v0
              v_mul_u32_u24 {v(T+1)}, 288, {v(T)}
              v_lshl_add_u32 {v(T+1)}, {vG}, 4, {v(T+1)}
              v_add_u32 {vBl}, {O_L}, {v(T+1)}
              v_lshlrev_b32 {vYs}, 4, {v(T)}
              v_and_b32 {v(T+1)}, 16, v0
              v_lshl_or_b32 {vYs}, {v(T+1)}, 3, {vYs}
              v_and_b32 {v(T+1)}, 32, v0
              v_lshl_or_b32 {vYs}, {v(T+1)}, 8, {vYs}
              v_cndmask_b32 {vYs}, {vYs}, {vNINF}, {sM8}
              s_lshl_b32 {sYs}, {sCS}, 16
              s_lshl_b32 {sT}, {sHEAD}, 8
              s_add_u32 {sYs}, {sYs}, {sT}
              s_lshl_b32 {sT}, s3, 14
              s_add_u32 {sYs}, {sYs}, {sT}
              s_add_u32 {sYs}, {sYs}, {YP}
              v_lshrrev_b32 {v(T)}, 2, {vN}
              v_lshl_add_u32 {v(T)}, {vG}, 3, {v(T)}
              v_and_b32 {v(T+1)}, 3, v0
              v_lshlrev_b32 {vWOr}, 7, {v(T)}
              v_lshl_or_b32 {vWOr}, {v(T+1)}, 3, {vWOr}
              v_bfe_u32 {v(T+1)}, v0, 3, 2
              v_xor_b32 {v(T+1)}, s3, {v(T+1)}
              v_lshl_or_b32 {vWOr}, {v(T+1)}, 5, {vWOr}
              v_add_u32 {vWOr}, {WO_L}, {vWOr}
              v_and_b32 {vTB}, {sFF}, {vTAG}
              v_and_b32 {vEM}, 1, v0
              v_add_u32 {vEM}, {sFF}, {vEM}
              v_and_b32 {vEM}, {sFF}, {vEM}
""")
    setupA(); A(f"s_mov_b32 s75, {sT2}")
    A(f"v_mul_u32_u24 {v(T+2)}, {XN_S}, {v(T+2)}\n v_add_u32 {v(T+2)}, {v(T+2)}, {v(T+4)}")
    F = BIG + 8; G = F + 16
    def rowsum32(r, t):
        for k in (8, 4, 2, 1): A(f"v_add_f32_dpp {r}, {r}, {r} row_ror:{k} {DPPM}")
        A(f"v_mov_b32 {t}, {r}\n v_permlane16_swap_b32 {r}, {t}\n v_add_f32 {r}, {r}, {t}")
    def ln_scalars(mean, var, mb, rinv):
        A(f"""v_cvt_pk_bf16_f32 {rinv}, {mean}, {var}
              v_lshlrev_b32 {mb}, 16, {rinv}
              v_and_b32 {rinv}, {sHI}, {rinv}
              v_add_f32 {rinv}, 0x3727c5ac, {rinv}
              v_cvt_pk_bf16_f32 {rinv}, {rinv}, {rinv}
              v_lshlrev_b32 {rinv}, 16, {rinv}
              v_sqrt_f32 {rinv}, {rinv}
              v_cvt_pk_bf16_f32 {rinv}, {rinv}, {rinv}
              v_lshlrev_b32 {rinv}, 16, {rinv}
              v_rcp_f32 {rinv}, {rinv}""")
    A("s_waitcnt vmcnt(16)")
    stamp(1)
    for i in range(8): A(f"v_lshlrev_b32 {v(F+2*i)}, 16, {v(BIG+i)}\n v_and_b32 {v(F+2*i+1)}, {sHI}, {v(BIG+i)}")
    for i in range(4): A(f"v_pk_add_f32 {v(G+2*i,2)}, {v(F+2*i,2)}, {v(F+8+2*i,2)}")
    for i in range(2): A(f"v_pk_add_f32 {v(G+2*i,2)}, {v(G+2*i,2)}, {v(G+4+2*i,2)}")
    A(f"v_pk_add_f32 {v(G,2)}, {v(G,2)}, {v(G+2,2)}\n v_add_f32 {v(T+5)}, {v(G)}, {v(G+1)}")
    rowsum32(v(T+5), v(T+6))
    A(f"v_mul_f32 {v(T+5)}, 0x3b000000, {v(T+5)}")
    for i in range(16): A(f"v_sub_f32 {v(G+i)}, {v(F+i)}, {v(T+5)}")
    A(f"v_pk_mul_f32 {v(T+7,2)}, {v(G,2)}, {v(G,2)}")
    for i in range(1, 8): A(f"v_pk_fma_f32 {v(T+7,2)}, {v(G+2*i,2)}, {v(G+2*i,2)}, {v(T+7,2)}")
    A(f"v_add_f32 {v(T+7)}, {v(T+7)}, {v(T+8)}")
    rowsum32(v(T+7), v(T+6))
    A(f"v_mul_f32 {v(T+7)}, 0x3b000000, {v(T+7)}")
    ln_scalars(v(T+5), v(T+7), v(T+8), v(T+9))
    for i in range(16): A(f"v_sub_f32 {v(F+i)}, {v(F+i)}, {v(T+8)}")
    for i in range(8): A(f"v_cvt_pk_bf16_f32 {v(BIG+i)}, {v(F+2*i)}, {v(F+2*i+1)}")
    for i in range(8): A(f"v_lshlrev_b32 {v(F+2*i)}, 16, {v(BIG+i)}\n v_and_b32 {v(F+2*i+1)}, {sHI}, {v(BIG+i)}")
    for i in range(16): A(f"v_mul_f32 {v(F+i)}, {v(F+i)}, {v(T+9)}")
    for i in range(8): A(f"v_cvt_pk_bf16_f32 {v(BIG+i)}, {v(F+2*i)}, {v(F+2*i+1)}")
    A(f"ds_write_b128 {v(T+2)}, {v(BIG,4)} offset:{XN_L}\n ds_write_b128 {v(T+2)}, {v(BIG+4,4)} offset:{XN_L+512}")
    A(f"""v_and_b32 {v(T+3)}, 7, v0
          v_mul_u32_u24 {v(T)}, {XN_S}, {v(T+3)}
          v_lshl_add_u32 {v(T)}, {vG}, 4, {v(T)}
          v_lshrrev_b32 {v(T+1)}, 2, {vN}
          v_lshl_add_u32 {v(T+1)}, {vG}, 3, {v(T+1)}
          v_lshlrev_b32 {v(T+1)}, 7, {v(T+1)}
          v_and_b32 {v(T+3)}, 3, v0
          v_lshl_add_u32 {v(T+1)}, {v(T+3)}, 3, {v(T+1)}
          v_bfe_u32 {v(T+3)}, v0, 3, 2
          v_xor_b32 {v(T+3)}, s3, {v(T+3)}
          v_lshl_add_u32 {v(T+1)}, {v(T+3)}, 5, {v(T+1)}
          v_add_u32 {v(T+1)}, {WQ_L}, {v(T+1)}
          v_lshlrev_b32 {v(T+2)}, 14, {vN}
          v_lshl_add_u32 {v(T+2)}, {vG}, 4, {v(T+2)}
          s_lshl_b32 {sT}, s3, 6
          s_lshl_b32 {sT3}, {sLC}, 8
          s_add_u32 {sT}, {sT}, {sT3}
          v_mov_b32 {v(O1+1)}, {vTAG}
          v_mov_b32 {v(O1+3)}, {vTAG}
          s_waitcnt vmcnt(0) lgkmcnt(0)""")
    if loc[0]: xl_load(A, v(T+12))
    for i in range(NO, NO + AK):
        n0 = len(ops); issue(i); del ops[n0:]; kv.pop()
    stamp(8, True)
    A("s_barrier")
    XF = 0; WF = 64
    for ks in range(16):
        A(f"ds_read_b128 {a(XF+4*ks)}, {v(T)} offset:{XN_L + ks*64}")
        A(f"ds_read_b64_tr_b16 {a(WF+4*ks,2)}, {v(T+1)} offset:{ks*4096}")
        A(f"ds_read_b64_tr_b16 {a(WF+4*ks+2,2)}, {v(T+1)} offset:{ks*4096 + 512}")
        if ks % 2 == 1 and ks >= 3:
            A("s_waitcnt lgkmcnt(6)")
            for k2 in range(ks - 3, ks - 1): mfma(v(O0,4), a(WF+4*k2), a(XF+4*k2), v(O0,4) if k2 else 0)
    A("s_waitcnt lgkmcnt(0)")
    for k2 in range(14, 16): mfma(v(O0,4), a(WF+4*k2), a(XF+4*k2), v(O0,4))
    A(f"v_cvt_pk_bf16_f32 {v(O1)}, {v(O0)}, {v(O0+1)}\n v_cvt_pk_bf16_f32 {v(O1+2)}, {v(O0+2)}, {v(O0+3)}")
    if loc[0]:
        A(f"s_waitcnt vmcnt({AK})"); xl_eval(v(T+12))
        if stamps: A(f"s_mov_b32 s101, {sLOC}")
    A(f"s_not_b64 exec, {sM8}")
    lstore(f"buffer_store_dwordx4 {v(O1,4)}, {v(T+2)}, {sW}, {sT} offen", loc[0])
    A(f"s_mov_b64 exec, -1\n s_mov_b32 {sT2}, s75")
    stamp(2)
    setup0(False); wsetup()
    def wdloads(thr=None):
        A(f"""s_lshl_b32 {sT2}, {sGI}, 15
              s_lshl_b32 {sT}, s3, 8
              s_add_u32 {sT2}, {sT2}, {sT}
              s_lshl_b32 {sT}, s3, 13
              s_add_u32 m0, {sT}, {WD_L}""")
        for k in range(8):
            if thr: A(f"s_waitcnt vmcnt({thr - 1})")
            A(f"buffer_load_dwordx4 {vWc2 if k & 2 else vWc}, {sD}, {sT2} offen nt lds")
            if k < 7: A(f"s_add_u32 {sT2}, {sT2}, 4096\n s_add_u32 m0, m0, 1024")
    for f in (consts1, consts2, tc1, tc2, pgsetup): f()
    A("s_barrier\n s_branch L_J")
    A.label("L_B")
    items = []; consumed = [-1]; extras = {}
    def item(cost, fn, req=None, minstep=0): items.append((cost, req, minstep, fn))
    def extra(step, fn): extras.setdefault(step, []).append(fn)
    def retry_guard(back):
        A(f"s_add_u32 {sCNT}, {sCNT}, 1\n s_cmp_ge_u32 {sCNT}, {cap}\n s_cbranch_scc1 {back}")
        if sleep: A(f"s_sleep {sleep}")

    item(36, setupA); item(44, setup0); item(4, pgsetup); item(20, lambda: tagfin(lambda t: vm(t, False))); item(33, wsetup); item(26, consts1); item(22, consts2); item(28, tc1); item(44, tc2)

    def xr():
        A(f"""v_bfe_u32 {v(T+10)}, v0, 2, 3
              v_lshlrev_b32 {v(T+10)}, 10, {v(T+10)}
              v_and_b32 {v(T+11)}, 3, v0
              v_lshl_or_b32 {v(T+10)}, {v(T+11)}, 1, {v(T+10)}
              v_bfe_u32 {v(T+11)}, v0, 5, 1
              v_lshl_or_b32 {v(T+10)}, {v(T+11)}, 3, {v(T+10)}
              s_lshr_b32 {sT}, {sWV}, 2
              s_lshl_b32 {sT}, {sT}, 4""")
        vm(f"buffer_load_ushort {vXR}, {v(T+10)}, {sX}, {sT} offen")
    def gu_op(j, f):
        A(f"s_add_u32 m0, {sW2m}, {(j&1)*8192 + (j>>1)*1024}")
        f(f"buffer_load_dwordx4 {vWb2 if j & 1 else vWb}, {sU if j & 1 else sG}, {sW2o} offen {wnt} lds")
        if j & 1: A(f"s_add_u32 {sW2o}, {sW2o}, {16*3584}")
    def wo_dma(f):
        for j in range(4):
            A(f"s_add_u32 m0, {sWm}, {j*1024}")
            f(f"buffer_load_dwordx4 {vWa2 if j & 1 else vWa}, {sO}, {sWo} offen nt lds")
            A(f"s_add_u32 {sWo}, {sWo}, 8192")
        if pre:
            A(f"""s_lshr_b32 {sT2}, {sWV}, 2
                  s_lshl_b32 {sT2}, {sT2}, 13
                  s_lshl_b32 {sT}, s3, 11
                  s_add_u32 {sT2}, {sT2}, {sT}
                  s_add_u32 {sT2}, {sT2}, {YP}
                  s_cmp_eq_u32 {sROLE}, 3
                  s_cselect_b32 {sT2}, {sT2}, 0x7f000000""")
            f(f"buffer_load_dwordx4 {v(224,4)}, {vVo}, {sW}, {sT2} offen sc1")
            f(f"buffer_load_dwordx4 {v(228,4)}, {vVo}, {sW}, {sT2} offen offset:1024 sc1")
    extra(IWO - 1, xr)
    GUF = 128; WDF = 192
    QT = 188; QAD = T + 13
    def qloads(f):
        for k in range(4):
            r = f(f"buffer_load_dwordx4 {v(QT+4*k,4)}, {v(QAD)}, {sW}, {sT3} offen offset:{(k>>1)*256 + (k&1)*16} sc1")
        return r
    def qload():
        A(f"""v_and_b32 {v(QAD)}, 3, v0
              v_lshlrev_b32 {v(QAD)}, 9, {v(QAD)}
              v_and_b32 {v(T+11)}, 4, v0
              v_add_u32 {v(T+11)}, {v(T+11)}, {vG}
              v_lshl_or_b32 {v(QAD)}, {v(T+11)}, 5, {v(QAD)}
              s_lshr_b32 {sT3}, {sWV}, 2
              s_lshl_b32 {sT3}, {sT3}, 11""")
        xl_load(vm, v(QT+16))
        st["q"] = qloads(vm)
    extra(IQ, qload)
    def qprep():
        wait_for(st["q"])
        A.label("L_qchk")
        A(f"""v_max3_u32 {v(T)}, {v(QT+1)}, {v(QT+3)}, {v(QT+5)}
              v_min3_u32 {v(T+1)}, {v(QT+1)}, {v(QT+3)}, {v(QT+5)}
              v_max3_u32 {v(T)}, {v(T)}, {v(QT+7)}, {v(QT+9)}
              v_min3_u32 {v(T+1)}, {v(T+1)}, {v(QT+7)}, {v(QT+9)}
              v_max3_u32 {v(T)}, {v(T)}, {v(QT+11)}, {v(QT+13)}
              v_min3_u32 {v(T+1)}, {v(T+1)}, {v(QT+11)}, {v(QT+13)}
              v_max3_u32 {v(T)}, {v(T)}, {v(QT+15)}, {sTAG}
              v_min3_u32 {v(T+1)}, {v(T+1)}, {v(QT+15)}, {sTAG}
              v_cmp_ne_u32 vcc, {v(T)}, {v(T+1)}
              s_cbranch_vccnz L_qretry""")
        A.label("L_qok")
        if bal: A(f"s_cmp_lg_u32 {sMODE}, 0\n s_cselect_b64 vcc, -1, 0")
        def o():
            A.label("L_qretry"); retry_guard("L_qok"); qloads(A); A("s_waitcnt vmcnt(0)\n s_branch L_qchk")
        ool.append(o)
        xl_eval(v(QT+16))
        stamp(4)
        if stamps and not bal: A(f"s_mov_b32 s100, {sCNT}")
        for c in range(2):
            for r in range(4):
                A(f"v_cndmask_b32 {v(QA+8*c+r)}, {v(QT+8*c+2*r)}, 0, {sM8}\n v_cndmask_b32 {v(QA+8*c+4+r)}, 0, {v(QT+8*c+2*r)}, {sM8}")
    item(32, qprep, minstep=IQ + D + ES + 1)
    def kitem(i):
        def f():
            u = i >> 3; d = DS + 8 * (u & 1) + 4 * ((i >> 2) & 1); o = (i >> 1) & 1; c = i & 1
            if 'm' not in abl: mfma(v(d,4), v(QA+8*c+4*o,4), a(slot(i)), v(d,4) if i & 3 else 0)
            consumed[0] = i
        return f
    def post(u):
        def f():
            d = DS + 8 * (u & 1)
            if 'x' in abl: return
            for r in range(4): A(f"v_cndmask_b32 {v(T+r)}, {v(d+4+r)}, {v(d+r)}, {sMV}")
            A(f"""v_permlane16_swap_b32 {v(T)}, {v(T+1)}
                  v_permlane16_swap_b32 {v(T+2)}, {v(T+3)}
                  v_add_f32_dpp {v(T)}, {v(T+1)}, {v(T)} quad_perm:[1,0,3,2] {DPPM}
                  v_add_f32_dpp {v(T+2)}, {v(T+3)}, {v(T+2)} quad_perm:[1,0,3,2] {DPPM}
                  v_cvt_pk_bf16_f32 {v(T)}, {v(T)}, {v(T+2)}
                  v_and_b32 {v(T+1)}, {sHI}, {v(T)}
                  v_lshlrev_b32 {v(T)}, 16, {v(T)}
                  v_mul_f32 {v(T+1)}, {sSCALE}, {v(T+1)}
                  v_mul_f32 {v(T)}, {sSCALE}, {v(T)}
                  v_cvt_pk_bf16_f32 {v(T)}, {v(T)}, {v(T+1)}
                  v_lshlrev_b32 {v(S+2*u)}, 16, {v(T)}
                  v_and_b32 {v(S+2*u+1)}, {sHI}, {v(T)}""")
            if 8 * u < NO:
                A(f"v_cndmask_b32 {v(S+2*u)}, {v(S+2*u)}, {vNINF}, {sOPT}\n v_cndmask_b32 {v(S+2*u+1)}, {v(S+2*u+1)}, {vNINF}, {sOPT}")
            A(f"""v_max_f32 {m01}, {m01}, {v(S+2*u)}
                  v_max_f32 {m23}, {m23}, {v(S+2*u+1)}""")
        return f
    for i in range(NK):
        item(3, kitem(i), req=i)
        if i >= 8 and (i & 7) == 3: item(22, post((i >> 3) - 1))
    item(26, post(16))
    def allred2(op, x, y):
        for k in (8, 4, 2, 1): A(f"{op}_dpp {x}, {x}, {x} row_ror:{k} {DPPM}\n {op}_dpp {y}, {y}, {y} row_ror:{k} {DPPM}")
    def half2(op, x, y):
        A(f"""v_mov_b32 {v(T)}, {x}
              v_mov_b32 {v(T+1)}, {y}
              v_permlane32_swap_b32 {x}, {v(T)}
              v_permlane32_swap_b32 {y}, {v(T+1)}
              {op} {x}, {x}, {v(T)}
              {op} {y}, {y}, {v(T+1)}""")
    def maxred():
        stamp(5)
        allred2("v_max_f32", m01, m23); half2("v_max_f32", m01, m23)
        A(f"v_mul_f32 {nm01}, {sLOG}, {m01}\n v_mul_f32 {nm23}, {sLOG}, {m23}")
    item(22, maxred)
    done = set()
    def expi(u):
        def f():
            done.add(u)
            A(f"""v_fma_f32 {v(T)}, {v(S+2*u)}, {sLOG}, -{nm01}
                  v_fma_f32 {v(T+1)}, {v(S+2*u+1)}, {sLOG}, -{nm23}
                  v_exp_f32 {v(T)}, {v(T)}
                  v_exp_f32 {v(T+1)}, {v(T+1)}
                  v_add_f32 {l01}, {l01}, {v(T)}
                  v_add_f32 {l23}, {l23}, {v(T+1)}
                  v_cvt_pk_bf16_f32 {v(T+2)}, {v(T)}, {v(T+1)}
                  ds_write_b32 {vPw}, {v(T+2)} offset:{u*256}""")
        return f
    def areg(j):
        k = j - (NK - PB)
        return A0 if k < 0 else (32 + 8 * k if k < 4 else 68 + 8 * (k - 4))
    def rdi(k):
        def f():
            p = vorder[k]; assert (p >> 1) in done
            A(f"ds_read_b128 {v(PP + 4 * (k & 7),4)}, {vPr} offset:{(p >> 1) * 256 + (p & 1) * 16}")
        return f
    def vperm(j):
        def f():
            p = PP + (j & 31)
            if 'x' in abl: return
            if (j & 15) == 0: A("s_waitcnt lgkmcnt(0)")
            for uu in range(2):
                for r in range(4): A(f"v_perm_b32 {v(areg(j)+4*uu+r)}, {v(p)}, {v(p)}, {v(SEL+4*uu+r)}")
        return f
    def vmm(j):
        def f():
            i = NK + j
            if 'm' in abl:
                consumed[0] = i; return
            mfma(v(O0,4), v(areg(j),4), a(slot(i)), v(O0,4) if j else 0)
            mfma(v(O1,4), v(areg(j)+4,4), a(slot(i)), v(O1,4) if j else 0)
            consumed[0] = i
        return f
    def mlpub():
        allred2("v_add_f32", l01, l23); half2("v_add_f32", l01, l23)
        A(f"""v_and_b32 {v(T+2)}, 16, v0
              s_lshl_b32 {sT}, {sWV}, 2
              s_add_u32 {sT}, {sT}, s3
              s_lshl_b32 {sT}, {sT}, 5
              s_add_u32 {sT}, {sT}, {ML}
              v_bfi_b32 {v(220)}, {sHI}, {m01}, {vTAG}
              v_bfi_b32 {v(221)}, {sHI}, {m23}, {vTAG}
              v_bfi_b32 {v(222)}, {sFF}, {vTAG}, {l01}
              v_bfi_b32 {v(223)}, {sFF}, {vTAG}, {l23}
              s_mov_b64 exec, 0x10001""")
        lstore(f"buffer_store_dwordx4 {v(220,4)}, {v(T+2)}, {sW}, {sT} offen", loc[1], vm)
        A("s_mov_b64 exec, -1")
    GM = 188; GA = T + 14
    def mlload():
        A(f"""v_and_b32 {v(GA)}, 16, v0
              v_lshl_or_b32 {v(GA)}, {vN}, 5, {v(GA)}
              s_lshr_b32 {sT3}, {sWV}, 2
              s_lshl_b32 {sT3}, {sT3}, 9
              s_add_u32 {sT3}, {sT3}, {ML}""")
        st["ml"] = vm(f"buffer_load_dwordx4 {v(GM,4)}, {v(GA)}, {sW}, {sT3} offen sc1")
    def mlfac1():
        wait_for(st["ml"])
        A.label("L_mlchk")
        A(f"""v_bitop3_b32 {v(T)}, {v(GM)}, {v(GM+1)}, {vTAG} bitop3:0x7e
              v_bitop3_b32 {v(T+1)}, {v(GM+2)}, {v(GM+3)}, {vTAG} bitop3:0x7e
              v_lshlrev_b32 {v(T)}, 16, {v(T)}
              v_and_or_b32 {v(T)}, {v(T+1)}, {sFF}, {v(T)}
              v_cmp_ne_u32 vcc, 0, {v(T)}
              s_cbranch_vccnz L_mlretry""")
        A.label("L_mlok")
        if bal: A(f"s_cmp_lg_u32 {sMODE}, 0\n s_cselect_b64 vcc, -1, 0")
        def o():
            A.label("L_mlretry"); retry_guard("L_mlok")
            A(f"buffer_load_dwordx4 {v(GM,4)}, {v(GA)}, {sW}, {sT3} offen sc1\n s_waitcnt vmcnt(0)\n s_branch L_mlchk")
        ool.append(o)
        A(f"v_and_b32 {v(GM)}, {sHI}, {v(GM)}\n v_and_b32 {v(GM+1)}, {sHI}, {v(GM+1)}\n v_xor_b32 {v(GM+2)}, {v(GM+2)}, {vTB}\n v_xor_b32 {v(GM+3)}, {v(GM+3)}, {vTB}\n v_mov_b32 {v(GM+4)}, {v(GM)}\n v_mov_b32 {v(GM+5)}, {v(GM+1)}")
        allred2("v_max_f32", v(GM+4), v(GM+5))
        A(f"""v_sub_f32 {v(GM)}, {v(GM)}, {v(GM+4)}
              v_sub_f32 {v(GM+1)}, {v(GM+1)}, {v(GM+5)}
              v_sub_f32 {f01}, {m01}, {v(GM+4)}
              v_sub_f32 {f23}, {m23}, {v(GM+5)}
              v_mul_f32 {v(GM)}, {sLOG}, {v(GM)}
              v_mul_f32 {v(GM+1)}, {sLOG}, {v(GM+1)}
              v_mul_f32 {f01}, {sLOG}, {f01}
              v_mul_f32 {f23}, {sLOG}, {f23}""")
    def mlfac2():
        A(f"""v_exp_f32 {v(GM)}, {v(GM)}
              v_exp_f32 {v(GM+1)}, {v(GM+1)}
              v_exp_f32 {f01}, {f01}
              v_exp_f32 {f23}, {f23}
              v_mul_f32 {v(GM)}, {v(GM)}, {v(GM+2)}
              v_mul_f32 {v(GM+1)}, {v(GM+1)}, {v(GM+3)}""")
        allred2("v_add_f32", v(GM), v(GM+1))
        A(f"""v_rcp_f32 {v(GM)}, {v(GM)}
              v_rcp_f32 {v(GM+1)}, {v(GM+1)}
              v_mul_f32 {f01}, {f01}, {v(GM)}
              v_mul_f32 {f23}, {f23}, {v(GM+1)}""")
    uorder = list(dict.fromkeys(p >> 1 for p in vorder))
    for k in range(3): item(9, expi(uorder[k]))
    for k in range(4): item(1, rdi(k))
    ne = 3
    for j in range(NK):
        t = j & 7
        if j < NK - PB: item(9, vperm(j))
        if PB and NK - PB - 4 <= j < NK - PB: item(9, vperm(NK - PB + 2 * (j - (NK - PB - 4)))); item(9, vperm(NK - PB + 2 * (j - (NK - PB - 4)) + 1))
        item(5, vmm(j), req=NK + j)
        if (j & 15) == (12 if j < 112 or not PB else 4):
            for k in range(4 * (j >> 4) + 4, min(34, 4 * (j >> 4) + 8)): item(1, rdi(k))
        if t in (0, 2, 4, 6) and ne < 17:
            item(9, expi(uorder[ne])); ne += 1
            if ne == 17: item(28, mlpub)
        if NK + j == IML + 2: item(36, mlfac1)
        if NK + j == IML + 4: item(22, mlfac2)
    extra(IML, mlload)
    if warm1:
        def cw():
            A("s_getpc_b64 s[0:1]")
            A.label("L_pc")
            A(f"s_add_u32 s0, s0, L_tail-L_pc\n s_addc_u32 s1, s1, 0\n v_lshlrev_b32 {v(T+10)}, 4, v0")
            vm(f"global_load_dwordx4 {v(228,4)}, {v(T+10)}, s[0:1]")
        extra(IML - 8, cw)

    if roll:
        def rp(k, stubs_):
            def f():
                A(f"s_lshr_b32 {sT}, s2, 3\n s_and_b32 {sT}, {sT}, {roll['mask']}\n s_cmp_lg_u32 {sT}, {(5 * k) & roll['mask']}\n s_cbranch_scc1 L_nr{k}\n s_getpc_b64 s[0:1]")
                A.label(f"L_rp{k}")
                A(f"s_add_u32 s0, s0, {'L_end-L_rp' + str(k) if stubs_ else roll['dist']}\n s_addc_u32 s1, s1, 0")
                vm(f"global_load_dwordx4 {v(228,4)}, {vT16}, s[0:1]", False)
                A.label(f"L_nr{k}")
            return f
        k = 0
        for stp in range(roll["first"], 236, roll["per"]):
            extra(stp, rp(k, False)); k += 1
        for stp in roll.get("st", []):
            extra(stp, rp(k, True)); k += 1
    sMODE = "s21"; sPG = "s22"; PGV = T + 12; PGA = "v243"
    if bal:
        assert not dbg
        one = bal.get("one")
        def ck(k, stp):
            def f():
                c = (5 + 3 * k) % 32
                if one: A(f"s_cmp_lg_u32 s3, {k & 3}\n s_cbranch_scc1 L_np{k}")
                A(f"""s_and_b32 {sT}, s2, 7
                      s_mul_i32 {sT2}, {sT}, {c}
                      s_lshr_b32 {sPG}, s2, 3
                      s_add_u32 {sPG}, {sPG}, {sT2}
                      s_add_u32 {sPG}, {sPG}, {(11 * k) % 32}
                      s_and_b32 s0, {sPG}, 31
                      s_and_b32 {sPG}, {sPG}, {bal.get("ns", 32) - 1}
                      s_lshl_b32 {sPG}, {sPG}, 7
                      s_add_u32 {sPG}, {sPG}, {PG + k * 4096}
                      s_load_dwordx8 s[64:71], s[26:27], {sPG} {bal.get("glc", "glc")}""")
                if k == 2 and "v" in stouch: A("s_load_dword s16, s[32:33], 0 glc")
                if k == 8 and "w" in stouch: A(f"s_load_dword s16, s[48:49], {sWo} glc\n s_load_dword s17, s[18:19], {sCS} glc")
                if k == 9 and "w" in stouch: A(f"s_load_dword s16, s[52:53], {sW2o} glc\n s_load_dword s17, s[56:57], {sW2o} glc\n s_load_dword s20, s[60:61], {sW2o} glc")
                if k == 10 and "x" in stouch: A(f"s_lshl_b32 s16, s2, 8\n s_add_u32 s16, s16, 0x210000\n s_load_dword s16, s[26:27], s16 glc")
                if not one: A(f"s_cmp_lg_u32 s3, {k & 3}\n s_cbranch_scc1 L_np{k}")
                if bal.get("ns", 32) < 32: A(f"s_cmp_ge_u32 s0, {bal['ns']}\n s_cbranch_scc1 L_np{k}")
                A(f"""s_lshl_b32 {sT}, {sT}, 2
                      s_xor_b32 {sPG}, {sPG}, {bal.get("sep", 0) * 128}
                      s_add_u32 {sPG}, {sPG}, {sT}
                      s_atomic_swap {sTAG}, s[26:27], {sPG}""")
                A.label(f"L_np{k}")
            def setmode():
                if bal.get("noA"): A(f"s_min_u32 {sMODE}, {sMODE}, {sCLS}")
                A(f"s_cmp_lg_u32 {sMODE}, 0\n s_cselect_b64 vcc, -1, 0")
                if stamps: A(f"s_add_u32 s100, s100, {sMODE}")
            def g():
                if one: A(f"s_cmp_lg_u32 s3, {k & 3}\n s_cbranch_scc1 L_ng{k}")
                A(f"s_waitcnt lgkmcnt(0)\n s_cmp_eq_u32 {sCLS}, 0\n s_cselect_b32 {sT}, {bal.get('aoff', 0)}, 0")
                for r in range(64, 72): A(f"s_cmp_eq_u32 s{r}, {sTAG}\n s_addc_u32 {sT}, {sT}, 0")
                A(f"s_cmp_lt_i32 {sT}, {bal['th']}\n s_cselect_b32 {sMODE}, 1, 0")
                if "th2" in bal: A(f"s_cmp_lt_i32 {sT}, {bal['th2']}\n s_cselect_b32 {sMODE}, 2, {sMODE}")
                if one:
                    A(f"v_mov_b32 {v(PGV)}, {sMODE}\n ds_write_b32 {PGA}, {v(PGV)}")
                    A.label(f"L_ng{k}")
                else: setmode()
            iw = bal.get("iw")
            def h1():
                A(f"ds_read_b32 {v(PGV)}, {PGA}")
                if iw: A(f"v_mov_b32 {v(T+15)}, 1\n s_mov_b64 exec, 1\n ds_add_rtn_u32 {v(T+15)}, {PGA}, {v(T+15)} offset:4\n s_mov_b64 exec, -1")
            def h2():
                A(f"s_waitcnt lgkmcnt(0)\n v_readfirstlane_b32 {sMODE}, {v(PGV)}\n s_and_b32 {sMODE}, {sMODE}, 3")
                if iw:
                    A(f"v_readfirstlane_b32 {sT}, {v(T+15)}\n s_and_b32 {sT}, {sT}, 3")
                    if iw & 1: A(f"s_cmp_eq_u32 {sT}, 0\n s_cselect_b32 {sMODE}, 1, {sMODE}")
                    if iw & 2: A(f"s_cmp_eq_u32 {sT}, 3\n s_cselect_b32 {sMODE}, 0, {sMODE}")
                setmode()
            return f, g, h1, h2
        k = 0
        for stp in range(bal["first"], bal["last"] + 1, bal["per"]):
            f, g, h1, h2 = ck(k, stp); lg_ = bal.get("lag", 7)
            extra(stp, f); extra(stp + lg_, g)
            if one: extra(stp + lg_ + 2, h1); extra(stp + lg_ + 3, h2)
            k += 1
        assert k <= 32
    qi = [0]
    def run_items(step, bud):
        while qi[0] < len(items):
            cost, req, ms, fn = items[qi[0]]
            if cost > bud or step < ms: break
            if req is not None and (req >= len(kv) or kv[req] > known[0]): break
            fn(); bud -= cost; qi[0] += 1
    run_items(0, 104)
    nsetup = 9
    def tgt(i, d):
        kvs = set(kv)
        j = i - d
        lo = max(j - ES, NO + D)
        for k in range(lo, j):
            if any(o not in kvs for o in range(kv[k] + 1, kv[k + 1])): return kv[k]
        return kv[j]
    stubs = []
    ool.append(lambda: A.lines.extend(stubs))
    def drain(limit):
        q = qi[0]
        while q < len(items):
            cost, req, ms, fn = items[q]
            if req is not None:
                if req >= limit: break
                wait_for(kv[req])
            fn(); q += 1
    for i in range(D0, NS):
        if i == NO + AK:
            assert qi[0] == nsetup and all(k >= NO + AK for k in extras) and AK % 4 == 0
            A.label("L_J")
        if i == NS - NO:
            assert "L_mlok:" in A.lines
            A(f"s_cmp_eq_u32 {sCLS}, 0\n s_cbranch_scc1 L_adrain")
            sv = (list(ops), known[0], consumed[0], list(A.hist), len(A.lines))
            A.label("L_adrain")
            for j in range(GE): gu_op(j, vm)
            drain(i)
            for j in range(GE, 16):
                A(f"s_waitcnt vmcnt({GW - 1})"); gu_op(j, A)
            if warmA:
                A("s_getpc_b64 s[0:1]")
                A.label("L_pca")
                A(f"s_sub_u32 s0, s0, L_pca-L_tail\n s_subb_u32 s1, s1, 0\n v_lshlrev_b32 {v(T+10)}, 4, v0")
                A(f"global_load_dwordx4 {v(228,4)}, {v(T+10)}, s[0:1]")
            wo_dma(A)
            A("s_nop 7"); A.raw("    s_branch L_tail")
            cut = A.lines[sv[4]:]; del A.lines[sv[4]:]
            ool.append(lambda: A.lines.extend(cut))
            ops[:] = sv[0]; known[0] = sv[1]; consumed[0] = sv[2]; A.hist = sv[3]
        if bal and bal["first"] + bal.get("lag", 7) + 3 < i < bal["off"]:
            A.raw(f"    s_cbranch_vccnz L_s{i}"); A.raw(f"L_b{i}:")
            lo_ = bal.get('lo2', bal['lo']) if i >= IEND else bal['lo']
            if "th2" in bal:
                stubs.append(f"L_s{i}:\n    s_cmp_eq_u32 {sMODE}, 1\n    s_waitcnt vmcnt({after(kv[i - lo_])})\n    s_cbranch_scc1 L_b{i}\n    s_waitcnt vmcnt({after(kv[i - lo_ + 1])})\n    s_branch L_b{i}")
            else: stubs.append(f"L_s{i}:\n    s_waitcnt vmcnt({after(kv[i - lo_])})\n    s_branch L_b{i}")
        wait_for(tgt(i, DEND if i >= IEND else DST if i < IS else D))
        assert consumed[0] >= prevocc(i), (i, consumed[0])
        issue(i)
        for fn in extras.pop(i, []): fn()
        run_items(i, budget)
    assert not extras, extras
    lag = NS - 1 - consumed[0]
    wo_dma(vm); drain(NS)
    A(f"; end lag {lag}")

    A.label("L_tail")
    stamp(6)
    X = 96; DM = 88; BL = 8; PS = 176
    for r in (0, 2): A(f"v_pk_mul_f32 {v(O0+r,2)}, {v(O0+r,2)}, {v(122,2)} op_sel_hi:[1,0]")
    A(f"ds_write_b128 {vT0w}, {v(O0,4)}")
    for r in (0, 2): A(f"v_pk_mul_f32 {v(O1+r,2)}, {v(O1+r,2)}, {v(122,2)} op_sel:[0,1]")
    A(f"ds_write_b128 {vT0w}, {v(O1,4)} offset:1024")
    A("s_waitcnt lgkmcnt(0)\n s_barrier")
    A(f"""ds_read2st64_b64 {v(DM,4)}, {vT0r} offset0:0 offset1:4
          ds_read2st64_b64 {v(DM+4,4)}, {vT0r} offset0:8 offset1:12
          s_waitcnt lgkmcnt(1)
          v_pk_add_f32 {v(DM,2)}, {v(DM,2)}, {v(DM+2,2)}
          s_waitcnt lgkmcnt(0)
          v_pk_add_f32 {v(DM+4,2)}, {v(DM+4,2)}, {v(DM+6,2)}
          v_pk_add_f32 {v(DM,2)}, {v(DM,2)}, {v(DM+4,2)}
          v_bfi_b32 {v(DM)}, {vEM}, {vTAG}, {v(DM)}
""")
    lstore(f"buffer_store_dwordx2 {v(DM,2)}, {vL8}, {sW}, {sOPs} offen", loc[2])
    stamp(1, "t")
    def poll(name, n, loads, body, S, tau, pre_issued=False):
        if pre_issued: A(f"s_branch L_{name}b")
        A.label(f"L_{name}")
        A(f"s_add_u32 {sCNT}, {sCNT}, 1\n s_cmp_lt_u32 {sCNT}, {cap}")
        A.raw(f"    s_cbranch_scc0 L_{name}ok")
        loads(PS)
        A.label(f"L_{name}b")
        body(PS, 0)
        A(f"s_cbranch_vccnz L_{name}")
        A.label(f"L_{name}ok")
    MK = ["s[28:29]", "s[30:31]", "s[32:33]", "s[34:35]"]
    def mpl(name, n, ld, chk, sel, spec, init=None):
        p = PS
        for k in range(n): A(f"s_mov_b64 {MK[k]}, -1")
        if init: init()
        A.label(f"L_{name}")
        for k in range(n): A(f"s_wqm_b64 exec, {MK[k]}\n {ld(p, k)}")
        A("s_mov_b64 exec, -1")
        for k in range(n):
            if k == 0: A("s_waitcnt vmcnt(0)")
            A(chk(p, k))
            A(f"v_cmp_ne_u32_sdwa {MK[k]}, {v(T+k)}, {v(T+15)} src0_sel:{sel} src1_sel:DWORD")
            if k % 2 == 1:
                spec(p, k)
                A(f"s_or_b64 vcc, {MK[k-1]}, {MK[k]}" if k == 1 else f"s_or_b64 vcc, vcc, {MK[k-1]}\n s_or_b64 vcc, vcc, {MK[k]}")
        A(f"s_cbranch_scc0 L_{name}ok\n s_add_u32 {sCNT}, {sCNT}, 1\n s_cmp_lt_u32 {sCNT}, {cap}\n s_cbranch_scc1 L_{name}")
        A.label(f"L_{name}ok")
    def cmp_tag(reg, sel): A(f"v_cmp_ne_u32_sdwa vcc, {reg}, {v(T+15)} src0_sel:{sel} src1_sel:DWORD")
    A(f"v_mov_b32 {v(T+15)}, 0\n ds_write_b32 {vL4}, {v(T+15)} offset:{Z_L}")
    def l1(p):
        for k in range(4): A(f"buffer_load_dwordx4 {v(p+4*k,4)}, {vVo}, {sW}, {sOPl} offen offset:{k*1024} sc1")
    l1(PS)
    A(f"s_waitcnt vmcnt({7 if pre else 5})")
    stamp(3)
    A("s_barrier")
    if early or half:
        A(f"s_cmp_eq_u32 {sROLE}, 1\n s_cbranch_scc1 L_prep")
        A.label("L_prepback")
    for ks in range(4):
        for t2 in range(2): A(f"ds_read_b64_tr_b16 {v(WOF+4*ks+2*t2,2)}, {vWOr} offset:{ks*4096 + t2*512}")
    A.label("L_t1s")
    def l1(p):
        for k in range(4): A(f"buffer_load_dwordx4 {v(p+4*k,4)}, {vVo}, {sW}, {sOPl} offen offset:{k*1024} sc1")
    def b1(p, n):
        A(f"""s_waitcnt vmcnt({n+2})
              v_xor_b32 {v(p)}, {v(p)}, {vTB}
              v_xor_b32 {v(p+4)}, {v(p+4)}, {vTB}
              v_pk_add_f32 {v(X+2,2)}, {v(p+2,2)}, {v(p+6,2)}
              v_pk_add_f32 {v(X,2)}, {v(p,2)}, {v(p+4,2)}
              v_or_b32 {v(T)}, {v(p)}, {v(p+4)}
              s_waitcnt vmcnt({n})
              v_xor_b32 {v(p+8)}, {v(p+8)}, {vTB}
              v_xor_b32 {v(p+12)}, {v(p+12)}, {vTB}
              v_or3_b32 {v(T)}, {v(T)}, {v(p+8)}, {v(p+12)}""")
        cmp_tag(v(T), "BYTE_0")
        A(f"v_pk_add_f32 {v(X+4,2)}, {v(p+8,2)}, {v(p+12,2)}\n v_pk_add_f32 {v(X+6,2)}, {v(p+10,2)}, {v(p+14,2)}")
    if mpoll[0]:
        mpl("t1", 4, lambda p, k: f"buffer_load_dwordx4 {v(p+4*k,4)}, {vVo}, {sW}, {sOPl} offen offset:{k*1024} sc1",
            lambda p, k: f"v_bitop3_b32 {v(T+k)}, {v(p+4*k)}, {v(p+4*k+2)}, {vTAG} bitop3:0x7e", "BYTE_0",
            lambda p, k: A(f"v_pk_add_f32 {v(X+2*k-2,2)}, {v(p+4*k-4,2)}, {v(p+4*k,2)}\n v_pk_add_f32 {v(X+2*k,2)}, {v(p+4*k-2,2)}, {v(p+4*k+2,2)}"))
    else:
        poll("t1", 4, l1, b1, NS_[0], tau[0], True)
    A(f"""v_pk_add_f32 {v(X,2)}, {v(X,2)}, {v(X+4,2)}
          v_pk_add_f32 {v(X+2,2)}, {v(X+2,2)}, {v(X+6,2)}
          v_cvt_pk_bf16_f32 {v(X)}, {v(X)}, {v(X+1)}
          v_cvt_pk_bf16_f32 {v(X+1)}, {v(X+2)}, {v(X+3)}
          ds_write_b64 {vOw}, {v(X,2)} offset:{O_L}""")
    stamp(2, "t")
    A("s_waitcnt lgkmcnt(0)\n s_barrier")
    for ks in range(4): A(f"ds_read_b128 {v(BL+4*ks,4)}, {vBl} offset:{ks*64}")
    for ks in range(4):
        if ks in (0, 2): A(f"s_waitcnt lgkmcnt({2-ks})")
        mfma(v(DM+4,4), v(WOF+4*ks,4), v(BL+4*ks,4), v(DM+4,4) if ks else 0)
    A(f"v_bfi_b32 {v(DM+4)}, {sFF}, {vTAG}, {v(DM+4)}\n buffer_store_dwordx4 {v(DM+4,4)}, {vYs}, {sW}, {sYs} offen sc1")
    A.label("L_t1done")

    stamp(7)

    A(f"s_cmp_eq_u32 {sROLE}, 3\n s_cbranch_scc0 L_notr")
    Y = X
    vRa, vRb, vRc, vRd, vRe, vRf, vRg, vRh = [v(i) for i in range(240, 248)]
    A(f"""s_lshr_b32 {sT2}, {sWV}, 2
          s_andn2_b32 {sA}, {sT2}, {4 if 'Y' in abl else 0}
          s_lshl_b32 {sA}, {sA}, 13
          s_lshl_b32 {sT}, s3, 11
          s_add_u32 {sA}, {sA}, {sT}
          s_add_u32 {sA}, {sA}, {YP}
          s_lshl_b32 {sB}, {sT2}, 8
          s_add_u32 {sB}, {sB}, {HB}
          v_lshl_add_u32 {vRb}, {vN}, 2, {vG}
          v_lshlrev_b32 {vRb}, 2, {vRb}
          s_lshl_b32 {sT}, s3, 8
          v_add_u32 {vRb}, {sT}, {vRb}
          v_lshlrev_b32 {vXR}, 16, {vXR}""")
    def b2(p, n, tb2=vTB):
        A(f"""s_waitcnt vmcnt({n})
              v_xor_b32 {v(p)}, {v(p)}, {vTB}
              v_xor_b32 {v(p+4)}, {v(p+4)}, {tb2}
              v_pk_add_f32 {v(Y+2,2)}, {v(p+2,2)}, {v(p+6,2)}
              v_or_b32 {v(T)}, {v(p)}, {v(p+4)}
              v_pk_add_f32 {v(Y,2)}, {v(p,2)}, {v(p+4,2)}""")
        cmp_tag(v(T), "BYTE_0")
    def red_b():
        A(f"""v_permlane32_swap_b32 {v(Y)}, {v(Y+2)}
              v_permlane32_swap_b32 {v(Y+1)}, {v(Y+3)}
              v_pk_add_f32 {v(Y,2)}, {v(Y,2)}, {v(Y+2,2)}
              v_permlane16_swap_b32 {v(Y)}, {v(Y+1)}
              v_add_f32 {v(Y)}, {v(Y)}, {v(Y+1)}""")
    def l2(p): A(f"buffer_load_dwordx4 {v(p,4)}, {vVo}, {sW}, {sA} offen sc1\n buffer_load_dwordx4 {v(p+4,4)}, {vVo}, {sW}, {sA} offen offset:1024 sc1")
    ld2 = lambda p, k: f"buffer_load_dwordx4 {v(p+4*k,4)}, {vVo}, {sW}, {sA} offen offset:{k*1024} sc1"
    ck2 = lambda p, k: f"v_xor_b32 {v(T+k)}, {v(p+4*k)}, {vTAG}"
    sp2 = lambda p, k: A(f"v_pk_add_f32 {v(Y,2)}, {v(p,2)}, {v(p+4,2)}\n v_pk_add_f32 {v(Y+2,2)}, {v(p+2,2)}, {v(p+6,2)}")
    if dlyr == "ack": A("s_waitcnt vmcnt(0)")
    elif dlyr: A(f"s_sleep {dlyr}")
    if mpoll[1]: mpl("r", 2, ld2, ck2, "BYTE_0", sp2)
    else: poll("r", 2, l2, b2, NS_[1], tau[1])
    red_b()
    stamp(3, "t")
    A(f"""ds_write_b32 {vRb}, {v(Y)} offset:{R_L}
          s_waitcnt lgkmcnt(0)
          s_barrier
          s_cmp_lg_u32 s3, 0
          s_cbranch_scc1 L_fin
          ds_read2st64_b32 {v(Y,2)}, {vL4} offset0:{R_L//256} offset1:{R_L//256+1}
          ds_read2st64_b32 {v(Y+2,2)}, {vL4} offset0:{R_L//256+2} offset1:{R_L//256+3}
          s_waitcnt lgkmcnt(0)
          v_pk_add_f32 {v(Y,2)}, {v(Y,2)}, {v(Y+2,2)}
          v_add_f32 {v(Y)}, {v(Y)}, {v(Y+1)}
          v_cvt_pk_bf16_f32 {v(Y)}, {v(Y)}, {v(Y)}
          v_and_b32 {v(Y)}, {sHI}, {v(Y)}
          v_add_f32 {v(Y)}, {v(Y)}, {vXR}
          v_cvt_pk_bf16_f32 {v(Y)}, {v(Y)}, {v(Y)}
          v_bfi_b32 {v(Y)}, {sHI}, {v(Y)}, {vTAG}
          buffer_store_dword {v(Y)}, {vL4}, {sW}, {sB} offen sc1""")
    stamp(4, "t")
    A(f"""s_cmp_lg_u32 {sWV}, 1
          s_cbranch_scc1 L_fin
          v_mov_b32 {v(Y+2)}, {EPOCH}
          s_mov_b64 exec, 1
          buffer_store_dword {vTAG}, {v(Y+2)}, {sW}, 0 offen sc1
          s_mov_b64 exec, -1
          s_branch L_fin""")
    A.label("L_notr")
    A(f"s_cmp_eq_u32 {sROLE}, 1\n s_cbranch_scc1 L_t3\n s_cmp_eq_u32 {sROLE}, 0\n s_cbranch_scc1 L_fin")
    HV = X + 8; SA = 104 + 4; sM11 = sB
    def t2bits(dst):
        A(f"s_and_b32 {sT}, {sTAG}, 1\n s_bfe_u32 {sT3}, {sTAG}, 0x10001\n s_lshl_b32 {sT3}, {sT3}, 16\n s_or_b32 {sT}, {sT}, {sT3}\n v_mov_b32 {dst}, {sT}")
    A(f"s_mov_b32 s64, s18\n s_and_b32 s65, s19, 0xffff\n s_mov_b32 s66, {0 if 'O' in abl else 8192}\n s_mov_b32 s67, 0x20000")
    vT2, vT2b, vK1, vK2 = vRa, vRf, vRg, vRh
    A(f"""s_lshr_b32 {sT2}, {sWV}, 2
          s_mul_i32 {sA}, {sT2}, 7168
          s_mul_i32 {sT}, s3, 1792
          s_add_u32 {sA}, {sA}, {sT}
          s_add_u32 {sA}, {sA}, {PD}
          v_cmp_gt_u32 vcc, 48, {vL}
          v_cndmask_b32 {vRe}, {vNINF}, {vVo}, vcc""")
    def l5(p):
        A(f"""buffer_load_dwordx4 {v(p,4)}, {vVo}, {sW}, {sA} offen sc1
              buffer_load_dwordx4 {v(p+4,4)}, {vRe}, {sW}, {sA} offen offset:1024 sc1""")
    if dly is None: l5(PS)
    t2bits(vT2)
    A(f"""s_lshl_b32 {sDd}, {sT2}, 4
          s_lshl_b32 {sC}, {sT2}, 8
          s_add_u32 {sC}, {sC}, {HB}
          s_mov_b32 {sM11}, 0x10001
          v_and_b32 {v(T)}, 16, v0
          v_lshl_or_b32 {vRb}, {vN}, 5, {v(T)}
          s_lshl_b32 {sT}, s3, 9
          v_add_u32 {vRb}, {sT}, {vRb}
          v_lshrrev_b32 {v(T)}, 3, {vL}
          v_and_b32 {v(T+1)}, 7, v0
          v_lshlrev_b32 {vRc}, 10, {v(T)}
          v_lshl_or_b32 {vRc}, {v(T+1)}, 1, {vRc}
          v_lshlrev_b32 {vRd}, 4, {v(T)}
          v_and_b32 {v(T+2)}, 3, v0
          v_lshl_or_b32 {vRd}, {v(T+2)}, 2, {vRd}
          v_and_b32 {v(T+2)}, 4, v0
          v_lshl_or_b32 {vRd}, {v(T+2)}, 5, {vRd}
          v_cndmask_b32 {vT2b}, 0, {vT2}, vcc
          v_xor_b32 {v(T+2)}, {sM11}, {vT2}
          v_cndmask_b32 {vK1}, {vT2}, {v(T+2)}, {sM8}
          v_cndmask_b32 {vK2}, 0, {vK1}, vcc
          v_and_b32 {v(T+2)}, 1, v0
          v_lshlrev_b32 {v(T+2)}, 4, {v(T+2)}
          v_mov_b32 {v(T+3)}, 0x3f80
          v_lshlrev_b32 {v(T+3)}, {v(T+2)}, {v(T+3)}
          v_lshrrev_b32 {v(T+1)}, 1, {v(T+1)}""")
    for r in range(4): A(f"v_cmp_eq_u32 vcc, {r}, {v(T+1)}\n v_cndmask_b32 {v(SA+r)}, 0, {v(T+3)}, vcc")
    A.label("L_t5h")
    A(f"""buffer_load_dword {v(HV)}, {vRd}, {sW}, {sC} offen sc1
          s_waitcnt vmcnt(0)
          v_xor_b32 {v(T)}, {v(HV)}, {vTAG}""")
    cmp_tag(v(T), "WORD_0")
    A(f"s_cbranch_vccz L_t5hok\n s_add_u32 {sCNT}, {sCNT}, 1\n s_cmp_lt_u32 {sCNT}, {cap}\n s_cbranch_scc1 L_t5h")
    A.label("L_t5hok")
    A(f"v_and_b32 {v(HV)}, {sHI}, {v(HV)}")
    if dly: A(f"s_sleep {dly}")
    def b5(p, n):
        A(f"""s_waitcnt vmcnt({n+1})
              v_bitop3_b32 {v(T)}, {v(p)}, {v(p+2)}, {vT2} bitop3:0x7e
              v_xor_b32 {v(p)}, {v(p)}, {vK1}
              v_xor_b32 {v(p+2)}, {v(p+2)}, {vK1}
              s_waitcnt vmcnt({n})
              v_bitop3_b32 {v(T+1)}, {v(p+4)}, {v(p+6)}, {vT2b} bitop3:0x7e""")
        mfma(v(Y,4), v(SA,4), v(p,4), 0)
        A(f"""v_xor_b32 {v(p+4)}, {v(p+4)}, {vK2}
              v_xor_b32 {v(p+6)}, {v(p+6)}, {vK2}
              v_bitop3_b32 {v(T)}, {v(T)}, {v(T+1)}, {sM11} bitop3:0xa8
              v_cmp_ne_u32 vcc, 0, {v(T)}""")
        mfma(v(Y,4), v(SA,4), v(p+4,4), v(Y,4))
    poll("t5", 2, l5, b5, 1, 0)
    stamp(3, "t")
    A(f"""s_mov_b32 exec_hi, 0
          ds_write_b128 {vRb}, {v(Y,4)} offset:{R_L}
          s_mov_b32 exec_hi, -1
          s_waitcnt lgkmcnt(0)
          s_barrier
          s_cmp_lg_u32 s3, 0
          s_cbranch_scc1 L_fin""")
    for k in range(4): A(f"ds_read2st64_b32 {v(Y+2*k,2)}, {vL4} offset0:{R_L//256+2*k} offset1:{R_L//256+2*k+1}")
    A(f"""s_waitcnt lgkmcnt(2)
          v_pk_add_f32 {v(Y,2)}, {v(Y,2)}, {v(Y+2,2)}
          s_waitcnt lgkmcnt(0)
          v_pk_add_f32 {v(Y+4,2)}, {v(Y+4,2)}, {v(Y+6,2)}
          v_pk_add_f32 {v(Y,2)}, {v(Y,2)}, {v(Y+4,2)}
          v_add_f32 {v(Y)}, {v(Y)}, {v(Y+1)}
          v_cvt_pk_bf16_f32 {v(Y)}, {v(Y)}, {v(Y)}
          v_and_b32 {v(Y)}, {sHI}, {v(Y)}
          v_add_f32 {v(Y)}, {v(Y)}, {v(HV)}""")
    if pert:
        import struct
        h_ = hex(struct.unpack("<I", struct.pack("<f", pert[0]))[0])
        if pert[1]: A(f"s_cmp_eq_u32 {sT2}, 5\n s_cselect_b64 exec, 1, 0")
        A(f"v_add_f32 {v(Y)}, {h_}, {v(Y)}\n s_mov_b64 exec, -1")
    A(f"""v_cvt_pk_bf16_f32 {v(Y)}, {v(Y)}, {v(Y)}
          buffer_store_short {v(Y)}, {vRc}, {sOut}, {sDd} offen {osc}""")
    stamp(4, "t")
    A("s_branch L_fin")
    if early or half: A.label("L_prep")
    else:
        A.label("L_t3")
        wdloads()
    vWd = "v248"
    A(f"""v_lshrrev_b32 {v(T)}, 2, {vN}
          v_lshl_add_u32 {v(T)}, {vG}, 3, {v(T)}
          v_lshlrev_b32 {vWd}, 8, {v(T)}
          v_lshlrev_b32 {v(T)}, 6, {v(T)}
          v_bfe_u32 {v(T+1)}, v0, 1, 1
          v_lshl_add_u32 {v(T)}, {v(T+1)}, 13, {v(T)}
          v_bfe_u32 {v(T+2)}, v0, 4, 1
          v_lshl_or_b32 {v(T+1)}, {v(T+2)}, 1, {v(T+1)}
          v_xor_b32 {v(T+1)}, s3, {v(T+1)}
          v_lshl_add_u32 {v(T)}, {v(T+1)}, 4, {v(T)}
          v_and_b32 {v(T+1)}, 1, v0
          v_lshl_add_u32 {v(T)}, {v(T+1)}, 3, {v(T)}
          v_add_u32 {v(T+9)}, {GU_L}, {v(T)}""")
    for k in range(16):
        for t2 in range(2): A(f"ds_read_b64_tr_b16 {a(GUF+4*k+2*t2,2)}, {v(T+9)} offset:{(k>>2)*16384 + (k&3)*2048 + t2*256}")
        if k % 4 == 3: A("s_waitcnt lgkmcnt(4)")
    t2bits(vRa)
    A(f"""v_and_b32 {v(T+1)}, 1, v0
          v_lshl_or_b32 {vWd}, {v(T+1)}, 4, {vWd}
          v_bfe_u32 {v(T+1)}, v0, 2, 3
          v_bfe_u32 {v(T+2)}, v0, 1, 1
          v_xor_b32 {v(T+1)}, {v(T+1)}, {v(T+2)}
          v_lshl_or_b32 {vWd}, {v(T+1)}, 5, {vWd}
          s_lshl_b32 {sWm}, s3, 13
          s_add_u32 {sWm}, {sWm}, {WD_L}""")
    PK = 96; HF = 8; DG = 144; CS = 116; SS = 120; SR = 72; sSEL = "s28"; sONE = "s29"
    A(f"""v_and_b32 {v(T)}, 7, v0
          v_bfe_u32 {v(T+1)}, v0, 3, 1
          v_mul_u32_u24 {vRc}, {XN_S}, {v(T)}
          v_and_b32 {v(T+2)}, 56, v0
          v_add_u32 {vRb}, {vRc}, {v(T+2)}
          s_lshl_b32 {sT}, s3, 8
          v_add_u32 {vRb}, {sT}, {vRb}
          v_lshl_add_u32 {vRc}, {vG}, 4, {vRc}
          v_mul_u32_u24 {vRe}, 80, {v(T)}
          v_lshl_add_u32 {vRd}, {vG}, 2, {vRe}
          s_lshl_b32 {sT}, s3, 4
          v_add_u32 {vRd}, {sT}, {vRd}
          v_lshlrev_b32 {vRf}, 6, {v(T)}
          v_lshl_or_b32 {v(T+3)}, {vG}, 4, {vRf}
          v_lshl_or_b32 {vRf}, {v(T+1)}, 2, {vRf}
          v_bfe_u32 {v(T+2)}, v0, 4, 1
          v_lshl_or_b32 {vRf}, {v(T+2)}, 3, {vRf}
          v_bfe_u32 {v(T+2)}, v0, 5, 1
          v_lshl_or_b32 {vRf}, {v(T+2)}, 1, {vRf}
          s_lshl_b32 {sT}, s3, 4
          v_add_u32 {vRf}, {sT}, {vRf}
          v_lshl_add_u32 {vRh}, {v(T+1)}, 2, {vG}
          v_mul_u32_u24 {vRh}, 7168, {vRh}
          v_lshl_add_u32 {vRh}, {v(T)}, 4, {vRh}
          s_mul_i32 {sB}, s3, {16*7168}
          s_lshl_b32 {sT}, {sGI}, 7
          s_add_u32 {sB}, {sB}, {sT}
          s_add_u32 {sB}, {sB}, {PD}
          s_add_u32 {sDd}, {sB}, {8*7168}
          s_mov_b32 {sT3}, 0x10001
          v_add_u32 {v(T+3)}, {A_L}, {v(T+3)}
          v_mov_b32 {v(T+4)}, {Z_L}
          v_cndmask_b32 {vB3}, {v(T+3)}, {v(T+4)}, {sM8}
          v_cndmask_b32 {vBh}, {v(T+4)}, {v(T+3)}, {sM8}
          s_lshl_b32 {sA}, s3, 12
          s_add_u32 {sA}, {sA}, {HB}
          s_mov_b32 {sSEL}, 0x07060302
          s_mov_b32 {sONE}, 0x3f803f80
          s_mov_b32 {sC}, 0""")
    if half:
        A("s_branch L_prepback")
        A.label("L_t3")
        wdloads()
    for i in range(8): A(f"v_mov_b32 {v(PK+i)}, {sONE}")
    A("s_branch L_t3lok")
    A.label("L_t3s")
    if dlyb: A(f"s_sleep {dlyb}")
    def l3(p):
        for k in range(4): A(f"buffer_load_dwordx4 {v(p+4*k,4)}, {vNINF if 'H' in abl and k >= 2 else vVo}, {sW}, {sA} offen offset:{k*1024} sc1")
    def pk(p, k): A(f"v_perm_b32 {v(PK+2*k)}, {v(p+4*k+1)}, {v(p+4*k)}, {sSEL}\n v_perm_b32 {v(PK+2*k+1)}, {v(p+4*k+3)}, {v(p+4*k+2)}, {sSEL}")
    def b3(p, n):
        A(f"s_waitcnt vmcnt({n+2})\n v_bitop3_b32 {v(T)}, {v(p)}, {v(p+4)}, {vTAG} bitop3:0x7e")
        pk(p, 0); pk(p, 1)
        A(f"s_waitcnt vmcnt({n})\n v_bitop3_b32 {v(T+1)}, {v(p+8)}, {v(p+12)}, {vTAG} bitop3:0x7e\n v_or_b32 {v(T)}, {v(T)}, {v(T) if 'H' in abl else v(T+1)}")
        cmp_tag(v(T), "WORD_0")
        pk(p, 2); pk(p, 3)
    if mpoll[2]: mpl("t3l", 4, ld2, ck2, "WORD_0", lambda p, k: (pk(p, k - 1), pk(p, k)))
    else: poll("t3l", 4, l3, b3, NS_[2], tau[2])
    stamp(3, "t")
    for k in range(4): A(f"ds_write_b64 {vRb}, {v(PK+2*k,2)} offset:{H_L + k*64}")
    for i in range(8):
        A(f"v_dot2_f32_bf16 {v(SS)}, {v(PK+i)}, {sONE}, {v(SS) if i else 0}\n v_dot2_f32_bf16 {v(SS+1)}, {v(PK+i)}, {v(PK+i)}, {v(SS+1) if i else 0}")
    A(f"""s_nop 2
          v_permlane16_swap_b32 {v(SS)}, {v(SS+1)}
          v_add_f32 {v(SS)}, {v(SS)}, {v(SS+1)}
          v_add_f32_dpp {v(SS)}, {v(SS)}, {v(SS)} row_ror:8 {DPPM}
          ds_write_b32 {vRd}, {v(SS)} offset:{ST_L}
          s_waitcnt lgkmcnt(0)
          s_barrier""")
    stamp(4, "t")
    for ks in range(2): A(f"ds_read_b128 {v(HF+4*ks,4)}, {vRc} offset:{H_L + ks*64}")
    for k in range(4): A(f"ds_read_b128 {v(SR+4*k,4)}, {vRe} offset:{ST_L + k*16}")
    for ks in range(2, 10): A(f"ds_read_b128 {v(HF+4*ks,4)}, {vRc} offset:{H_L + ks*64}")
    z = v(T); z2 = v(T+1); mean = v(T+2); mb = v(T+3); rinv = v(T+4)
    sc = f"""v_pk_add_f32 {v(SR,2)}, {v(SR,2)}, {v(SR+2,2)}
          v_pk_add_f32 {v(SR+4,2)}, {v(SR+4,2)}, {v(SR+6,2)}
          v_pk_add_f32 {v(SR+8,2)}, {v(SR+8,2)}, {v(SR+10,2)}
          v_pk_add_f32 {v(SR+12,2)}, {v(SR+12,2)}, {v(SR+14,2)}
          v_pk_add_f32 {v(SR,2)}, {v(SR,2)}, {v(SR+4,2)}
          v_pk_add_f32 {v(SR+8,2)}, {v(SR+8,2)}, {v(SR+12,2)}
          v_pk_add_f32 {v(SR,2)}, {v(SR,2)}, {v(SR+8,2)}
          v_mul_f32 {mean}, 0x3b000000, {v(SR)}
          v_mul_f32 {z}, 0x3b000000, {v(SR+1)}
          v_fma_f32 {z}, -{mean}, {mean}, {z}
          v_max_f32 {z}, 0, {z}
          v_cvt_pk_bf16_f32 {rinv}, {mean}, {z}
          v_lshlrev_b32 {mb}, 16, {rinv}
          v_and_b32 {rinv}, {sHI}, {rinv}
          v_add_f32 {rinv}, 0x3727c5ac, {rinv}
          v_cvt_pk_bf16_f32 {rinv}, {rinv}, {rinv}
          v_lshlrev_b32 {rinv}, 16, {rinv}
          v_sqrt_f32 {rinv}, {rinv}
          v_cvt_pk_bf16_f32 {rinv}, {rinv}, {rinv}
          v_lshlrev_b32 {rinv}, 16, {rinv}
          v_rcp_f32 {rinv}, {rinv}
          v_mul_f32 {mb}, {mb}, {rinv}
          v_mul_f32 {v(T+5)}, {mb}, {v(CS)}
          v_mul_f32 {v(T+6)}, {mb}, {v(CS+1)}""".split("\n")
    if tdiag: A("s_waitcnt lgkmcnt(0)")
    order = [0, 1, "s", "s", "s", "s"] + list(range(2, 10))
    si = 0
    for ks in range(16):
        upto = {0: 1, 2: 5, 6: 9, 10: 12, 13: 15}
        if ks in upto: A(f"s_waitcnt lgkmcnt({len(order) - 1 - order.index(upto[ks])})")
        mfma(v(DG,4), a(GUF+4*ks), v(HF+4*ks,4), v(DG,4) if ks else 0)
        if ks < 6:
            A(f"ds_read_b128 {v(HF+4*(ks+10),4)}, {vRc} offset:{H_L + (ks+10)*64}"); order.append(ks + 10)
        if ks >= 2:
            for _ in range(1 if ks < 6 else 2):
                if si < len(sc): A(sc[si]); si += 1
    while si < len(sc): A(sc[si]); si += 1
    g_, u_ = v(T+7), v(T+8)
    A(f"""v_mov_b32 {z2}, 0xc0135761
          v_permlane32_swap_b32 {v(DG)}, {v(DG+1)}
          v_permlane32_swap_b32 {v(DG+2)}, {v(DG+3)}
          v_cndmask_b32 {v(DG)}, {v(DG)}, {v(DG+2)}, {sM8}
          v_cndmask_b32 {v(DG+1)}, {v(DG+1)}, {v(DG+3)}, {sM8}
          v_fma_f32 {g_}, {v(DG)}, {rinv}, -{v(T+5)}
          v_fma_f32 {u_}, {v(DG+1)}, {rinv}, -{v(T+6)}
          v_cvt_pk_bf16_f32 {u_}, {g_}, {u_}
          v_lshlrev_b32 {g_}, 16, {u_}
          v_mul_f32 {z}, {g_}, {g_}
          v_fmac_f32 {z2}, 0xbdd2d3e8, {z}
          v_mul_f32 {z}, {z2}, {g_}
          v_exp_f32 {z}, {z}
          v_and_b32 {u_}, {sHI}, {u_}
          v_add_f32 {z}, 1.0, {z}
          v_rcp_f32 {z}, {z}
          s_cmp_eq_u32 {sC}, 0
          v_mul_f32 {z}, {z}, {g_}
          v_cvt_pk_bf16_f32 {z}, {z}, {z}
          v_lshlrev_b32 {z}, 16, {z}
          v_mul_f32 {z}, {z}, {u_}
          v_cvt_pk_bf16_f32 {z}, {z}, {z}
          ds_write_b16 {vRf}, {z} offset:{A_L}
          s_cselect_b32 s38, 0, {WS_END}
          s_waitcnt lgkmcnt(0)
          s_barrier
          ds_read_b128 {v(BL,4)}, {vB3}
          ds_read_b128 {v(BL+4,4)}, {vBh}""")
    stamp(5, "t")
    A("s_waitcnt lgkmcnt(0)")
    DP = 148
    for i in range(4):
        mfma(v(DP+4*i,4), a(WDF+8*i), v(BL,4), 0)
        mfma(v(DP+4*i,4), a(WDF+8*i+4), v(BL+4,4), v(DP+4*i,4))
    for p_ in range(2):
        for q_ in range(4): A(f"v_cvt_pk_bf16_f32 {v(164+4*p_+q_)}, {v(DP+8*p_+2*q_)}, {v(DP+8*p_+2*q_+1)}")
        for q_ in (0, 2): A(f"v_bfi_b32 {v(164+4*p_+q_)}, {sT3}, {vRa}, {v(164+4*p_+q_)}")
        A(f"buffer_store_dwordx4 {v(164+4*p_,4)}, {vRh}, {sW}, {(sB, sDd)[p_]} offen sc1")
    stamp(8, "t")
    A(f"""s_cbranch_scc0 L_fin
          s_mov_b32 {sC}, 1
          s_mov_b32 s38, {WS_END}
          v_mov_b32 {v(CS)}, {v(DG)}
          v_mov_b32 {v(CS+1)}, {v(DG+1)}""")
    if early:
        A("s_waitcnt vmcnt(0)\n s_nop 7\n s_branch L_prepback")
        A.label("L_t3")
        wdloads()
    A("s_waitcnt vmcnt(0)")
    for k in range(8):
        A(f"v_xor_b32 {v(T)}, {(4*(k>>2) + 2*(k&1))*32}, {vWd}\n v_add_u32 {v(T)}, {sWm}, {v(T)}")
        for t2 in range(2): A(f"ds_read_b64_tr_b16 {a(WDF+4*k+2*t2,2)}, {v(T)} offset:{t2*1024 + ((k>>1)&1)*8}")
        if k == 5: A("s_waitcnt lgkmcnt(4)")
    stamp(8)
    A("s_branch L_t3s")
    A.label("L_fin")
    if padto:
        if padwg is not None: A(f"s_cmp_lg_u32 s2, {padwg}\n s_cbranch_scc1 L_end")
        A.label("L_pad")
        A(f"s_memrealtime s[82:83]\n s_waitcnt lgkmcnt(0)\n s_sub_u32 s82, s82, s80\n s_cmp_lt_u32 s82, {padto}\n s_cbranch_scc1 L_pad")
    if stamps:
        A("s_waitcnt vmcnt(0)")
        stamp(9)
        A("s_getreg_b32 s0, hwreg(HW_REG_XCC_ID)\n s_waitcnt lgkmcnt(0)\n v_mov_b32 v8, 0")
        for k in range(10): A(f"v_writelane_b32 v8, s{80+2*k}, {k}")
        A(f"v_writelane_b32 v8, s0, 10\n v_writelane_b32 v8, {sCNT}, 11\n v_writelane_b32 v8, {sROLE}, 12\n v_writelane_b32 v8, s100, 13\n v_writelane_b32 v8, s101, 14\n s_getreg_b32 s0, hwreg(HW_REG_HW_ID)\n v_writelane_b32 v8, s0, 15")
        if dbg:
            A(f"s_not_b32 s0, s80\n v_writelane_b32 v8, s0, 10\n s_mov_b64 exec, 0xffff\n buffer_atomic_umax v8, {vL4}, {sDbg}, 0 offen sc1\n s_endpgm")
        A(f"s_lshl_b32 s0, s2, 2\n s_add_u32 s0, s0, s3\n s_lshl_b32 s0, s0, 8\n s_add_u32 s0, s0, 0x10000000\n s_add_u32 s26, s26, s0\n s_addc_u32 s27, s27, 0")
        A(f"v_lshlrev_b32 v9, 2, {vL}\n global_store_dword v9, v8, s[26:27]")
    A.label("L_end")
    A("s_endpgm")
    for o in ool: o()
    if warm0 or warm1: A.raw(".rept 3000\n s_endpgm\n.endr")
    elif roll: A.raw(".rept 400\n s_endpgm\n.endr")
    A.raw('.section .rodata,"a"\n.p2align 6')
    A.raw(f".amdhsa_kernel {NAME}_kernel")
    A.raw("""  .amdhsa_next_free_vgpr 512
  .amdhsa_next_free_sgpr 102
  .amdhsa_accum_offset 256
  .amdhsa_group_segment_fixed_size 0
  .amdhsa_kernarg_size 96
  .amdhsa_user_sgpr_count 2
  .amdhsa_user_sgpr_kernarg_segment_ptr 1
  .amdhsa_system_sgpr_workgroup_id_x 1
  .amdhsa_float_denorm_mode_32 3
.end_amdhsa_kernel""")
    return A.text()

if __name__ == "__main__":
    if len(sys.argv) > 1:
        cfgs = json.loads(sys.argv[1])
        for k, c in cfgs.items(): open(f"k_{k}.s", "w").write(gen(**c))
        print(" ".join(f"work/k_{k}.s" for k in cfgs))
    else:
        open(f"cdna_kernels/{NAME}.s", "w").write(gen())
```

```python
import sys, json
sys.path.insert(0, "work")
from asmlib import Asm
NAME = "sequential_preLN__gqa_block_cached__geglu_ffn__decode"

Q_OFF = 0x0
EPOCH = 0x40000
CLR = 0x100000
YP = CLR
OP = CLR + 0x80000
ML = CLR + 0x100000
HB = CLR + 0x40000
PD = CLR + 0x10C000
WS_END = PD + 64 * 7168
XL = 0x50000
PG = 0x60000
XN_L = 0; XN_S = 1056
P_L = 8448
WO_L = P_L + 4 * 4608
GU_L = WO_L + 16384
WD_L = GU_L + 65536
WQ_L = GU_L
LDS_SZ = WD_L + 32768
T0_L = 0; O_L = P_L; Z_L = P_L + 4096; R_L = 0
H_L = WO_L; ST_L = P_L + 8192; A_L = P_L + 8192 + 768

def mask(f):
    v = 0
    for l in range(64):
        if f(l): v |= 1 << l
    return v

def gen(D=6, D0=8, IQ=52, budget=44, stamps=False, wnt="", IML=214, cap=200000, kvflag="nt",
        sleep=0, IEND=256, DEND=9, IWO=100, sdiag=False, warm0=False, warm1=False, abl="", kpat="p8", dbg=False, tdiag=False, bal="def",
        touch=False, osc="", vflag=None, ES=0, WOS=4, perm=True, VS=2, V0=1, rot=0, pre=False, NS_=(1, 1, 1, 1), tau=(0, 0, 0, 0), gate=0, adum=True, EA=1, kpair=0, vpair=0, GW=5, GE=4, rsh=0, mp=(12, 13, 14, 16), padto=0, padwg=None, ldsx=0, mpoll=(0, 0, 0, 0), otouch=None, loc=(1, 1, 1, 1), XJ=1, stouch="", PB=8, pert=None, IS=0, DST=8, dly=None, dlyr="ack", dlyb=None, early=False, AK=0, warmA=True, half=True, roll=dict(mask=15, dist=1536, first=33, per=28, st=[35, 150]), roll0=15, wd0=0, wds=4, IW2=176, GM_=9):
    A = Asm()
    if bal == "def": bal = None if dbg else dict(lo=5, first=46, per=16, last=241, th=4, off=272, lag=8, one=1, aoff=-3, sep=16, lo2=7)
    hdr = [l for l in open("cdna_kernels/" + NAME + ".s.ref").read().split("\n") if l.startswith(";") and "@launch" not in l]
    for l in hdr: A.raw(l)
    A.raw(f"; @launch grid=(256,1,1) block=(256,1,1) lds={LDS_SZ + ldsx}")
    for l in """
; One persistent launch, 256 workgroups x 4 waves (one workgroup per CU, all co-resident).
;   ids: x = wg&7 = kv head, b = wg>>5, split = (wg>>3)&3; the 4 workgroups of a (b, kv head) share its 8192 keys.
;   class A (one per group) first computes LN(x) @ wq for 64 columns and takes 26 of the 128 key rows, the others 34.
;   K phase: 8-key x 128-byte loads straight into an AGPR ring, QK^T by MFMA, scores rounded like the reference.
;   V phase: exact per-wave max, P in LDS, PV by MFMA with a diagonal A operand; (max, sum) exchanged per group.
;   tail: o partials -> o @ wo (per head, 64 columns) -> sum over heads + x (one copy of h per id&7 set) -> class A:
;         LN folded into gate/up, gelu*up, @ w_down partials -> final sum + h.  Every hand-off carries a tag (previous
;         tag in d_ws + 1) that the reader strips again; plain stores only when all readers reported the same XCC id.
;   loads in flight per wave are 6, or 5 while the workgroup is ahead of most of its sampled peers.""".strip().split("\n"): A.raw(l)
    A.raw('.amdgcn_target "amdgcn-amd-amdhsa--gfx950"')
    A.raw(".text"); A.raw(f".globl {NAME}_kernel"); A.raw(".p2align 8"); A.raw(f".type {NAME}_kernel,@function")
    A.label(f"{NAME}_kernel")
    NK = 136; NS = 2 * NK; NO = 32
    if dbg: stamps = True
    sK, sV, sW, sX, sQ, sO, sG, sU, sD, sOut, sDbg = [f"s[{b}:{b+3}]" for b in range(28, 72, 4)]
    sKV = "s72"; sROLE = "s73"; sCNT = "s74"; sLOG = "s75"; sMV = "s[76:77]"; sM8 = "s[78:79]"
    sSCALE = "s4"; sHI = "s5"; sTAG = "s6"; sT = "s7"; sT2 = "s8"; sT3 = "s9"; sGI = "s10"; sHEAD = "s11"; sCS = "s12"
    sOPs, sOPl, sOPl2, sYs, sA, sB, sC, sDd = [f"s{i}" for i in range(13, 21)]
    sYs = "s23"
    sOPT = "s[24:25]"; sINC = "s20"; sXV = "s95" if not stamps else "s93"; sLOC = "s96" if not stamps else "s83"; sLC = "s1"; sCLS = "s100" if not stamps else "s99"; sE = "s101" if not stamps else "s97"; sE0 = "s98" if not stamps else "s95"; sWV = "s99" if not stamps else "s81"
    sWo, sWm, sW2o, sW2m = "s44", "s45", "s46", "s47"
    vL = "v1"; vKa = "v2"; vKb = "v3"; vVo = "v4"; vPw = "v5"; vPr = "v6"
    SEL = 8; QA = 16; S = 32; vNINF = "v252"; DS = 68; PP = 156; A0 = 100; A1 = 104; O0 = 108; O1 = 112
    m01, m23, l01, l23, nm01, nm23, f01, f23 = [f"v{i}" for i in range(116, 124)]
    vXR = "v124"; T = 125
    vN = "v141"; vG = "v142"
    BIG = 156; WOF = 144
    vT0w, vT0r, vL4, vL8, vOw, vBl, vBh, vYs = [f"v{i}" for i in range(232, 240)]
    vTAG = "v7"; vWOr = "v143"; sFF = "s15"
    vWa, vWb, vWc = "v240", "v224", "v253"; vWa2, vWb2, vWc2 = "v244", "v225", "v254"; vB3 = "v249"; vT16 = "v255"; vTB, vEM = "v250", "v251"
    v = lambda i, n=1: f"v{i}" if n == 1 else f"v[{i}:{i+n-1}]"
    a = lambda i, n=4: f"a[{i}:{i+n-1}]"
    def stamp(k, diag=False):
        if diag == "t":
            if not tdiag: return
        elif tdiag and k in (1, 2, 3, 4, 5, 8): return
        elif sdiag and k in (5, 6, 7, 8) and not diag: return
        elif diag and not sdiag: return
        if stamps: A(f"s_memrealtime s[{80+2*k}:{81+2*k}]")
    def smov64(dst, val):
        lo = int(dst[2:dst.index(":")])
        A(f"s_mov_b32 s{lo}, 0x{val & 0xffffffff:x}\n s_mov_b32 s{lo+1}, 0x{val >> 32:x}")
    ops = []; known = [-1]
    def vm(text, mandatory=True):
        A(text); ops.append(mandatory); return len(ops) - 1
    def after(idx, r1=False): return sum(1 for m in ops[idx+1:] if m is True or (r1 and m == 'r1'))
    def wait_for(idx):
        if idx <= known[0]: return
        n = after(idx); assert n <= 63
        A(f"s_waitcnt vmcnt({n})"); known[0] = idx
    ool = []
    def mfma(d, x, y, c): A(f"v_mfma_f32_16x16x32_bf16 {d}, {x}, {y}, {c}")
    DPPM = "row_mask:0xf bank_mask:0xf"

    A("s_cmp_ge_u32 s2, 256\n s_cbranch_scc1 L_end")
    A("s_load_dwordx8 s[4:11], s[0:1], 0\n s_load_dwordx8 s[12:19], s[0:1], 32\n s_load_dwordx8 s[20:27], s[0:1], 64")
    if stamps:
        for k in range(1, 11): A(f"s_mov_b32 s{80+2*k}, 0")
        A("s_mov_b32 s101, 0")
    stamp(0)
    if stamps: A("s_waitcnt lgkmcnt(0)")
    if padto: A("s_memrealtime s[80:81]")
    A(f"""v_lshrrev_b32 {v(T)}, 6, v0
          v_and_b32 {vL}, 63, v0
          v_readfirstlane_b32 s3, {v(T)}
          v_lshrrev_b32 {vG}, 4, {vL}
          v_and_b32 {v(T+3)}, 14, v0
          v_lshlrev_b32 {vKa}, 7, {v(T+3)}
          v_lshl_or_b32 {vKa}, {vG}, 4, {vKa}
          v_and_b32 {v(T+4)}, 1, v0
          v_lshl_or_b32 {vKa}, {v(T+4)}, 6, {vKa}
          {"v_lshlrev_b32 " + vKa + ", 4, " + vL if kpat == "c" else ""}
          v_xor_b32 {vKb}, 64, {vKa}
          s_mov_b32 s31, 0x20000
          s_and_b32 {sWV}, s2, 7
          s_lshl_b32 {sWV}, {sWV}, 2
          s_bfe_u32 s75, s2, 0x20003
          s_or_b32 {sWV}, {sWV}, s75
          s_and_b32 s74, s2, 0xe0
          s_or_b32 {sWV}, {sWV}, s74
          s_lshr_b32 s74, s2, 5
          s_add_u32 s74, s75, s74
          s_and_b32 {sCLS}, s74, 3
          s_add_u32 s74, s74, 3
          s_and_b32 s74, s74, 3
          s_mov_b32 {sE0}, s74
          s_lshl_b32 {sE}, s74, {mp[2]}
          s_and_b32 s73, s3, 1
          s_lshl_b32 s73, s73, {mp[0]}
          s_lshr_b32 s74, s3, 1
          s_lshl_b32 s74, s74, {mp[1]}
          s_add_u32 s73, s73, s74
          s_lshr_b32 s75, {sWV}, 2
          s_lshl_b32 s75, s75, 21
          s_sub_u32 s30, 0x200000, s73
          s_add_u32 s73, s73, s75
          s_waitcnt lgkmcnt(0)
          s_add_u32 s28, s6, s73
          s_addc_u32 s29, s7, 0
          s_and_b32 s29, s29, 0xffff""")
    stamp(5, True)
    kv = []; st = {}; uid = [0]
    def lstore(text, on, f=A):
        if not on: return f(text + " sc1")
        uid[0] += 1; u = uid[0]
        A(f"s_cmp_eq_u32 {sLOC}, 0\n s_cbranch_scc1 L_ls{u}")
        r = f(text)
        A.label(f"L_le{u}")
        def o():
            A.label(f"L_ls{u}"); A(text + " sc1"); A(f"s_branch L_le{u}")
        ool.append(o)
        return r
    def xl_pub(f):
        uid[0] += 1; u = uid[0]
        A(f"""s_getreg_b32 {sXV}, hwreg(HW_REG_XCC_ID, 0, 3)
              s_lshl_b32 {sT}, {sTAG}, 3
              s_or_b32 {sXV}, {sXV}, {sT}
              s_cmp_lg_u32 s3, 1
              s_cbranch_scc1 L_xp{u}
              s_and_b32 {sT}, s2, 7
              s_lshl_b32 {sT}, {sT}, 7
              s_lshr_b32 s0, s2, 3
              s_lshl_b32 s0, s0, 2
              s_add_u32 {sT}, {sT}, s0
              s_add_u32 {sT}, {sT}, {XL}
              v_mov_b32 {v(T+10)}, {sXV}
              v_mov_b32 {v(T+11)}, 0
              s_mov_b64 exec, 1""")
        f(f"buffer_store_dword {v(T+10)}, {v(T+11)}, {sW}, {sT} offen")
        A("s_mov_b64 exec, -1")
        A.label(f"L_xp{u}")
    def xl_load(f, dst):
        A(f"""v_and_b32 {v(T+10)}, 31, v0
              v_lshlrev_b32 {v(T+10)}, 2, {v(T+10)}
              s_and_b32 {sT2}, s2, 7
              s_lshl_b32 {sT2}, {sT2}, 7
              s_add_u32 {sT2}, {sT2}, {XL}""")
        return f(f"buffer_load_dword {dst}, {v(T+10)}, {sW}, {sT2} offen sc1")
    def xl_eval(src):
        A(f"v_cmp_ne_u32 s[0:1], {sXV}, {src}\n s_cmp_eq_u64 s[0:1], 0\n s_cselect_b32 {sLOC}, 1, 0")
    def tagfin(f):
        A(f"s_waitcnt lgkmcnt(0)\n s_add_u32 {sTAG}, {sTAG}, 1\n v_mov_b32 {vTAG}, {sTAG}")
        xl_pub(f)
    slot = lambda i: (i % 64) * 4 if i < NK else ((i - NK + 8) % 32) * 4
    def prevocc(i):
        for j in range(i - 1, -1, -1):
            if slot(j) == slot(i): return j
        return -1
    rowoff = lambda p: (3 * p if p < 8 else 24 + 4 * (p - 8)) * 16384
    vorder = list(range(8, 34))
    vorder += list(range(8))
    tileof = lambda i: i >> 2 if i < NK else vorder[(i - NK) >> 2]
    isopt = lambda i: tileof(i) < 8
    def issue(i):
        p = tileof(i)
        dst = a(slot(i))
        if (i & 3) == 0:
            if p >= 8:
                q = p - 8 + 6
                A(f"s_add_u32 {sKV}, {sE}, {((q & 1) << mp[3]) + ((q >> 1) << 17)}")
            elif tuple(mp) == (12, 13, 14, 16): A(f"s_add_u32 {sKV}, {sE}, {3 * p * 16384}")
            else:
                A(f"""s_add_u32 s0, {sE0}, {3 * p}
                      s_and_b32 {sKV}, s0, 3
                      s_lshl_b32 {sKV}, {sKV}, {mp[2]}
                      s_bfe_u32 s1, s0, 0x10002
                      s_lshl_b32 s1, s1, {mp[3]}
                      s_add_u32 {sKV}, {sKV}, s1
                      s_lshr_b32 s1, s0, 3
                      s_lshl_b32 s1, s1, 17
                      s_add_u32 {sKV}, {sKV}, s1""")
        if i < NK:
            va = vKb if p & 1 else vKa
            kv.append(vm(f"buffer_load_dwordx4 {dst}, {va}, {sK}, {sKV} offen offset:{(i&3)*1024 if kpat == 'c' else ((i>>1)&1)*2048 + (i&1)*128} {kvflag}"))
        else:
            kv.append(vm(f"buffer_load_dwordx4 {dst}, {vVo}, {sV}, {sKV} offen offset:{(i&3)*1024} {kvflag if vflag is None else vflag}"))
    A(f"s_cmp_eq_u32 {sCLS}, 0\n s_cbranch_scc1 L_A")
    for i in range(D0):
        issue(i)
        if i == 1: A(f"s_load_dword {sTAG}, s[26:27], {EPOCH}")
    stamp(6, True)
    if roll0 is not None:
        A(f"s_and_b32 s74, s2, {roll0 << 3}\n s_cmp_lg_u32 s74, 8\n s_cbranch_scc1 L_B\n s_getpc_b64 s[0:1]\n v_lshlrev_b32 {vT16}, 5, v0")
        vm(f"global_load_dword {v(228)}, {vT16}, s[0:1]", False)
    A("s_branch L_B")
    A.label("L_A")
    A(f"s_load_dword {sTAG}, s[26:27], {EPOCH}")
    A(f"""s_mov_b32 s40, s4
          s_and_b32 s41, s5, 0xffff
          s_mov_b32 s42, 8192
          s_mov_b32 s43, 0x20000
          v_lshrrev_b32 {v(T+2)}, 5, v0
          v_and_b32 {v(T+4)}, 31, v0
          v_lshlrev_b32 {v(T+4)}, 4, {v(T+4)}
          v_lshl_or_b32 {v(T)}, {v(T+2)}, 10, {v(T+4)}
          buffer_load_dwordx4 {v(BIG,4)}, {v(T)}, {sX}, 0 offen
          buffer_load_dwordx4 {v(BIG+4,4)}, {v(T)}, {sX}, 0 offen offset:512
          s_mov_b32 s44, s10
          s_and_b32 s45, s11, 0xffff
          s_mov_b32 s46, {0 if 'q' in abl else 512*4096*2}
          s_mov_b32 s47, 0x20000
          v_and_b32 {v(T+3)}, 7, v0
          v_lshrrev_b32 {v(T+1)}, 3, {vL}
          v_and_b32 {v(T+5)}, 2, {v(T+1)}
          v_xor_b32 {v(T+3)}, {v(T+3)}, {v(T+5)}
          v_lshlrev_b32 {v(T+1)}, 13, {v(T+1)}
          v_lshl_or_b32 {v(T+1)}, {v(T+3)}, 4, {v(T+1)}
          v_xor_b32 {v(T+3)}, 64, {v(T+1)}
          s_and_b32 s74, s2, 7
          s_lshl_b32 s74, s74, 3
          s_lshr_b32 s75, s2, 5
          s_add_u32 {sLC}, s74, s75
          {"s_xor_b32 " + sLC + ", " + sLC + ", 4" if perm else ""}
          s_lshl_b32 s74, {sLC}, 7
          s_lshl_b32 s75, s3, 20
          s_add_u32 s74, s74, s75
          s_lshl_b32 s75, s3, 14
          s_add_u32 m0, s75, {WQ_L}""")
    for j in range(16):
        A(f"buffer_load_dwordx4 {v(T+3) if j & 1 else v(T+1)}, {sQ}, s74 offen nt lds")
        if j < 15: A(f"s_add_u32 s74, s74, {8*8192}\n s_add_u32 m0, m0, 1024")
        if j == XJ:
            A(f"s_mov_b32 s36, s26\n s_and_b32 s37, s27, 0xffff\n s_mov_b32 s38, {WS_END}\n s_mov_b32 s39, 0x20000")
            tagfin(A)
    stamp(7, True)
    def setupA():
        A(f"v_lshlrev_b32 {vVo}, 4, {vL}\n v_and_b32 {vN}, 15, v0")
        A("s_add_u32 s32, s8, s73\n s_addc_u32 s33, s9, 0\n s_and_b32 s33, s33, 0xffff\n s_mov_b32 s34, s30")
        for b in (32, 36, 40, 48, 52, 56, 60) + ((68,) if dbg else ()): A(f"s_mov_b32 s{b+3}, 0x20000")
        A(f"s_mov_b32 s40, s4\n s_and_b32 s41, s5, 0xffff\n s_mov_b32 s42, 8192")
        A(f"s_mov_b32 s36, s26\n s_and_b32 s37, s27, 0xffff\n s_mov_b32 s38, {WS_END}\n s_mov_b32 {sHI}, 0xffff0000")
        smov64(sM8, mask(lambda l: (l >> 3) & 1))
        A(f"""s_lshr_b32 {sT2}, s2, 5
              s_cmp_lt_u32 {sT2}, 7
              s_cselect_b32 {sROLE}, 1, 0
              s_cmp_eq_u32 {sCLS}, 3
              s_cselect_b32 {sROLE}, 3, {sROLE}
              s_cmp_eq_u32 {sCLS}, 2
              s_cselect_b32 {sROLE}, 2, {sROLE}
              s_cmp_eq_u32 {sCLS}, 1
              s_cselect_b32 {sROLE}, 3, {sROLE}""")
    sMODE = "s21"; PGA = "v243"
    def pgsetup():
        if bal: A(f"s_mov_b32 {sMODE}, 0\n v_mov_b32 {PGA}, {P_L + 4352}\n v_mov_b32 {v(T)}, 0\n ds_write_b32 {PGA}, {v(T)}\n ds_write_b32 {PGA}, {v(T)} offset:4")
    def setup0(isB=True):
        for (b, p, sz) in ((48, 12, 0 if 'o' in abl else 4096*512*2), (52, 16, 0 if 'g' in abl else 512*1792*2), (56, 18, 0 if 'g' in abl else 512*1792*2), (60, 20, 0 if 'd' in abl else 1792*512*2)) + (((68, 24, 256),) if dbg else ()):
            A(f"s_mov_b32 s{b}, s{p}\n s_and_b32 s{b+1}, s{p+1}, 0xffff\n s_mov_b32 s{b+2}, {sz}")
        A(f"""s_mov_b64 s[18:19], s[22:23]
              s_mov_b32 {sLOG}, 0x3fb8aa3b
              s_mov_b32 {sSCALE}, 0x3db504f3
              s_mov_b32 {sCNT}, 0
              s_mov_b32 {sFF}, 0xff
              s_bfe_u32 {sCS}, s2, 0x30003
              s_and_b32 {sT}, s2, 7
              s_mul_i32 {sGI}, {sT}, 7
              s_add_u32 {sGI}, {sGI}, {sT2}
              s_lshl_b32 {sHEAD}, {sT}, 2
              s_lshr_b32 {sT}, s2, 6
              s_add_u32 {sHEAD}, {sHEAD}, {sT}""")
        smov64(sMV, mask(lambda l: (l & 1) == ((l >> 4) & 1)))
        A(f"""s_cmp_eq_u32 {sROLE}, 1
              s_cselect_b32 s54, s54, 0
              s_cselect_b32 s58, s58, 0
              s_cselect_b32 s62, s62, 0
              s_cmp_eq_u32 {sCLS}, 0
              s_cselect_b32 s24, -1, 0
              s_mov_b32 s25, s24""")
        if touch and isB:
            A(f"s_cmp_lg_u32 s3, 1\n s_cbranch_scc1 L_nt0\n s_mov_b64 exec, 1\n s_mov_b32 {sT}, 0x100000\n s_mov_b32 {sT2}, 0x200000\n s_lshl_b32 {sT3}, {sHEAD}, 17")
            for (srd, so) in ((sV, "0"), (sOut, "0"), (sW, sT), (sW, sT2), (sO, sT3), (sG, "0"), (sU, "0"), (sD, "0")):
                vm(f"buffer_load_dword v231, {vVo}, {srd}, {so} offen nt", False)
            A("s_mov_b64 exec, -1")
            A.label("L_nt0")
        if warm0 and isB:
            A("s_getpc_b64 s[0:1]")
            A(f"s_lshl_b32 {sT}, {sCS}, 2\n s_add_u32 {sT}, {sT}, s3\n s_lshl_b32 {sT}, {sT}, 10\n s_add_u32 s0, s0, {sT}\n s_addc_u32 s1, s1, 0")
            A(f"s_cmp_ge_u32 s2, 128\n s_cbranch_scc1 L_nw0")
            vm(f"global_load_dwordx4 {v(228,4)}, {vVo}, s[0:1]", False)
            A.label("L_nw0")
    def wsetup():
        A(f"""v_lshrrev_b32 {vWa}, 3, {vL}
              v_and_b32 {v(T+1)}, 2, {vWa}
              v_lshlrev_b32 {vWa}, 10, {vWa}
              v_and_b32 {v(T)}, 7, v0
              v_xor_b32 {v(T)}, {v(T)}, {v(T+1)}
              v_lshl_or_b32 {vWa}, {v(T)}, 4, {vWa}
              v_xor_b32 {vWa2}, 64, {vWa}
              v_lshrrev_b32 {v(T)}, 2, {vL}
              v_mul_u32_u24 {vWb}, 3584, {v(T)}
              v_and_b32 {v(T+1)}, 3, v0
              v_and_b32 {v(T)}, 2, {vG}
              v_xor_b32 {v(T+1)}, {v(T+1)}, {v(T)}
              v_lshl_add_u32 {vWb}, {v(T+1)}, 4, {vWb}
              v_xor_b32 {vWb2}, 16, {vWb}
              v_lshlrev_b32 {vWc}, 10, {vG}
              v_lshlrev_b32 {v(T)}, 1, {vG}
              v_xor_b32 {v(T)}, {v(T)}, {vN}
              v_lshl_or_b32 {vWc}, {v(T)}, 4, {vWc}
              v_xor_b32 {vWc2}, 128, {vWc}
              s_mul_i32 {sW2o}, s3, {128*3584}
              s_lshl_b32 {sT2}, {sGI}, 6
              s_add_u32 {sW2o}, {sW2o}, {sT2}
              s_lshl_b32 {sW2m}, s3, 14
              s_add_u32 {sW2m}, {sW2m}, {GU_L}
              s_lshl_b32 {sWo}, {sHEAD}, 17
              s_lshl_b32 {sT2}, {sCS}, 7
              s_add_u32 {sWo}, {sWo}, {sT2}
              s_lshl_b32 {sT2}, s3, 15
              s_add_u32 {sWo}, {sWo}, {sT2}
              s_lshl_b32 {sWm}, s3, 12
              s_add_u32 {sWm}, {sWm}, {WO_L}""")
    def consts1():
        A(f"""v_and_b32 {v(T)}, 1, v0
              v_cmp_eq_u32 vcc, 1, {v(T)}
              v_mov_b32 {v(T+1)}, 0x0c0c0100
              v_mov_b32 {v(T+2)}, 0x01000c0c
              v_cndmask_b32 {v(T+1)}, {v(T+1)}, {v(T+2)}, vcc
              v_mov_b32 {v(T+2)}, 0x0c0c0302
              v_mov_b32 {v(T+3)}, 0x03020c0c
              v_cndmask_b32 {v(T+2)}, {v(T+2)}, {v(T+3)}, vcc
              v_bfe_u32 {v(T)}, v0, 1, 1
              v_bfe_u32 {v(T+3)}, v0, 3, 1
              v_lshl_or_b32 {v(T)}, {v(T+3)}, 1, {v(T)}
              v_mov_b32 {v(T+3)}, 0x0c0c0c0c""")
        for r in range(4):
            A(f"""v_cmp_eq_u32 vcc, {r}, {v(T)}
                  v_cndmask_b32 {v(SEL+r)}, {v(T+3)}, {v(T+1)}, vcc
                  v_cndmask_b32 {v(SEL+4+r)}, {v(T+3)}, {v(T+2)}, vcc""")
    def consts2():
        A(f"s_mul_i32 {sT}, s3, 4608\n s_add_u32 {sT}, {sT}, {P_L}\n v_mov_b32 {vNINF}, 0xff800000")
        A(f"""v_bfe_u32 {v(T)}, v0, 4, 1
              v_lshlrev_b32 {vPw}, 7, {v(T)}
              v_and_b32 {v(T)}, 7, v0
              v_lshl_or_b32 {vPw}, {v(T)}, 4, {vPw}
              v_bfe_u32 {v(T)}, v0, 5, 1
              v_lshl_or_b32 {vPw}, {v(T)}, 3, {vPw}
              v_bfe_u32 {v(T)}, v0, 3, 1
              v_lshl_or_b32 {vPw}, {v(T)}, 2, {vPw}
              v_add_u32 {vPw}, {sT}, {vPw}
              v_and_b32 {v(T)}, 4, v0
              v_lshlrev_b32 {vPr}, 5, {v(T)}
              v_lshl_or_b32 {vPr}, {vG}, 5, {vPr}
              v_add_u32 {vPr}, {sT}, {vPr}
              v_mov_b32 {m01}, 0xff800000
              v_mov_b32 {m23}, 0xff800000
              v_mov_b32 {l01}, 0
              v_mov_b32 {l23}, 0""")
    def tc1():
        A(f"""s_lshl_b32 {sT}, s3, 11
              s_add_u32 {sT}, {sT}, {T0_L}
              v_bfe_u32 {v(T)}, v0, 4, 1
              v_lshlrev_b32 {vT0w}, 9, {v(T)}
              v_lshl_or_b32 {vT0w}, {vN}, 5, {vT0w}
              v_bfe_u32 {v(T)}, v0, 5, 1
              v_lshl_or_b32 {vT0w}, {v(T)}, 4, {vT0w}
              v_add_u32 {vT0w}, {sT}, {vT0w}
              v_lshlrev_b32 {vT0r}, 3, v0
              v_lshlrev_b32 {vL4}, 2, {vL}
              v_lshlrev_b32 {vL8}, 3, {vL}
              v_lshlrev_b32 {vT16}, 4, v0
              s_and_b32 {sT}, {sWV}, 28
              s_add_u32 {sT}, {sT}, s3
              s_lshl_b32 {sOPs}, {sT}, 14
              s_lshr_b32 {sT}, {sWV}, 6
              s_lshl_b32 {sT}, {sT}, 12
              s_add_u32 {sOPs}, {sOPs}, {sT}
              s_and_b32 {sT}, {sWV}, 3
              s_lshl_b32 {sT}, {sT}, 10
              s_add_u32 {sOPs}, {sOPs}, {sT}
              s_and_b32 {sT}, {sWV}, 32
              s_lshl_b32 {sT}, {sT}, 4
              s_add_u32 {sOPs}, {sOPs}, {sT}
              s_add_u32 {sOPs}, {sOPs}, {OP}
              s_lshl_b32 {sOPl}, {sHEAD}, 14
              s_lshl_b32 {sT}, s3, 12
              s_add_u32 {sOPl}, {sOPl}, {sT}
              s_add_u32 {sOPl}, {sOPl}, {OP}""")
    def tc2():
        A(f"""v_lshrrev_b32 {v(T)}, 5, v0
              v_and_b32 {v(T+1)}, 31, v0
              v_mul_u32_u24 {vOw}, 288, {v(T)}
              v_lshl_add_u32 {vOw}, {v(T+1)}, 3, {vOw}
              v_and_b32 {v(T)}, 7, v0
              v_mul_u32_u24 {v(T+1)}, 288, {v(T)}
              v_lshl_add_u32 {v(T+1)}, {vG}, 4, {v(T+1)}
              v_add_u32 {vBl}, {O_L}, {v(T+1)}
              v_lshlrev_b32 {vYs}, 4, {v(T)}
              v_bfe_u32 {v(T+1)}, v0, 4, 1
              v_lshl_or_b32 {vYs}, {v(T+1)}, 3, {vYs}
              v_and_b32 {v(T+1)}, 32, v0
              v_lshl_or_b32 {vYs}, {v(T+1)}, 7, {vYs}
              v_cndmask_b32 {vYs}, {vYs}, {vNINF}, {sM8}
              s_lshl_b32 {sYs}, {sCS}, 15
              s_lshl_b32 {sT}, {sHEAD}, 7
              s_add_u32 {sYs}, {sYs}, {sT}
              s_lshl_b32 {sT}, s3, 13
              s_add_u32 {sYs}, {sYs}, {sT}
              s_add_u32 {sYs}, {sYs}, {YP}
              v_lshrrev_b32 {v(T)}, 2, {vN}
              v_lshl_add_u32 {v(T)}, {vG}, 3, {v(T)}
              v_and_b32 {v(T+1)}, 3, v0
              v_lshlrev_b32 {vWOr}, 7, {v(T)}
              v_lshl_or_b32 {vWOr}, {v(T+1)}, 3, {vWOr}
              v_bfe_u32 {v(T+1)}, v0, 3, 2
              v_xor_b32 {v(T+1)}, s3, {v(T+1)}
              v_lshl_or_b32 {vWOr}, {v(T+1)}, 5, {vWOr}
              v_add_u32 {vWOr}, {WO_L}, {vWOr}
              v_and_b32 {vTB}, {sFF}, {vTAG}
              v_and_b32 {vEM}, 1, v0
              v_add_u32 {vEM}, {sFF}, {vEM}
              v_and_b32 {vEM}, {sFF}, {vEM}
""")
    def wdloads(thr=None, k0=0, k1=8):
        if k0 >= k1: return
        A(f"""s_lshl_b32 {sT2}, {sGI}, 15
              s_lshl_b32 {sT}, s3, 8
              s_add_u32 {sT2}, {sT2}, {sT}
              s_add_u32 {sT2}, {sT2}, {k0 * 4096}
              s_lshl_b32 {sT}, s3, 13
              s_add_u32 m0, {sT}, {WD_L + k0 * 1024}""")
        for k in range(k0, k1):
            if thr: A(f"s_waitcnt vmcnt({thr - 1})")
            A(f"buffer_load_dwordx4 {vWc2 if k & 2 else vWc}, {sD}, {sT2} offen nt lds")
            if k < k1 - 1: A(f"s_add_u32 {sT2}, {sT2}, 4096\n s_add_u32 m0, m0, 1024")
    setupA(); A(f"s_mov_b32 s75, {sT2}")
    A(f"v_mul_u32_u24 {v(T+2)}, {XN_S}, {v(T+2)}\n v_add_u32 {v(T+2)}, {v(T+2)}, {v(T+4)}")
    F = BIG + 8; G = F + 16
    def rowsum32(r, t):
        for k in (8, 4, 2, 1): A(f"v_add_f32_dpp {r}, {r}, {r} row_ror:{k} {DPPM}")
        A(f"v_mov_b32 {t}, {r}\n v_permlane16_swap_b32 {r}, {t}\n v_add_f32 {r}, {r}, {t}")
    def ln_scalars(mean, var, mb, rinv):
        A(f"""v_cvt_pk_bf16_f32 {rinv}, {mean}, {var}
              v_lshlrev_b32 {mb}, 16, {rinv}
              v_and_b32 {rinv}, {sHI}, {rinv}
              v_add_f32 {rinv}, 0x3727c5ac, {rinv}
              v_cvt_pk_bf16_f32 {rinv}, {rinv}, {rinv}
              v_lshlrev_b32 {rinv}, 16, {rinv}
              v_sqrt_f32 {rinv}, {rinv}
              v_cvt_pk_bf16_f32 {rinv}, {rinv}, {rinv}
              v_lshlrev_b32 {rinv}, 16, {rinv}
              v_rcp_f32 {rinv}, {rinv}""")
    A("s_waitcnt vmcnt(16)")
    stamp(1)
    for i in range(8): A(f"v_lshlrev_b32 {v(F+2*i)}, 16, {v(BIG+i)}\n v_and_b32 {v(F+2*i+1)}, {sHI}, {v(BIG+i)}")
    for i in range(4): A(f"v_pk_add_f32 {v(G+2*i,2)}, {v(F+2*i,2)}, {v(F+8+2*i,2)}")
    for i in range(2): A(f"v_pk_add_f32 {v(G+2*i,2)}, {v(G+2*i,2)}, {v(G+4+2*i,2)}")
    A(f"v_pk_add_f32 {v(G,2)}, {v(G,2)}, {v(G+2,2)}\n v_add_f32 {v(T+5)}, {v(G)}, {v(G+1)}")
    rowsum32(v(T+5), v(T+6))
    A(f"v_mul_f32 {v(T+5)}, 0x3b000000, {v(T+5)}")
    for i in range(16): A(f"v_sub_f32 {v(G+i)}, {v(F+i)}, {v(T+5)}")
    A(f"v_pk_mul_f32 {v(T+7,2)}, {v(G,2)}, {v(G,2)}")
    for i in range(1, 8): A(f"v_pk_fma_f32 {v(T+7,2)}, {v(G+2*i,2)}, {v(G+2*i,2)}, {v(T+7,2)}")
    A(f"v_add_f32 {v(T+7)}, {v(T+7)}, {v(T+8)}")
    rowsum32(v(T+7), v(T+6))
    A(f"v_mul_f32 {v(T+7)}, 0x3b000000, {v(T+7)}")
    ln_scalars(v(T+5), v(T+7), v(T+8), v(T+9))
    for i in range(16): A(f"v_sub_f32 {v(F+i)}, {v(F+i)}, {v(T+8)}")
    for i in range(8): A(f"v_cvt_pk_bf16_f32 {v(BIG+i)}, {v(F+2*i)}, {v(F+2*i+1)}")
    for i in range(8): A(f"v_lshlrev_b32 {v(F+2*i)}, 16, {v(BIG+i)}\n v_and_b32 {v(F+2*i+1)}, {sHI}, {v(BIG+i)}")
    for i in range(16): A(f"v_mul_f32 {v(F+i)}, {v(F+i)}, {v(T+9)}")
    for i in range(8): A(f"v_cvt_pk_bf16_f32 {v(BIG+i)}, {v(F+2*i)}, {v(F+2*i+1)}")
    A(f"ds_write_b128 {v(T+2)}, {v(BIG,4)} offset:{XN_L}\n ds_write_b128 {v(T+2)}, {v(BIG+4,4)} offset:{XN_L+512}")
    if wd0 == 1: setup0(False); wsetup()
    A(f"""v_and_b32 {v(T+3)}, 7, v0
          v_mul_u32_u24 {v(T)}, {XN_S}, {v(T+3)}
          v_lshl_add_u32 {v(T)}, {vG}, 4, {v(T)}
          v_lshrrev_b32 {v(T+1)}, 2, {vN}
          v_lshl_add_u32 {v(T+1)}, {vG}, 3, {v(T+1)}
          v_lshlrev_b32 {v(T+1)}, 7, {v(T+1)}
          v_and_b32 {v(T+3)}, 3, v0
          v_lshl_add_u32 {v(T+1)}, {v(T+3)}, 3, {v(T+1)}
          v_bfe_u32 {v(T+3)}, v0, 3, 2
          v_xor_b32 {v(T+3)}, s3, {v(T+3)}
          v_lshl_add_u32 {v(T+1)}, {v(T+3)}, 5, {v(T+1)}
          v_add_u32 {v(T+1)}, {WQ_L}, {v(T+1)}
          v_lshlrev_b32 {v(T+2)}, 14, {vN}
          v_lshl_add_u32 {v(T+2)}, {vG}, 4, {v(T+2)}
          s_lshl_b32 {sT}, s3, 6
          s_lshl_b32 {sT3}, {sLC}, 8
          s_add_u32 {sT3}, {sT}, {sT3}
          v_mov_b32 {v(O1+1)}, {vTAG}
          v_mov_b32 {v(O1+3)}, {vTAG}
          s_waitcnt vmcnt(0) lgkmcnt(0)""")
    if loc[0]: xl_load(A, v(T+12))
    if wd0 == 1: wdloads()
    for i in range(NO, NO + AK):
        n0 = len(ops); issue(i); del ops[n0:]; kv.pop()
    stamp(8, True)
    A("s_barrier")
    XF = 0; WF = 64
    for ks in range(16):
        A(f"ds_read_b128 {a(XF+4*ks)}, {v(T)} offset:{XN_L + ks*64}")
        A(f"ds_read_b64_tr_b16 {a(WF+4*ks,2)}, {v(T+1)} offset:{ks*4096}")
        A(f"ds_read_b64_tr_b16 {a(WF+4*ks+2,2)}, {v(T+1)} offset:{ks*4096 + 512}")
        if ks % 2 == 1 and ks >= 3:
            A("s_waitcnt lgkmcnt(6)")
            for k2 in range(ks - 3, ks - 1): mfma(v(O0,4), a(WF+4*k2), a(XF+4*k2), v(O0,4) if k2 else 0)
    A("s_waitcnt lgkmcnt(0)")
    for k2 in range(14, 16): mfma(v(O0,4), a(WF+4*k2), a(XF+4*k2), v(O0,4))
    A(f"v_cvt_pk_bf16_f32 {v(O1)}, {v(O0)}, {v(O0+1)}\n v_cvt_pk_bf16_f32 {v(O1+2)}, {v(O0+2)}, {v(O0+3)}")
    if loc[0]:
        A(f"s_waitcnt vmcnt({AK + (8 if wd0 == 1 else 0)})"); xl_eval(v(T+12))
        if stamps: A(f"s_mov_b32 s101, {sLOC}")
    A(f"s_not_b64 exec, {sM8}")
    lstore(f"buffer_store_dwordx4 {v(O1,4)}, {v(T+2)}, {sW}, {sT3} offen", loc[0])
    A("s_mov_b64 exec, -1")
    stamp(2)
    if wd0 != 1:
        A(f"s_mov_b32 {sT2}, s75"); setup0(False); wsetup()
    if wd0 == 2: wdloads()
    for f in (consts1, consts2, tc1, tc2, pgsetup): f()
    A("s_barrier\n s_branch L_J")
    A.label("L_B")
    items = []; consumed = [-1]; extras = {}
    def item(cost, fn, req=None, minstep=0): items.append((cost, req, minstep, fn))
    def extra(step, fn): extras.setdefault(step, []).append(fn)
    def retry_guard(back):
        A(f"s_add_u32 {sCNT}, {sCNT}, 1\n s_cmp_ge_u32 {sCNT}, {cap}\n s_cbranch_scc1 {back}")
        if sleep: A(f"s_sleep {sleep}")

    item(36, setupA); item(44, setup0); item(4, pgsetup); item(20, lambda: tagfin(lambda t: vm(t, False))); item(33, wsetup); item(26, consts1); item(22, consts2); item(28, tc1); item(44, tc2)

    def octet(dst):
        A(f"s_lshr_b32 {dst}, s2, 5\n s_lshl_b32 {dst}, {dst}, 3\n s_and_b32 s0, {sCLS}, 2\n s_lshl_b32 s0, s0, 1\n s_add_u32 {dst}, {dst}, s0\n s_add_u32 {dst}, {dst}, s3")
    def xr():
        A(f"""v_and_b32 {v(T+10)}, 7, v0
              v_lshlrev_b32 {v(T+10)}, 10, {v(T+10)}
              v_bfe_u32 {v(T+11)}, v0, 3, 1
              v_lshl_or_b32 {v(T+10)}, {v(T+11)}, 1, {v(T+10)}
              v_bfe_u32 {v(T+11)}, v0, 5, 1
              v_lshl_or_b32 {v(T+10)}, {v(T+11)}, 2, {v(T+10)}
              v_bfe_u32 {v(T+11)}, v0, 4, 1
              v_lshl_or_b32 {v(T+10)}, {v(T+11)}, 3, {v(T+10)}""")
        octet(sT); A(f"s_lshl_b32 {sT}, {sT}, 4")
        vm(f"buffer_load_ushort {vXR}, {v(T+10)}, {sX}, {sT} offen")
    def gu_op(j, f):
        A(f"s_add_u32 m0, {sW2m}, {(j&1)*8192 + (j>>1)*1024}")
        f(f"buffer_load_dwordx4 {vWb2 if j & 1 else vWb}, {sU if j & 1 else sG}, {sW2o} offen {wnt} lds")
        if j & 1: A(f"s_add_u32 {sW2o}, {sW2o}, {16*3584}")
    def wo_dma(f):
        for j in range(4):
            A(f"s_add_u32 m0, {sWm}, {j*1024}")
            f(f"buffer_load_dwordx4 {vWa2 if j & 1 else vWa}, {sO}, {sWo} offen nt lds")
            A(f"s_add_u32 {sWo}, {sWo}, 8192")
        if pre:
            A(f"""s_lshr_b32 {sT2}, {sWV}, 2
                  s_lshl_b32 {sT2}, {sT2}, 13
                  s_lshl_b32 {sT}, s3, 11
                  s_add_u32 {sT2}, {sT2}, {sT}
                  s_add_u32 {sT2}, {sT2}, {YP}
                  s_cmp_eq_u32 {sROLE}, 3
                  s_cselect_b32 {sT2}, {sT2}, 0x7f000000""")
            f(f"buffer_load_dwordx4 {v(224,4)}, {vVo}, {sW}, {sT2} offen sc1")
            f(f"buffer_load_dwordx4 {v(228,4)}, {vVo}, {sW}, {sT2} offen offset:1024 sc1")
    extra(IWO - 1, xr)
    def wo2(j):
        def f():
            A(f"s_cmp_eq_u32 {sROLE}, 2\n s_cbranch_scc0 L_w2{j}\n s_xor_b32 {sT}, {sWo}, 256\n s_add_u32 {sT}, {sT}, {j*8192}\n s_add_u32 m0, {sWm}, {16384 + j*1024}")
            vm(f"buffer_load_dwordx4 {vWa2 if j & 1 else vWa}, {sO}, {sT} offen nt lds", False)
            A.label(f"L_w2{j}")
        return f
    for j in range(4): extra(IW2 + 7 * j, wo2(j))
    GUF = 128; WDF = 192
    QT = 188; QAD = T + 13
    def qloads(f):
        for k in range(4):
            r = f(f"buffer_load_dwordx4 {v(QT+4*k,4)}, {v(QAD)}, {sW}, {sT3} offen offset:{(k>>1)*256 + (k&1)*16} sc1")
        return r
    def qload():
        A(f"""v_and_b32 {v(QAD)}, 3, v0
              v_lshlrev_b32 {v(QAD)}, 9, {v(QAD)}
              v_and_b32 {v(T+11)}, 4, v0
              v_add_u32 {v(T+11)}, {v(T+11)}, {vG}
              v_lshl_or_b32 {v(QAD)}, {v(T+11)}, 5, {v(QAD)}
              s_lshr_b32 {sT3}, {sWV}, 2
              s_lshl_b32 {sT3}, {sT3}, 11""")
        xl_load(vm, v(QT+16))
        st["q"] = qloads(vm)
    extra(IQ, qload)
    def qprep():
        wait_for(st["q"])
        A.label("L_qchk")
        A(f"""v_max3_u32 {v(T)}, {v(QT+1)}, {v(QT+3)}, {v(QT+5)}
              v_min3_u32 {v(T+1)}, {v(QT+1)}, {v(QT+3)}, {v(QT+5)}
              v_max3_u32 {v(T)}, {v(T)}, {v(QT+7)}, {v(QT+9)}
              v_min3_u32 {v(T+1)}, {v(T+1)}, {v(QT+7)}, {v(QT+9)}
              v_max3_u32 {v(T)}, {v(T)}, {v(QT+11)}, {v(QT+13)}
              v_min3_u32 {v(T+1)}, {v(T+1)}, {v(QT+11)}, {v(QT+13)}
              v_max3_u32 {v(T)}, {v(T)}, {v(QT+15)}, {sTAG}
              v_min3_u32 {v(T+1)}, {v(T+1)}, {v(QT+15)}, {sTAG}
              v_cmp_ne_u32 vcc, {v(T)}, {v(T+1)}
              s_cbranch_vccnz L_qretry""")
        A.label("L_qok")
        if bal: A(f"s_cmp_lg_u32 {sMODE}, 0\n s_cselect_b64 vcc, -1, 0")
        def o():
            A.label("L_qretry"); retry_guard("L_qok"); qloads(A); A("s_waitcnt vmcnt(0)\n s_branch L_qchk")
        ool.append(o)
        xl_eval(v(QT+16))
        stamp(4)
        if stamps and not bal: A(f"s_mov_b32 s100, {sCNT}")
        for c in range(2):
            for r in range(4):
                A(f"v_cndmask_b32 {v(QA+8*c+r)}, {v(QT+8*c+2*r)}, 0, {sM8}\n v_cndmask_b32 {v(QA+8*c+4+r)}, 0, {v(QT+8*c+2*r)}, {sM8}")
    item(32, qprep, minstep=IQ + D + ES + 1)
    def kitem(i):
        def f():
            u = i >> 3; d = DS + 8 * (u & 1) + 4 * ((i >> 2) & 1); o = (i >> 1) & 1; c = i & 1
            if 'm' not in abl: mfma(v(d,4), v(QA+8*c+4*o,4), a(slot(i)), v(d,4) if i & 3 else 0)
            consumed[0] = i
        return f
    def post(u):
        def f():
            d = DS + 8 * (u & 1)
            if 'x' in abl: return
            for r in range(4): A(f"v_cndmask_b32 {v(T+r)}, {v(d+4+r)}, {v(d+r)}, {sMV}")
            A(f"""v_permlane16_swap_b32 {v(T)}, {v(T+1)}
                  v_permlane16_swap_b32 {v(T+2)}, {v(T+3)}
                  v_add_f32_dpp {v(T)}, {v(T+1)}, {v(T)} quad_perm:[1,0,3,2] {DPPM}
                  v_add_f32_dpp {v(T+2)}, {v(T+3)}, {v(T+2)} quad_perm:[1,0,3,2] {DPPM}
                  v_cvt_pk_bf16_f32 {v(T)}, {v(T)}, {v(T+2)}
                  v_and_b32 {v(T+1)}, {sHI}, {v(T)}
                  v_lshlrev_b32 {v(T)}, 16, {v(T)}
                  v_mul_f32 {v(T+1)}, {sSCALE}, {v(T+1)}
                  v_mul_f32 {v(T)}, {sSCALE}, {v(T)}
                  v_cvt_pk_bf16_f32 {v(T)}, {v(T)}, {v(T+1)}
                  v_lshlrev_b32 {v(S+2*u)}, 16, {v(T)}
                  v_and_b32 {v(S+2*u+1)}, {sHI}, {v(T)}""")
            if 8 * u < NO:
                A(f"v_cndmask_b32 {v(S+2*u)}, {v(S+2*u)}, {vNINF}, {sOPT}\n v_cndmask_b32 {v(S+2*u+1)}, {v(S+2*u+1)}, {vNINF}, {sOPT}")
            A(f"""v_max_f32 {m01}, {m01}, {v(S+2*u)}
                  v_max_f32 {m23}, {m23}, {v(S+2*u+1)}""")
        return f
    for i in range(NK):
        item(3, kitem(i), req=i)
        if i >= 8 and (i & 7) == 3: item(22, post((i >> 3) - 1))
    item(26, post(16))
    def allred2(op, x, y):
        for k in (8, 4, 2, 1): A(f"{op}_dpp {x}, {x}, {x} row_ror:{k} {DPPM}\n {op}_dpp {y}, {y}, {y} row_ror:{k} {DPPM}")
    def half2(op, x, y):
        A(f"""v_mov_b32 {v(T)}, {x}
              v_mov_b32 {v(T+1)}, {y}
              v_permlane32_swap_b32 {x}, {v(T)}
              v_permlane32_swap_b32 {y}, {v(T+1)}
              {op} {x}, {x}, {v(T)}
              {op} {y}, {y}, {v(T+1)}""")
    def maxred():
        stamp(5)
        allred2("v_max_f32", m01, m23); half2("v_max_f32", m01, m23)
        A(f"v_mul_f32 {nm01}, {sLOG}, {m01}\n v_mul_f32 {nm23}, {sLOG}, {m23}")
    item(22, maxred)
    done = set()
    def expi(u):
        def f():
            done.add(u)
            A(f"""v_fma_f32 {v(T)}, {v(S+2*u)}, {sLOG}, -{nm01}
                  v_fma_f32 {v(T+1)}, {v(S+2*u+1)}, {sLOG}, -{nm23}
                  v_exp_f32 {v(T)}, {v(T)}
                  v_exp_f32 {v(T+1)}, {v(T+1)}
                  v_add_f32 {l01}, {l01}, {v(T)}
                  v_add_f32 {l23}, {l23}, {v(T+1)}
                  v_cvt_pk_bf16_f32 {v(T+2)}, {v(T)}, {v(T+1)}
                  ds_write_b32 {vPw}, {v(T+2)} offset:{u*256}""")
        return f
    def areg(j):
        k = j - (NK - PB)
        return A0 if k < 0 else (32 + 8 * k if k < 4 else 68 + 8 * (k - 4))
    def rdi(k):
        def f():
            p = vorder[k]; assert (p >> 1) in done
            A(f"ds_read_b128 {v(PP + 4 * (k & 7),4)}, {vPr} offset:{(p >> 1) * 256 + (p & 1) * 16}")
        return f
    def vperm(j):
        def f():
            p = PP + (j & 31)
            if 'x' in abl: return
            if (j & 15) == 0: A("s_waitcnt lgkmcnt(0)")
            for uu in range(2):
                for r in range(4): A(f"v_perm_b32 {v(areg(j)+4*uu+r)}, {v(p)}, {v(p)}, {v(SEL+4*uu+r)}")
        return f
    def vmm(j):
        def f():
            i = NK + j
            if 'm' in abl:
                consumed[0] = i; return
            mfma(v(O0,4), v(areg(j),4), a(slot(i)), v(O0,4) if j else 0)
            mfma(v(O1,4), v(areg(j)+4,4), a(slot(i)), v(O1,4) if j else 0)
            consumed[0] = i
        return f
    def mlpub():
        allred2("v_add_f32", l01, l23); half2("v_add_f32", l01, l23)
        A(f"""v_and_b32 {v(T+2)}, 16, v0
              s_lshl_b32 {sT}, {sWV}, 2
              s_add_u32 {sT}, {sT}, s3
              s_lshl_b32 {sT}, {sT}, 5
              s_add_u32 {sT}, {sT}, {ML}
              v_bfi_b32 {v(220)}, {sHI}, {m01}, {vTAG}
              v_bfi_b32 {v(221)}, {sHI}, {m23}, {vTAG}
              v_bfi_b32 {v(222)}, {sFF}, {vTAG}, {l01}
              v_bfi_b32 {v(223)}, {sFF}, {vTAG}, {l23}
              s_mov_b64 exec, 0x10001""")
        lstore(f"buffer_store_dwordx4 {v(220,4)}, {v(T+2)}, {sW}, {sT} offen", loc[1], vm)
        A("s_mov_b64 exec, -1")
    GM = 188; GA = T + 14
    def mlload():
        A(f"""v_and_b32 {v(GA)}, 16, v0
              v_lshl_or_b32 {v(GA)}, {vN}, 5, {v(GA)}
              s_lshr_b32 {sT3}, {sWV}, 2
              s_lshl_b32 {sT3}, {sT3}, 9
              s_add_u32 {sT3}, {sT3}, {ML}""")
        st["ml"] = vm(f"buffer_load_dwordx4 {v(GM,4)}, {v(GA)}, {sW}, {sT3} offen sc1")
    def mlfac1():
        wait_for(st["ml"])
        A.label("L_mlchk")
        A(f"""v_bitop3_b32 {v(T)}, {v(GM)}, {v(GM+1)}, {vTAG} bitop3:0x7e
              v_bitop3_b32 {v(T+1)}, {v(GM+2)}, {v(GM+3)}, {vTAG} bitop3:0x7e
              v_lshlrev_b32 {v(T)}, 16, {v(T)}
              v_and_or_b32 {v(T)}, {v(T+1)}, {sFF}, {v(T)}
              v_cmp_ne_u32 vcc, 0, {v(T)}
              s_cbranch_vccnz L_mlretry""")
        A.label("L_mlok")
        if bal: A(f"s_cmp_lg_u32 {sMODE}, 0\n s_cselect_b64 vcc, -1, 0")
        def o():
            A.label("L_mlretry"); retry_guard("L_mlok")
            A(f"buffer_load_dwordx4 {v(GM,4)}, {v(GA)}, {sW}, {sT3} offen sc1\n s_waitcnt vmcnt(0)\n s_branch L_mlchk")
        ool.append(o)
        A(f"v_and_b32 {v(GM)}, {sHI}, {v(GM)}\n v_and_b32 {v(GM+1)}, {sHI}, {v(GM+1)}\n v_xor_b32 {v(GM+2)}, {v(GM+2)}, {vTB}\n v_xor_b32 {v(GM+3)}, {v(GM+3)}, {vTB}\n v_mov_b32 {v(GM+4)}, {v(GM)}\n v_mov_b32 {v(GM+5)}, {v(GM+1)}")
        allred2("v_max_f32", v(GM+4), v(GM+5))
        A(f"""v_sub_f32 {v(GM)}, {v(GM)}, {v(GM+4)}
              v_sub_f32 {v(GM+1)}, {v(GM+1)}, {v(GM+5)}
              v_sub_f32 {f01}, {m01}, {v(GM+4)}
              v_sub_f32 {f23}, {m23}, {v(GM+5)}
              v_mul_f32 {v(GM)}, {sLOG}, {v(GM)}
              v_mul_f32 {v(GM+1)}, {sLOG}, {v(GM+1)}
              v_mul_f32 {f01}, {sLOG}, {f01}
              v_mul_f32 {f23}, {sLOG}, {f23}""")
    def mlfac2():
        A(f"""v_exp_f32 {v(GM)}, {v(GM)}
              v_exp_f32 {v(GM+1)}, {v(GM+1)}
              v_exp_f32 {f01}, {f01}
              v_exp_f32 {f23}, {f23}
              v_mul_f32 {v(GM)}, {v(GM)}, {v(GM+2)}
              v_mul_f32 {v(GM+1)}, {v(GM+1)}, {v(GM+3)}""")
        allred2("v_add_f32", v(GM), v(GM+1))
        A(f"""v_rcp_f32 {v(GM)}, {v(GM)}
              v_rcp_f32 {v(GM+1)}, {v(GM+1)}
              v_mul_f32 {f01}, {f01}, {v(GM)}
              v_mul_f32 {f23}, {f23}, {v(GM+1)}""")
    uorder = list(dict.fromkeys(p >> 1 for p in vorder))
    for k in range(3): item(9, expi(uorder[k]))
    for k in range(4): item(1, rdi(k))
    ne = 3
    for j in range(NK):
        t = j & 7
        if j < NK - PB: item(9, vperm(j))
        if PB and NK - PB - 4 <= j < NK - PB: item(9, vperm(NK - PB + 2 * (j - (NK - PB - 4)))); item(9, vperm(NK - PB + 2 * (j - (NK - PB - 4)) + 1))
        item(5, vmm(j), req=NK + j)
        if (j & 15) == (12 if j < 112 or not PB else 4):
            for k in range(4 * (j >> 4) + 4, min(34, 4 * (j >> 4) + 8)): item(1, rdi(k))
        if t in (0, 2, 4, 6) and ne < 17:
            item(9, expi(uorder[ne])); ne += 1
            if ne == 17: item(28, mlpub)
        if NK + j == IML + 2: item(36, mlfac1)
        if NK + j == IML + 4: item(22, mlfac2)
    extra(IML, mlload)
    if warm1:
        def cw():
            A("s_getpc_b64 s[0:1]")
            A.label("L_pc")
            A(f"s_add_u32 s0, s0, L_tail-L_pc\n s_addc_u32 s1, s1, 0\n v_lshlrev_b32 {v(T+10)}, 4, v0")
            vm(f"global_load_dwordx4 {v(228,4)}, {v(T+10)}, s[0:1]")
        extra(IML - 8, cw)

    if roll:
        def rp(k, stubs_):
            def f():
                A(f"s_lshr_b32 {sT}, s2, 3\n s_and_b32 {sT}, {sT}, {roll['mask']}\n s_cmp_lg_u32 {sT}, {(5 * k) & roll['mask']}\n s_cbranch_scc1 L_nr{k}\n s_getpc_b64 s[0:1]")
                A.label(f"L_rp{k}")
                A(f"s_add_u32 s0, s0, {'L_end-L_rp' + str(k) if stubs_ else roll['dist']}\n s_addc_u32 s1, s1, 0")
                vm(f"global_load_dwordx4 {v(228,4)}, {vT16}, s[0:1]", False)
                A.label(f"L_nr{k}")
            return f
        k = 0
        for stp in range(roll["first"], 236, roll["per"]):
            extra(stp, rp(k, False)); k += 1
        for stp in roll.get("st", []):
            extra(stp, rp(k, True)); k += 1
    sMODE = "s21"; sPG = "s22"; PGV = T + 12; PGA = "v243"
    if bal:
        assert not dbg
        one = bal.get("one")
        def ck(k, stp):
            def f():
                c = (5 + 3 * k) % 32
                if one: A(f"s_cmp_lg_u32 s3, {k & 3}\n s_cbranch_scc1 L_np{k}")
                A(f"""s_and_b32 {sT}, s2, 7
                      s_mul_i32 {sT2}, {sT}, {c}
                      s_lshr_b32 {sPG}, s2, 3
                      s_add_u32 {sPG}, {sPG}, {sT2}
                      s_add_u32 {sPG}, {sPG}, {(11 * k) % 32}
                      s_and_b32 s0, {sPG}, 31
                      s_and_b32 {sPG}, {sPG}, {bal.get("ns", 32) - 1}
                      s_lshl_b32 {sPG}, {sPG}, 7
                      s_add_u32 {sPG}, {sPG}, {PG + k * 4096}
                      s_load_dwordx8 s[64:71], s[26:27], {sPG} {bal.get("glc", "glc")}""")
                if k == 2 and "v" in stouch: A("s_load_dword s16, s[32:33], 0 glc")
                if k == 8 and "w" in stouch: A(f"s_load_dword s16, s[48:49], {sWo} glc\n s_load_dword s17, s[18:19], {sCS} glc")
                if k == 9 and "w" in stouch: A(f"s_load_dword s16, s[52:53], {sW2o} glc\n s_load_dword s17, s[56:57], {sW2o} glc\n s_load_dword s20, s[60:61], {sW2o} glc")
                if k == 10 and "x" in stouch: A(f"s_lshl_b32 s16, s2, 8\n s_add_u32 s16, s16, 0x210000\n s_load_dword s16, s[26:27], s16 glc")
                if not one: A(f"s_cmp_lg_u32 s3, {k & 3}\n s_cbranch_scc1 L_np{k}")
                if bal.get("ns", 32) < 32: A(f"s_cmp_ge_u32 s0, {bal['ns']}\n s_cbranch_scc1 L_np{k}")
                A(f"""s_lshl_b32 {sT}, {sT}, 2
                      s_xor_b32 {sPG}, {sPG}, {bal.get("sep", 0) * 128}
                      s_add_u32 {sPG}, {sPG}, {sT}
                      s_atomic_swap {sTAG}, s[26:27], {sPG}""")
                A.label(f"L_np{k}")
            def setmode():
                if bal.get("noA"): A(f"s_min_u32 {sMODE}, {sMODE}, {sCLS}")
                A(f"s_cmp_lg_u32 {sMODE}, 0\n s_cselect_b64 vcc, -1, 0")
                if stamps: A(f"s_add_u32 s100, s100, {sMODE}")
            def g():
                if one: A(f"s_cmp_lg_u32 s3, {k & 3}\n s_cbranch_scc1 L_ng{k}")
                A(f"s_waitcnt lgkmcnt(0)\n s_cmp_eq_u32 {sCLS}, 0\n s_cselect_b32 {sT}, {bal.get('aoff', 0)}, 0")
                for r in range(64, 72): A(f"s_cmp_eq_u32 s{r}, {sTAG}\n s_addc_u32 {sT}, {sT}, 0")
                A(f"s_cmp_lt_i32 {sT}, {bal['th']}\n s_cselect_b32 {sMODE}, 1, 0")
                if "th2" in bal: A(f"s_cmp_lt_i32 {sT}, {bal['th2']}\n s_cselect_b32 {sMODE}, 2, {sMODE}")
                if one:
                    A(f"v_mov_b32 {v(PGV)}, {sMODE}\n ds_write_b32 {PGA}, {v(PGV)}")
                    A.label(f"L_ng{k}")
                else: setmode()
            iw = bal.get("iw")
            def h1():
                A(f"ds_read_b32 {v(PGV)}, {PGA}")
                if iw: A(f"v_mov_b32 {v(T+15)}, 1\n s_mov_b64 exec, 1\n ds_add_rtn_u32 {v(T+15)}, {PGA}, {v(T+15)} offset:4\n s_mov_b64 exec, -1")
            def h2():
                A(f"s_waitcnt lgkmcnt(0)\n v_readfirstlane_b32 {sMODE}, {v(PGV)}\n s_and_b32 {sMODE}, {sMODE}, 3")
                if iw:
                    A(f"v_readfirstlane_b32 {sT}, {v(T+15)}\n s_and_b32 {sT}, {sT}, 3")
                    if iw & 1: A(f"s_cmp_eq_u32 {sT}, 0\n s_cselect_b32 {sMODE}, 1, {sMODE}")
                    if iw & 2: A(f"s_cmp_eq_u32 {sT}, 3\n s_cselect_b32 {sMODE}, 0, {sMODE}")
                setmode()
            return f, g, h1, h2
        k = 0
        for stp in range(bal["first"], bal["last"] + 1, bal["per"]):
            f, g, h1, h2 = ck(k, stp); lg_ = bal.get("lag", 7)
            extra(stp, f); extra(stp + lg_, g)
            if one: extra(stp + lg_ + 2, h1); extra(stp + lg_ + 3, h2)
            k += 1
        assert k <= 32
    qi = [0]
    def run_items(step, bud):
        while qi[0] < len(items):
            cost, req, ms, fn = items[qi[0]]
            if cost > bud or step < ms: break
            if req is not None and (req >= len(kv) or kv[req] > known[0]): break
            fn(); bud -= cost; qi[0] += 1
    run_items(0, 104)
    nsetup = 9
    def tgt(i, d):
        kvs = set(kv)
        j = i - d
        lo = max(j - ES, NO + D)
        for k in range(lo, j):
            if any(o not in kvs for o in range(kv[k] + 1, kv[k + 1])): return kv[k]
        return kv[j]
    stubs = []
    ool.append(lambda: A.lines.extend(stubs))
    def drain(limit):
        q = qi[0]
        while q < len(items):
            cost, req, ms, fn = items[q]
            if req is not None:
                if req >= limit: break
                wait_for(kv[req])
            fn(); q += 1
    for i in range(D0, NS):
        if i == NO + AK:
            assert qi[0] == nsetup and all(k >= NO + AK for k in extras) and AK % 4 == 0
            A.label("L_J")
        if i == NS - NO:
            assert "L_mlok:" in A.lines
            A(f"s_cmp_eq_u32 {sCLS}, 0\n s_cbranch_scc1 L_adrain")
            sv = (list(ops), known[0], consumed[0], list(A.hist), len(A.lines))
            A.label("L_adrain")
            for j in range(GE): gu_op(j, vm)
            drain(i)
            if warmA:
                A("s_getpc_b64 s[0:1]")
                A.label("L_pca")
                A(f"s_sub_u32 s0, s0, L_pca-L_tail\n s_subb_u32 s1, s1, 0\n v_lshlrev_b32 {v(T+10)}, 4, v0")
                A(f"global_load_dwordx4 {v(228,4)}, {v(T+10)}, s[0:1]")
            A("s_nop 7"); A.raw("    s_branch L_tail")
            cut = A.lines[sv[4]:]; del A.lines[sv[4]:]
            ool.append(lambda: A.lines.extend(cut))
            ops[:] = sv[0]; known[0] = sv[1]; consumed[0] = sv[2]; A.hist = sv[3]
        if bal and bal["first"] + bal.get("lag", 7) + 3 < i < bal["off"]:
            A.raw(f"    s_cbranch_vccnz L_s{i}"); A.raw(f"L_b{i}:")
            lo_ = bal.get('lo2', bal['lo']) if i >= IEND else bal['lo']
            if "th2" in bal:
                stubs.append(f"L_s{i}:\n    s_cmp_eq_u32 {sMODE}, 1\n    s_waitcnt vmcnt({after(kv[i - lo_])})\n    s_cbranch_scc1 L_b{i}\n    s_waitcnt vmcnt({after(kv[i - lo_ + 1])})\n    s_branch L_b{i}")
            else: stubs.append(f"L_s{i}:\n    s_waitcnt vmcnt({after(kv[i - lo_])})\n    s_branch L_b{i}")
        wait_for(tgt(i, DEND if i >= IEND else DST if i < IS else D))
        assert consumed[0] >= prevocc(i), (i, consumed[0])
        issue(i)
        for fn in extras.pop(i, []): fn()
        run_items(i, budget)
    assert not extras, extras
    lag = NS - 1 - consumed[0]
    wo_dma(vm); drain(NS)
    A(f"; end lag {lag}")

    A.label("L_tail")
    stamp(6)
    X = 96; DM = 88; BL = 8; PS = 176
    for r in (0, 2): A(f"v_pk_mul_f32 {v(O0+r,2)}, {v(O0+r,2)}, {v(122,2)} op_sel_hi:[1,0]")
    A(f"ds_write_b128 {vT0w}, {v(O0,4)}")
    for r in (0, 2): A(f"v_pk_mul_f32 {v(O1+r,2)}, {v(O1+r,2)}, {v(122,2)} op_sel:[0,1]")
    A(f"ds_write_b128 {vT0w}, {v(O1,4)} offset:1024")
    A("s_waitcnt lgkmcnt(0)\n s_barrier")
    A(f"""ds_read2st64_b64 {v(DM,4)}, {vT0r} offset0:0 offset1:4
          ds_read2st64_b64 {v(DM+4,4)}, {vT0r} offset0:8 offset1:12
          s_waitcnt lgkmcnt(1)
          v_pk_add_f32 {v(DM,2)}, {v(DM,2)}, {v(DM+2,2)}
          s_waitcnt lgkmcnt(0)
          v_pk_add_f32 {v(DM+4,2)}, {v(DM+4,2)}, {v(DM+6,2)}
          v_pk_add_f32 {v(DM,2)}, {v(DM,2)}, {v(DM+4,2)}
          v_bfi_b32 {v(DM)}, {vEM}, {vTAG}, {v(DM)}
""")
    lstore(f"buffer_store_dwordx2 {v(DM,2)}, {vL8}, {sW}, {sOPs} offen", loc[2])
    stamp(1, "t")
    def poll(name, n, loads, body, S, tau, pre_issued=False):
        if pre_issued: A(f"s_branch L_{name}b")
        A.label(f"L_{name}")
        A(f"s_add_u32 {sCNT}, {sCNT}, 1\n s_cmp_lt_u32 {sCNT}, {cap}")
        A.raw(f"    s_cbranch_scc0 L_{name}ok")
        loads(PS)
        A.label(f"L_{name}b")
        body(PS, 0)
        A(f"s_cbranch_vccnz L_{name}")
        A.label(f"L_{name}ok")
    MK = ["s[28:29]", "s[30:31]", "s[32:33]", "s[34:35]"]
    def mpl(name, n, ld, chk, sel, spec, init=None):
        p = PS
        for k in range(n): A(f"s_mov_b64 {MK[k]}, -1")
        if init: init()
        A.label(f"L_{name}")
        for k in range(n): A(f"s_wqm_b64 exec, {MK[k]}\n {ld(p, k)}")
        A("s_mov_b64 exec, -1")
        for k in range(n):
            if k == 0: A("s_waitcnt vmcnt(0)")
            A(chk(p, k))
            A(f"v_cmp_ne_u32_sdwa {MK[k]}, {v(T+k)}, {v(T+15)} src0_sel:{sel} src1_sel:DWORD")
            if k % 2 == 1:
                spec(p, k)
                A(f"s_or_b64 vcc, {MK[k-1]}, {MK[k]}" if k == 1 else f"s_or_b64 vcc, vcc, {MK[k-1]}\n s_or_b64 vcc, vcc, {MK[k]}")
        A(f"s_cbranch_scc0 L_{name}ok\n s_add_u32 {sCNT}, {sCNT}, 1\n s_cmp_lt_u32 {sCNT}, {cap}\n s_cbranch_scc1 L_{name}")
        A.label(f"L_{name}ok")
    def cmp_tag(reg, sel): A(f"v_cmp_ne_u32_sdwa vcc, {reg}, {v(T+15)} src0_sel:{sel} src1_sel:DWORD")
    A(f"v_mov_b32 {v(T+15)}, 0\n ds_write_b32 {vL4}, {v(T+15)} offset:{Z_L}")
    vT2 = "v240"; sM11 = "s30"; sHS = "s31"
    def t2bits(dst):
        A(f"s_and_b32 {sT}, {sTAG}, 1\n s_bfe_u32 {sT3}, {sTAG}, 0x10001\n s_lshl_b32 {sT3}, {sT3}, 16\n s_or_b32 {sT}, {sT}, {sT3}\n v_mov_b32 {dst}, {sT}")
    def l1(p):
        for k in range(4): A(f"buffer_load_dwordx4 {v(p+4*k,4)}, {vVo}, {sW}, {sOPl} offen offset:{k*1024} sc1")
    def tcommon():
        t2bits(vT2)
        A(f"s_mov_b32 {sM11}, 0x10001\n s_and_b32 {sHS}, s2, 7\n s_lshl_b32 {sHS}, {sHS}, 14\n s_add_u32 {sHS}, {sHS}, {HB}")
    A(f"s_cmp_eq_u32 {sCLS}, 0\n s_cbranch_scc1 L_t3")
    l1(PS)
    tcommon()
    A(f"s_waitcnt vmcnt({7 if pre else 5})")
    stamp(3)
    A("s_barrier")
    for ks in range(8):
        for t2 in range(2): A(f"ds_read_b64_tr_b16 {v(WOF+4*ks+2*t2,2)}, {vWOr} offset:{ks*4096 + t2*512}")
        if ks == 5: A("s_waitcnt lgkmcnt(8)")
    A(f"s_xor_b32 {sA}, {sYs}, {2 << 15}")
    A.label("L_t1s")
    def l1(p):
        for k in range(4): A(f"buffer_load_dwordx4 {v(p+4*k,4)}, {vVo}, {sW}, {sOPl} offen offset:{k*1024} sc1")
    def b1(p, n):
        A(f"""s_waitcnt vmcnt({n+2})
              v_xor_b32 {v(p)}, {v(p)}, {vTB}
              v_xor_b32 {v(p+4)}, {v(p+4)}, {vTB}
              v_pk_add_f32 {v(X+2,2)}, {v(p+2,2)}, {v(p+6,2)}
              v_pk_add_f32 {v(X,2)}, {v(p,2)}, {v(p+4,2)}
              v_or_b32 {v(T)}, {v(p)}, {v(p+4)}
              s_waitcnt vmcnt({n})
              v_xor_b32 {v(p+8)}, {v(p+8)}, {vTB}
              v_xor_b32 {v(p+12)}, {v(p+12)}, {vTB}
              v_or3_b32 {v(T)}, {v(T)}, {v(p+8)}, {v(p+12)}""")
        cmp_tag(v(T), "BYTE_0")
        A(f"v_pk_add_f32 {v(X+4,2)}, {v(p+8,2)}, {v(p+12,2)}\n v_pk_add_f32 {v(X+6,2)}, {v(p+10,2)}, {v(p+14,2)}")
    if mpoll[0]:
        mpl("t1", 4, lambda p, k: f"buffer_load_dwordx4 {v(p+4*k,4)}, {vVo}, {sW}, {sOPl} offen offset:{k*1024} sc1",
            lambda p, k: f"v_bitop3_b32 {v(T+k)}, {v(p+4*k)}, {v(p+4*k+2)}, {vTAG} bitop3:0x7e", "BYTE_0",
            lambda p, k: A(f"v_pk_add_f32 {v(X+2*k-2,2)}, {v(p+4*k-4,2)}, {v(p+4*k,2)}\n v_pk_add_f32 {v(X+2*k,2)}, {v(p+4*k-2,2)}, {v(p+4*k+2,2)}"))
    else:
        poll("t1", 4, l1, b1, NS_[0], tau[0], True)
    A(f"""v_pk_add_f32 {v(X,2)}, {v(X,2)}, {v(X+4,2)}
          v_pk_add_f32 {v(X+2,2)}, {v(X+2,2)}, {v(X+6,2)}
          v_cvt_pk_bf16_f32 {v(X)}, {v(X)}, {v(X+1)}
          v_cvt_pk_bf16_f32 {v(X+1)}, {v(X+2)}, {v(X+3)}
          ds_write_b64 {vOw}, {v(X,2)} offset:{O_L}""")
    stamp(2, "t")
    A("s_waitcnt lgkmcnt(0)\n s_barrier")
    for ks in range(4): A(f"ds_read_b128 {v(BL+4*ks,4)}, {vBl} offset:{ks*64}")
    A(f"s_cmp_eq_u32 {sROLE}, 2")
    for ks in range(4):
        if ks in (0, 2): A(f"s_waitcnt lgkmcnt({2-ks})")
        mfma(v(DM+4,4), v(WOF+4*ks,4), v(BL+4*ks,4), v(DM+4,4) if ks else 0)
    for ks in range(4): mfma(v(X+4,4), v(WOF+16+4*ks,4), v(BL+4*ks,4), v(X+4,4) if ks else 0)
    A(f"""v_cvt_pk_bf16_f32 {v(DM+2)}, {v(DM+4)}, {v(DM+5)}
          v_cvt_pk_bf16_f32 {v(DM+3)}, {v(DM+6)}, {v(DM+7)}
          v_bfi_b32 {v(DM+2)}, {sM11}, {vT2}, {v(DM+2)}
          buffer_store_dwordx2 {v(DM+2,2)}, {vYs}, {sW}, {sYs} offen sc1
          s_cbranch_scc0 L_t1one
          v_cvt_pk_bf16_f32 {v(DM+4)}, {v(X+4)}, {v(X+5)}
          v_cvt_pk_bf16_f32 {v(DM+5)}, {v(X+6)}, {v(X+7)}
          v_bfi_b32 {v(DM+4)}, {sM11}, {vT2}, {v(DM+4)}
          buffer_store_dwordx2 {v(DM+4,2)}, {vYs}, {sW}, {sA} offen sc1""")
    stamp(7)
    A("s_branch L_t5s")
    A.label("L_t1one")
    stamp(7)
    Y = X; SA = 108
    vRa, vRb, vRc, vRd, vRe, vRf, vRg, vRh = [v(i) for i in range(240, 248)]
    vK1 = vRg
    def selector():
        A(f"""v_xor_b32 {v(T+2)}, {sM11}, {vT2}
              v_cndmask_b32 {vK1}, {vT2}, {v(T+2)}, {sM8}
              v_and_b32 {v(T+2)}, 1, v0
              v_lshlrev_b32 {v(T+2)}, 4, {v(T+2)}
              v_mov_b32 {v(T+3)}, 0x3f80
              v_lshlrev_b32 {v(T+3)}, {v(T+2)}, {v(T+3)}
              v_bfe_u32 {v(T+1)}, v0, 1, 2""")
        for r in range(4): A(f"v_cmp_eq_u32 vcc, {r}, {v(T+1)}\n v_cndmask_b32 {v(SA+r)}, 0, {v(T+3)}, vcc")
    octet(sT2)
    A(f"""s_lshl_b32 {sA}, {sT2}, 12
          s_add_u32 {sA}, {sA}, {YP}
          s_lshl_b32 {sB}, {sT2}, 8
          s_add_u32 {sB}, {sB}, {sHS}
          s_mov_b32 s32, 0
          s_mov_b32 s33, -1
          v_and_b32 {vRb}, 7, v0
          v_lshlrev_b32 {vRb}, 4, {vRb}
          v_bfe_u32 {v(T)}, v0, 3, 1
          v_lshl_or_b32 {vRb}, {v(T)}, 2, {vRb}
          v_bfe_u32 {v(T)}, v0, 5, 1
          v_lshl_or_b32 {vRb}, {v(T)}, 3, {vRb}
          v_bfe_u32 {v(T)}, v0, 4, 1
          v_lshl_or_b32 {vRb}, {v(T)}, 7, {vRb}
          v_lshlrev_b32 {vXR}, 16, {vXR}""")
    selector()
    def l2(p):
        for k in range(4): A(f"buffer_load_dwordx4 {v(p+4*k,4)}, {vVo}, {sW}, {sA} offen offset:{k*1024} sc1")
    def b2(p, n):
        for k in range(4):
            if k % 2 == 0: A(f"s_waitcnt vmcnt({n + 2 - k})")
            A(f"""v_bitop3_b32 {v(T+k)}, {v(p+4*k)}, {v(p+4*k+2)}, {vT2} bitop3:0x7e
                  v_xor_b32 {v(p+4*k)}, {v(p+4*k)}, {vK1}
                  v_xor_b32 {v(p+4*k+2)}, {v(p+4*k+2)}, {vK1}""")
            if k: mfma(v(Y,4), v(SA,4), v(p+4*k-4,4), v(Y,4) if k > 1 else 0)
        A(f"v_or3_b32 {v(T)}, {v(T)}, {v(T+1)}, {v(T+2)}")
        mfma(v(Y,4), v(SA,4), v(p+12,4), v(Y,4))
        A(f"v_bitop3_b32 {v(T)}, {v(T)}, {v(T+3)}, {sM11} bitop3:0xa8\n v_cmp_ne_u32 vcc, 0, {v(T)}")
    if dlyr == "ack": A("s_waitcnt vmcnt(0)")
    elif dlyr: A(f"s_sleep {dlyr}")
    poll("r", 4, l2, b2, 1, 0)
    stamp(3, "t")
    A(f"""v_cndmask_b32 {v(Y)}, {v(Y)}, {v(Y+2)}, s[32:33]
          v_cndmask_b32 {v(Y+1)}, {v(Y+1)}, {v(Y+3)}, s[32:33]
          v_cndmask_b32 {v(Y+2)}, {v(Y+1)}, {v(Y)}, {sM8}
          v_cndmask_b32 {v(Y)}, {v(Y)}, {v(Y+1)}, {sM8}
          v_add_f32_dpp {v(Y)}, {v(Y+2)}, {v(Y)} row_ror:8 {DPPM}
          v_cvt_pk_bf16_f32 {v(Y)}, {v(Y)}, {v(Y)}
          v_and_b32 {v(Y)}, {sHI}, {v(Y)}
          v_add_f32 {v(Y)}, {v(Y)}, {vXR}
          v_cvt_pk_bf16_f32 {v(Y)}, {v(Y)}, {v(Y)}
          v_bfi_b32 {v(Y)}, {sHI}, {v(Y)}, {vTAG}""")
    lstore(f"buffer_store_dword {v(Y)}, {vRb}, {sW}, {sB} offen", loc[3])
    stamp(4, "t")
    A("s_cmp_lg_u32 s3, 0\n s_cbranch_scc1 L_fin")
    A(f"""s_cmp_lg_u32 {sWV}, 1
          s_cbranch_scc1 L_fin
          v_mov_b32 {v(Y+2)}, {EPOCH}
          s_mov_b64 exec, 1
          buffer_store_dword {vTAG}, {v(Y+2)}, {sW}, 0 offen sc1
          s_mov_b64 exec, -1
          s_branch L_fin""")
    A.label("L_t5s")
    HV = X + 8
    A(f"s_mov_b32 s64, s18\n s_and_b32 s65, s19, 0xffff\n s_mov_b32 s66, {0 if 'O' in abl else 8192}\n s_mov_b32 s67, 0x20000")
    vT2b, vK2 = vRf, vRh
    selector()
    A(f"""s_lshr_b32 {sT2}, {sWV}, 2
          s_mul_i32 {sA}, {sT2}, 7168
          s_mul_i32 {sT}, s3, 1792
          s_add_u32 {sA}, {sA}, {sT}
          s_add_u32 {sA}, {sA}, {PD}
          v_cmp_gt_u32 vcc, 48, {vL}
          v_cndmask_b32 {vRe}, {vNINF}, {vVo}, vcc""")
    def l5(p):
        A(f"""buffer_load_dwordx4 {v(p,4)}, {vVo}, {sW}, {sA} offen sc1
              buffer_load_dwordx4 {v(p+4,4)}, {vRe}, {sW}, {sA} offen offset:1024 sc1""")
    if dly is None: l5(PS)
    A(f"""s_lshl_b32 {sDd}, {sT2}, 4
          s_lshl_b32 {sC}, {sT2}, 8
          s_add_u32 {sC}, {sC}, {sHS}
          v_and_b32 {v(T)}, 16, v0
          v_lshl_or_b32 {vRb}, {vN}, 5, {v(T)}
          s_lshl_b32 {sT}, s3, 9
          v_add_u32 {vRb}, {sT}, {vRb}
          v_lshrrev_b32 {v(T)}, 3, {vL}
          v_and_b32 {v(T+1)}, 7, v0
          v_lshlrev_b32 {vRc}, 10, {v(T)}
          v_lshl_or_b32 {vRc}, {v(T+1)}, 1, {vRc}
          v_lshlrev_b32 {vRd}, 4, {v(T)}
          v_and_b32 {v(T+2)}, 3, v0
          v_lshl_or_b32 {vRd}, {v(T+2)}, 2, {vRd}
          v_and_b32 {v(T+2)}, 4, v0
          v_lshl_or_b32 {vRd}, {v(T+2)}, 5, {vRd}
          v_cndmask_b32 {vT2b}, 0, {vT2}, vcc
          v_cndmask_b32 {vK2}, 0, {vK1}, vcc""")
    A.label("L_t5h")
    A(f"""buffer_load_dword {v(HV)}, {vRd}, {sW}, {sC} offen sc1
          s_waitcnt vmcnt(0)
          v_xor_b32 {v(T)}, {v(HV)}, {vTAG}""")
    cmp_tag(v(T), "WORD_0")
    A(f"s_cbranch_vccz L_t5hok\n s_add_u32 {sCNT}, {sCNT}, 1\n s_cmp_lt_u32 {sCNT}, {cap}\n s_cbranch_scc1 L_t5h")
    A.label("L_t5hok")
    A(f"v_and_b32 {v(HV)}, {sHI}, {v(HV)}")
    if dly: A(f"s_sleep {dly}")
    def b5(p, n):
        A(f"""s_waitcnt vmcnt({n+1})
              v_bitop3_b32 {v(T)}, {v(p)}, {v(p+2)}, {vT2} bitop3:0x7e
              v_xor_b32 {v(p)}, {v(p)}, {vK1}
              v_xor_b32 {v(p+2)}, {v(p+2)}, {vK1}
              s_waitcnt vmcnt({n})
              v_bitop3_b32 {v(T+1)}, {v(p+4)}, {v(p+6)}, {vT2b} bitop3:0x7e""")
        mfma(v(Y,4), v(SA,4), v(p,4), 0)
        A(f"""v_xor_b32 {v(p+4)}, {v(p+4)}, {vK2}
              v_xor_b32 {v(p+6)}, {v(p+6)}, {vK2}
              v_bitop3_b32 {v(T)}, {v(T)}, {v(T+1)}, {sM11} bitop3:0xa8
              v_cmp_ne_u32 vcc, 0, {v(T)}""")
        mfma(v(Y,4), v(SA,4), v(p+4,4), v(Y,4))
    poll("t5", 2, l5, b5, 1, 0)
    stamp(3, "t")
    A(f"""s_mov_b32 exec_hi, 0
          ds_write_b128 {vRb}, {v(Y,4)} offset:{R_L}
          s_mov_b32 exec_hi, -1
          s_waitcnt lgkmcnt(0)
          s_barrier
          s_cmp_lg_u32 s3, 0
          s_cbranch_scc1 L_fin""")
    for k in range(4): A(f"ds_read2st64_b32 {v(Y+2*k,2)}, {vL4} offset0:{R_L//256+2*k} offset1:{R_L//256+2*k+1}")
    A(f"""s_waitcnt lgkmcnt(2)
          v_pk_add_f32 {v(Y,2)}, {v(Y,2)}, {v(Y+2,2)}
          s_waitcnt lgkmcnt(0)
          v_pk_add_f32 {v(Y+4,2)}, {v(Y+4,2)}, {v(Y+6,2)}
          v_pk_add_f32 {v(Y,2)}, {v(Y,2)}, {v(Y+4,2)}
          v_add_f32 {v(Y)}, {v(Y)}, {v(Y+1)}
          v_cvt_pk_bf16_f32 {v(Y)}, {v(Y)}, {v(Y)}
          v_and_b32 {v(Y)}, {sHI}, {v(Y)}
          v_add_f32 {v(Y)}, {v(Y)}, {v(HV)}""")
    if pert:
        import struct
        h_ = hex(struct.unpack("<I", struct.pack("<f", pert[0]))[0])
        if pert[1]: A(f"s_cmp_eq_u32 {sT2}, 5\n s_cselect_b64 exec, 1, 0")
        A(f"v_add_f32 {v(Y)}, {h_}, {v(Y)}\n s_mov_b64 exec, -1")
    A(f"""v_cvt_pk_bf16_f32 {v(Y)}, {v(Y)}, {v(Y)}
          buffer_store_short {v(Y)}, {vRc}, {sOut}, {sDd} offen {osc}""")
    stamp(4, "t")
    A("s_branch L_fin")
    A.label("L_t3")
    A(f"s_cmp_eq_u32 {sROLE}, 0\n s_cbranch_scc1 L_fin")
    for j in range(GE, GM_):
        A(f"s_waitcnt vmcnt({GW - 1})"); gu_op(j, A)
    tcommon()
    vWd = "v248"
    A(f"""v_lshrrev_b32 {v(T)}, 2, {vN}
          v_lshl_add_u32 {v(T)}, {vG}, 3, {v(T)}
          v_lshlrev_b32 {vWd}, 8, {v(T)}
          v_lshlrev_b32 {v(T)}, 6, {v(T)}
          v_bfe_u32 {v(T+1)}, v0, 1, 1
          v_lshl_add_u32 {v(T)}, {v(T+1)}, 13, {v(T)}
          v_bfe_u32 {v(T+2)}, v0, 4, 1
          v_lshl_or_b32 {v(T+1)}, {v(T+2)}, 1, {v(T+1)}
          v_xor_b32 {v(T+1)}, s3, {v(T+1)}
          v_lshl_add_u32 {v(T)}, {v(T+1)}, 4, {v(T)}
          v_and_b32 {v(T+1)}, 1, v0
          v_lshl_add_u32 {v(T)}, {v(T+1)}, 3, {v(T)}
          v_add_u32 {v(T+9)}, {GU_L}, {v(T)}""")
    A(f"""v_and_b32 {v(T+1)}, 1, v0
          v_lshl_or_b32 {vWd}, {v(T+1)}, 4, {vWd}
          v_bfe_u32 {v(T+1)}, v0, 2, 3
          v_bfe_u32 {v(T+2)}, v0, 1, 1
          v_xor_b32 {v(T+1)}, {v(T+1)}, {v(T+2)}
          v_lshl_or_b32 {vWd}, {v(T+1)}, 5, {vWd}
          s_lshl_b32 {sWm}, s3, 13
          s_add_u32 {sWm}, {sWm}, {WD_L}""")
    def wdfrags():
        for k in range(8):
            A(f"v_xor_b32 {v(T)}, {(4*(k>>2) + 2*(k&1))*32}, {vWd}\n v_add_u32 {v(T)}, {sWm}, {v(T)}")
            for t2 in range(2): A(f"ds_read_b64_tr_b16 {a(WDF+4*k+2*t2,2)}, {v(T)} offset:{t2*1024 + ((k>>1)&1)*8}")
            if k in (3, 7): A("s_waitcnt lgkmcnt(4)")
    PK = 96; HF = 8; DG = 144; CS = 116; SS = 120; SR = 72; sSEL = "s28"; sONE = "s29"
    A(f"""v_and_b32 {v(T)}, 7, v0
          v_bfe_u32 {v(T+1)}, v0, 3, 1
          v_mul_u32_u24 {vRc}, {XN_S}, {v(T)}
          v_and_b32 {v(T+2)}, 56, v0
          v_add_u32 {vRb}, {vRc}, {v(T+2)}
          s_lshl_b32 {sT}, s3, 8
          v_add_u32 {vRb}, {sT}, {vRb}
          v_lshl_add_u32 {vRc}, {vG}, 4, {vRc}
          v_mul_u32_u24 {vRe}, 80, {v(T)}
          v_lshl_add_u32 {vRd}, {vG}, 2, {vRe}
          s_lshl_b32 {sT}, s3, 4
          v_add_u32 {vRd}, {sT}, {vRd}
          v_lshlrev_b32 {vRf}, 6, {v(T)}
          v_lshl_or_b32 {v(T+3)}, {vG}, 4, {vRf}
          v_lshl_or_b32 {vRf}, {v(T+1)}, 2, {vRf}
          v_bfe_u32 {v(T+2)}, v0, 4, 1
          v_lshl_or_b32 {vRf}, {v(T+2)}, 3, {vRf}
          v_bfe_u32 {v(T+2)}, v0, 5, 1
          v_lshl_or_b32 {vRf}, {v(T+2)}, 1, {vRf}
          s_lshl_b32 {sT}, s3, 4
          v_add_u32 {vRf}, {sT}, {vRf}
          v_lshl_add_u32 {vRh}, {v(T+1)}, 2, {vG}
          v_mul_u32_u24 {vRh}, 7168, {vRh}
          v_lshl_add_u32 {vRh}, {v(T)}, 4, {vRh}
          s_mul_i32 {sB}, s3, {16*7168}
          s_lshl_b32 {sT}, {sGI}, 7
          s_add_u32 {sB}, {sB}, {sT}
          s_add_u32 {sB}, {sB}, {PD}
          s_add_u32 {sDd}, {sB}, {8*7168}
          v_add_u32 {v(T+3)}, {A_L}, {v(T+3)}
          v_mov_b32 {v(T+4)}, {Z_L}
          v_cndmask_b32 {vB3}, {v(T+3)}, {v(T+4)}, {sM8}
          v_cndmask_b32 {vBh}, {v(T+4)}, {v(T+3)}, {sM8}
          s_lshl_b32 {sA}, s3, 12
          s_add_u32 {sA}, {sA}, {sHS}
          s_mov_b32 {sSEL}, 0x07060302
          s_mov_b32 {sONE}, 0x3f803f80
          s_mov_b32 {sC}, 0""")
    for i in range(8): A(f"v_mov_b32 {v(PK+i)}, {sONE}")
    A("s_branch L_t3lok")
    A.label("L_t3s")
    if dlyb: A(f"s_sleep {dlyb}")
    def l3(p):
        for k in range(4): A(f"buffer_load_dwordx4 {v(p+4*k,4)}, {vNINF if 'H' in abl and k >= 2 else vVo}, {sW}, {sA} offen offset:{k*1024} sc1")
    def pk(p, k): A(f"v_perm_b32 {v(PK+2*k)}, {v(p+4*k+1)}, {v(p+4*k)}, {sSEL}\n v_perm_b32 {v(PK+2*k+1)}, {v(p+4*k+3)}, {v(p+4*k+2)}, {sSEL}")
    def b3(p, n):
        A(f"s_waitcnt vmcnt({n+2})\n v_bitop3_b32 {v(T)}, {v(p)}, {v(p+4)}, {vTAG} bitop3:0x7e")
        pk(p, 0); pk(p, 1)
        A(f"s_waitcnt vmcnt({n})\n v_bitop3_b32 {v(T+1)}, {v(p+8)}, {v(p+12)}, {vTAG} bitop3:0x7e\n v_or_b32 {v(T)}, {v(T)}, {v(T) if 'H' in abl else v(T+1)}")
        cmp_tag(v(T), "WORD_0")
        pk(p, 2); pk(p, 3)
    poll("t3l", 4, l3, b3, NS_[2], tau[2])
    stamp(3, "t")
    for k in range(4): A(f"ds_write_b64 {vRb}, {v(PK+2*k,2)} offset:{H_L + k*64}")
    for i in range(8):
        A(f"v_dot2_f32_bf16 {v(SS)}, {v(PK+i)}, {sONE}, {v(SS) if i else 0}\n v_dot2_f32_bf16 {v(SS+1)}, {v(PK+i)}, {v(PK+i)}, {v(SS+1) if i else 0}")
    A(f"""s_nop 2
          v_permlane16_swap_b32 {v(SS)}, {v(SS+1)}
          v_add_f32 {v(SS)}, {v(SS)}, {v(SS+1)}
          v_add_f32_dpp {v(SS)}, {v(SS)}, {v(SS)} row_ror:8 {DPPM}
          ds_write_b32 {vRd}, {v(SS)} offset:{ST_L}
          s_waitcnt lgkmcnt(0)
          s_barrier""")
    stamp(4, "t")
    for ks in range(2): A(f"ds_read_b128 {v(HF+4*ks,4)}, {vRc} offset:{H_L + ks*64}")
    for k in range(4): A(f"ds_read_b128 {v(SR+4*k,4)}, {vRe} offset:{ST_L + k*16}")
    for ks in range(2, 10): A(f"ds_read_b128 {v(HF+4*ks,4)}, {vRc} offset:{H_L + ks*64}")
    z = v(T); z2 = v(T+1); mean = v(T+2); mb = v(T+3); rinv = v(T+4)
    sc = f"""v_pk_add_f32 {v(SR,2)}, {v(SR,2)}, {v(SR+2,2)}
          v_pk_add_f32 {v(SR+4,2)}, {v(SR+4,2)}, {v(SR+6,2)}
          v_pk_add_f32 {v(SR+8,2)}, {v(SR+8,2)}, {v(SR+10,2)}
          v_pk_add_f32 {v(SR+12,2)}, {v(SR+12,2)}, {v(SR+14,2)}
          v_pk_add_f32 {v(SR,2)}, {v(SR,2)}, {v(SR+4,2)}
          v_pk_add_f32 {v(SR+8,2)}, {v(SR+8,2)}, {v(SR+12,2)}
          v_pk_add_f32 {v(SR,2)}, {v(SR,2)}, {v(SR+8,2)}
          v_mul_f32 {mean}, 0x3b000000, {v(SR)}
          v_mul_f32 {z}, 0x3b000000, {v(SR+1)}
          v_fma_f32 {z}, -{mean}, {mean}, {z}
          v_max_f32 {z}, 0, {z}
          v_cvt_pk_bf16_f32 {rinv}, {mean}, {z}
          v_lshlrev_b32 {mb}, 16, {rinv}
          v_and_b32 {rinv}, {sHI}, {rinv}
          v_add_f32 {rinv}, 0x3727c5ac, {rinv}
          v_cvt_pk_bf16_f32 {rinv}, {rinv}, {rinv}
          v_lshlrev_b32 {rinv}, 16, {rinv}
          v_sqrt_f32 {rinv}, {rinv}
          v_cvt_pk_bf16_f32 {rinv}, {rinv}, {rinv}
          v_lshlrev_b32 {rinv}, 16, {rinv}
          v_rcp_f32 {rinv}, {rinv}
          v_mul_f32 {mb}, {mb}, {rinv}
          v_mul_f32 {v(T+5)}, {mb}, {v(CS)}
          v_mul_f32 {v(T+6)}, {mb}, {v(CS+1)}""".split("\n")
    if tdiag: A("s_waitcnt lgkmcnt(0)")
    order = [0, 1, "s", "s", "s", "s"] + list(range(2, 10))
    si = 0
    for ks in range(16):
        upto = {0: 1, 2: 5, 6: 9, 10: 12, 13: 15}
        if ks in upto: A(f"s_waitcnt lgkmcnt({len(order) - 1 - order.index(upto[ks])})")
        mfma(v(DG,4), a(GUF+4*ks), v(HF+4*ks,4), v(DG,4) if ks else 0)
        if ks < 6:
            A(f"ds_read_b128 {v(HF+4*(ks+10),4)}, {vRc} offset:{H_L + (ks+10)*64}"); order.append(ks + 10)
        if ks >= 2:
            for _ in range(1 if ks < 6 else 2):
                if si < len(sc): A(sc[si]); si += 1
    while si < len(sc): A(sc[si]); si += 1
    g_, u_ = v(T+7), v(T+8)
    A(f"""v_mov_b32 {z2}, 0xc0135761
          v_permlane32_swap_b32 {v(DG)}, {v(DG+1)}
          v_permlane32_swap_b32 {v(DG+2)}, {v(DG+3)}
          v_cndmask_b32 {v(DG)}, {v(DG)}, {v(DG+2)}, {sM8}
          v_cndmask_b32 {v(DG+1)}, {v(DG+1)}, {v(DG+3)}, {sM8}
          v_fma_f32 {g_}, {v(DG)}, {rinv}, -{v(T+5)}
          v_fma_f32 {u_}, {v(DG+1)}, {rinv}, -{v(T+6)}
          v_cvt_pk_bf16_f32 {u_}, {g_}, {u_}
          v_lshlrev_b32 {g_}, 16, {u_}
          v_mul_f32 {z}, {g_}, {g_}
          v_fmac_f32 {z2}, 0xbdd2d3e8, {z}
          v_mul_f32 {z}, {z2}, {g_}
          v_exp_f32 {z}, {z}
          v_and_b32 {u_}, {sHI}, {u_}
          v_add_f32 {z}, 1.0, {z}
          v_rcp_f32 {z}, {z}
          s_cmp_eq_u32 {sC}, 0
          v_mul_f32 {z}, {z}, {g_}
          v_cvt_pk_bf16_f32 {z}, {z}, {z}
          v_lshlrev_b32 {z}, 16, {z}
          v_mul_f32 {z}, {z}, {u_}
          v_cvt_pk_bf16_f32 {z}, {z}, {z}
          ds_write_b16 {vRf}, {z} offset:{A_L}
          s_cselect_b32 s38, 0, {WS_END}
          s_waitcnt lgkmcnt(0)
          s_barrier
          ds_read_b128 {v(BL,4)}, {vB3}
          ds_read_b128 {v(BL+4,4)}, {vBh}""")
    stamp(5, "t")
    A("s_waitcnt lgkmcnt(0)")
    DP = 148
    for i in range(4):
        mfma(v(DP+4*i,4), a(WDF+8*i), v(BL,4), 0)
        mfma(v(DP+4*i,4), a(WDF+8*i+4), v(BL+4,4), v(DP+4*i,4))
    for p_ in range(2):
        for q_ in range(4): A(f"v_cvt_pk_bf16_f32 {v(164+4*p_+q_)}, {v(DP+8*p_+2*q_)}, {v(DP+8*p_+2*q_+1)}")
        for q_ in (0, 2): A(f"v_bfi_b32 {v(164+4*p_+q_)}, {sM11}, {vT2}, {v(164+4*p_+q_)}")
        A(f"buffer_store_dwordx4 {v(164+4*p_,4)}, {vRh}, {sW}, {(sB, sDd)[p_]} offen sc1")
    stamp(8, "t")
    A(f"""s_cbranch_scc0 L_fin
          s_mov_b32 {sC}, 1
          s_mov_b32 s38, {WS_END}""")
    for j in range(GM_, 16):
        A(f"s_waitcnt vmcnt({GW - 1})"); gu_op(j, A)
    wdloads(GW)
    A("s_waitcnt vmcnt(8)")
    stamp(3)
    A("s_barrier")
    for k in range(16):
        for t2 in range(2): A(f"ds_read_b64_tr_b16 {a(GUF+4*k+2*t2,2)}, {v(T+9)} offset:{(k>>2)*16384 + (k&3)*2048 + t2*256}")
        if k % 4 == 3: A("s_waitcnt lgkmcnt(4)")
    A("s_waitcnt lgkmcnt(0)")
    for k in range(16): mfma(v(DG,4), a(GUF+4*k), v(PK,4), v(DG,4) if k else 0)
    A("s_waitcnt vmcnt(0)")
    wdfrags()
    A(f"""v_permlane32_swap_b32 {v(DG)}, {v(DG+1)}
          v_permlane32_swap_b32 {v(DG+2)}, {v(DG+3)}
          v_cndmask_b32 {v(CS)}, {v(DG)}, {v(DG+2)}, {sM8}
          v_cndmask_b32 {v(CS+1)}, {v(DG+1)}, {v(DG+3)}, {sM8}""")
    stamp(8)
    A("s_branch L_t3s")
    A.label("L_fin")
    if padto:
        if padwg is not None: A(f"s_cmp_lg_u32 s2, {padwg}\n s_cbranch_scc1 L_end")
        A.label("L_pad")
        A(f"s_memrealtime s[82:83]\n s_waitcnt lgkmcnt(0)\n s_sub_u32 s82, s82, s80\n s_cmp_lt_u32 s82, {padto}\n s_cbranch_scc1 L_pad")
    if stamps:
        A("s_waitcnt vmcnt(0)")
        stamp(9)
        A("s_getreg_b32 s0, hwreg(HW_REG_XCC_ID)\n s_waitcnt lgkmcnt(0)\n v_mov_b32 v8, 0")
        for k in range(10): A(f"v_writelane_b32 v8, s{80+2*k}, {k}")
        A(f"v_writelane_b32 v8, s0, 10\n v_writelane_b32 v8, {sCNT}, 11\n v_writelane_b32 v8, {sROLE}, 12\n v_writelane_b32 v8, s100, 13\n v_writelane_b32 v8, s101, 14\n s_getreg_b32 s0, hwreg(HW_REG_HW_ID)\n v_writelane_b32 v8, s0, 15")
        if dbg:
            A(f"s_not_b32 s0, s80\n v_writelane_b32 v8, s0, 10\n s_mov_b64 exec, 0xffff\n buffer_atomic_umax v8, {vL4}, {sDbg}, 0 offen sc1\n s_endpgm")
        A(f"s_lshl_b32 s0, s2, 2\n s_add_u32 s0, s0, s3\n s_lshl_b32 s0, s0, 8\n s_add_u32 s0, s0, 0x10000000\n s_add_u32 s26, s26, s0\n s_addc_u32 s27, s27, 0")
        A(f"v_lshlrev_b32 v9, 2, {vL}\n global_store_dword v9, v8, s[26:27]")
    A.label("L_end")
    A("s_endpgm")
    for o in ool: o()
    if warm0 or warm1: A.raw(".rept 3000\n s_endpgm\n.endr")
    elif roll: A.raw(".rept 520\n s_endpgm\n.endr")
    A.raw('.section .rodata,"a"\n.p2align 6')
    A.raw(f".amdhsa_kernel {NAME}_kernel")
    A.raw("""  .amdhsa_next_free_vgpr 512
  .amdhsa_next_free_sgpr 102
  .amdhsa_accum_offset 256
  .amdhsa_group_segment_fixed_size 0
  .amdhsa_kernarg_size 96
  .amdhsa_user_sgpr_count 2
  .amdhsa_user_sgpr_kernarg_segment_ptr 1
  .amdhsa_system_sgpr_workgroup_id_x 1
  .amdhsa_float_denorm_mode_32 3
.end_amdhsa_kernel""")
    return A.text()

if __name__ == "__main__":
    if len(sys.argv) > 1:
        cfgs = json.loads(sys.argv[1])
        for k, c in cfgs.items(): open(f"k_{k}.s", "w").write(gen(**c))
        print(" ".join(f"work/k_{k}.s" for k in cfgs))
    else:
        open(f"cdna_kernels/{NAME}.s", "w").write(gen())
```

```python
import sys, json
sys.path.insert(0, "work")
from asmlib import Asm
NAME = "sequential_preLN__gqa_block_cached__geglu_ffn__decode"

Q_OFF = 0x0
EPOCH = 0x40000
CLR = 0x100000
YP = CLR
OP = CLR + 0x80000
ML = CLR + 0x100000
HB = CLR + 0x40000
PD = CLR + 0x10C000
WS_END = PD + 64 * 7168
XL = 0x50000
PG = 0x60000
XN_L = 0; XN_S = 1056
P_L = 8448
WO_L = P_L + 4 * 4608
GU_L = WO_L + 16384
WD_L = GU_L + 65536
WQ_L = GU_L
LDS_SZ = WD_L + 32768
T0_L = 0; O_L = P_L; Z_L = P_L + 4096; R_L = 0
H_L = WO_L; ST_L = P_L + 8192; A_L = P_L + 8192 + 768

def mask(f):
    v = 0
    for l in range(64):
        if f(l): v |= 1 << l
    return v

def gen(D=6, D0=8, IQ=52, budget=44, stamps=False, wnt="", IML=214, cap=200000, kvflag="nt",
        sleep=0, IEND=256, DEND=9, IWO=100, sdiag=False, warm0=False, warm1=False, abl="", kpat="p8", dbg=False, tdiag=False, bal="def",
        touch=False, osc="", vflag=None, ES=0, WOS=4, perm=True, VS=2, V0=1, rot=0, pre=False, NS_=(1, 1, 1, 1), tau=(0, 0, 0, 0), gate=0, adum=True, EA=1, kpair=0, vpair=0, GW=5, GE=4, rsh=0, mp=(12, 13, 14, 16), padto=0, padwg=None, ldsx=0, mpoll=(0, 0, 0, 0), otouch=None, loc=(1, 1, 1, 1), XJ=1, stouch="", PB=8, pert=None, IS=0, DST=8, dly=None, dlyr="ack", dlyb=None, early=False, AK=0, warmA=True, half=True, roll=dict(mask=15, dist=1536, first=33, per=28, st=[35, 150]), roll0=15, wd0=0, wds=4, IW2=176, GM_=9, offpre=True):
    A = Asm()
    if bal == "def": bal = None if dbg else dict(lo=5, first=46, per=16, last=241, th=4, off=272, lag=8, one=1, aoff=-3, sep=16, lo2=7)
    hdr = [l for l in open("cdna_kernels/" + NAME + ".s.ref").read().split("\n") if l.startswith(";") and "@launch" not in l]
    for l in hdr: A.raw(l)
    A.raw(f"; @launch grid=(256,1,1) block=(256,1,1) lds={LDS_SZ + ldsx}")
    for l in """
; One persistent launch, 256 workgroups x 4 waves (one workgroup per CU, all co-resident).
;   ids: x = wg&7 = kv head, b = wg>>5, split = (wg>>3)&3; the 4 workgroups of a (b, kv head) share its 8192 keys.
;   class A (one per group) first computes LN(x) @ wq for 64 columns and takes 26 of the 128 key rows, the others 34.
;   K phase: 8-key x 128-byte loads straight into an AGPR ring, QK^T by MFMA, scores rounded like the reference.
;   V phase: exact per-wave max, P in LDS, PV by MFMA with a diagonal A operand; (max, sum) exchanged per group.
;   tail: o partials -> o @ wo (per head, 64 columns) -> sum over heads + x (one copy of h per id&7 set) -> class A:
;         LN folded into gate/up, gelu*up, @ w_down partials -> final sum + h.  Every hand-off carries a tag (previous
;         tag in d_ws + 1) that the reader strips again; plain stores only when all readers reported the same XCC id.
;   loads in flight per wave are 6, or 5 while the workgroup is ahead of most of its sampled peers.""".strip().split("\n"): A.raw(l)
    A.raw('.amdgcn_target "amdgcn-amd-amdhsa--gfx950"')
    A.raw(".text"); A.raw(f".globl {NAME}_kernel"); A.raw(".p2align 8"); A.raw(f".type {NAME}_kernel,@function")
    A.label(f"{NAME}_kernel")
    NK = 136; NS = 2 * NK; NO = 32
    if dbg: stamps = True
    sK, sV, sW, sX, sQ, sO, sG, sU, sD, sOut, sDbg = [f"s[{b}:{b+3}]" for b in range(28, 72, 4)]
    sKV = "s72"; sROLE = "s73"; sCNT = "s74"; sLOG = "s75"; sMV = "s[76:77]"; sM8 = "s[78:79]"
    sSCALE = "s4"; sHI = "s5"; sTAG = "s6"; sT = "s7"; sT2 = "s8"; sT3 = "s9"; sGI = "s10"; sHEAD = "s11"; sCS = "s12"
    sOPs, sOPl, sOPl2, sYs, sA, sB, sC, sDd = [f"s{i}" for i in range(13, 21)]
    sYs = "s23"
    sOPT = "s[24:25]"; sINC = "s20"; sXV = "s95" if not stamps else "s93"; sLOC = "s96" if not stamps else "s83"; sLC = "s1"; sCLS = "s100" if not stamps else "s99"; sE = "s101" if not stamps else "s97"; sE0 = "s98" if not stamps else "s95"; sWV = "s99" if not stamps else "s81"
    sWo, sWm, sW2o, sW2m = "s44", "s45", "s46", "s47"
    vL = "v1"; vKa = "v2"; vKb = "v3"; vVo = "v4"; vPw = "v5"; vPr = "v6"
    SEL = 8; QA = 16; S = 32; vNINF = "v252"; DS = 68; PP = 156; A0 = 100; A1 = 104; O0 = 108; O1 = 112
    m01, m23, l01, l23, nm01, nm23, f01, f23 = [f"v{i}" for i in range(116, 124)]
    vXR = "v124"; T = 125
    vN = "v141"; vG = "v142"
    BIG = 156; WOF = 144
    vT0w, vT0r, vL4, vL8, vOw, vBl, vBh, vYs = [f"v{i}" for i in range(232, 240)]
    vTAG = "v7"; vWOr = "v143"; sFF = "s15"
    vWa, vWb, vWc = "v240", "v224", "v253"; vWa2, vWb2, vWc2 = "v244", "v225", "v254"; vB3 = "v249"; vT16 = "v255"; vTB, vEM = "v250", "v251"
    v = lambda i, n=1: f"v{i}" if n == 1 else f"v[{i}:{i+n-1}]"
    a = lambda i, n=4: f"a[{i}:{i+n-1}]"
    def stamp(k, diag=False):
        if diag == "t":
            if not tdiag: return
        elif tdiag and k in (1, 2, 3, 4, 5, 8): return
        elif sdiag and k in (5, 6, 7, 8) and not diag: return
        elif diag and not sdiag: return
        if stamps: A(f"s_memrealtime s[{80+2*k}:{81+2*k}]")
    def smov64(dst, val):
        lo = int(dst[2:dst.index(":")])
        A(f"s_mov_b32 s{lo}, 0x{val & 0xffffffff:x}\n s_mov_b32 s{lo+1}, 0x{val >> 32:x}")
    ops = []; known = [-1]
    def vm(text, mandatory=True):
        A(text); ops.append(mandatory); return len(ops) - 1
    def after(idx, r1=False): return sum(1 for m in ops[idx+1:] if m is True or (r1 and m == 'r1'))
    def wait_for(idx):
        if idx <= known[0]: return
        n = after(idx); assert n <= 63
        A(f"s_waitcnt vmcnt({n})"); known[0] = idx
    ool = []
    def mfma(d, x, y, c): A(f"v_mfma_f32_16x16x32_bf16 {d}, {x}, {y}, {c}")
    DPPM = "row_mask:0xf bank_mask:0xf"

    A("s_cmp_ge_u32 s2, 256\n s_cbranch_scc1 L_end")
    A("s_load_dwordx8 s[4:11], s[0:1], 0\n s_load_dwordx8 s[12:19], s[0:1], 32\n s_load_dwordx8 s[20:27], s[0:1], 64")
    if stamps:
        for k in range(1, 11): A(f"s_mov_b32 s{80+2*k}, 0")
        A("s_mov_b32 s101, 0")
    stamp(0)
    if stamps: A("s_waitcnt lgkmcnt(0)")
    if padto: A("s_memrealtime s[80:81]")
    A(f"""v_lshrrev_b32 {v(T)}, 6, v0
          v_and_b32 {vL}, 63, v0
          v_readfirstlane_b32 s3, {v(T)}
          v_lshrrev_b32 {vG}, 4, {vL}
          v_and_b32 {v(T+3)}, 14, v0
          v_lshlrev_b32 {vKa}, 7, {v(T+3)}
          v_lshl_or_b32 {vKa}, {vG}, 4, {vKa}
          v_and_b32 {v(T+4)}, 1, v0
          v_lshl_or_b32 {vKa}, {v(T+4)}, 6, {vKa}
          {"v_lshlrev_b32 " + vKa + ", 4, " + vL if kpat == "c" else ""}
          v_xor_b32 {vKb}, 64, {vKa}
          s_mov_b32 s31, 0x20000
          s_and_b32 {sWV}, s2, 7
          s_lshl_b32 {sWV}, {sWV}, 2
          s_bfe_u32 s75, s2, 0x20003
          s_or_b32 {sWV}, {sWV}, s75
          s_and_b32 s74, s2, 0xe0
          s_or_b32 {sWV}, {sWV}, s74
          s_lshr_b32 s74, s2, 5
          s_add_u32 s74, s75, s74
          s_and_b32 {sCLS}, s74, 3
          s_add_u32 s74, s74, 3
          s_and_b32 s74, s74, 3
          s_mov_b32 {sE0}, s74
          s_lshl_b32 {sE}, s74, {mp[2]}
          s_and_b32 s73, s3, 1
          s_lshl_b32 s73, s73, {mp[0]}
          s_lshr_b32 s74, s3, 1
          s_lshl_b32 s74, s74, {mp[1]}
          s_add_u32 s73, s73, s74
          s_lshr_b32 s75, {sWV}, 2
          s_lshl_b32 s75, s75, 21
          s_sub_u32 s30, 0x200000, s73
          s_add_u32 s73, s73, s75
          s_waitcnt lgkmcnt(0)
          s_add_u32 s28, s6, s73
          s_addc_u32 s29, s7, 0
          s_and_b32 s29, s29, 0xffff""")
    stamp(5, True)
    kv = []; st = {}; uid = [0]
    def lstore(text, on, f=A):
        if not on: return f(text + " sc1")
        uid[0] += 1; u = uid[0]
        A(f"s_cmp_eq_u32 {sLOC}, 0\n s_cbranch_scc1 L_ls{u}")
        r = f(text)
        A.label(f"L_le{u}")
        def o():
            A.label(f"L_ls{u}"); A(text + " sc1"); A(f"s_branch L_le{u}")
        ool.append(o)
        return r
    def xl_pub(f):
        uid[0] += 1; u = uid[0]
        A(f"""s_getreg_b32 {sXV}, hwreg(HW_REG_XCC_ID, 0, 4)
              s_lshl_b32 {sXV}, {sXV}, 28
              s_xor_b32 {sXV}, {sXV}, {sTAG}
              s_cmp_lg_u32 s3, 1
              s_cbranch_scc1 L_xp{u}
              s_and_b32 {sT}, s2, 7
              s_lshl_b32 {sT}, {sT}, 7
              s_lshr_b32 s0, s2, 3
              s_lshl_b32 s0, s0, 2
              s_add_u32 {sT}, {sT}, s0
              s_add_u32 {sT}, {sT}, {XL}
              v_mov_b32 {v(T+10)}, {sXV}
              v_mov_b32 {v(T+11)}, 0
              s_mov_b64 exec, 1""")
        f(f"buffer_store_dword {v(T+10)}, {v(T+11)}, {sW}, {sT} offen")
        A("s_mov_b64 exec, -1")
        A.label(f"L_xp{u}")
    def xl_load(f, dst):
        A(f"""v_and_b32 {v(T+10)}, 31, v0
              v_lshlrev_b32 {v(T+10)}, 2, {v(T+10)}
              s_and_b32 {sT2}, s2, 7
              s_lshl_b32 {sT2}, {sT2}, 7
              s_add_u32 {sT2}, {sT2}, {XL}""")
        return f(f"buffer_load_dword {dst}, {v(T+10)}, {sW}, {sT2} offen sc1")
    def xl_eval(src):
        A(f"v_cmp_ne_u32 s[0:1], {sXV}, {src}\n s_cmp_eq_u64 s[0:1], 0\n s_cselect_b32 {sLOC}, 1, 0")
    def tagfin(f):
        A(f"s_waitcnt lgkmcnt(0)\n s_add_u32 {sTAG}, {sTAG}, 1\n v_mov_b32 {vTAG}, {sTAG}")
        xl_pub(f)
    slot = lambda i: (i % 64) * 4 if i < NK else ((i - NK + 8) % 32) * 4
    def prevocc(i):
        for j in range(i - 1, -1, -1):
            if slot(j) == slot(i): return j
        return -1
    rowoff = lambda p: (3 * p if p < 8 else 24 + 4 * (p - 8)) * 16384
    vorder = list(range(8, 34))
    vorder += list(range(8))
    tileof = lambda i: i >> 2 if i < NK else vorder[(i - NK) >> 2]
    isopt = lambda i: tileof(i) < 8
    def issue(i, part=3):
        p = tileof(i)
        dst = a(slot(i))
        if (i & 3) == 0 and part & 1:
            if p >= 8:
                q = p - 8 + 6
                A(f"s_add_u32 {sKV}, {sE}, {((q & 1) << mp[3]) + ((q >> 1) << 17)}")
            elif tuple(mp) == (12, 13, 14, 16): A(f"s_add_u32 {sKV}, {sE}, {3 * p * 16384}")
            else:
                A(f"""s_add_u32 s0, {sE0}, {3 * p}
                      s_and_b32 {sKV}, s0, 3
                      s_lshl_b32 {sKV}, {sKV}, {mp[2]}
                      s_bfe_u32 s1, s0, 0x10002
                      s_lshl_b32 s1, s1, {mp[3]}
                      s_add_u32 {sKV}, {sKV}, s1
                      s_lshr_b32 s1, s0, 3
                      s_lshl_b32 s1, s1, 17
                      s_add_u32 {sKV}, {sKV}, s1""")
        if not part & 2: return
        if i < NK:
            va = vKb if p & 1 else vKa
            kv.append(vm(f"buffer_load_dwordx4 {dst}, {va}, {sK}, {sKV} offen offset:{(i&3)*1024 if kpat == 'c' else ((i>>1)&1)*2048 + (i&1)*128} {kvflag}"))
        else:
            kv.append(vm(f"buffer_load_dwordx4 {dst}, {vVo}, {sV}, {sKV} offen offset:{(i&3)*1024} {kvflag if vflag is None else vflag}"))
    A(f"s_cmp_eq_u32 {sCLS}, 0\n s_cbranch_scc1 L_A")
    for i in range(D0):
        issue(i)
        if i == 1: A(f"s_load_dword {sTAG}, s[26:27], {EPOCH}")
    stamp(6, True)
    if roll0 is not None:
        A(f"s_and_b32 s74, s2, {roll0 << 3}\n s_cmp_lg_u32 s74, 8\n s_cbranch_scc1 L_B\n s_getpc_b64 s[0:1]\n v_lshlrev_b32 {vT16}, 5, v0")
        vm(f"global_load_dword {v(228)}, {vT16}, s[0:1]", False)
    A("s_branch L_B")
    A.label("L_A")
    A(f"s_load_dword {sTAG}, s[26:27], {EPOCH}")
    A(f"""s_mov_b32 s40, s4
          s_and_b32 s41, s5, 0xffff
          s_mov_b32 s42, 8192
          s_mov_b32 s43, 0x20000
          v_lshrrev_b32 {v(T+2)}, 5, v0
          v_and_b32 {v(T+4)}, 31, v0
          v_lshlrev_b32 {v(T+4)}, 4, {v(T+4)}
          v_lshl_or_b32 {v(T)}, {v(T+2)}, 10, {v(T+4)}
          buffer_load_dwordx4 {v(BIG,4)}, {v(T)}, {sX}, 0 offen
          buffer_load_dwordx4 {v(BIG+4,4)}, {v(T)}, {sX}, 0 offen offset:512
          s_mov_b32 s44, s10
          s_and_b32 s45, s11, 0xffff
          s_mov_b32 s46, {0 if 'q' in abl else 512*4096*2}
          s_mov_b32 s47, 0x20000
          v_and_b32 {v(T+3)}, 7, v0
          v_lshrrev_b32 {v(T+1)}, 3, {vL}
          v_and_b32 {v(T+5)}, 2, {v(T+1)}
          v_xor_b32 {v(T+3)}, {v(T+3)}, {v(T+5)}
          v_lshlrev_b32 {v(T+1)}, 13, {v(T+1)}
          v_lshl_or_b32 {v(T+1)}, {v(T+3)}, 4, {v(T+1)}
          v_xor_b32 {v(T+3)}, 64, {v(T+1)}
          s_and_b32 s74, s2, 7
          s_lshl_b32 s74, s74, 3
          s_lshr_b32 s75, s2, 5
          s_add_u32 {sLC}, s74, s75
          {"s_xor_b32 " + sLC + ", " + sLC + ", 4" if perm else ""}
          s_lshl_b32 s74, {sLC}, 7
          s_lshl_b32 s75, s3, 20
          s_add_u32 s74, s74, s75
          s_lshl_b32 s75, s3, 14
          s_add_u32 m0, s75, {WQ_L}""")
    for j in range(16):
        A(f"buffer_load_dwordx4 {v(T+3) if j & 1 else v(T+1)}, {sQ}, s74 offen nt lds")
        if j < 15: A(f"s_add_u32 s74, s74, {8*8192}\n s_add_u32 m0, m0, 1024")
        if j == XJ:
            A(f"s_mov_b32 s36, s26\n s_and_b32 s37, s27, 0xffff\n s_mov_b32 s38, {WS_END}\n s_mov_b32 s39, 0x20000")
            tagfin(A)
    stamp(7, True)
    def setupA():
        A(f"v_lshlrev_b32 {vVo}, 4, {vL}\n v_and_b32 {vN}, 15, v0")
        A("s_add_u32 s32, s8, s73\n s_addc_u32 s33, s9, 0\n s_and_b32 s33, s33, 0xffff\n s_mov_b32 s34, s30")
        for b in (32, 36, 40, 48, 52, 56, 60) + ((68,) if dbg else ()): A(f"s_mov_b32 s{b+3}, 0x20000")
        A(f"s_mov_b32 s40, s4\n s_and_b32 s41, s5, 0xffff\n s_mov_b32 s42, 8192")
        A(f"s_mov_b32 s36, s26\n s_and_b32 s37, s27, 0xffff\n s_mov_b32 s38, {WS_END}\n s_mov_b32 {sHI}, 0xffff0000")
        smov64(sM8, mask(lambda l: (l >> 3) & 1))
        A(f"""s_lshr_b32 {sT2}, s2, 5
              s_cmp_lt_u32 {sT2}, 7
              s_cselect_b32 {sROLE}, 1, 0
              s_cmp_eq_u32 {sCLS}, 3
              s_cselect_b32 {sROLE}, 3, {sROLE}
              s_cmp_eq_u32 {sCLS}, 2
              s_cselect_b32 {sROLE}, 2, {sROLE}
              s_cmp_eq_u32 {sCLS}, 1
              s_cselect_b32 {sROLE}, 3, {sROLE}""")
    sMODE = "s21"; PGA = "v243"
    def pgsetup():
        if bal: A(f"s_mov_b32 {sMODE}, 0\n v_mov_b32 {PGA}, {P_L + 4352}\n v_mov_b32 {v(T)}, 0\n ds_write_b32 {PGA}, {v(T)}\n ds_write_b32 {PGA}, {v(T)} offset:4")
        if bal and bal.get("cnt"):
            A(f"""s_and_b32 s0, s2, 7
                  s_mul_i32 s0, s0, {bal.get("mul", 3)}
                  s_lshr_b32 s22, s2, 3
                  s_add_u32 s22, s22, s0
                  s_and_b32 s22, s22, {256 // bal["cnt"] - 1}
                  s_lshl_b32 s22, s22, 7
                  s_lshl_b32 s0, s3, 4
                  s_add_u32 s22, s22, s0
                  s_add_u32 s22, s22, {PG}
                  s_add_u32 s66, s26, s22
                  s_addc_u32 s67, s27, 0
                  s_load_dwordx4 s[68:71], s[66:67], 0 glc""")
    def setup0(isB=True):
        for (b, p, sz) in ((48, 12, 0 if 'o' in abl else 4096*512*2), (52, 16, 0 if 'g' in abl else 512*1792*2), (56, 18, 0 if 'g' in abl else 512*1792*2), (60, 20, 0 if 'd' in abl else 1792*512*2)) + (((68, 24, 256),) if dbg else ()):
            A(f"s_mov_b32 s{b}, s{p}\n s_and_b32 s{b+1}, s{p+1}, 0xffff\n s_mov_b32 s{b+2}, {sz}")
        A(f"""s_mov_b64 s[18:19], s[22:23]
              s_mov_b32 {sLOG}, 0x3fb8aa3b
              s_mov_b32 {sSCALE}, 0x3db504f3
              s_mov_b32 {sCNT}, 0
              s_mov_b32 {sFF}, 0xff
              s_bfe_u32 {sCS}, s2, 0x30003
              s_and_b32 {sT}, s2, 7
              s_mul_i32 {sGI}, {sT}, 7
              s_add_u32 {sGI}, {sGI}, {sT2}
              s_lshl_b32 {sHEAD}, {sT}, 2
              s_lshr_b32 {sT}, s2, 6
              s_add_u32 {sHEAD}, {sHEAD}, {sT}""")
        smov64(sMV, mask(lambda l: (l & 1) == ((l >> 4) & 1)))
        A(f"""s_cmp_eq_u32 {sROLE}, 1
              s_cselect_b32 s54, s54, 0
              s_cselect_b32 s58, s58, 0
              s_cselect_b32 s62, s62, 0
              s_cmp_eq_u32 {sCLS}, 0
              s_cselect_b32 s24, -1, 0
              s_mov_b32 s25, s24""")
        if touch and isB:
            A(f"s_cmp_lg_u32 s3, 1\n s_cbranch_scc1 L_nt0\n s_mov_b64 exec, 1\n s_mov_b32 {sT}, 0x100000\n s_mov_b32 {sT2}, 0x200000\n s_lshl_b32 {sT3}, {sHEAD}, 17")
            for (srd, so) in ((sV, "0"), (sOut, "0"), (sW, sT), (sW, sT2), (sO, sT3), (sG, "0"), (sU, "0"), (sD, "0")):
                vm(f"buffer_load_dword v231, {vVo}, {srd}, {so} offen nt", False)
            A("s_mov_b64 exec, -1")
            A.label("L_nt0")
        if warm0 and isB:
            A("s_getpc_b64 s[0:1]")
            A(f"s_lshl_b32 {sT}, {sCS}, 2\n s_add_u32 {sT}, {sT}, s3\n s_lshl_b32 {sT}, {sT}, 10\n s_add_u32 s0, s0, {sT}\n s_addc_u32 s1, s1, 0")
            A(f"s_cmp_ge_u32 s2, 128\n s_cbranch_scc1 L_nw0")
            vm(f"global_load_dwordx4 {v(228,4)}, {vVo}, s[0:1]", False)
            A.label("L_nw0")
    def wsetup():
        A(f"""v_lshrrev_b32 {vWa}, 3, {vL}
              v_and_b32 {v(T+1)}, 2, {vWa}
              v_lshlrev_b32 {vWa}, 10, {vWa}
              v_and_b32 {v(T)}, 7, v0
              v_xor_b32 {v(T)}, {v(T)}, {v(T+1)}
              v_lshl_or_b32 {vWa}, {v(T)}, 4, {vWa}
              v_xor_b32 {vWa2}, 64, {vWa}
              v_lshrrev_b32 {v(T)}, 2, {vL}
              v_mul_u32_u24 {vWb}, 3584, {v(T)}
              v_and_b32 {v(T+1)}, 3, v0
              v_and_b32 {v(T)}, 2, {vG}
              v_xor_b32 {v(T+1)}, {v(T+1)}, {v(T)}
              v_lshl_add_u32 {vWb}, {v(T+1)}, 4, {vWb}
              v_xor_b32 {vWb2}, 16, {vWb}
              v_lshlrev_b32 {vWc}, 10, {vG}
              v_lshlrev_b32 {v(T)}, 1, {vG}
              v_xor_b32 {v(T)}, {v(T)}, {vN}
              v_lshl_or_b32 {vWc}, {v(T)}, 4, {vWc}
              v_xor_b32 {vWc2}, 128, {vWc}
              s_mul_i32 {sW2o}, s3, {128*3584}
              s_lshl_b32 {sT2}, {sGI}, 6
              s_add_u32 {sW2o}, {sW2o}, {sT2}
              s_lshl_b32 {sW2m}, s3, 14
              s_add_u32 {sW2m}, {sW2m}, {GU_L}
              s_lshl_b32 {sWo}, {sHEAD}, 17
              s_lshl_b32 {sT2}, {sCS}, 7
              s_add_u32 {sWo}, {sWo}, {sT2}
              s_lshl_b32 {sT2}, s3, 15
              s_add_u32 {sWo}, {sWo}, {sT2}
              s_lshl_b32 {sWm}, s3, 12
              s_add_u32 {sWm}, {sWm}, {WO_L}""")
    def consts1():
        A(f"""v_and_b32 {v(T)}, 1, v0
              v_cmp_eq_u32 vcc, 1, {v(T)}
              v_mov_b32 {v(T+1)}, 0x0c0c0100
              v_mov_b32 {v(T+2)}, 0x01000c0c
              v_cndmask_b32 {v(T+1)}, {v(T+1)}, {v(T+2)}, vcc
              v_mov_b32 {v(T+2)}, 0x0c0c0302
              v_mov_b32 {v(T+3)}, 0x03020c0c
              v_cndmask_b32 {v(T+2)}, {v(T+2)}, {v(T+3)}, vcc
              v_bfe_u32 {v(T)}, v0, 1, 1
              v_bfe_u32 {v(T+3)}, v0, 3, 1
              v_lshl_or_b32 {v(T)}, {v(T+3)}, 1, {v(T)}
              v_mov_b32 {v(T+3)}, 0x0c0c0c0c""")
        for r in range(4):
            A(f"""v_cmp_eq_u32 vcc, {r}, {v(T)}
                  v_cndmask_b32 {v(SEL+r)}, {v(T+3)}, {v(T+1)}, vcc
                  v_cndmask_b32 {v(SEL+4+r)}, {v(T+3)}, {v(T+2)}, vcc""")
    def consts2():
        A(f"s_mul_i32 {sT}, s3, 4608\n s_add_u32 {sT}, {sT}, {P_L}\n v_mov_b32 {vNINF}, 0xff800000")
        A(f"""v_bfe_u32 {v(T)}, v0, 4, 1
              v_lshlrev_b32 {vPw}, 7, {v(T)}
              v_and_b32 {v(T)}, 7, v0
              v_lshl_or_b32 {vPw}, {v(T)}, 4, {vPw}
              v_bfe_u32 {v(T)}, v0, 5, 1
              v_lshl_or_b32 {vPw}, {v(T)}, 3, {vPw}
              v_bfe_u32 {v(T)}, v0, 3, 1
              v_lshl_or_b32 {vPw}, {v(T)}, 2, {vPw}
              v_add_u32 {vPw}, {sT}, {vPw}
              v_and_b32 {v(T)}, 4, v0
              v_lshlrev_b32 {vPr}, 5, {v(T)}
              v_lshl_or_b32 {vPr}, {vG}, 5, {vPr}
              v_add_u32 {vPr}, {sT}, {vPr}
              v_mov_b32 {m01}, 0xff800000
              v_mov_b32 {m23}, 0xff800000
              v_mov_b32 {l01}, 0
              v_mov_b32 {l23}, 0""")
    def tc1():
        A(f"""s_lshl_b32 {sT}, s3, 11
              s_add_u32 {sT}, {sT}, {T0_L}
              v_bfe_u32 {v(T)}, v0, 4, 1
              v_lshlrev_b32 {vT0w}, 9, {v(T)}
              v_lshl_or_b32 {vT0w}, {vN}, 5, {vT0w}
              v_bfe_u32 {v(T)}, v0, 5, 1
              v_lshl_or_b32 {vT0w}, {v(T)}, 4, {vT0w}
              v_add_u32 {vT0w}, {sT}, {vT0w}
              v_lshlrev_b32 {vT0r}, 3, v0
              v_lshlrev_b32 {vL4}, 2, {vL}
              v_lshlrev_b32 {vL8}, 3, {vL}
              v_lshlrev_b32 {vT16}, 4, v0
              s_and_b32 {sT}, {sWV}, 28
              s_add_u32 {sT}, {sT}, s3
              s_lshl_b32 {sOPs}, {sT}, 14
              s_lshr_b32 {sT}, {sWV}, 6
              s_lshl_b32 {sT}, {sT}, 12
              s_add_u32 {sOPs}, {sOPs}, {sT}
              s_and_b32 {sT}, {sWV}, 3
              s_lshl_b32 {sT}, {sT}, 10
              s_add_u32 {sOPs}, {sOPs}, {sT}
              s_and_b32 {sT}, {sWV}, 32
              s_lshl_b32 {sT}, {sT}, 4
              s_add_u32 {sOPs}, {sOPs}, {sT}
              s_add_u32 {sOPs}, {sOPs}, {OP}
              s_lshl_b32 {sOPl}, {sHEAD}, 14
              s_lshl_b32 {sT}, s3, 12
              s_add_u32 {sOPl}, {sOPl}, {sT}
              s_add_u32 {sOPl}, {sOPl}, {OP}""")
    def tc2():
        A(f"""v_lshrrev_b32 {v(T)}, 5, v0
              v_and_b32 {v(T+1)}, 31, v0
              v_mul_u32_u24 {vOw}, 288, {v(T)}
              v_lshl_add_u32 {vOw}, {v(T+1)}, 3, {vOw}
              v_and_b32 {v(T)}, 7, v0
              v_mul_u32_u24 {v(T+1)}, 288, {v(T)}
              v_lshl_add_u32 {v(T+1)}, {vG}, 4, {v(T+1)}
              v_add_u32 {vBl}, {O_L}, {v(T+1)}
              v_lshlrev_b32 {vYs}, 4, {v(T)}
              v_bfe_u32 {v(T+1)}, v0, 4, 1
              v_lshl_or_b32 {vYs}, {v(T+1)}, 3, {vYs}
              v_and_b32 {v(T+1)}, 32, v0
              v_lshl_or_b32 {vYs}, {v(T+1)}, 7, {vYs}
              v_cndmask_b32 {vYs}, {vYs}, {vNINF}, {sM8}
              s_lshl_b32 {sYs}, {sCS}, 15
              s_lshl_b32 {sT}, {sHEAD}, 7
              s_add_u32 {sYs}, {sYs}, {sT}
              s_lshl_b32 {sT}, s3, 13
              s_add_u32 {sYs}, {sYs}, {sT}
              s_add_u32 {sYs}, {sYs}, {YP}
              v_lshrrev_b32 {v(T)}, 2, {vN}
              v_lshl_add_u32 {v(T)}, {vG}, 3, {v(T)}
              v_and_b32 {v(T+1)}, 3, v0
              v_lshlrev_b32 {vWOr}, 7, {v(T)}
              v_lshl_or_b32 {vWOr}, {v(T+1)}, 3, {vWOr}
              v_bfe_u32 {v(T+1)}, v0, 3, 2
              v_xor_b32 {v(T+1)}, s3, {v(T+1)}
              v_lshl_or_b32 {vWOr}, {v(T+1)}, 5, {vWOr}
              v_add_u32 {vWOr}, {WO_L}, {vWOr}
              v_and_b32 {vTB}, {sFF}, {vTAG}
              v_and_b32 {vEM}, 1, v0
              v_add_u32 {vEM}, {sFF}, {vEM}
              v_and_b32 {vEM}, {sFF}, {vEM}
""")
    def wdloads(thr=None, k0=0, k1=8):
        if k0 >= k1: return
        A(f"""s_lshl_b32 {sT2}, {sGI}, 15
              s_lshl_b32 {sT}, s3, 8
              s_add_u32 {sT2}, {sT2}, {sT}
              s_add_u32 {sT2}, {sT2}, {k0 * 4096}
              s_lshl_b32 {sT}, s3, 13
              s_add_u32 m0, {sT}, {WD_L + k0 * 1024}""")
        for k in range(k0, k1):
            if thr: A(f"s_waitcnt vmcnt({thr - 1})")
            A(f"buffer_load_dwordx4 {vWc2 if k & 2 else vWc}, {sD}, {sT2} offen nt lds")
            if k < k1 - 1: A(f"s_add_u32 {sT2}, {sT2}, 4096\n s_add_u32 m0, m0, 1024")
    setupA(); A(f"s_mov_b32 s75, {sT2}")
    A(f"v_mul_u32_u24 {v(T+2)}, {XN_S}, {v(T+2)}\n v_add_u32 {v(T+2)}, {v(T+2)}, {v(T+4)}")
    F = BIG + 8; G = F + 16
    def rowsum32(r, t):
        for k in (8, 4, 2, 1): A(f"v_add_f32_dpp {r}, {r}, {r} row_ror:{k} {DPPM}")
        A(f"v_mov_b32 {t}, {r}\n v_permlane16_swap_b32 {r}, {t}\n v_add_f32 {r}, {r}, {t}")
    def ln_scalars(mean, var, mb, rinv):
        A(f"""v_cvt_pk_bf16_f32 {rinv}, {mean}, {var}
              v_lshlrev_b32 {mb}, 16, {rinv}
              v_and_b32 {rinv}, {sHI}, {rinv}
              v_add_f32 {rinv}, 0x3727c5ac, {rinv}
              v_cvt_pk_bf16_f32 {rinv}, {rinv}, {rinv}
              v_lshlrev_b32 {rinv}, 16, {rinv}
              v_sqrt_f32 {rinv}, {rinv}
              v_cvt_pk_bf16_f32 {rinv}, {rinv}, {rinv}
              v_lshlrev_b32 {rinv}, 16, {rinv}
              v_rcp_f32 {rinv}, {rinv}""")
    A("s_waitcnt vmcnt(16)")
    stamp(1)
    for i in range(8): A(f"v_lshlrev_b32 {v(F+2*i)}, 16, {v(BIG+i)}\n v_and_b32 {v(F+2*i+1)}, {sHI}, {v(BIG+i)}")
    for i in range(4): A(f"v_pk_add_f32 {v(G+2*i,2)}, {v(F+2*i,2)}, {v(F+8+2*i,2)}")
    for i in range(2): A(f"v_pk_add_f32 {v(G+2*i,2)}, {v(G+2*i,2)}, {v(G+4+2*i,2)}")
    A(f"v_pk_add_f32 {v(G,2)}, {v(G,2)}, {v(G+2,2)}\n v_add_f32 {v(T+5)}, {v(G)}, {v(G+1)}")
    rowsum32(v(T+5), v(T+6))
    A(f"v_mul_f32 {v(T+5)}, 0x3b000000, {v(T+5)}")
    for i in range(16): A(f"v_sub_f32 {v(G+i)}, {v(F+i)}, {v(T+5)}")
    A(f"v_pk_mul_f32 {v(T+7,2)}, {v(G,2)}, {v(G,2)}")
    for i in range(1, 8): A(f"v_pk_fma_f32 {v(T+7,2)}, {v(G+2*i,2)}, {v(G+2*i,2)}, {v(T+7,2)}")
    A(f"v_add_f32 {v(T+7)}, {v(T+7)}, {v(T+8)}")
    rowsum32(v(T+7), v(T+6))
    A(f"v_mul_f32 {v(T+7)}, 0x3b000000, {v(T+7)}")
    ln_scalars(v(T+5), v(T+7), v(T+8), v(T+9))
    for i in range(16): A(f"v_sub_f32 {v(F+i)}, {v(F+i)}, {v(T+8)}")
    for i in range(8): A(f"v_cvt_pk_bf16_f32 {v(BIG+i)}, {v(F+2*i)}, {v(F+2*i+1)}")
    for i in range(8): A(f"v_lshlrev_b32 {v(F+2*i)}, 16, {v(BIG+i)}\n v_and_b32 {v(F+2*i+1)}, {sHI}, {v(BIG+i)}")
    for i in range(16): A(f"v_mul_f32 {v(F+i)}, {v(F+i)}, {v(T+9)}")
    for i in range(8): A(f"v_cvt_pk_bf16_f32 {v(BIG+i)}, {v(F+2*i)}, {v(F+2*i+1)}")
    A(f"ds_write_b128 {v(T+2)}, {v(BIG,4)} offset:{XN_L}\n ds_write_b128 {v(T+2)}, {v(BIG+4,4)} offset:{XN_L+512}")
    if wd0 == 1: setup0(False); wsetup()
    A(f"""v_and_b32 {v(T+3)}, 7, v0
          v_mul_u32_u24 {v(T)}, {XN_S}, {v(T+3)}
          v_lshl_add_u32 {v(T)}, {vG}, 4, {v(T)}
          v_lshrrev_b32 {v(T+1)}, 2, {vN}
          v_lshl_add_u32 {v(T+1)}, {vG}, 3, {v(T+1)}
          v_lshlrev_b32 {v(T+1)}, 7, {v(T+1)}
          v_and_b32 {v(T+3)}, 3, v0
          v_lshl_add_u32 {v(T+1)}, {v(T+3)}, 3, {v(T+1)}
          v_bfe_u32 {v(T+3)}, v0, 3, 2
          v_xor_b32 {v(T+3)}, s3, {v(T+3)}
          v_lshl_add_u32 {v(T+1)}, {v(T+3)}, 5, {v(T+1)}
          v_add_u32 {v(T+1)}, {WQ_L}, {v(T+1)}
          v_lshlrev_b32 {v(T+2)}, 14, {vN}
          v_lshl_add_u32 {v(T+2)}, {vG}, 4, {v(T+2)}
          s_lshl_b32 {sT}, s3, 6
          s_lshl_b32 {sT3}, {sLC}, 8
          s_add_u32 {sT3}, {sT}, {sT3}
          v_mov_b32 {v(O1+1)}, {vTAG}
          v_mov_b32 {v(O1+3)}, {vTAG}
          s_waitcnt vmcnt(0) lgkmcnt(0)""")
    if loc[0]: xl_load(A, v(T+12))
    if wd0 == 1: wdloads()
    for i in range(NO, NO + AK):
        n0 = len(ops); issue(i); del ops[n0:]; kv.pop()
    stamp(8, True)
    A("s_barrier")
    XF = 0; WF = 64
    for ks in range(16):
        A(f"ds_read_b128 {a(XF+4*ks)}, {v(T)} offset:{XN_L + ks*64}")
        A(f"ds_read_b64_tr_b16 {a(WF+4*ks,2)}, {v(T+1)} offset:{ks*4096}")
        A(f"ds_read_b64_tr_b16 {a(WF+4*ks+2,2)}, {v(T+1)} offset:{ks*4096 + 512}")
        if ks % 2 == 1 and ks >= 3:
            A("s_waitcnt lgkmcnt(6)")
            for k2 in range(ks - 3, ks - 1): mfma(v(O0,4), a(WF+4*k2), a(XF+4*k2), v(O0,4) if k2 else 0)
    A("s_waitcnt lgkmcnt(0)")
    for k2 in range(14, 16): mfma(v(O0,4), a(WF+4*k2), a(XF+4*k2), v(O0,4))
    A(f"v_cvt_pk_bf16_f32 {v(O1)}, {v(O0)}, {v(O0+1)}\n v_cvt_pk_bf16_f32 {v(O1+2)}, {v(O0+2)}, {v(O0+3)}")
    if loc[0]:
        A(f"s_waitcnt vmcnt({AK + (8 if wd0 == 1 else 0)})"); xl_eval(v(T+12))
        if stamps: A(f"s_mov_b32 s101, {sLOC}")
    A(f"s_not_b64 exec, {sM8}")
    lstore(f"buffer_store_dwordx4 {v(O1,4)}, {v(T+2)}, {sW}, {sT3} offen", loc[0])
    A("s_mov_b64 exec, -1")
    stamp(2)
    if wd0 != 1:
        A(f"s_mov_b32 {sT2}, s75"); setup0(False); wsetup()
    if wd0 == 2: wdloads()
    for f in (consts1, consts2, tc1, tc2, pgsetup): f()
    A("s_barrier\n s_branch L_J")
    A.label("L_B")
    items = []; consumed = [-1]; extras = {}
    def item(cost, fn, req=None, minstep=0): items.append((cost, req, minstep, fn))
    def extra(step, fn): extras.setdefault(step, []).append(fn)
    def retry_guard(back):
        A(f"s_add_u32 {sCNT}, {sCNT}, 1\n s_cmp_ge_u32 {sCNT}, {cap}\n s_cbranch_scc1 {back}")
        if sleep: A(f"s_sleep {sleep}")

    item(36, setupA); item(44, setup0); item(4, pgsetup); item(20, lambda: tagfin(lambda t: vm(t, False))); item(33, wsetup); item(26, consts1); item(22, consts2); item(28, tc1); item(44, tc2)

    def octet(dst):
        A(f"s_lshr_b32 {dst}, s2, 5\n s_lshl_b32 {dst}, {dst}, 3\n s_and_b32 s0, {sCLS}, 2\n s_lshl_b32 s0, s0, 1\n s_add_u32 {dst}, {dst}, s0\n s_add_u32 {dst}, {dst}, s3")
    def xr():
        A(f"""v_and_b32 {v(T+10)}, 7, v0
              v_lshlrev_b32 {v(T+10)}, 10, {v(T+10)}
              v_bfe_u32 {v(T+11)}, v0, 3, 1
              v_lshl_or_b32 {v(T+10)}, {v(T+11)}, 1, {v(T+10)}
              v_bfe_u32 {v(T+11)}, v0, 5, 1
              v_lshl_or_b32 {v(T+10)}, {v(T+11)}, 2, {v(T+10)}
              v_bfe_u32 {v(T+11)}, v0, 4, 1
              v_lshl_or_b32 {v(T+10)}, {v(T+11)}, 3, {v(T+10)}""")
        octet(sT); A(f"s_lshl_b32 {sT}, {sT}, 4")
        vm(f"buffer_load_ushort {vXR}, {v(T+10)}, {sX}, {sT} offen")
    def gu_op(j, f):
        A(f"s_add_u32 m0, {sW2m}, {(j&1)*8192 + (j>>1)*1024}")
        f(f"buffer_load_dwordx4 {vWb2 if j & 1 else vWb}, {sU if j & 1 else sG}, {sW2o} offen {wnt} lds")
        if j & 1: A(f"s_add_u32 {sW2o}, {sW2o}, {16*3584}")
    def wo_dma(f):
        for j in range(4):
            A(f"s_add_u32 m0, {sWm}, {j*1024}")
            f(f"buffer_load_dwordx4 {vWa2 if j & 1 else vWa}, {sO}, {sWo} offen nt lds")
            A(f"s_add_u32 {sWo}, {sWo}, 8192")
        if pre:
            A(f"""s_lshr_b32 {sT2}, {sWV}, 2
                  s_lshl_b32 {sT2}, {sT2}, 13
                  s_lshl_b32 {sT}, s3, 11
                  s_add_u32 {sT2}, {sT2}, {sT}
                  s_add_u32 {sT2}, {sT2}, {YP}
                  s_cmp_eq_u32 {sROLE}, 3
                  s_cselect_b32 {sT2}, {sT2}, 0x7f000000""")
            f(f"buffer_load_dwordx4 {v(224,4)}, {vVo}, {sW}, {sT2} offen sc1")
            f(f"buffer_load_dwordx4 {v(228,4)}, {vVo}, {sW}, {sT2} offen offset:1024 sc1")
    extra(IWO - 1, xr)
    def wo2(j):
        def f():
            A(f"s_cmp_eq_u32 {sROLE}, 2\n s_cbranch_scc0 L_w2{j}\n s_xor_b32 {sT}, {sWo}, 256\n s_add_u32 {sT}, {sT}, {j*8192}\n s_add_u32 m0, {sWm}, {16384 + j*1024}")
            vm(f"buffer_load_dwordx4 {vWa2 if j & 1 else vWa}, {sO}, {sT} offen nt lds", False)
            A.label(f"L_w2{j}")
        return f
    for j in range(4): extra(IW2 + 7 * j, wo2(j))
    GUF = 128; WDF = 192
    QT = 188; QAD = T + 13
    def qloads(f):
        for k in range(4):
            r = f(f"buffer_load_dwordx4 {v(QT+4*k,4)}, {v(QAD)}, {sW}, {sT3} offen offset:{(k>>1)*256 + (k&1)*16} sc1")
        return r
    def qload():
        A(f"""v_and_b32 {v(QAD)}, 3, v0
              v_lshlrev_b32 {v(QAD)}, 9, {v(QAD)}
              v_and_b32 {v(T+11)}, 4, v0
              v_add_u32 {v(T+11)}, {v(T+11)}, {vG}
              v_lshl_or_b32 {v(QAD)}, {v(T+11)}, 5, {v(QAD)}
              s_lshr_b32 {sT3}, {sWV}, 2
              s_lshl_b32 {sT3}, {sT3}, 11""")
        xl_load(vm, v(QT+16))
        st["q"] = qloads(vm)
    extra(IQ, qload)
    def qprep():
        wait_for(st["q"])
        A.label("L_qchk")
        A(f"""v_max3_u32 {v(T)}, {v(QT+1)}, {v(QT+3)}, {v(QT+5)}
              v_min3_u32 {v(T+1)}, {v(QT+1)}, {v(QT+3)}, {v(QT+5)}
              v_max3_u32 {v(T)}, {v(T)}, {v(QT+7)}, {v(QT+9)}
              v_min3_u32 {v(T+1)}, {v(T+1)}, {v(QT+7)}, {v(QT+9)}
              v_max3_u32 {v(T)}, {v(T)}, {v(QT+11)}, {v(QT+13)}
              v_min3_u32 {v(T+1)}, {v(T+1)}, {v(QT+11)}, {v(QT+13)}
              v_max3_u32 {v(T)}, {v(T)}, {v(QT+15)}, {sTAG}
              v_min3_u32 {v(T+1)}, {v(T+1)}, {v(QT+15)}, {sTAG}
              v_cmp_ne_u32 vcc, {v(T)}, {v(T+1)}
              s_cbranch_vccnz L_qretry""")
        A.label("L_qok")
        if bal: A(f"s_cmp_lg_u32 {sMODE}, 0\n s_cselect_b64 vcc, -1, 0")
        def o():
            A.label("L_qretry"); retry_guard("L_qok"); qloads(A); A("s_waitcnt vmcnt(0)\n s_branch L_qchk")
        ool.append(o)
        xl_eval(v(QT+16))
        stamp(4)
        if stamps and not bal: A(f"s_mov_b32 s100, {sCNT}")
        for c in range(2):
            for r in range(4):
                A(f"v_cndmask_b32 {v(QA+8*c+r)}, {v(QT+8*c+2*r)}, 0, {sM8}\n v_cndmask_b32 {v(QA+8*c+4+r)}, 0, {v(QT+8*c+2*r)}, {sM8}")
    item(32, qprep, minstep=IQ + D + ES + 1)
    def kitem(i):
        def f():
            u = i >> 3; d = DS + 8 * (u & 1) + 4 * ((i >> 2) & 1); o = (i >> 1) & 1; c = i & 1
            if 'm' not in abl: mfma(v(d,4), v(QA+8*c+4*o,4), a(slot(i)), v(d,4) if i & 3 else 0)
            consumed[0] = i
        return f
    def post(u):
        def f():
            d = DS + 8 * (u & 1)
            if 'x' in abl: return
            for r in range(4): A(f"v_cndmask_b32 {v(T+r)}, {v(d+4+r)}, {v(d+r)}, {sMV}")
            A(f"""v_permlane16_swap_b32 {v(T)}, {v(T+1)}
                  v_permlane16_swap_b32 {v(T+2)}, {v(T+3)}
                  v_add_f32_dpp {v(T)}, {v(T+1)}, {v(T)} quad_perm:[1,0,3,2] {DPPM}
                  v_add_f32_dpp {v(T+2)}, {v(T+3)}, {v(T+2)} quad_perm:[1,0,3,2] {DPPM}
                  v_cvt_pk_bf16_f32 {v(T)}, {v(T)}, {v(T+2)}
                  v_and_b32 {v(T+1)}, {sHI}, {v(T)}
                  v_lshlrev_b32 {v(T)}, 16, {v(T)}
                  v_mul_f32 {v(T+1)}, {sSCALE}, {v(T+1)}
                  v_mul_f32 {v(T)}, {sSCALE}, {v(T)}
                  v_cvt_pk_bf16_f32 {v(T)}, {v(T)}, {v(T+1)}
                  v_lshlrev_b32 {v(S+2*u)}, 16, {v(T)}
                  v_and_b32 {v(S+2*u+1)}, {sHI}, {v(T)}""")
            if 8 * u < NO:
                A(f"v_cndmask_b32 {v(S+2*u)}, {v(S+2*u)}, {vNINF}, {sOPT}\n v_cndmask_b32 {v(S+2*u+1)}, {v(S+2*u+1)}, {vNINF}, {sOPT}")
            A(f"""v_max_f32 {m01}, {m01}, {v(S+2*u)}
                  v_max_f32 {m23}, {m23}, {v(S+2*u+1)}""")
        return f
    for i in range(NK):
        item(3, kitem(i), req=i)
        if i >= 8 and (i & 7) == 3: item(22, post((i >> 3) - 1))
    item(26, post(16))
    def allred2(op, x, y):
        for k in (8, 4, 2, 1): A(f"{op}_dpp {x}, {x}, {x} row_ror:{k} {DPPM}\n {op}_dpp {y}, {y}, {y} row_ror:{k} {DPPM}")
    def half2(op, x, y):
        A(f"""v_mov_b32 {v(T)}, {x}
              v_mov_b32 {v(T+1)}, {y}
              v_permlane32_swap_b32 {x}, {v(T)}
              v_permlane32_swap_b32 {y}, {v(T+1)}
              {op} {x}, {x}, {v(T)}
              {op} {y}, {y}, {v(T+1)}""")
    def maxred():
        stamp(5)
        allred2("v_max_f32", m01, m23); half2("v_max_f32", m01, m23)
        A(f"v_mul_f32 {nm01}, {sLOG}, {m01}\n v_mul_f32 {nm23}, {sLOG}, {m23}")
    item(22, maxred)
    done = set()
    def expi(u):
        def f():
            done.add(u)
            A(f"""v_fma_f32 {v(T)}, {v(S+2*u)}, {sLOG}, -{nm01}
                  v_fma_f32 {v(T+1)}, {v(S+2*u+1)}, {sLOG}, -{nm23}
                  v_exp_f32 {v(T)}, {v(T)}
                  v_exp_f32 {v(T+1)}, {v(T+1)}
                  v_add_f32 {l01}, {l01}, {v(T)}
                  v_add_f32 {l23}, {l23}, {v(T+1)}
                  v_cvt_pk_bf16_f32 {v(T+2)}, {v(T)}, {v(T+1)}
                  ds_write_b32 {vPw}, {v(T+2)} offset:{u*256}""")
        return f
    def areg(j):
        k = j - (NK - PB)
        return A0 if k < 0 else (32 + 8 * k if k < 4 else 68 + 8 * (k - 4))
    def rdi(k):
        def f():
            p = vorder[k]; assert (p >> 1) in done
            A(f"ds_read_b128 {v(PP + 4 * (k & 7),4)}, {vPr} offset:{(p >> 1) * 256 + (p & 1) * 16}")
        return f
    def vperm(j):
        def f():
            p = PP + (j & 31)
            if 'x' in abl: return
            if (j & 15) == 0: A("s_waitcnt lgkmcnt(0)")
            for uu in range(2):
                for r in range(4): A(f"v_perm_b32 {v(areg(j)+4*uu+r)}, {v(p)}, {v(p)}, {v(SEL+4*uu+r)}")
        return f
    def vmm(j):
        def f():
            i = NK + j
            if 'm' in abl:
                consumed[0] = i; return
            mfma(v(O0,4), v(areg(j),4), a(slot(i)), v(O0,4) if j else 0)
            mfma(v(O1,4), v(areg(j)+4,4), a(slot(i)), v(O1,4) if j else 0)
            consumed[0] = i
        return f
    def mlpub():
        allred2("v_add_f32", l01, l23); half2("v_add_f32", l01, l23)
        A(f"""v_and_b32 {v(T+2)}, 16, v0
              s_lshl_b32 {sT}, {sWV}, 2
              s_add_u32 {sT}, {sT}, s3
              s_lshl_b32 {sT}, {sT}, 5
              s_add_u32 {sT}, {sT}, {ML}
              v_bfi_b32 {v(220)}, {sHI}, {m01}, {vTAG}
              v_bfi_b32 {v(221)}, {sHI}, {m23}, {vTAG}
              v_bfi_b32 {v(222)}, {sFF}, {vTAG}, {l01}
              v_bfi_b32 {v(223)}, {sFF}, {vTAG}, {l23}
              s_mov_b64 exec, 0x10001""")
        lstore(f"buffer_store_dwordx4 {v(220,4)}, {v(T+2)}, {sW}, {sT} offen", loc[1], vm)
        A("s_mov_b64 exec, -1")
    GM = 188; GA = T + 14
    def mlload():
        A(f"""v_and_b32 {v(GA)}, 16, v0
              v_lshl_or_b32 {v(GA)}, {vN}, 5, {v(GA)}
              s_lshr_b32 {sT3}, {sWV}, 2
              s_lshl_b32 {sT3}, {sT3}, 9
              s_add_u32 {sT3}, {sT3}, {ML}""")
        st["ml"] = vm(f"buffer_load_dwordx4 {v(GM,4)}, {v(GA)}, {sW}, {sT3} offen sc1")
    def mlfac1():
        wait_for(st["ml"])
        A.label("L_mlchk")
        A(f"""v_bitop3_b32 {v(T)}, {v(GM)}, {v(GM+1)}, {vTAG} bitop3:0x7e
              v_bitop3_b32 {v(T+1)}, {v(GM+2)}, {v(GM+3)}, {vTAG} bitop3:0x7e
              v_lshlrev_b32 {v(T)}, 16, {v(T)}
              v_and_or_b32 {v(T)}, {v(T+1)}, {sFF}, {v(T)}
              v_cmp_ne_u32 vcc, 0, {v(T)}
              s_cbranch_vccnz L_mlretry""")
        A.label("L_mlok")
        if bal: A(f"s_cmp_lg_u32 {sMODE}, 0\n s_cselect_b64 vcc, -1, 0")
        def o():
            A.label("L_mlretry"); retry_guard("L_mlok")
            A(f"buffer_load_dwordx4 {v(GM,4)}, {v(GA)}, {sW}, {sT3} offen sc1\n s_waitcnt vmcnt(0)\n s_branch L_mlchk")
        ool.append(o)
        A(f"v_and_b32 {v(GM)}, {sHI}, {v(GM)}\n v_and_b32 {v(GM+1)}, {sHI}, {v(GM+1)}\n v_xor_b32 {v(GM+2)}, {v(GM+2)}, {vTB}\n v_xor_b32 {v(GM+3)}, {v(GM+3)}, {vTB}\n v_mov_b32 {v(GM+4)}, {v(GM)}\n v_mov_b32 {v(GM+5)}, {v(GM+1)}")
        allred2("v_max_f32", v(GM+4), v(GM+5))
        A(f"""v_sub_f32 {v(GM)}, {v(GM)}, {v(GM+4)}
              v_sub_f32 {v(GM+1)}, {v(GM+1)}, {v(GM+5)}
              v_sub_f32 {f01}, {m01}, {v(GM+4)}
              v_sub_f32 {f23}, {m23}, {v(GM+5)}
              v_mul_f32 {v(GM)}, {sLOG}, {v(GM)}
              v_mul_f32 {v(GM+1)}, {sLOG}, {v(GM+1)}
              v_mul_f32 {f01}, {sLOG}, {f01}
              v_mul_f32 {f23}, {sLOG}, {f23}""")
    def mlfac2():
        A(f"""v_exp_f32 {v(GM)}, {v(GM)}
              v_exp_f32 {v(GM+1)}, {v(GM+1)}
              v_exp_f32 {f01}, {f01}
              v_exp_f32 {f23}, {f23}
              v_mul_f32 {v(GM)}, {v(GM)}, {v(GM+2)}
              v_mul_f32 {v(GM+1)}, {v(GM+1)}, {v(GM+3)}""")
        allred2("v_add_f32", v(GM), v(GM+1))
        A(f"""v_rcp_f32 {v(GM)}, {v(GM)}
              v_rcp_f32 {v(GM+1)}, {v(GM+1)}
              v_mul_f32 {f01}, {f01}, {v(GM)}
              v_mul_f32 {f23}, {f23}, {v(GM+1)}""")
    uorder = list(dict.fromkeys(p >> 1 for p in vorder))
    for k in range(3): item(9, expi(uorder[k]))
    for k in range(4): item(1, rdi(k))
    ne = 3
    for j in range(NK):
        t = j & 7
        if j < NK - PB: item(9, vperm(j))
        if PB and NK - PB - 4 <= j < NK - PB: item(9, vperm(NK - PB + 2 * (j - (NK - PB - 4)))); item(9, vperm(NK - PB + 2 * (j - (NK - PB - 4)) + 1))
        item(5, vmm(j), req=NK + j)
        if (j & 15) == (12 if j < 112 or not PB else 4):
            for k in range(4 * (j >> 4) + 4, min(34, 4 * (j >> 4) + 8)): item(1, rdi(k))
        if t in (0, 2, 4, 6) and ne < 17:
            item(9, expi(uorder[ne])); ne += 1
            if ne == 17: item(28, mlpub)
        if NK + j == IML + 2: item(36, mlfac1)
        if NK + j == IML + 4: item(22, mlfac2)
    extra(IML, mlload)
    if warm1:
        def cw():
            A("s_getpc_b64 s[0:1]")
            A.label("L_pc")
            A(f"s_add_u32 s0, s0, L_tail-L_pc\n s_addc_u32 s1, s1, 0\n v_lshlrev_b32 {v(T+10)}, 4, v0")
            vm(f"global_load_dwordx4 {v(228,4)}, {v(T+10)}, s[0:1]")
        extra(IML - 8, cw)

    if roll:
        def rp(k, stubs_):
            def f():
                A(f"s_lshr_b32 {sT}, s2, 3\n s_and_b32 {sT}, {sT}, {roll['mask']}\n s_cmp_lg_u32 {sT}, {(5 * k) & roll['mask']}\n s_cbranch_scc1 L_nr{k}\n s_getpc_b64 s[0:1]")
                A.label(f"L_rp{k}")
                A(f"s_add_u32 s0, s0, {'L_end-L_rp' + str(k) if stubs_ else roll['dist']}\n s_addc_u32 s1, s1, 0")
                vm(f"global_load_dwordx4 {v(228,4)}, {vT16}, s[0:1]", False)
                A.label(f"L_nr{k}")
            return f
        k = 0
        for stp in range(roll["first"], 236, roll["per"]):
            extra(stp, rp(k, False)); k += 1
        for stp in roll.get("st", []):
            extra(stp, rp(k, True)); k += 1
    sMODE = "s21"; sPG = "s22"; PGV = T + 12; PGA = "v243"
    if bal:
        assert not dbg
        one = bal.get("one")
        def ck(k, stp):
            def f():
                if bal.get("cnt"):
                    A(f"s_cmp_lg_u32 s3, {k & 3}\n s_cbranch_scc1 L_np{k}\n s_mov_b32 s64, 1\n s_atomic_add s64, s[66:67], {(k >> 2) * 4} glc")
                    A.label(f"L_np{k}")
                    return
                c = (5 + 3 * k) % 32
                if one: A(f"s_cmp_lg_u32 s3, {k & 3}\n s_cbranch_scc1 L_np{k}")
                A(f"""s_and_b32 {sT}, s2, 7
                      s_mul_i32 {sT2}, {sT}, {c}
                      s_lshr_b32 {sPG}, s2, 3
                      s_add_u32 {sPG}, {sPG}, {sT2}
                      s_add_u32 {sPG}, {sPG}, {(11 * k) % 32}
                      s_and_b32 s0, {sPG}, 31
                      s_and_b32 {sPG}, {sPG}, {bal.get("ns", 32) - 1}
                      s_lshl_b32 {sPG}, {sPG}, 7
                      s_add_u32 {sPG}, {sPG}, {PG + k * 4096}
                      s_load_dwordx8 s[64:71], s[26:27], {sPG} {bal.get("glc", "glc")}""")
                if k == 2 and "v" in stouch: A("s_load_dword s16, s[32:33], 0 glc")
                if k == 8 and "w" in stouch: A(f"s_load_dword s16, s[48:49], {sWo} glc\n s_load_dword s17, s[18:19], {sCS} glc")
                if k == 9 and "w" in stouch: A(f"s_load_dword s16, s[52:53], {sW2o} glc\n s_load_dword s17, s[56:57], {sW2o} glc\n s_load_dword s20, s[60:61], {sW2o} glc")
                if k == 10 and "x" in stouch: A(f"s_lshl_b32 s16, s2, 8\n s_add_u32 s16, s16, 0x210000\n s_load_dword s16, s[26:27], s16 glc")
                if not one: A(f"s_cmp_lg_u32 s3, {k & 3}\n s_cbranch_scc1 L_np{k}")
                if bal.get("ns", 32) < 32: A(f"s_cmp_ge_u32 s0, {bal['ns']}\n s_cbranch_scc1 L_np{k}")
                A(f"""s_lshl_b32 {sT}, {sT}, 2
                      s_xor_b32 {sPG}, {sPG}, {bal.get("sep", 0) * 128}
                      s_add_u32 {sPG}, {sPG}, {sT}""")
                if bal.get("vst"):
                    A("s_mov_b64 exec, 1")
                    vm(f"buffer_store_dword {vTAG}, {vL4}, {sW}, {sPG} offen sc1", False)
                    A("s_mov_b64 exec, -1")
                else: A(f"s_atomic_swap {sTAG}, s[26:27], {sPG}")
                A.label(f"L_np{k}")
            def setmode():
                if bal.get("noA"): A(f"s_min_u32 {sMODE}, {sMODE}, {sCLS}")
                A(f"s_cmp_lg_u32 {sMODE}, 0\n s_cselect_b64 vcc, -1, 0")
                if stamps: A(f"s_add_u32 s100, s100, {sMODE}")
            def g():
                if one: A(f"s_cmp_lg_u32 s3, {k & 3}\n s_cbranch_scc1 L_ng{k}")
                A(f"s_waitcnt lgkmcnt(0)\n s_cmp_eq_u32 {sCLS}, 0\n s_cselect_b32 {sT}, {bal.get('aoff', 0)}, 0")
                if bal.get("cnt"): A(f"s_add_u32 {sT}, {sT}, s64\n s_sub_u32 {sT}, {sT}, s{68 + (k >> 2)}")
                else:
                    for r in range(64, 72): A(f"s_cmp_eq_u32 s{r}, {sTAG}\n s_addc_u32 {sT}, {sT}, 0")
                A(f"s_cmp_lt_i32 {sT}, {bal['th']}\n s_cselect_b32 {sMODE}, 1, 0")
                if "th2" in bal: A(f"s_cmp_lt_i32 {sT}, {bal['th2']}\n s_cselect_b32 {sMODE}, 2, {sMODE}")
                if one:
                    A(f"v_mov_b32 {v(PGV)}, {sMODE}\n ds_write_b32 {PGA}, {v(PGV)}")
                    A.label(f"L_ng{k}")
                else: setmode()
            iw = bal.get("iw")
            def h1():
                A(f"ds_read_b32 {v(PGV)}, {PGA}")
                if iw: A(f"v_mov_b32 {v(T+15)}, 1\n s_mov_b64 exec, 1\n ds_add_rtn_u32 {v(T+15)}, {PGA}, {v(T+15)} offset:4\n s_mov_b64 exec, -1")
            def h2():
                A(f"s_waitcnt lgkmcnt(0)\n v_readfirstlane_b32 {sMODE}, {v(PGV)}\n s_and_b32 {sMODE}, {sMODE}, 3")
                if iw:
                    A(f"v_readfirstlane_b32 {sT}, {v(T+15)}\n s_and_b32 {sT}, {sT}, 3")
                    if iw & 1: A(f"s_cmp_eq_u32 {sT}, 0\n s_cselect_b32 {sMODE}, 1, {sMODE}")
                    if iw & 2: A(f"s_cmp_eq_u32 {sT}, 3\n s_cselect_b32 {sMODE}, 0, {sMODE}")
                setmode()
            return f, g, h1, h2
        k = 0
        for stp in range(bal["first"], bal["last"] + 1, bal["per"]):
            f, g, h1, h2 = ck(k, stp); lg_ = bal.get("lag", 7)
            extra(stp, f); extra(stp + lg_, g)
            if one: extra(stp + lg_ + 2, h1); extra(stp + lg_ + 3, h2)
            k += 1
        assert k <= 32
    qi = [0]
    def run_items(step, bud):
        while qi[0] < len(items):
            cost, req, ms, fn = items[qi[0]]
            if cost > bud or step < ms: break
            if req is not None and (req >= len(kv) or kv[req] > known[0]): break
            fn(); bud -= cost; qi[0] += 1
    run_items(0, 104)
    nsetup = 9
    def tgt(i, d):
        kvs = set(kv)
        j = i - d
        lo = max(j - ES, NO + D)
        for k in range(lo, j):
            if any(o not in kvs for o in range(kv[k] + 1, kv[k + 1])): return kv[k]
        return kv[j]
    stubs = []
    ool.append(lambda: A.lines.extend(stubs))
    def drain(limit):
        q = qi[0]
        while q < len(items):
            cost, req, ms, fn = items[q]
            if req is not None:
                if req >= limit: break
                wait_for(kv[req])
            fn(); q += 1
    for i in range(D0, NS):
        if i == NO + AK:
            assert qi[0] == nsetup and all(k >= NO + AK for k in extras) and AK % 4 == 0
            A.label("L_J")
        if i == NS - NO:
            assert "L_mlok:" in A.lines
            A(f"s_cmp_eq_u32 {sCLS}, 0\n s_cbranch_scc1 L_adrain")
            sv = (list(ops), known[0], consumed[0], list(A.hist), len(A.lines))
            A.label("L_adrain")
            for j in range(GE): gu_op(j, vm)
            drain(i)
            if warmA:
                A("s_getpc_b64 s[0:1]")
                A.label("L_pca")
                A(f"s_sub_u32 s0, s0, L_pca-L_tail\n s_subb_u32 s1, s1, 0\n v_lshlrev_b32 {v(T+10)}, 4, v0")
                A(f"global_load_dwordx4 {v(228,4)}, {v(T+10)}, s[0:1]")
            A("s_nop 7"); A.raw("    s_branch L_tail")
            cut = A.lines[sv[4]:]; del A.lines[sv[4]:]
            ool.append(lambda: A.lines.extend(cut))
            ops[:] = sv[0]; known[0] = sv[1]; consumed[0] = sv[2]; A.hist = sv[3]
        if offpre: issue(i, 1)
        if bal and bal["first"] + bal.get("lag", 7) + 3 < i < bal["off"]:
            A.raw(f"    s_cbranch_vccnz L_s{i}"); A.raw(f"L_b{i}:")
            lo_ = bal.get('lo2', bal['lo']) if i >= IEND else bal['lo']
            if "th2" in bal:
                stubs.append(f"L_s{i}:\n    s_cmp_eq_u32 {sMODE}, 1\n    s_waitcnt vmcnt({after(kv[i - lo_])})\n    s_cbranch_scc1 L_b{i}\n    s_waitcnt vmcnt({after(kv[i - lo_ + 1])})\n    s_branch L_b{i}")
            else: stubs.append(f"L_s{i}:\n    s_waitcnt vmcnt({after(kv[i - lo_])})\n    s_branch L_b{i}")
        wait_for(tgt(i, DEND if i >= IEND else DST if i < IS else D))
        assert consumed[0] >= prevocc(i), (i, consumed[0])
        issue(i, 2 if offpre else 3)
        for fn in extras.pop(i, []): fn()
        run_items(i, budget)
    assert not extras, extras
    lag = NS - 1 - consumed[0]
    wo_dma(vm); drain(NS)
    A(f"; end lag {lag}")

    A.label("L_tail")
    stamp(6)
    X = 96; DM = 88; BL = 8; PS = 176
    for r in (0, 2): A(f"v_pk_mul_f32 {v(O0+r,2)}, {v(O0+r,2)}, {v(122,2)} op_sel_hi:[1,0]")
    A(f"ds_write_b128 {vT0w}, {v(O0,4)}")
    for r in (0, 2): A(f"v_pk_mul_f32 {v(O1+r,2)}, {v(O1+r,2)}, {v(122,2)} op_sel:[0,1]")
    A(f"ds_write_b128 {vT0w}, {v(O1,4)} offset:1024")
    A("s_waitcnt lgkmcnt(0)\n s_barrier")
    A(f"""ds_read2st64_b64 {v(DM,4)}, {vT0r} offset0:0 offset1:4
          ds_read2st64_b64 {v(DM+4,4)}, {vT0r} offset0:8 offset1:12
          s_waitcnt lgkmcnt(1)
          v_pk_add_f32 {v(DM,2)}, {v(DM,2)}, {v(DM+2,2)}
          s_waitcnt lgkmcnt(0)
          v_pk_add_f32 {v(DM+4,2)}, {v(DM+4,2)}, {v(DM+6,2)}
          v_pk_add_f32 {v(DM,2)}, {v(DM,2)}, {v(DM+4,2)}
          v_bfi_b32 {v(DM)}, {vEM}, {vTAG}, {v(DM)}
""")
    lstore(f"buffer_store_dwordx2 {v(DM,2)}, {vL8}, {sW}, {sOPs} offen", loc[2])
    stamp(1, "t")
    def poll(name, n, loads, body, S, tau, pre_issued=False):
        if pre_issued: A(f"s_branch L_{name}b")
        A.label(f"L_{name}")
        A(f"s_add_u32 {sCNT}, {sCNT}, 1\n s_cmp_lt_u32 {sCNT}, {cap}")
        A.raw(f"    s_cbranch_scc0 L_{name}ok")
        loads(PS)
        A.label(f"L_{name}b")
        body(PS, 0)
        A(f"s_cbranch_vccnz L_{name}")
        A.label(f"L_{name}ok")
    MK = ["s[28:29]", "s[30:31]", "s[32:33]", "s[34:35]"]
    def mpl(name, n, ld, chk, sel, spec, init=None):
        p = PS
        for k in range(n): A(f"s_mov_b64 {MK[k]}, -1")
        if init: init()
        A.label(f"L_{name}")
        for k in range(n): A(f"s_wqm_b64 exec, {MK[k]}\n {ld(p, k)}")
        A("s_mov_b64 exec, -1")
        for k in range(n):
            if k == 0: A("s_waitcnt vmcnt(0)")
            A(chk(p, k))
            A(f"v_cmp_ne_u32_sdwa {MK[k]}, {v(T+k)}, {v(T+15)} src0_sel:{sel} src1_sel:DWORD")
            if k % 2 == 1:
                spec(p, k)
                A(f"s_or_b64 vcc, {MK[k-1]}, {MK[k]}" if k == 1 else f"s_or_b64 vcc, vcc, {MK[k-1]}\n s_or_b64 vcc, vcc, {MK[k]}")
        A(f"s_cbranch_scc0 L_{name}ok\n s_add_u32 {sCNT}, {sCNT}, 1\n s_cmp_lt_u32 {sCNT}, {cap}\n s_cbranch_scc1 L_{name}")
        A.label(f"L_{name}ok")
    def cmp_tag(reg, sel): A(f"v_cmp_ne_u32_sdwa vcc, {reg}, {v(T+15)} src0_sel:{sel} src1_sel:DWORD")
    A(f"v_mov_b32 {v(T+15)}, 0\n ds_write_b32 {vL4}, {v(T+15)} offset:{Z_L}")
    vT2 = "v240"; sM11 = "s30"; sHS = "s31"
    def t2bits(dst):
        A(f"s_and_b32 {sT}, {sTAG}, 1\n s_bfe_u32 {sT3}, {sTAG}, 0x10001\n s_lshl_b32 {sT3}, {sT3}, 16\n s_or_b32 {sT}, {sT}, {sT3}\n v_mov_b32 {dst}, {sT}")
    def l1(p):
        for k in range(4): A(f"buffer_load_dwordx4 {v(p+4*k,4)}, {vVo}, {sW}, {sOPl} offen offset:{k*1024} sc1")
    def tcommon():
        t2bits(vT2)
        A(f"s_mov_b32 {sM11}, 0x10001\n s_and_b32 {sHS}, s2, 7\n s_lshl_b32 {sHS}, {sHS}, 14\n s_add_u32 {sHS}, {sHS}, {HB}")
    A(f"s_cmp_eq_u32 {sCLS}, 0\n s_cbranch_scc1 L_t3")
    l1(PS)
    tcommon()
    A(f"s_waitcnt vmcnt({7 if pre else 5})")
    stamp(3)
    A("s_barrier")
    for ks in range(8):
        for t2 in range(2): A(f"ds_read_b64_tr_b16 {v(WOF+4*ks+2*t2,2)}, {vWOr} offset:{ks*4096 + t2*512}")
        if ks == 5: A("s_waitcnt lgkmcnt(8)")
    A(f"s_xor_b32 {sA}, {sYs}, {2 << 15}")
    A.label("L_t1s")
    def l1(p):
        for k in range(4): A(f"buffer_load_dwordx4 {v(p+4*k,4)}, {vVo}, {sW}, {sOPl} offen offset:{k*1024} sc1")
    def b1(p, n):
        A(f"""s_waitcnt vmcnt({n+2})
              v_xor_b32 {v(p)}, {v(p)}, {vTB}
              v_xor_b32 {v(p+4)}, {v(p+4)}, {vTB}
              v_pk_add_f32 {v(X+2,2)}, {v(p+2,2)}, {v(p+6,2)}
              v_pk_add_f32 {v(X,2)}, {v(p,2)}, {v(p+4,2)}
              v_or_b32 {v(T)}, {v(p)}, {v(p+4)}
              s_waitcnt vmcnt({n})
              v_xor_b32 {v(p+8)}, {v(p+8)}, {vTB}
              v_xor_b32 {v(p+12)}, {v(p+12)}, {vTB}
              v_or3_b32 {v(T)}, {v(T)}, {v(p+8)}, {v(p+12)}""")
        cmp_tag(v(T), "BYTE_0")
        A(f"v_pk_add_f32 {v(X+4,2)}, {v(p+8,2)}, {v(p+12,2)}\n v_pk_add_f32 {v(X+6,2)}, {v(p+10,2)}, {v(p+14,2)}")
    if mpoll[0]:
        mpl("t1", 4, lambda p, k: f"buffer_load_dwordx4 {v(p+4*k,4)}, {vVo}, {sW}, {sOPl} offen offset:{k*1024} sc1",
            lambda p, k: f"v_bitop3_b32 {v(T+k)}, {v(p+4*k)}, {v(p+4*k+2)}, {vTAG} bitop3:0x7e", "BYTE_0",
            lambda p, k: A(f"v_pk_add_f32 {v(X+2*k-2,2)}, {v(p+4*k-4,2)}, {v(p+4*k,2)}\n v_pk_add_f32 {v(X+2*k,2)}, {v(p+4*k-2,2)}, {v(p+4*k+2,2)}"))
    else:
        poll("t1", 4, l1, b1, NS_[0], tau[0], True)
    A(f"""v_pk_add_f32 {v(X,2)}, {v(X,2)}, {v(X+4,2)}
          v_pk_add_f32 {v(X+2,2)}, {v(X+2,2)}, {v(X+6,2)}
          v_cvt_pk_bf16_f32 {v(X)}, {v(X)}, {v(X+1)}
          v_cvt_pk_bf16_f32 {v(X+1)}, {v(X+2)}, {v(X+3)}
          ds_write_b64 {vOw}, {v(X,2)} offset:{O_L}""")
    stamp(2, "t")
    A("s_waitcnt lgkmcnt(0)\n s_barrier")
    for ks in range(4): A(f"ds_read_b128 {v(BL+4*ks,4)}, {vBl} offset:{ks*64}")
    A(f"s_cmp_eq_u32 {sROLE}, 2")
    for ks in range(4):
        if ks in (0, 2): A(f"s_waitcnt lgkmcnt({2-ks})")
        mfma(v(DM+4,4), v(WOF+4*ks,4), v(BL+4*ks,4), v(DM+4,4) if ks else 0)
    for ks in range(4): mfma(v(X+4,4), v(WOF+16+4*ks,4), v(BL+4*ks,4), v(X+4,4) if ks else 0)
    A(f"""v_cvt_pk_bf16_f32 {v(DM+2)}, {v(DM+4)}, {v(DM+5)}
          v_cvt_pk_bf16_f32 {v(DM+3)}, {v(DM+6)}, {v(DM+7)}
          v_bfi_b32 {v(DM+2)}, {sM11}, {vT2}, {v(DM+2)}
          buffer_store_dwordx2 {v(DM+2,2)}, {vYs}, {sW}, {sYs} offen sc1
          s_cbranch_scc0 L_t1one
          v_cvt_pk_bf16_f32 {v(DM+4)}, {v(X+4)}, {v(X+5)}
          v_cvt_pk_bf16_f32 {v(DM+5)}, {v(X+6)}, {v(X+7)}
          v_bfi_b32 {v(DM+4)}, {sM11}, {vT2}, {v(DM+4)}
          buffer_store_dwordx2 {v(DM+4,2)}, {vYs}, {sW}, {sA} offen sc1""")
    stamp(7)
    A("s_branch L_t5s")
    A.label("L_t1one")
    stamp(7)
    Y = X; SA = 108
    vRa, vRb, vRc, vRd, vRe, vRf, vRg, vRh = [v(i) for i in range(240, 248)]
    vK1 = vRg
    def selector():
        A(f"""v_xor_b32 {v(T+2)}, {sM11}, {vT2}
              v_cndmask_b32 {vK1}, {vT2}, {v(T+2)}, {sM8}
              v_and_b32 {v(T+2)}, 1, v0
              v_lshlrev_b32 {v(T+2)}, 4, {v(T+2)}
              v_mov_b32 {v(T+3)}, 0x3f80
              v_lshlrev_b32 {v(T+3)}, {v(T+2)}, {v(T+3)}
              v_bfe_u32 {v(T+1)}, v0, 1, 2""")
        for r in range(4): A(f"v_cmp_eq_u32 vcc, {r}, {v(T+1)}\n v_cndmask_b32 {v(SA+r)}, 0, {v(T+3)}, vcc")
    octet(sT2)
    A(f"""s_lshl_b32 {sA}, {sT2}, 12
          s_add_u32 {sA}, {sA}, {YP}
          s_lshl_b32 {sB}, {sT2}, 8
          s_add_u32 {sB}, {sB}, {sHS}
          s_mov_b32 s32, 0
          s_mov_b32 s33, -1
          v_and_b32 {vRb}, 7, v0
          v_lshlrev_b32 {vRb}, 4, {vRb}
          v_bfe_u32 {v(T)}, v0, 3, 1
          v_lshl_or_b32 {vRb}, {v(T)}, 2, {vRb}
          v_bfe_u32 {v(T)}, v0, 5, 1
          v_lshl_or_b32 {vRb}, {v(T)}, 3, {vRb}
          v_bfe_u32 {v(T)}, v0, 4, 1
          v_lshl_or_b32 {vRb}, {v(T)}, 7, {vRb}
          v_lshlrev_b32 {vXR}, 16, {vXR}""")
    selector()
    def l2(p):
        for k in range(4): A(f"buffer_load_dwordx4 {v(p+4*k,4)}, {vVo}, {sW}, {sA} offen offset:{k*1024} sc1")
    def b2(p, n):
        for k in range(4):
            if k % 2 == 0: A(f"s_waitcnt vmcnt({n + 2 - k})")
            A(f"""v_bitop3_b32 {v(T+k)}, {v(p+4*k)}, {v(p+4*k+2)}, {vT2} bitop3:0x7e
                  v_xor_b32 {v(p+4*k)}, {v(p+4*k)}, {vK1}
                  v_xor_b32 {v(p+4*k+2)}, {v(p+4*k+2)}, {vK1}""")
            if k: mfma(v(Y,4), v(SA,4), v(p+4*k-4,4), v(Y,4) if k > 1 else 0)
        A(f"v_or3_b32 {v(T)}, {v(T)}, {v(T+1)}, {v(T+2)}")
        mfma(v(Y,4), v(SA,4), v(p+12,4), v(Y,4))
        A(f"v_bitop3_b32 {v(T)}, {v(T)}, {v(T+3)}, {sM11} bitop3:0xa8\n v_cmp_ne_u32 vcc, 0, {v(T)}")
    if dlyr == "ack": A("s_waitcnt vmcnt(0)")
    elif dlyr: A(f"s_sleep {dlyr}")
    poll("r", 4, l2, b2, 1, 0)
    stamp(3, "t")
    A(f"""v_cndmask_b32 {v(Y)}, {v(Y)}, {v(Y+2)}, s[32:33]
          v_cndmask_b32 {v(Y+1)}, {v(Y+1)}, {v(Y+3)}, s[32:33]
          v_cndmask_b32 {v(Y+2)}, {v(Y+1)}, {v(Y)}, {sM8}
          v_cndmask_b32 {v(Y)}, {v(Y)}, {v(Y+1)}, {sM8}
          v_add_f32_dpp {v(Y)}, {v(Y+2)}, {v(Y)} row_ror:8 {DPPM}
          v_cvt_pk_bf16_f32 {v(Y)}, {v(Y)}, {v(Y)}
          v_and_b32 {v(Y)}, {sHI}, {v(Y)}
          v_add_f32 {v(Y)}, {v(Y)}, {vXR}
          v_cvt_pk_bf16_f32 {v(Y)}, {v(Y)}, {v(Y)}
          v_bfi_b32 {v(Y)}, {sHI}, {v(Y)}, {vTAG}""")
    lstore(f"buffer_store_dword {v(Y)}, {vRb}, {sW}, {sB} offen", loc[3])
    stamp(4, "t")
    A("s_cmp_lg_u32 s3, 0\n s_cbranch_scc1 L_fin")
    A(f"""s_cmp_lg_u32 {sWV}, 1
          s_cbranch_scc1 L_fin
          v_mov_b32 {v(Y+2)}, {EPOCH}
          s_mov_b64 exec, 1
          buffer_store_dword {vTAG}, {v(Y+2)}, {sW}, 0 offen sc1
          s_mov_b64 exec, -1
          s_branch L_fin""")
    A.label("L_t5s")
    HV = X + 8
    A(f"s_mov_b32 s64, s18\n s_and_b32 s65, s19, 0xffff\n s_mov_b32 s66, {0 if 'O' in abl else 8192}\n s_mov_b32 s67, 0x20000")
    vT2b, vK2 = vRf, vRh
    selector()
    A(f"""s_lshr_b32 {sT2}, {sWV}, 2
          s_mul_i32 {sA}, {sT2}, 7168
          s_mul_i32 {sT}, s3, 1792
          s_add_u32 {sA}, {sA}, {sT}
          s_add_u32 {sA}, {sA}, {PD}
          v_cmp_gt_u32 vcc, 48, {vL}
          v_cndmask_b32 {vRe}, {vNINF}, {vVo}, vcc""")
    def l5(p):
        A(f"""buffer_load_dwordx4 {v(p,4)}, {vVo}, {sW}, {sA} offen sc1
              buffer_load_dwordx4 {v(p+4,4)}, {vRe}, {sW}, {sA} offen offset:1024 sc1""")
    if dly is None: l5(PS)
    A(f"""s_lshl_b32 {sDd}, {sT2}, 4
          s_lshl_b32 {sC}, {sT2}, 8
          s_add_u32 {sC}, {sC}, {sHS}
          v_and_b32 {v(T)}, 16, v0
          v_lshl_or_b32 {vRb}, {vN}, 5, {v(T)}
          s_lshl_b32 {sT}, s3, 9
          v_add_u32 {vRb}, {sT}, {vRb}
          v_lshrrev_b32 {v(T)}, 3, {vL}
          v_and_b32 {v(T+1)}, 7, v0
          v_lshlrev_b32 {vRc}, 10, {v(T)}
          v_lshl_or_b32 {vRc}, {v(T+1)}, 1, {vRc}
          v_lshlrev_b32 {vRd}, 4, {v(T)}
          v_and_b32 {v(T+2)}, 3, v0
          v_lshl_or_b32 {vRd}, {v(T+2)}, 2, {vRd}
          v_and_b32 {v(T+2)}, 4, v0
          v_lshl_or_b32 {vRd}, {v(T+2)}, 5, {vRd}
          v_cndmask_b32 {vT2b}, 0, {vT2}, vcc
          v_cndmask_b32 {vK2}, 0, {vK1}, vcc""")
    A.label("L_t5h")
    A(f"""buffer_load_dword {v(HV)}, {vRd}, {sW}, {sC} offen sc1
          s_waitcnt vmcnt(0)
          v_xor_b32 {v(T)}, {v(HV)}, {vTAG}""")
    cmp_tag(v(T), "WORD_0")
    A(f"s_cbranch_vccz L_t5hok\n s_add_u32 {sCNT}, {sCNT}, 1\n s_cmp_lt_u32 {sCNT}, {cap}\n s_cbranch_scc1 L_t5h")
    A.label("L_t5hok")
    A(f"v_and_b32 {v(HV)}, {sHI}, {v(HV)}")
    if dly: A(f"s_sleep {dly}")
    def b5(p, n):
        A(f"""s_waitcnt vmcnt({n+1})
              v_bitop3_b32 {v(T)}, {v(p)}, {v(p+2)}, {vT2} bitop3:0x7e
              v_xor_b32 {v(p)}, {v(p)}, {vK1}
              v_xor_b32 {v(p+2)}, {v(p+2)}, {vK1}
              s_waitcnt vmcnt({n})
              v_bitop3_b32 {v(T+1)}, {v(p+4)}, {v(p+6)}, {vT2b} bitop3:0x7e""")
        mfma(v(Y,4), v(SA,4), v(p,4), 0)
        A(f"""v_xor_b32 {v(p+4)}, {v(p+4)}, {vK2}
              v_xor_b32 {v(p+6)}, {v(p+6)}, {vK2}
              v_bitop3_b32 {v(T)}, {v(T)}, {v(T+1)}, {sM11} bitop3:0xa8
              v_cmp_ne_u32 vcc, 0, {v(T)}""")
        mfma(v(Y,4), v(SA,4), v(p+4,4), v(Y,4))
    poll("t5", 2, l5, b5, 1, 0)
    stamp(3, "t")
    A(f"""s_mov_b32 exec_hi, 0
          ds_write_b128 {vRb}, {v(Y,4)} offset:{R_L}
          s_mov_b32 exec_hi, -1
          s_waitcnt lgkmcnt(0)
          s_barrier
          s_cmp_lg_u32 s3, 0
          s_cbranch_scc1 L_fin""")
    for k in range(4): A(f"ds_read2st64_b32 {v(Y+2*k,2)}, {vL4} offset0:{R_L//256+2*k} offset1:{R_L//256+2*k+1}")
    A(f"""s_waitcnt lgkmcnt(2)
          v_pk_add_f32 {v(Y,2)}, {v(Y,2)}, {v(Y+2,2)}
          s_waitcnt lgkmcnt(0)
          v_pk_add_f32 {v(Y+4,2)}, {v(Y+4,2)}, {v(Y+6,2)}
          v_pk_add_f32 {v(Y,2)}, {v(Y,2)}, {v(Y+4,2)}
          v_add_f32 {v(Y)}, {v(Y)}, {v(Y+1)}
          v_cvt_pk_bf16_f32 {v(Y)}, {v(Y)}, {v(Y)}
          v_and_b32 {v(Y)}, {sHI}, {v(Y)}
          v_add_f32 {v(Y)}, {v(Y)}, {v(HV)}""")
    if pert:
        import struct
        h_ = hex(struct.unpack("<I", struct.pack("<f", pert[0]))[0])
        if pert[1]: A(f"s_cmp_eq_u32 {sT2}, 5\n s_cselect_b64 exec, 1, 0")
        A(f"v_add_f32 {v(Y)}, {h_}, {v(Y)}\n s_mov_b64 exec, -1")
    A(f"""v_cvt_pk_bf16_f32 {v(Y)}, {v(Y)}, {v(Y)}
          buffer_store_short {v(Y)}, {vRc}, {sOut}, {sDd} offen {osc}""")
    stamp(4, "t")
    A("s_branch L_fin")
    A.label("L_t3")
    A(f"s_cmp_eq_u32 {sROLE}, 0\n s_cbranch_scc1 L_fin")
    for j in range(GE, GM_):
        A(f"s_waitcnt vmcnt({GW - 1})"); gu_op(j, A)
    tcommon()
    vWd = "v248"
    A(f"""v_lshrrev_b32 {v(T)}, 2, {vN}
          v_lshl_add_u32 {v(T)}, {vG}, 3, {v(T)}
          v_lshlrev_b32 {vWd}, 8, {v(T)}
          v_lshlrev_b32 {v(T)}, 6, {v(T)}
          v_bfe_u32 {v(T+1)}, v0, 1, 1
          v_lshl_add_u32 {v(T)}, {v(T+1)}, 13, {v(T)}
          v_bfe_u32 {v(T+2)}, v0, 4, 1
          v_lshl_or_b32 {v(T+1)}, {v(T+2)}, 1, {v(T+1)}
          v_xor_b32 {v(T+1)}, s3, {v(T+1)}
          v_lshl_add_u32 {v(T)}, {v(T+1)}, 4, {v(T)}
          v_and_b32 {v(T+1)}, 1, v0
          v_lshl_add_u32 {v(T)}, {v(T+1)}, 3, {v(T)}
          v_add_u32 {v(T+9)}, {GU_L}, {v(T)}""")
    A(f"""v_and_b32 {v(T+1)}, 1, v0
          v_lshl_or_b32 {vWd}, {v(T+1)}, 4, {vWd}
          v_bfe_u32 {v(T+1)}, v0, 2, 3
          v_bfe_u32 {v(T+2)}, v0, 1, 1
          v_xor_b32 {v(T+1)}, {v(T+1)}, {v(T+2)}
          v_lshl_or_b32 {vWd}, {v(T+1)}, 5, {vWd}
          s_lshl_b32 {sWm}, s3, 13
          s_add_u32 {sWm}, {sWm}, {WD_L}""")
    def wdfrags():
        for k in range(8):
            A(f"v_xor_b32 {v(T)}, {(4*(k>>2) + 2*(k&1))*32}, {vWd}\n v_add_u32 {v(T)}, {sWm}, {v(T)}")
            for t2 in range(2): A(f"ds_read_b64_tr_b16 {a(WDF+4*k+2*t2,2)}, {v(T)} offset:{t2*1024 + ((k>>1)&1)*8}")
            if k in (3, 7): A("s_waitcnt lgkmcnt(4)")
    PK = 96; HF = 8; DG = 144; CS = 116; SS = 120; SR = 72; sSEL = "s28"; sONE = "s29"
    A(f"""v_and_b32 {v(T)}, 7, v0
          v_bfe_u32 {v(T+1)}, v0, 3, 1
          v_mul_u32_u24 {vRc}, {XN_S}, {v(T)}
          v_and_b32 {v(T+2)}, 56, v0
          v_add_u32 {vRb}, {vRc}, {v(T+2)}
          s_lshl_b32 {sT}, s3, 8
          v_add_u32 {vRb}, {sT}, {vRb}
          v_lshl_add_u32 {vRc}, {vG}, 4, {vRc}
          v_mul_u32_u24 {vRe}, 80, {v(T)}
          v_lshl_add_u32 {vRd}, {vG}, 2, {vRe}
          s_lshl_b32 {sT}, s3, 4
          v_add_u32 {vRd}, {sT}, {vRd}
          v_lshlrev_b32 {vRf}, 6, {v(T)}
          v_lshl_or_b32 {v(T+3)}, {vG}, 4, {vRf}
          v_lshl_or_b32 {vRf}, {v(T+1)}, 2, {vRf}
          v_bfe_u32 {v(T+2)}, v0, 4, 1
          v_lshl_or_b32 {vRf}, {v(T+2)}, 3, {vRf}
          v_bfe_u32 {v(T+2)}, v0, 5, 1
          v_lshl_or_b32 {vRf}, {v(T+2)}, 1, {vRf}
          s_lshl_b32 {sT}, s3, 4
          v_add_u32 {vRf}, {sT}, {vRf}
          v_lshl_add_u32 {vRh}, {v(T+1)}, 2, {vG}
          v_mul_u32_u24 {vRh}, 7168, {vRh}
          v_lshl_add_u32 {vRh}, {v(T)}, 4, {vRh}
          s_mul_i32 {sB}, s3, {16*7168}
          s_lshl_b32 {sT}, {sGI}, 7
          s_add_u32 {sB}, {sB}, {sT}
          s_add_u32 {sB}, {sB}, {PD}
          s_add_u32 {sDd}, {sB}, {8*7168}
          v_add_u32 {v(T+3)}, {A_L}, {v(T+3)}
          v_mov_b32 {v(T+4)}, {Z_L}
          v_cndmask_b32 {vB3}, {v(T+3)}, {v(T+4)}, {sM8}
          v_cndmask_b32 {vBh}, {v(T+4)}, {v(T+3)}, {sM8}
          s_lshl_b32 {sA}, s3, 12
          s_add_u32 {sA}, {sA}, {sHS}
          s_mov_b32 {sSEL}, 0x07060302
          s_mov_b32 {sONE}, 0x3f803f80
          s_mov_b32 {sC}, 0""")
    for i in range(8): A(f"v_mov_b32 {v(PK+i)}, {sONE}")
    A("s_branch L_t3lok")
    A.label("L_t3s")
    if dlyb: A(f"s_sleep {dlyb}")
    def l3(p):
        for k in range(4): A(f"buffer_load_dwordx4 {v(p+4*k,4)}, {vNINF if 'H' in abl and k >= 2 else vVo}, {sW}, {sA} offen offset:{k*1024} sc1")
    def pk(p, k): A(f"v_perm_b32 {v(PK+2*k)}, {v(p+4*k+1)}, {v(p+4*k)}, {sSEL}\n v_perm_b32 {v(PK+2*k+1)}, {v(p+4*k+3)}, {v(p+4*k+2)}, {sSEL}")
    def b3(p, n):
        A(f"s_waitcnt vmcnt({n+2})\n v_bitop3_b32 {v(T)}, {v(p)}, {v(p+4)}, {vTAG} bitop3:0x7e")
        pk(p, 0); pk(p, 1)
        A(f"s_waitcnt vmcnt({n})\n v_bitop3_b32 {v(T+1)}, {v(p+8)}, {v(p+12)}, {vTAG} bitop3:0x7e\n v_or_b32 {v(T)}, {v(T)}, {v(T) if 'H' in abl else v(T+1)}")
        cmp_tag(v(T), "WORD_0")
        pk(p, 2); pk(p, 3)
    poll("t3l", 4, l3, b3, NS_[2], tau[2])
    stamp(3, "t")
    for k in range(4): A(f"ds_write_b64 {vRb}, {v(PK+2*k,2)} offset:{H_L + k*64}")
    for i in range(8):
        A(f"v_dot2_f32_bf16 {v(SS)}, {v(PK+i)}, {sONE}, {v(SS) if i else 0}\n v_dot2_f32_bf16 {v(SS+1)}, {v(PK+i)}, {v(PK+i)}, {v(SS+1) if i else 0}")
    A(f"""s_nop 2
          v_permlane16_swap_b32 {v(SS)}, {v(SS+1)}
          v_add_f32 {v(SS)}, {v(SS)}, {v(SS+1)}
          v_add_f32_dpp {v(SS)}, {v(SS)}, {v(SS)} row_ror:8 {DPPM}
          ds_write_b32 {vRd}, {v(SS)} offset:{ST_L}
          s_waitcnt lgkmcnt(0)
          s_barrier""")
    stamp(4, "t")
    for ks in range(2): A(f"ds_read_b128 {v(HF+4*ks,4)}, {vRc} offset:{H_L + ks*64}")
    for k in range(4): A(f"ds_read_b128 {v(SR+4*k,4)}, {vRe} offset:{ST_L + k*16}")
    for ks in range(2, 10): A(f"ds_read_b128 {v(HF+4*ks,4)}, {vRc} offset:{H_L + ks*64}")
    z = v(T); z2 = v(T+1); mean = v(T+2); mb = v(T+3); rinv = v(T+4)
    sc = f"""v_pk_add_f32 {v(SR,2)}, {v(SR,2)}, {v(SR+2,2)}
          v_pk_add_f32 {v(SR+4,2)}, {v(SR+4,2)}, {v(SR+6,2)}
          v_pk_add_f32 {v(SR+8,2)}, {v(SR+8,2)}, {v(SR+10,2)}
          v_pk_add_f32 {v(SR+12,2)}, {v(SR+12,2)}, {v(SR+14,2)}
          v_pk_add_f32 {v(SR,2)}, {v(SR,2)}, {v(SR+4,2)}
          v_pk_add_f32 {v(SR+8,2)}, {v(SR+8,2)}, {v(SR+12,2)}
          v_pk_add_f32 {v(SR,2)}, {v(SR,2)}, {v(SR+8,2)}
          v_mul_f32 {mean}, 0x3b000000, {v(SR)}
          v_mul_f32 {z}, 0x3b000000, {v(SR+1)}
          v_fma_f32 {z}, -{mean}, {mean}, {z}
          v_max_f32 {z}, 0, {z}
          v_cvt_pk_bf16_f32 {rinv}, {mean}, {z}
          v_lshlrev_b32 {mb}, 16, {rinv}
          v_and_b32 {rinv}, {sHI}, {rinv}
          v_add_f32 {rinv}, 0x3727c5ac, {rinv}
          v_cvt_pk_bf16_f32 {rinv}, {rinv}, {rinv}
          v_lshlrev_b32 {rinv}, 16, {rinv}
          v_sqrt_f32 {rinv}, {rinv}
          v_cvt_pk_bf16_f32 {rinv}, {rinv}, {rinv}
          v_lshlrev_b32 {rinv}, 16, {rinv}
          v_rcp_f32 {rinv}, {rinv}
          v_mul_f32 {mb}, {mb}, {rinv}
          v_mul_f32 {v(T+5)}, {mb}, {v(CS)}
          v_mul_f32 {v(T+6)}, {mb}, {v(CS+1)}""".split("\n")
    if tdiag: A("s_waitcnt lgkmcnt(0)")
    order = [0, 1, "s", "s", "s", "s"] + list(range(2, 10))
    si = 0
    for ks in range(16):
        upto = {0: 1, 2: 5, 6: 9, 10: 12, 13: 15}
        if ks in upto: A(f"s_waitcnt lgkmcnt({len(order) - 1 - order.index(upto[ks])})")
        mfma(v(DG,4), a(GUF+4*ks), v(HF+4*ks,4), v(DG,4) if ks else 0)
        if ks < 6:
            A(f"ds_read_b128 {v(HF+4*(ks+10),4)}, {vRc} offset:{H_L + (ks+10)*64}"); order.append(ks + 10)
        if ks >= 2:
            for _ in range(1 if ks < 6 else 2):
                if si < len(sc): A(sc[si]); si += 1
    while si < len(sc): A(sc[si]); si += 1
    g_, u_ = v(T+7), v(T+8)
    A(f"""v_mov_b32 {z2}, 0xc0135761
          v_permlane32_swap_b32 {v(DG)}, {v(DG+1)}
          v_permlane32_swap_b32 {v(DG+2)}, {v(DG+3)}
          v_cndmask_b32 {v(DG)}, {v(DG)}, {v(DG+2)}, {sM8}
          v_cndmask_b32 {v(DG+1)}, {v(DG+1)}, {v(DG+3)}, {sM8}
          v_fma_f32 {g_}, {v(DG)}, {rinv}, -{v(T+5)}
          v_fma_f32 {u_}, {v(DG+1)}, {rinv}, -{v(T+6)}
          v_cvt_pk_bf16_f32 {u_}, {g_}, {u_}
          v_lshlrev_b32 {g_}, 16, {u_}
          v_mul_f32 {z}, {g_}, {g_}
          v_fmac_f32 {z2}, 0xbdd2d3e8, {z}
          v_mul_f32 {z}, {z2}, {g_}
          v_exp_f32 {z}, {z}
          v_and_b32 {u_}, {sHI}, {u_}
          v_add_f32 {z}, 1.0, {z}
          v_rcp_f32 {z}, {z}
          s_cmp_eq_u32 {sC}, 0
          v_mul_f32 {z}, {z}, {g_}
          v_cvt_pk_bf16_f32 {z}, {z}, {z}
          v_lshlrev_b32 {z}, 16, {z}
          v_mul_f32 {z}, {z}, {u_}
          v_cvt_pk_bf16_f32 {z}, {z}, {z}
          ds_write_b16 {vRf}, {z} offset:{A_L}
          s_cselect_b32 s38, 0, {WS_END}
          s_waitcnt lgkmcnt(0)
          s_barrier
          ds_read_b128 {v(BL,4)}, {vB3}
          ds_read_b128 {v(BL+4,4)}, {vBh}""")
    stamp(5, "t")
    A("s_waitcnt lgkmcnt(0)")
    DP = 148
    for i in range(4):
        mfma(v(DP+4*i,4), a(WDF+8*i), v(BL,4), 0)
        mfma(v(DP+4*i,4), a(WDF+8*i+4), v(BL+4,4), v(DP+4*i,4))
    for p_ in range(2):
        for q_ in range(4): A(f"v_cvt_pk_bf16_f32 {v(164+4*p_+q_)}, {v(DP+8*p_+2*q_)}, {v(DP+8*p_+2*q_+1)}")
        for q_ in (0, 2): A(f"v_bfi_b32 {v(164+4*p_+q_)}, {sM11}, {vT2}, {v(164+4*p_+q_)}")
        A(f"buffer_store_dwordx4 {v(164+4*p_,4)}, {vRh}, {sW}, {(sB, sDd)[p_]} offen sc1")
    stamp(8, "t")
    A(f"""s_cbranch_scc0 L_fin
          s_mov_b32 {sC}, 1
          s_mov_b32 s38, {WS_END}""")
    for j in range(GM_, 16):
        A(f"s_waitcnt vmcnt({GW - 1})"); gu_op(j, A)
    wdloads(GW)
    A("s_waitcnt vmcnt(8)")
    stamp(3)
    A("s_barrier")
    for k in range(16):
        for t2 in range(2): A(f"ds_read_b64_tr_b16 {a(GUF+4*k+2*t2,2)}, {v(T+9)} offset:{(k>>2)*16384 + (k&3)*2048 + t2*256}")
        if k % 4 == 3: A("s_waitcnt lgkmcnt(4)")
    A("s_waitcnt lgkmcnt(0)")
    for k in range(16): mfma(v(DG,4), a(GUF+4*k), v(PK,4), v(DG,4) if k else 0)
    A("s_waitcnt vmcnt(0)")
    wdfrags()
    A(f"""v_permlane32_swap_b32 {v(DG)}, {v(DG+1)}
          v_permlane32_swap_b32 {v(DG+2)}, {v(DG+3)}
          v_cndmask_b32 {v(CS)}, {v(DG)}, {v(DG+2)}, {sM8}
          v_cndmask_b32 {v(CS+1)}, {v(DG+1)}, {v(DG+3)}, {sM8}""")
    stamp(8)
    A("s_branch L_t3s")
    A.label("L_fin")
    if padto:
        if padwg is not None: A(f"s_cmp_lg_u32 s2, {padwg}\n s_cbranch_scc1 L_end")
        A.label("L_pad")
        A(f"s_memrealtime s[82:83]\n s_waitcnt lgkmcnt(0)\n s_sub_u32 s82, s82, s80\n s_cmp_lt_u32 s82, {padto}\n s_cbranch_scc1 L_pad")
    if stamps:
        A("s_waitcnt vmcnt(0)")
        stamp(9)
        A("s_getreg_b32 s0, hwreg(HW_REG_XCC_ID)\n s_waitcnt lgkmcnt(0)\n v_mov_b32 v8, 0")
        for k in range(10): A(f"v_writelane_b32 v8, s{80+2*k}, {k}")
        A(f"v_writelane_b32 v8, s0, 10\n v_writelane_b32 v8, {sCNT}, 11\n v_writelane_b32 v8, {sROLE}, 12\n v_writelane_b32 v8, s100, 13\n v_writelane_b32 v8, s101, 14\n s_getreg_b32 s0, hwreg(HW_REG_HW_ID)\n v_writelane_b32 v8, s0, 15")
        if dbg:
            A(f"s_not_b32 s0, s80\n v_writelane_b32 v8, s0, 10\n s_mov_b64 exec, 0xffff\n buffer_atomic_umax v8, {vL4}, {sDbg}, 0 offen sc1\n s_endpgm")
        A(f"s_lshl_b32 s0, s2, 2\n s_add_u32 s0, s0, s3\n s_lshl_b32 s0, s0, 8\n s_add_u32 s0, s0, 0x10000000\n s_add_u32 s26, s26, s0\n s_addc_u32 s27, s27, 0")
        A(f"v_lshlrev_b32 v9, 2, {vL}\n global_store_dword v9, v8, s[26:27]")
    A.label("L_end")
    A("s_endpgm")
    for o in ool: o()
    if warm0 or warm1: A.raw(".rept 3000\n s_endpgm\n.endr")
    elif roll: A.raw(".rept 520\n s_endpgm\n.endr")
    A.raw('.section .rodata,"a"\n.p2align 6')
    A.raw(f".amdhsa_kernel {NAME}_kernel")
    A.raw("""  .amdhsa_next_free_vgpr 512
  .amdhsa_next_free_sgpr 102
  .amdhsa_accum_offset 256
  .amdhsa_group_segment_fixed_size 0
  .amdhsa_kernarg_size 96
  .amdhsa_user_sgpr_count 2
  .amdhsa_user_sgpr_kernarg_segment_ptr 1
  .amdhsa_system_sgpr_workgroup_id_x 1
  .amdhsa_float_denorm_mode_32 3
.end_amdhsa_kernel""")
    return A.text()

if __name__ == "__main__":
    if len(sys.argv) > 1:
        cfgs = json.loads(sys.argv[1])
        for k, c in cfgs.items(): open(f"k_{k}.s", "w").write(gen(**c))
        print(" ".join(f"work/k_{k}.s" for k in cfgs))
    else:
        open(f"cdna_kernels/{NAME}.s", "w").write(gen())
```

```python
import sys, json
sys.path.insert(0, "work")
from asmlib import Asm
NAME = "sequential_preLN__gqa_block_cached__geglu_ffn__decode"

Q_OFF = 0x0
EPOCH = 0x40000
CLR = 0x100000
YP = CLR
OP = CLR + 0x80000
ML = CLR + 0x100000
HB = CLR + 0x40000
PD = CLR + 0x10C000
WS_END = PD + 64 * 7168
XL = 0x50000
PG = 0x60000
XN_L = 0; XN_S = 1056
P_L = 8448
WO_L = P_L + 4 * 4608
GU_L = WO_L + 16384
WD_L = GU_L + 65536
WQ_L = GU_L
LDS_SZ = WD_L + 32768
T0_L = 0; O_L = P_L; Z_L = P_L + 4096; R_L = 0
H_L = WO_L; ST_L = P_L + 8192; A_L = P_L + 8192 + 768

def mask(f):
    v = 0
    for l in range(64):
        if f(l): v |= 1 << l
    return v

def gen(D=6, D0=8, IQ=52, budget=44, stamps=False, wnt="", IML=214, cap=200000, kvflag="nt",
        sleep=0, IEND=256, DEND=9, IWO=100, sdiag=False, warm0=False, warm1=False, abl="", kpat="p8", dbg=False, tdiag=False, bal="def",
        touch=False, osc="", vflag=None, ES=0, WOS=4, perm=True, VS=2, V0=1, rot=0, pre=False, NS_=(1, 1, 1, 1), tau=(0, 0, 0, 0), gate=0, adum=True, EA=1, kpair=0, vpair=0, GW=5, GE=4, rsh=0, mp=(12, 13, 14, 16), padto=0, padwg=None, ldsx=0, mpoll=(0, 0, 0, 0), otouch=None, loc=(1, 1, 1, 1), XJ=1, stouch="", PB=8, pert=None, IS=0, DST=8, dly=None, dlyr="ack", dlyb=None, early=False, AK=0, warmA=True, half=True, roll=dict(mask=15, dist=1536, first=33, per=28, st=[35, 150]), roll0=15, wd0=0, wds=4, IW2=176, GM_=9, offpre=True):
    A = Asm()
    if bal == "def": bal = None if dbg else dict(lo=5, first=46, per=16, last=241, th=4, off=272, lag=8, one=1, aoff=-3, sep=16, lo2=7)
    hdr = [l for l in open("cdna_kernels/" + NAME + ".s.ref").read().split("\n") if l.startswith(";") and "@launch" not in l]
    for l in hdr: A.raw(l)
    A.raw(f"; @launch grid=(256,1,1) block=(256,1,1) lds={LDS_SZ + ldsx}")
    for l in """
; One persistent launch, 256 workgroups x 4 waves (one workgroup per CU, all co-resident).
;   ids: x = wg&7 = kv head, b = wg>>5, split = (wg>>3)&3; the 4 workgroups of a (b, kv head) share its 8192 keys.
;   class A (one per group) first computes LN(x) @ wq for 64 columns and takes 26 of the 128 key rows, the others 34.
;   K phase: 8-key x 128-byte loads straight into an AGPR ring, QK^T by MFMA, scores rounded like the reference.
;   V phase: exact per-wave max, P in LDS, PV by MFMA with a diagonal A operand; (max, sum) exchanged per group.
;   tail: o partials -> o @ wo (per head, 64 columns) -> sum over heads + x (one copy of h per id&7 set) -> class A:
;         LN folded into gate/up, gelu*up, @ w_down partials -> final sum + h.  Every hand-off carries a tag (previous
;         tag in d_ws + 1) that the reader strips again; plain stores only when all readers reported the same XCC id.
;   loads in flight per wave are 6, or 5 while the workgroup is ahead of most of its sampled peers.""".strip().split("\n"): A.raw(l)
    A.raw('.amdgcn_target "amdgcn-amd-amdhsa--gfx950"')
    A.raw(".text"); A.raw(f".globl {NAME}_kernel"); A.raw(".p2align 8"); A.raw(f".type {NAME}_kernel,@function")
    A.label(f"{NAME}_kernel")
    NK = 136; NS = 2 * NK; NO = 32
    if dbg: stamps = True
    sK, sV, sW, sX, sQ, sO, sG, sU, sD, sOut, sDbg = [f"s[{b}:{b+3}]" for b in range(28, 72, 4)]
    sKV = "s72"; sROLE = "s73"; sCNT = "s74"; sLOG = "s75"; sMV = "s[76:77]"; sM8 = "s[78:79]"
    sSCALE = "s4"; sHI = "s5"; sTAG = "s6"; sT = "s7"; sT2 = "s8"; sT3 = "s9"; sGI = "s10"; sHEAD = "s11"; sCS = "s12"
    sOPs, sOPl, sOPl2, sYs, sA, sB, sC, sDd = [f"s{i}" for i in range(13, 21)]
    sYs = "s23"
    sOPT = "s[24:25]"; sINC = "s20"; sXV = "s95" if not stamps else "s93"; sLOC = "s96" if not stamps else "s83"; sLC = "s1"; sCLS = "s100" if not stamps else "s99"; sE = "s101" if not stamps else "s97"; sE0 = "s98" if not stamps else "s95"; sWV = "s99" if not stamps else "s81"
    sWo, sWm, sW2o, sW2m = "s44", "s45", "s46", "s47"
    vL = "v1"; vKa = "v2"; vKb = "v3"; vVo = "v4"; vPw = "v5"; vPr = "v6"
    SEL = 8; QA = 16; S = 32; vNINF = "v252"; DS = 68; PP = 156; A0 = 100; A1 = 104; O0 = 108; O1 = 112
    m01, m23, l01, l23, nm01, nm23, f01, f23 = [f"v{i}" for i in range(116, 124)]
    vXR = "v124"; T = 125
    vN = "v141"; vG = "v142"
    BIG = 156; WOF = 144
    vT0w, vT0r, vL4, vL8, vOw, vBl, vBh, vYs = [f"v{i}" for i in range(232, 240)]
    vTAG = "v7"; vWOr = "v143"; sFF = "s15"
    vWa, vWb, vWc = "v240", "v224", "v253"; vWa2, vWb2, vWc2 = "v244", "v225", "v254"; vB3 = "v249"; vT16 = "v255"; vTB, vEM = "v250", "v251"
    v = lambda i, n=1: f"v{i}" if n == 1 else f"v[{i}:{i+n-1}]"
    a = lambda i, n=4: f"a[{i}:{i+n-1}]"
    def stamp(k, diag=False):
        if diag == "t":
            if not tdiag: return
        elif tdiag and k in (1, 2, 3, 4, 5, 8): return
        elif sdiag and k in (5, 6, 7, 8) and not diag: return
        elif diag and not sdiag: return
        if stamps: A(f"s_memrealtime s[{80+2*k}:{81+2*k}]")
    def smov64(dst, val):
        lo = int(dst[2:dst.index(":")])
        A(f"s_mov_b32 s{lo}, 0x{val & 0xffffffff:x}\n s_mov_b32 s{lo+1}, 0x{val >> 32:x}")
    ops = []; known = [-1]
    def vm(text, mandatory=True):
        A(text); ops.append(mandatory); return len(ops) - 1
    def after(idx, r1=False): return sum(1 for m in ops[idx+1:] if m is True or (r1 and m == 'r1'))
    def wait_for(idx):
        if idx <= known[0]: return
        n = after(idx); assert n <= 63
        A(f"s_waitcnt vmcnt({n})"); known[0] = idx
    ool = []
    def mfma(d, x, y, c): A(f"v_mfma_f32_16x16x32_bf16 {d}, {x}, {y}, {c}")
    DPPM = "row_mask:0xf bank_mask:0xf"

    A("s_cmp_ge_u32 s2, 256\n s_cbranch_scc1 L_end")
    A("s_load_dwordx8 s[4:11], s[0:1], 0\n s_load_dwordx8 s[12:19], s[0:1], 32\n s_load_dwordx8 s[20:27], s[0:1], 64")
    if stamps:
        for k in range(1, 11): A(f"s_mov_b32 s{80+2*k}, 0")
        A("s_mov_b32 s101, 0")
    stamp(0)
    if stamps: A("s_waitcnt lgkmcnt(0)")
    if padto: A("s_memrealtime s[80:81]")
    A(f"""v_lshrrev_b32 {v(T)}, 6, v0
          v_and_b32 {vL}, 63, v0
          v_readfirstlane_b32 s3, {v(T)}
          v_lshrrev_b32 {vG}, 4, {vL}
          v_and_b32 {v(T+3)}, 14, v0
          v_lshlrev_b32 {vKa}, 7, {v(T+3)}
          v_lshl_or_b32 {vKa}, {vG}, 4, {vKa}
          v_and_b32 {v(T+4)}, 1, v0
          v_lshl_or_b32 {vKa}, {v(T+4)}, 6, {vKa}
          {"v_lshlrev_b32 " + vKa + ", 4, " + vL if kpat == "c" else ""}
          v_xor_b32 {vKb}, 64, {vKa}
          s_mov_b32 s31, 0x20000
          s_and_b32 {sWV}, s2, 7
          s_lshl_b32 {sWV}, {sWV}, 2
          s_bfe_u32 s75, s2, 0x20003
          s_or_b32 {sWV}, {sWV}, s75
          s_and_b32 s74, s2, 0xe0
          s_or_b32 {sWV}, {sWV}, s74
          s_lshr_b32 s74, s2, 5
          s_add_u32 s74, s75, s74
          s_and_b32 {sCLS}, s74, 3
          s_add_u32 s74, s74, 3
          s_and_b32 s74, s74, 3
          s_mov_b32 {sE0}, s74
          s_lshl_b32 {sE}, s74, {mp[2]}
          s_and_b32 s73, s3, 1
          s_lshl_b32 s73, s73, {mp[0]}
          s_lshr_b32 s74, s3, 1
          s_lshl_b32 s74, s74, {mp[1]}
          s_add_u32 s73, s73, s74
          s_lshr_b32 s75, {sWV}, 2
          s_lshl_b32 s75, s75, 21
          s_sub_u32 s30, 0x200000, s73
          s_add_u32 s73, s73, s75
          s_waitcnt lgkmcnt(0)
          s_add_u32 s28, s6, s73
          s_addc_u32 s29, s7, 0
          s_and_b32 s29, s29, 0xffff""")
    stamp(5, True)
    kv = []; st = {}; uid = [0]
    def lstore(text, on, f=A):
        if not on: return f(text + " sc1")
        uid[0] += 1; u = uid[0]
        A(f"s_cmp_eq_u32 {sLOC}, 0\n s_cbranch_scc1 L_ls{u}")
        r = f(text)
        A.label(f"L_le{u}")
        def o():
            A.label(f"L_ls{u}"); A(text + " sc1"); A(f"s_branch L_le{u}")
        ool.append(o)
        return r
    def xl_pub(f):
        uid[0] += 1; u = uid[0]
        A(f"""s_getreg_b32 {sXV}, hwreg(HW_REG_XCC_ID, 0, 4)
              s_lshl_b32 {sXV}, {sXV}, 28
              s_xor_b32 {sXV}, {sXV}, {sTAG}
              s_cmp_lg_u32 s3, 1
              s_cbranch_scc1 L_xp{u}
              s_and_b32 {sT}, s2, 7
              s_lshl_b32 {sT}, {sT}, 7
              s_lshr_b32 s0, s2, 3
              s_lshl_b32 s0, s0, 2
              s_add_u32 {sT}, {sT}, s0
              s_add_u32 {sT}, {sT}, {XL}
              v_mov_b32 {v(T+10)}, {sXV}
              v_mov_b32 {v(T+11)}, 0
              s_mov_b64 exec, 1""")
        f(f"buffer_store_dword {v(T+10)}, {v(T+11)}, {sW}, {sT} offen")
        A("s_mov_b64 exec, -1")
        A.label(f"L_xp{u}")
    def xl_load(f, dst):
        A(f"""v_and_b32 {v(T+10)}, 31, v0
              v_lshlrev_b32 {v(T+10)}, 2, {v(T+10)}
              s_and_b32 {sT2}, s2, 7
              s_lshl_b32 {sT2}, {sT2}, 7
              s_add_u32 {sT2}, {sT2}, {XL}""")
        return f(f"buffer_load_dword {dst}, {v(T+10)}, {sW}, {sT2} offen sc1")
    def xl_eval(src):
        A(f"v_cmp_ne_u32 s[0:1], {sXV}, {src}\n s_cmp_eq_u64 s[0:1], 0\n s_cselect_b32 {sLOC}, 1, 0")
    def tagfin(f):
        A(f"s_waitcnt lgkmcnt(0)\n s_add_u32 {sTAG}, {sTAG}, 1\n v_mov_b32 {vTAG}, {sTAG}")
        xl_pub(f)
    slot = lambda i: (i % 64) * 4 if i < NK else ((i - NK + 8) % 32) * 4
    def prevocc(i):
        for j in range(i - 1, -1, -1):
            if slot(j) == slot(i): return j
        return -1
    rowoff = lambda p: (3 * p if p < 8 else 24 + 4 * (p - 8)) * 16384
    vorder = list(range(8, 34))
    vorder += list(range(8))
    tileof = lambda i: i >> 2 if i < NK else vorder[(i - NK) >> 2]
    isopt = lambda i: tileof(i) < 8
    def issue(i, part=3):
        p = tileof(i)
        dst = a(slot(i))
        if (i & 3) == 0 and part & 1:
            if p >= 8:
                q = p - 8 + 6
                A(f"s_add_u32 {sKV}, {sE}, {((q & 1) << mp[3]) + ((q >> 1) << 17)}")
            elif tuple(mp) == (12, 13, 14, 16): A(f"s_add_u32 {sKV}, {sE}, {3 * p * 16384}")
            else:
                A(f"""s_add_u32 s0, {sE0}, {3 * p}
                      s_and_b32 {sKV}, s0, 3
                      s_lshl_b32 {sKV}, {sKV}, {mp[2]}
                      s_bfe_u32 s1, s0, 0x10002
                      s_lshl_b32 s1, s1, {mp[3]}
                      s_add_u32 {sKV}, {sKV}, s1
                      s_lshr_b32 s1, s0, 3
                      s_lshl_b32 s1, s1, 17
                      s_add_u32 {sKV}, {sKV}, s1""")
        if not part & 2: return
        if i < NK:
            va = vKb if p & 1 else vKa
            kv.append(vm(f"buffer_load_dwordx4 {dst}, {va}, {sK}, {sKV} offen offset:{(i&3)*1024 if kpat == 'c' else ((i>>1)&1)*2048 + (i&1)*128} {kvflag}"))
        else:
            kv.append(vm(f"buffer_load_dwordx4 {dst}, {vVo}, {sV}, {sKV} offen offset:{(i&3)*1024} {kvflag if vflag is None else vflag}"))
    A(f"s_cmp_eq_u32 {sCLS}, 0\n s_cbranch_scc1 L_A")
    for i in range(D0):
        issue(i)
        if i == 1: A(f"s_load_dword {sTAG}, s[26:27], {EPOCH}")
    stamp(6, True)
    if roll0 is not None:
        A(f"s_and_b32 s74, s2, {roll0 << 3}\n s_cmp_lg_u32 s74, 8\n s_cbranch_scc1 L_B\n s_getpc_b64 s[0:1]\n v_lshlrev_b32 {vT16}, 5, v0")
        vm(f"global_load_dword {v(228)}, {vT16}, s[0:1]", False)
    A("s_branch L_B")
    A.label("L_A")
    A(f"s_load_dword {sTAG}, s[26:27], {EPOCH}")
    A(f"""s_mov_b32 s40, s4
          s_and_b32 s41, s5, 0xffff
          s_mov_b32 s42, 8192
          s_mov_b32 s43, 0x20000
          v_lshrrev_b32 {v(T+2)}, 5, v0
          v_and_b32 {v(T+4)}, 31, v0
          v_lshlrev_b32 {v(T+4)}, 4, {v(T+4)}
          v_lshl_or_b32 {v(T)}, {v(T+2)}, 10, {v(T+4)}
          buffer_load_dwordx4 {v(BIG,4)}, {v(T)}, {sX}, 0 offen
          buffer_load_dwordx4 {v(BIG+4,4)}, {v(T)}, {sX}, 0 offen offset:512
          s_mov_b32 s44, s10
          s_and_b32 s45, s11, 0xffff
          s_mov_b32 s46, {0 if 'q' in abl else 512*4096*2}
          s_mov_b32 s47, 0x20000
          v_and_b32 {v(T+3)}, 7, v0
          v_lshrrev_b32 {v(T+1)}, 3, {vL}
          v_and_b32 {v(T+5)}, 2, {v(T+1)}
          v_xor_b32 {v(T+3)}, {v(T+3)}, {v(T+5)}
          v_lshlrev_b32 {v(T+1)}, 13, {v(T+1)}
          v_lshl_or_b32 {v(T+1)}, {v(T+3)}, 4, {v(T+1)}
          v_xor_b32 {v(T+3)}, 64, {v(T+1)}
          s_and_b32 s74, s2, 7
          s_lshl_b32 s74, s74, 3
          s_lshr_b32 s75, s2, 5
          s_add_u32 {sLC}, s74, s75
          {"s_xor_b32 " + sLC + ", " + sLC + ", 4" if perm else ""}
          s_lshl_b32 s74, {sLC}, 7
          s_lshl_b32 s75, s3, 20
          s_add_u32 s74, s74, s75
          s_lshl_b32 s75, s3, 14
          s_add_u32 m0, s75, {WQ_L}""")
    for j in range(16):
        A(f"buffer_load_dwordx4 {v(T+3) if j & 1 else v(T+1)}, {sQ}, s74 offen nt lds")
        if j < 15: A(f"s_add_u32 s74, s74, {8*8192}\n s_add_u32 m0, m0, 1024")
        if j == XJ:
            A(f"s_mov_b32 s36, s26\n s_and_b32 s37, s27, 0xffff\n s_mov_b32 s38, {WS_END}\n s_mov_b32 s39, 0x20000")
            tagfin(A)
    stamp(7, True)
    def setupA():
        A(f"v_lshlrev_b32 {vVo}, 4, {vL}\n v_and_b32 {vN}, 15, v0")
        A("s_add_u32 s32, s8, s73\n s_addc_u32 s33, s9, 0\n s_and_b32 s33, s33, 0xffff\n s_mov_b32 s34, s30")
        for b in (32, 36, 40, 48, 52, 56, 60) + ((68,) if dbg else ()): A(f"s_mov_b32 s{b+3}, 0x20000")
        A(f"s_mov_b32 s40, s4\n s_and_b32 s41, s5, 0xffff\n s_mov_b32 s42, 8192")
        A(f"s_mov_b32 s36, s26\n s_and_b32 s37, s27, 0xffff\n s_mov_b32 s38, {WS_END}\n s_mov_b32 {sHI}, 0xffff0000")
        smov64(sM8, mask(lambda l: (l >> 3) & 1))
        A(f"""s_lshr_b32 {sT2}, s2, 5
              s_cmp_lt_u32 {sT2}, 7
              s_cselect_b32 {sROLE}, 1, 0
              s_cmp_eq_u32 {sCLS}, 3
              s_cselect_b32 {sROLE}, 3, {sROLE}
              s_cmp_eq_u32 {sCLS}, 2
              s_cselect_b32 {sROLE}, 2, {sROLE}
              s_cmp_eq_u32 {sCLS}, 1
              s_cselect_b32 {sROLE}, 3, {sROLE}""")
    sMODE = "s21"; PGA = "v243"
    def pgsetup():
        if bal: A(f"s_mov_b32 {sMODE}, 0\n v_mov_b32 {PGA}, {P_L + 4352}\n v_mov_b32 {v(T)}, 0\n ds_write_b32 {PGA}, {v(T)}\n ds_write_b32 {PGA}, {v(T)} offset:4")
        if bal and bal.get("cnt"):
            A(f"""s_and_b32 s0, s2, 7
                  s_mul_i32 s0, s0, {bal.get("mul", 3)}
                  s_lshr_b32 s22, s2, 3
                  s_add_u32 s22, s22, s0
                  s_and_b32 s22, s22, {256 // bal["cnt"] - 1}
                  s_lshl_b32 s22, s22, 7
                  s_lshl_b32 s0, s3, 4
                  s_add_u32 s22, s22, s0
                  s_add_u32 s22, s22, {PG}
                  s_add_u32 s66, s26, s22
                  s_addc_u32 s67, s27, 0
                  s_load_dwordx4 s[68:71], s[66:67], 0 glc""")
    def setup0(isB=True):
        for (b, p, sz) in ((48, 12, 0 if 'o' in abl else 4096*512*2), (52, 16, 0 if 'g' in abl else 512*1792*2), (56, 18, 0 if 'g' in abl else 512*1792*2), (60, 20, 0 if 'd' in abl else 1792*512*2)) + (((68, 24, 256),) if dbg else ()):
            A(f"s_mov_b32 s{b}, s{p}\n s_and_b32 s{b+1}, s{p+1}, 0xffff\n s_mov_b32 s{b+2}, {sz}")
        A(f"""s_mov_b64 s[18:19], s[22:23]
              s_mov_b32 {sLOG}, 0x3fb8aa3b
              s_mov_b32 {sSCALE}, 0x3db504f3
              s_mov_b32 {sCNT}, 0
              s_mov_b32 {sFF}, 0xff
              s_bfe_u32 {sCS}, s2, 0x30003
              s_and_b32 {sT}, s2, 7
              s_mul_i32 {sGI}, {sT}, 7
              s_add_u32 {sGI}, {sGI}, {sT2}
              s_lshl_b32 {sHEAD}, {sT}, 2
              s_lshr_b32 {sT}, s2, 6
              s_add_u32 {sHEAD}, {sHEAD}, {sT}""")
        smov64(sMV, mask(lambda l: (l & 1) == ((l >> 4) & 1)))
        A(f"""s_cmp_eq_u32 {sROLE}, 1
              s_cselect_b32 s54, s54, 0
              s_cselect_b32 s58, s58, 0
              s_cselect_b32 s62, s62, 0
              s_cmp_eq_u32 {sCLS}, 0
              s_cselect_b32 s24, -1, 0
              s_mov_b32 s25, s24""")
        if touch and isB:
            A(f"s_cmp_lg_u32 s3, 1\n s_cbranch_scc1 L_nt0\n s_mov_b64 exec, 1\n s_mov_b32 {sT}, 0x100000\n s_mov_b32 {sT2}, 0x200000\n s_lshl_b32 {sT3}, {sHEAD}, 17")
            for (srd, so) in ((sV, "0"), (sOut, "0"), (sW, sT), (sW, sT2), (sO, sT3), (sG, "0"), (sU, "0"), (sD, "0")):
                vm(f"buffer_load_dword v231, {vVo}, {srd}, {so} offen nt", False)
            A("s_mov_b64 exec, -1")
            A.label("L_nt0")
        if warm0 and isB:
            A("s_getpc_b64 s[0:1]")
            A(f"s_lshl_b32 {sT}, {sCS}, 2\n s_add_u32 {sT}, {sT}, s3\n s_lshl_b32 {sT}, {sT}, 10\n s_add_u32 s0, s0, {sT}\n s_addc_u32 s1, s1, 0")
            A(f"s_cmp_ge_u32 s2, 128\n s_cbranch_scc1 L_nw0")
            vm(f"global_load_dwordx4 {v(228,4)}, {vVo}, s[0:1]", False)
            A.label("L_nw0")
    def wsetup():
        A(f"""v_lshrrev_b32 {vWa}, 3, {vL}
              v_and_b32 {v(T+1)}, 2, {vWa}
              v_lshlrev_b32 {vWa}, 10, {vWa}
              v_and_b32 {v(T)}, 7, v0
              v_xor_b32 {v(T)}, {v(T)}, {v(T+1)}
              v_lshl_or_b32 {vWa}, {v(T)}, 4, {vWa}
              v_xor_b32 {vWa2}, 64, {vWa}
              v_lshrrev_b32 {v(T)}, 2, {vL}
              v_mul_u32_u24 {vWb}, 3584, {v(T)}
              v_and_b32 {v(T+1)}, 3, v0
              v_and_b32 {v(T)}, 2, {vG}
              v_xor_b32 {v(T+1)}, {v(T+1)}, {v(T)}
              v_lshl_add_u32 {vWb}, {v(T+1)}, 4, {vWb}
              v_xor_b32 {vWb2}, 16, {vWb}
              v_lshlrev_b32 {vWc}, 10, {vG}
              v_lshlrev_b32 {v(T)}, 1, {vG}
              v_xor_b32 {v(T)}, {v(T)}, {vN}
              v_lshl_or_b32 {vWc}, {v(T)}, 4, {vWc}
              v_xor_b32 {vWc2}, 128, {vWc}
              s_mul_i32 {sW2o}, s3, {128*3584}
              s_lshl_b32 {sT2}, {sGI}, 6
              s_add_u32 {sW2o}, {sW2o}, {sT2}
              s_lshl_b32 {sW2m}, s3, 14
              s_add_u32 {sW2m}, {sW2m}, {GU_L}
              s_lshl_b32 {sWo}, {sHEAD}, 17
              s_lshl_b32 {sT2}, {sCS}, 7
              s_add_u32 {sWo}, {sWo}, {sT2}
              s_lshl_b32 {sT2}, s3, 15
              s_add_u32 {sWo}, {sWo}, {sT2}
              s_lshl_b32 {sWm}, s3, 12
              s_add_u32 {sWm}, {sWm}, {WO_L}""")
    def consts1():
        A(f"""v_and_b32 {v(T)}, 1, v0
              v_cmp_eq_u32 vcc, 1, {v(T)}
              v_mov_b32 {v(T+1)}, 0x0c0c0100
              v_mov_b32 {v(T+2)}, 0x01000c0c
              v_cndmask_b32 {v(T+1)}, {v(T+1)}, {v(T+2)}, vcc
              v_mov_b32 {v(T+2)}, 0x0c0c0302
              v_mov_b32 {v(T+3)}, 0x03020c0c
              v_cndmask_b32 {v(T+2)}, {v(T+2)}, {v(T+3)}, vcc
              v_bfe_u32 {v(T)}, v0, 1, 1
              v_bfe_u32 {v(T+3)}, v0, 3, 1
              v_lshl_or_b32 {v(T)}, {v(T+3)}, 1, {v(T)}
              v_mov_b32 {v(T+3)}, 0x0c0c0c0c""")
        for r in range(4):
            A(f"""v_cmp_eq_u32 vcc, {r}, {v(T)}
                  v_cndmask_b32 {v(SEL+r)}, {v(T+3)}, {v(T+1)}, vcc
                  v_cndmask_b32 {v(SEL+4+r)}, {v(T+3)}, {v(T+2)}, vcc""")
    def consts2():
        A(f"s_mul_i32 {sT}, s3, 4608\n s_add_u32 {sT}, {sT}, {P_L}\n v_mov_b32 {vNINF}, 0xff800000")
        A(f"""v_bfe_u32 {v(T)}, v0, 4, 1
              v_lshlrev_b32 {vPw}, 7, {v(T)}
              v_and_b32 {v(T)}, 7, v0
              v_lshl_or_b32 {vPw}, {v(T)}, 4, {vPw}
              v_bfe_u32 {v(T)}, v0, 5, 1
              v_lshl_or_b32 {vPw}, {v(T)}, 3, {vPw}
              v_bfe_u32 {v(T)}, v0, 3, 1
              v_lshl_or_b32 {vPw}, {v(T)}, 2, {vPw}
              v_add_u32 {vPw}, {sT}, {vPw}
              v_and_b32 {v(T)}, 4, v0
              v_lshlrev_b32 {vPr}, 5, {v(T)}
              v_lshl_or_b32 {vPr}, {vG}, 5, {vPr}
              v_add_u32 {vPr}, {sT}, {vPr}
              v_mov_b32 {m01}, 0xff800000
              v_mov_b32 {m23}, 0xff800000
              v_mov_b32 {l01}, 0
              v_mov_b32 {l23}, 0""")
    def tc1():
        A(f"""s_lshl_b32 {sT}, s3, 11
              s_add_u32 {sT}, {sT}, {T0_L}
              v_bfe_u32 {v(T)}, v0, 4, 1
              v_lshlrev_b32 {vT0w}, 9, {v(T)}
              v_lshl_or_b32 {vT0w}, {vN}, 5, {vT0w}
              v_bfe_u32 {v(T)}, v0, 5, 1
              v_lshl_or_b32 {vT0w}, {v(T)}, 4, {vT0w}
              v_add_u32 {vT0w}, {sT}, {vT0w}
              v_lshlrev_b32 {vT0r}, 3, v0
              v_lshlrev_b32 {vL4}, 2, {vL}
              v_lshlrev_b32 {vL8}, 3, {vL}
              v_lshlrev_b32 {vT16}, 4, v0
              s_and_b32 {sT}, {sWV}, 28
              s_add_u32 {sT}, {sT}, s3
              s_lshl_b32 {sOPs}, {sT}, 14
              s_lshr_b32 {sT}, {sWV}, 6
              s_lshl_b32 {sT}, {sT}, 12
              s_add_u32 {sOPs}, {sOPs}, {sT}
              s_and_b32 {sT}, {sWV}, 3
              s_lshl_b32 {sT}, {sT}, 10
              s_add_u32 {sOPs}, {sOPs}, {sT}
              s_and_b32 {sT}, {sWV}, 32
              s_lshl_b32 {sT}, {sT}, 4
              s_add_u32 {sOPs}, {sOPs}, {sT}
              s_add_u32 {sOPs}, {sOPs}, {OP}
              s_lshl_b32 {sOPl}, {sHEAD}, 14
              s_lshl_b32 {sT}, s3, 12
              s_add_u32 {sOPl}, {sOPl}, {sT}
              s_add_u32 {sOPl}, {sOPl}, {OP}""")
    def tc2():
        A(f"""v_lshrrev_b32 {v(T)}, 5, v0
              v_and_b32 {v(T+1)}, 31, v0
              v_mul_u32_u24 {vOw}, 288, {v(T)}
              v_lshl_add_u32 {vOw}, {v(T+1)}, 3, {vOw}
              v_and_b32 {v(T)}, 7, v0
              v_mul_u32_u24 {v(T+1)}, 288, {v(T)}
              v_lshl_add_u32 {v(T+1)}, {vG}, 4, {v(T+1)}
              v_add_u32 {vBl}, {O_L}, {v(T+1)}
              v_lshlrev_b32 {vYs}, 4, {v(T)}
              v_bfe_u32 {v(T+1)}, v0, 4, 1
              v_lshl_or_b32 {vYs}, {v(T+1)}, 3, {vYs}
              v_and_b32 {v(T+1)}, 32, v0
              v_lshl_or_b32 {vYs}, {v(T+1)}, 7, {vYs}
              v_cndmask_b32 {vYs}, {vYs}, {vNINF}, {sM8}
              s_lshl_b32 {sYs}, {sCS}, 15
              s_lshl_b32 {sT}, {sHEAD}, 7
              s_add_u32 {sYs}, {sYs}, {sT}
              s_lshl_b32 {sT}, s3, 13
              s_add_u32 {sYs}, {sYs}, {sT}
              s_add_u32 {sYs}, {sYs}, {YP}
              v_lshrrev_b32 {v(T)}, 2, {vN}
              v_lshl_add_u32 {v(T)}, {vG}, 3, {v(T)}
              v_and_b32 {v(T+1)}, 3, v0
              v_lshlrev_b32 {vWOr}, 7, {v(T)}
              v_lshl_or_b32 {vWOr}, {v(T+1)}, 3, {vWOr}
              v_bfe_u32 {v(T+1)}, v0, 3, 2
              v_xor_b32 {v(T+1)}, s3, {v(T+1)}
              v_lshl_or_b32 {vWOr}, {v(T+1)}, 5, {vWOr}
              v_add_u32 {vWOr}, {WO_L}, {vWOr}
              v_and_b32 {vTB}, {sFF}, {vTAG}
              v_and_b32 {vEM}, 1, v0
              v_add_u32 {vEM}, {sFF}, {vEM}
              v_and_b32 {vEM}, {sFF}, {vEM}
""")
    def wdloads(thr=None, k0=0, k1=8):
        if k0 >= k1: return
        A(f"""s_lshl_b32 {sT2}, {sGI}, 15
              s_lshl_b32 {sT}, s3, 8
              s_add_u32 {sT2}, {sT2}, {sT}
              s_add_u32 {sT2}, {sT2}, {k0 * 4096}
              s_lshl_b32 {sT}, s3, 13
              s_add_u32 m0, {sT}, {WD_L + k0 * 1024}""")
        for k in range(k0, k1):
            if thr: A(f"s_waitcnt vmcnt({thr - 1})")
            A(f"buffer_load_dwordx4 {vWc2 if k & 2 else vWc}, {sD}, {sT2} offen nt lds")
            if k < k1 - 1: A(f"s_add_u32 {sT2}, {sT2}, 4096\n s_add_u32 m0, m0, 1024")
    setupA(); A(f"s_mov_b32 s75, {sT2}")
    A(f"v_mul_u32_u24 {v(T+2)}, {XN_S}, {v(T+2)}\n v_add_u32 {v(T+2)}, {v(T+2)}, {v(T+4)}")
    F = BIG + 8; G = F + 16
    def rowsum32(r, t):
        for k in (8, 4, 2, 1): A(f"v_add_f32_dpp {r}, {r}, {r} row_ror:{k} {DPPM}")
        A(f"v_mov_b32 {t}, {r}\n v_permlane16_swap_b32 {r}, {t}\n v_add_f32 {r}, {r}, {t}")
    def ln_scalars(mean, var, mb, rinv):
        A(f"""v_cvt_pk_bf16_f32 {rinv}, {mean}, {var}
              v_lshlrev_b32 {mb}, 16, {rinv}
              v_and_b32 {rinv}, {sHI}, {rinv}
              v_add_f32 {rinv}, 0x3727c5ac, {rinv}
              v_cvt_pk_bf16_f32 {rinv}, {rinv}, {rinv}
              v_lshlrev_b32 {rinv}, 16, {rinv}
              v_sqrt_f32 {rinv}, {rinv}
              v_cvt_pk_bf16_f32 {rinv}, {rinv}, {rinv}
              v_lshlrev_b32 {rinv}, 16, {rinv}
              v_rcp_f32 {rinv}, {rinv}""")
    A("s_waitcnt vmcnt(16)")
    stamp(1)
    for i in range(8): A(f"v_lshlrev_b32 {v(F+2*i)}, 16, {v(BIG+i)}\n v_and_b32 {v(F+2*i+1)}, {sHI}, {v(BIG+i)}")
    for i in range(4): A(f"v_pk_add_f32 {v(G+2*i,2)}, {v(F+2*i,2)}, {v(F+8+2*i,2)}")
    for i in range(2): A(f"v_pk_add_f32 {v(G+2*i,2)}, {v(G+2*i,2)}, {v(G+4+2*i,2)}")
    A(f"v_pk_add_f32 {v(G,2)}, {v(G,2)}, {v(G+2,2)}\n v_add_f32 {v(T+5)}, {v(G)}, {v(G+1)}")
    rowsum32(v(T+5), v(T+6))
    A(f"v_mul_f32 {v(T+5)}, 0x3b000000, {v(T+5)}")
    for i in range(16): A(f"v_sub_f32 {v(G+i)}, {v(F+i)}, {v(T+5)}")
    A(f"v_pk_mul_f32 {v(T+7,2)}, {v(G,2)}, {v(G,2)}")
    for i in range(1, 8): A(f"v_pk_fma_f32 {v(T+7,2)}, {v(G+2*i,2)}, {v(G+2*i,2)}, {v(T+7,2)}")
    A(f"v_add_f32 {v(T+7)}, {v(T+7)}, {v(T+8)}")
    rowsum32(v(T+7), v(T+6))
    A(f"v_mul_f32 {v(T+7)}, 0x3b000000, {v(T+7)}")
    ln_scalars(v(T+5), v(T+7), v(T+8), v(T+9))
    for i in range(16): A(f"v_sub_f32 {v(F+i)}, {v(F+i)}, {v(T+8)}")
    for i in range(8): A(f"v_cvt_pk_bf16_f32 {v(BIG+i)}, {v(F+2*i)}, {v(F+2*i+1)}")
    for i in range(8): A(f"v_lshlrev_b32 {v(F+2*i)}, 16, {v(BIG+i)}\n v_and_b32 {v(F+2*i+1)}, {sHI}, {v(BIG+i)}")
    for i in range(16): A(f"v_mul_f32 {v(F+i)}, {v(F+i)}, {v(T+9)}")
    for i in range(8): A(f"v_cvt_pk_bf16_f32 {v(BIG+i)}, {v(F+2*i)}, {v(F+2*i+1)}")
    A(f"ds_write_b128 {v(T+2)}, {v(BIG,4)} offset:{XN_L}\n ds_write_b128 {v(T+2)}, {v(BIG+4,4)} offset:{XN_L+512}")
    if wd0 == 1: setup0(False); wsetup()
    A(f"""v_and_b32 {v(T+3)}, 7, v0
          v_mul_u32_u24 {v(T)}, {XN_S}, {v(T+3)}
          v_lshl_add_u32 {v(T)}, {vG}, 4, {v(T)}
          v_lshrrev_b32 {v(T+1)}, 2, {vN}
          v_lshl_add_u32 {v(T+1)}, {vG}, 3, {v(T+1)}
          v_lshlrev_b32 {v(T+1)}, 7, {v(T+1)}
          v_and_b32 {v(T+3)}, 3, v0
          v_lshl_add_u32 {v(T+1)}, {v(T+3)}, 3, {v(T+1)}
          v_bfe_u32 {v(T+3)}, v0, 3, 2
          v_xor_b32 {v(T+3)}, s3, {v(T+3)}
          v_lshl_add_u32 {v(T+1)}, {v(T+3)}, 5, {v(T+1)}
          v_add_u32 {v(T+1)}, {WQ_L}, {v(T+1)}
          v_lshlrev_b32 {v(T+2)}, 14, {vN}
          v_lshl_add_u32 {v(T+2)}, {vG}, 4, {v(T+2)}
          s_lshl_b32 {sT}, s3, 6
          s_lshl_b32 {sT3}, {sLC}, 8
          s_add_u32 {sT3}, {sT}, {sT3}
          v_mov_b32 {v(O1+1)}, {vTAG}
          v_mov_b32 {v(O1+3)}, {vTAG}
          s_waitcnt vmcnt(0) lgkmcnt(0)""")
    if loc[0]: xl_load(A, v(T+12))
    if wd0 == 1: wdloads()
    for i in range(NO, NO + AK):
        n0 = len(ops); issue(i); del ops[n0:]; kv.pop()
    stamp(8, True)
    A("s_barrier")
    XF = 0; WF = 64
    for ks in range(16):
        A(f"ds_read_b128 {a(XF+4*ks)}, {v(T)} offset:{XN_L + ks*64}")
        A(f"ds_read_b64_tr_b16 {a(WF+4*ks,2)}, {v(T+1)} offset:{ks*4096}")
        A(f"ds_read_b64_tr_b16 {a(WF+4*ks+2,2)}, {v(T+1)} offset:{ks*4096 + 512}")
        if ks % 2 == 1 and ks >= 3:
            A("s_waitcnt lgkmcnt(6)")
            for k2 in range(ks - 3, ks - 1): mfma(v(O0,4), a(WF+4*k2), a(XF+4*k2), v(O0,4) if k2 else 0)
    A("s_waitcnt lgkmcnt(0)")
    for k2 in range(14, 16): mfma(v(O0,4), a(WF+4*k2), a(XF+4*k2), v(O0,4))
    A(f"v_cvt_pk_bf16_f32 {v(O1)}, {v(O0)}, {v(O0+1)}\n v_cvt_pk_bf16_f32 {v(O1+2)}, {v(O0+2)}, {v(O0+3)}")
    if loc[0]:
        A(f"s_waitcnt vmcnt({AK + (8 if wd0 == 1 else 0)})"); xl_eval(v(T+12))
        if stamps: A(f"s_mov_b32 s101, {sLOC}")
    A(f"s_not_b64 exec, {sM8}")
    lstore(f"buffer_store_dwordx4 {v(O1,4)}, {v(T+2)}, {sW}, {sT3} offen", loc[0])
    A("s_mov_b64 exec, -1")
    stamp(2)
    if wd0 != 1:
        A(f"s_mov_b32 {sT2}, s75"); setup0(False); wsetup()
    if wd0 == 2: wdloads()
    for f in (consts1, consts2, tc1, tc2, pgsetup): f()
    A("s_barrier\n s_branch L_J")
    A.label("L_B")
    items = []; consumed = [-1]; extras = {}
    def item(cost, fn, req=None, minstep=0): items.append((cost, req, minstep, fn))
    def extra(step, fn): extras.setdefault(step, []).append(fn)
    def retry_guard(back):
        A(f"s_add_u32 {sCNT}, {sCNT}, 1\n s_cmp_ge_u32 {sCNT}, {cap}\n s_cbranch_scc1 {back}")
        if sleep: A(f"s_sleep {sleep}")

    item(36, setupA); item(44, setup0); item(4, pgsetup); item(20, lambda: tagfin(lambda t: vm(t, False))); item(33, wsetup); item(26, consts1); item(22, consts2); item(28, tc1); item(44, tc2)

    def octet(dst):
        A(f"s_lshr_b32 {dst}, s2, 5\n s_lshl_b32 {dst}, {dst}, 3\n s_and_b32 s0, {sCLS}, 2\n s_lshl_b32 s0, s0, 1\n s_add_u32 {dst}, {dst}, s0\n s_add_u32 {dst}, {dst}, s3")
    def xr():
        A(f"""v_and_b32 {v(T+10)}, 7, v0
              v_lshlrev_b32 {v(T+10)}, 10, {v(T+10)}
              v_bfe_u32 {v(T+11)}, v0, 3, 1
              v_lshl_or_b32 {v(T+10)}, {v(T+11)}, 1, {v(T+10)}
              v_bfe_u32 {v(T+11)}, v0, 5, 1
              v_lshl_or_b32 {v(T+10)}, {v(T+11)}, 2, {v(T+10)}
              v_bfe_u32 {v(T+11)}, v0, 4, 1
              v_lshl_or_b32 {v(T+10)}, {v(T+11)}, 3, {v(T+10)}""")
        octet(sT); A(f"s_lshl_b32 {sT}, {sT}, 4")
        vm(f"buffer_load_ushort {vXR}, {v(T+10)}, {sX}, {sT} offen")
    def gu_op(j, f):
        A(f"s_add_u32 m0, {sW2m}, {(j&1)*8192 + (j>>1)*1024}")
        f(f"buffer_load_dwordx4 {vWb2 if j & 1 else vWb}, {sU if j & 1 else sG}, {sW2o} offen {wnt} lds")
        if j & 1: A(f"s_add_u32 {sW2o}, {sW2o}, {16*3584}")
    def wo_dma(f):
        for j in range(4):
            A(f"s_add_u32 m0, {sWm}, {j*1024}")
            f(f"buffer_load_dwordx4 {vWa2 if j & 1 else vWa}, {sO}, {sWo} offen nt lds")
            A(f"s_add_u32 {sWo}, {sWo}, 8192")
        if pre:
            A(f"""s_lshr_b32 {sT2}, {sWV}, 2
                  s_lshl_b32 {sT2}, {sT2}, 13
                  s_lshl_b32 {sT}, s3, 11
                  s_add_u32 {sT2}, {sT2}, {sT}
                  s_add_u32 {sT2}, {sT2}, {YP}
                  s_cmp_eq_u32 {sROLE}, 3
                  s_cselect_b32 {sT2}, {sT2}, 0x7f000000""")
            f(f"buffer_load_dwordx4 {v(224,4)}, {vVo}, {sW}, {sT2} offen sc1")
            f(f"buffer_load_dwordx4 {v(228,4)}, {vVo}, {sW}, {sT2} offen offset:1024 sc1")
    extra(IWO - 1, xr)
    def wo2(j):
        def f():
            A(f"s_cmp_eq_u32 {sROLE}, 2\n s_cbranch_scc0 L_w2{j}\n s_xor_b32 {sT}, {sWo}, 256\n s_add_u32 {sT}, {sT}, {j*8192}\n s_add_u32 m0, {sWm}, {16384 + j*1024}")
            vm(f"buffer_load_dwordx4 {vWa2 if j & 1 else vWa}, {sO}, {sT} offen nt lds", False)
            A.label(f"L_w2{j}")
        return f
    for j in range(4): extra(IW2 + 7 * j, wo2(j))
    GUF = 128; WDF = 192
    QT = 188; QAD = T + 13
    def qloads(f):
        for k in range(4):
            r = f(f"buffer_load_dwordx4 {v(QT+4*k,4)}, {v(QAD)}, {sW}, {sT3} offen offset:{(k>>1)*256 + (k&1)*16} sc1")
        return r
    def qload():
        A(f"""v_and_b32 {v(QAD)}, 3, v0
              v_lshlrev_b32 {v(QAD)}, 9, {v(QAD)}
              v_and_b32 {v(T+11)}, 4, v0
              v_add_u32 {v(T+11)}, {v(T+11)}, {vG}
              v_lshl_or_b32 {v(QAD)}, {v(T+11)}, 5, {v(QAD)}
              s_lshr_b32 {sT3}, {sWV}, 2
              s_lshl_b32 {sT3}, {sT3}, 11""")
        xl_load(vm, v(QT+16))
        st["q"] = qloads(vm)
    extra(IQ, qload)
    def qprep():
        wait_for(st["q"])
        A.label("L_qchk")
        A(f"""v_max3_u32 {v(T)}, {v(QT+1)}, {v(QT+3)}, {v(QT+5)}
              v_min3_u32 {v(T+1)}, {v(QT+1)}, {v(QT+3)}, {v(QT+5)}
              v_max3_u32 {v(T)}, {v(T)}, {v(QT+7)}, {v(QT+9)}
              v_min3_u32 {v(T+1)}, {v(T+1)}, {v(QT+7)}, {v(QT+9)}
              v_max3_u32 {v(T)}, {v(T)}, {v(QT+11)}, {v(QT+13)}
              v_min3_u32 {v(T+1)}, {v(T+1)}, {v(QT+11)}, {v(QT+13)}
              v_max3_u32 {v(T)}, {v(T)}, {v(QT+15)}, {sTAG}
              v_min3_u32 {v(T+1)}, {v(T+1)}, {v(QT+15)}, {sTAG}
              v_cmp_ne_u32 vcc, {v(T)}, {v(T+1)}
              s_cbranch_vccnz L_qretry""")
        A.label("L_qok")
        if bal: A(f"s_cmp_lg_u32 {sMODE}, 0\n s_cselect_b64 vcc, -1, 0")
        def o():
            A.label("L_qretry"); retry_guard("L_qok"); qloads(A); A("s_waitcnt vmcnt(0)\n s_branch L_qchk")
        ool.append(o)
        xl_eval(v(QT+16))
        stamp(4)
        if stamps and not bal: A(f"s_mov_b32 s100, {sCNT}")
        for c in range(2):
            for r in range(4):
                A(f"v_cndmask_b32 {v(QA+8*c+r)}, {v(QT+8*c+2*r)}, 0, {sM8}\n v_cndmask_b32 {v(QA+8*c+4+r)}, 0, {v(QT+8*c+2*r)}, {sM8}")
    item(32, qprep, minstep=IQ + D + ES + 1)
    def kitem(i):
        def f():
            u = i >> 3; d = DS + 8 * (u & 1) + 4 * ((i >> 2) & 1); o = (i >> 1) & 1; c = i & 1
            if 'm' not in abl: mfma(v(d,4), v(QA+8*c+4*o,4), a(slot(i)), v(d,4) if i & 3 else 0)
            consumed[0] = i
        return f
    def post(u):
        def f():
            d = DS + 8 * (u & 1)
            if 'x' in abl: return
            for r in range(4): A(f"v_cndmask_b32 {v(T+r)}, {v(d+4+r)}, {v(d+r)}, {sMV}")
            A(f"""v_permlane16_swap_b32 {v(T)}, {v(T+1)}
                  v_permlane16_swap_b32 {v(T+2)}, {v(T+3)}
                  v_add_f32_dpp {v(T)}, {v(T+1)}, {v(T)} quad_perm:[1,0,3,2] {DPPM}
                  v_add_f32_dpp {v(T+2)}, {v(T+3)}, {v(T+2)} quad_perm:[1,0,3,2] {DPPM}
                  v_cvt_pk_bf16_f32 {v(T)}, {v(T)}, {v(T+2)}
                  v_and_b32 {v(T+1)}, {sHI}, {v(T)}
                  v_lshlrev_b32 {v(T)}, 16, {v(T)}
                  v_mul_f32 {v(T+1)}, {sSCALE}, {v(T+1)}
                  v_mul_f32 {v(T)}, {sSCALE}, {v(T)}
                  v_cvt_pk_bf16_f32 {v(T)}, {v(T)}, {v(T+1)}
                  v_lshlrev_b32 {v(S+2*u)}, 16, {v(T)}
                  v_and_b32 {v(S+2*u+1)}, {sHI}, {v(T)}""")
            if 8 * u < NO:
                A(f"v_cndmask_b32 {v(S+2*u)}, {v(S+2*u)}, {vNINF}, {sOPT}\n v_cndmask_b32 {v(S+2*u+1)}, {v(S+2*u+1)}, {vNINF}, {sOPT}")
            A(f"""v_max_f32 {m01}, {m01}, {v(S+2*u)}
                  v_max_f32 {m23}, {m23}, {v(S+2*u+1)}""")
        return f
    for i in range(NK):
        item(3, kitem(i), req=i)
        if i >= 8 and (i & 7) == 3: item(22, post((i >> 3) - 1))
    item(26, post(16))
    def allred2(op, x, y):
        for k in (8, 4, 2, 1): A(f"{op}_dpp {x}, {x}, {x} row_ror:{k} {DPPM}\n {op}_dpp {y}, {y}, {y} row_ror:{k} {DPPM}")
    def half2(op, x, y):
        A(f"""v_mov_b32 {v(T)}, {x}
              v_mov_b32 {v(T+1)}, {y}
              v_permlane32_swap_b32 {x}, {v(T)}
              v_permlane32_swap_b32 {y}, {v(T+1)}
              {op} {x}, {x}, {v(T)}
              {op} {y}, {y}, {v(T+1)}""")
    def maxred():
        stamp(5)
        allred2("v_max_f32", m01, m23); half2("v_max_f32", m01, m23)
        A(f"v_mul_f32 {nm01}, {sLOG}, {m01}\n v_mul_f32 {nm23}, {sLOG}, {m23}")
    item(22, maxred)
    done = set()
    def expi(u):
        def f():
            done.add(u)
            A(f"""v_fma_f32 {v(T)}, {v(S+2*u)}, {sLOG}, -{nm01}
                  v_fma_f32 {v(T+1)}, {v(S+2*u+1)}, {sLOG}, -{nm23}
                  v_exp_f32 {v(T)}, {v(T)}
                  v_exp_f32 {v(T+1)}, {v(T+1)}
                  v_add_f32 {l01}, {l01}, {v(T)}
                  v_add_f32 {l23}, {l23}, {v(T+1)}
                  v_cvt_pk_bf16_f32 {v(T+2)}, {v(T)}, {v(T+1)}
                  ds_write_b32 {vPw}, {v(T+2)} offset:{u*256}""")
        return f
    def areg(j):
        k = j - (NK - PB)
        return A0 if k < 0 else (32 + 8 * k if k < 4 else 68 + 8 * (k - 4))
    def rdi(k):
        def f():
            p = vorder[k]; assert (p >> 1) in done
            A(f"ds_read_b128 {v(PP + 4 * (k & 7),4)}, {vPr} offset:{(p >> 1) * 256 + (p & 1) * 16}")
        return f
    def vperm(j):
        def f():
            p = PP + (j & 31)
            if 'x' in abl: return
            if (j & 15) == 0: A("s_waitcnt lgkmcnt(0)")
            for uu in range(2):
                for r in range(4): A(f"v_perm_b32 {v(areg(j)+4*uu+r)}, {v(p)}, {v(p)}, {v(SEL+4*uu+r)}")
        return f
    def vmm(j):
        def f():
            i = NK + j
            if 'm' in abl:
                consumed[0] = i; return
            mfma(v(O0,4), v(areg(j),4), a(slot(i)), v(O0,4) if j else 0)
            mfma(v(O1,4), v(areg(j)+4,4), a(slot(i)), v(O1,4) if j else 0)
            consumed[0] = i
        return f
    def mlpub():
        allred2("v_add_f32", l01, l23); half2("v_add_f32", l01, l23)
        A(f"""v_and_b32 {v(T+2)}, 16, v0
              s_lshl_b32 {sT}, {sWV}, 2
              s_add_u32 {sT}, {sT}, s3
              s_lshl_b32 {sT}, {sT}, 5
              s_add_u32 {sT}, {sT}, {ML}
              v_bfi_b32 {v(220)}, {sHI}, {m01}, {vTAG}
              v_bfi_b32 {v(221)}, {sHI}, {m23}, {vTAG}
              v_bfi_b32 {v(222)}, {sFF}, {vTAG}, {l01}
              v_bfi_b32 {v(223)}, {sFF}, {vTAG}, {l23}
              s_mov_b64 exec, 0x10001""")
        lstore(f"buffer_store_dwordx4 {v(220,4)}, {v(T+2)}, {sW}, {sT} offen", loc[1], vm)
        A("s_mov_b64 exec, -1")
    GM = 188; GA = T + 14
    def mlload():
        A(f"""v_and_b32 {v(GA)}, 16, v0
              v_lshl_or_b32 {v(GA)}, {vN}, 5, {v(GA)}
              s_lshr_b32 {sT3}, {sWV}, 2
              s_lshl_b32 {sT3}, {sT3}, 9
              s_add_u32 {sT3}, {sT3}, {ML}""")
        st["ml"] = vm(f"buffer_load_dwordx4 {v(GM,4)}, {v(GA)}, {sW}, {sT3} offen sc1")
    def mlfac1():
        wait_for(st["ml"])
        A.label("L_mlchk")
        A(f"""v_bitop3_b32 {v(T)}, {v(GM)}, {v(GM+1)}, {vTAG} bitop3:0x7e
              v_bitop3_b32 {v(T+1)}, {v(GM+2)}, {v(GM+3)}, {vTAG} bitop3:0x7e
              v_lshlrev_b32 {v(T)}, 16, {v(T)}
              v_and_or_b32 {v(T)}, {v(T+1)}, {sFF}, {v(T)}
              v_cmp_ne_u32 vcc, 0, {v(T)}
              s_cbranch_vccnz L_mlretry""")
        A.label("L_mlok")
        if bal: A(f"s_cmp_lg_u32 {sMODE}, 0\n s_cselect_b64 vcc, -1, 0")
        def o():
            A.label("L_mlretry"); retry_guard("L_mlok")
            A(f"buffer_load_dwordx4 {v(GM,4)}, {v(GA)}, {sW}, {sT3} offen sc1\n s_waitcnt vmcnt(0)\n s_branch L_mlchk")
        ool.append(o)
        A(f"v_and_b32 {v(GM)}, {sHI}, {v(GM)}\n v_and_b32 {v(GM+1)}, {sHI}, {v(GM+1)}\n v_xor_b32 {v(GM+2)}, {v(GM+2)}, {vTB}\n v_xor_b32 {v(GM+3)}, {v(GM+3)}, {vTB}\n v_mov_b32 {v(GM+4)}, {v(GM)}\n v_mov_b32 {v(GM+5)}, {v(GM+1)}")
        allred2("v_max_f32", v(GM+4), v(GM+5))
        A(f"""v_sub_f32 {v(GM)}, {v(GM)}, {v(GM+4)}
              v_sub_f32 {v(GM+1)}, {v(GM+1)}, {v(GM+5)}
              v_sub_f32 {f01}, {m01}, {v(GM+4)}
              v_sub_f32 {f23}, {m23}, {v(GM+5)}
              v_mul_f32 {v(GM)}, {sLOG}, {v(GM)}
              v_mul_f32 {v(GM+1)}, {sLOG}, {v(GM+1)}
              v_mul_f32 {f01}, {sLOG}, {f01}
              v_mul_f32 {f23}, {sLOG}, {f23}""")
    def mlfac2():
        A(f"""v_exp_f32 {v(GM)}, {v(GM)}
              v_exp_f32 {v(GM+1)}, {v(GM+1)}
              v_exp_f32 {f01}, {f01}
              v_exp_f32 {f23}, {f23}
              v_mul_f32 {v(GM)}, {v(GM)}, {v(GM+2)}
              v_mul_f32 {v(GM+1)}, {v(GM+1)}, {v(GM+3)}""")
        allred2("v_add_f32", v(GM), v(GM+1))
        A(f"""v_rcp_f32 {v(GM)}, {v(GM)}
              v_rcp_f32 {v(GM+1)}, {v(GM+1)}
              v_mul_f32 {f01}, {f01}, {v(GM)}
              v_mul_f32 {f23}, {f23}, {v(GM+1)}""")
    uorder = list(dict.fromkeys(p >> 1 for p in vorder))
    for k in range(3): item(9, expi(uorder[k]))
    for k in range(4): item(1, rdi(k))
    ne = 3
    for j in range(NK):
        t = j & 7
        if j < NK - PB: item(9, vperm(j))
        if PB and NK - PB - 4 <= j < NK - PB: item(9, vperm(NK - PB + 2 * (j - (NK - PB - 4)))); item(9, vperm(NK - PB + 2 * (j - (NK - PB - 4)) + 1))
        item(5, vmm(j), req=NK + j)
        if (j & 15) == (12 if j < 112 or not PB else 4):
            for k in range(4 * (j >> 4) + 4, min(34, 4 * (j >> 4) + 8)): item(1, rdi(k))
        if t in (0, 2, 4, 6) and ne < 17:
            item(9, expi(uorder[ne])); ne += 1
            if ne == 17: item(28, mlpub)
        if NK + j == IML + 2: item(36, mlfac1)
        if NK + j == IML + 4: item(22, mlfac2)
    extra(IML, mlload)
    if warm1:
        def cw():
            A("s_getpc_b64 s[0:1]")
            A.label("L_pc")
            A(f"s_add_u32 s0, s0, L_tail-L_pc\n s_addc_u32 s1, s1, 0\n v_lshlrev_b32 {v(T+10)}, 4, v0")
            vm(f"global_load_dwordx4 {v(228,4)}, {v(T+10)}, s[0:1]")
        extra(IML - 8, cw)

    if roll:
        def rp(k, stubs_):
            def f():
                A(f"s_lshr_b32 {sT}, s2, 3\n s_and_b32 {sT}, {sT}, {roll['mask']}\n s_cmp_lg_u32 {sT}, {(5 * k) & roll['mask']}\n s_cbranch_scc1 L_nr{k}\n s_getpc_b64 s[0:1]")
                A.label(f"L_rp{k}")
                A(f"s_add_u32 s0, s0, {'L_end-L_rp' + str(k) if stubs_ else roll['dist']}\n s_addc_u32 s1, s1, 0")
                vm(f"global_load_dwordx4 {v(228,4)}, {vT16}, s[0:1]", False)
                A.label(f"L_nr{k}")
            return f
        k = 0
        for stp in range(roll["first"], 236, roll["per"]):
            extra(stp, rp(k, False)); k += 1
        for stp in roll.get("st", []):
            extra(stp, rp(k, True)); k += 1
    sMODE = "s21"; sPG = "s22"; PGV = T + 12; PGA = "v243"
    if bal:
        assert not dbg
        one = bal.get("one")
        def ck(k, stp):
            def f():
                if bal.get("cnt"):
                    A(f"s_cmp_lg_u32 s3, {k & 3}\n s_cbranch_scc1 L_np{k}\n s_mov_b32 s64, 1\n s_atomic_add s64, s[66:67], {(k >> 2) * 4} glc")
                    A.label(f"L_np{k}")
                    return
                c = (5 + 3 * k) % 32
                if one: A(f"s_cmp_lg_u32 s3, {k & 3}\n s_cbranch_scc1 L_np{k}")
                A(f"""s_and_b32 {sT}, s2, 7
                      s_mul_i32 {sT2}, {sT}, {c}
                      s_lshr_b32 {sPG}, s2, 3
                      s_add_u32 {sPG}, {sPG}, {sT2}
                      s_add_u32 {sPG}, {sPG}, {(11 * k) % 32}
                      s_and_b32 s0, {sPG}, 31
                      s_and_b32 {sPG}, {sPG}, {bal.get("ns", 32) - 1}
                      s_lshl_b32 {sPG}, {sPG}, 7
                      s_add_u32 {sPG}, {sPG}, {PG + k * 4096}
                      s_load_dwordx8 s[64:71], s[26:27], {sPG} {bal.get("glc", "glc")}""")
                if k == 2 and "v" in stouch: A("s_load_dword s16, s[32:33], 0 glc")
                if k == 8 and "w" in stouch: A(f"s_load_dword s16, s[48:49], {sWo} glc\n s_load_dword s17, s[18:19], {sCS} glc")
                if k == 9 and "w" in stouch: A(f"s_load_dword s16, s[52:53], {sW2o} glc\n s_load_dword s17, s[56:57], {sW2o} glc\n s_load_dword s20, s[60:61], {sW2o} glc")
                if k == 10 and "x" in stouch: A(f"s_lshl_b32 s16, s2, 8\n s_add_u32 s16, s16, 0x210000\n s_load_dword s16, s[26:27], s16 glc")
                if not one: A(f"s_cmp_lg_u32 s3, {k & 3}\n s_cbranch_scc1 L_np{k}")
                if bal.get("ns", 32) < 32: A(f"s_cmp_ge_u32 s0, {bal['ns']}\n s_cbranch_scc1 L_np{k}")
                A(f"""s_lshl_b32 {sT}, {sT}, 2
                      s_xor_b32 {sPG}, {sPG}, {bal.get("sep", 0) * 128}
                      s_add_u32 {sPG}, {sPG}, {sT}""")
                if bal.get("vst"):
                    A("s_mov_b64 exec, 1")
                    vm(f"buffer_store_dword {vTAG}, {vL4}, {sW}, {sPG} offen sc1", False)
                    A("s_mov_b64 exec, -1")
                else: A(f"s_atomic_swap {sTAG}, s[26:27], {sPG}")
                A.label(f"L_np{k}")
            def setmode():
                if bal.get("noA"): A(f"s_min_u32 {sMODE}, {sMODE}, {sCLS}")
                A(f"s_cmp_lg_u32 {sMODE}, 0\n s_cselect_b64 vcc, -1, 0")
                if stamps: A(f"s_add_u32 s100, s100, {sMODE}")
            def g():
                if one: A(f"s_cmp_lg_u32 s3, {k & 3}\n s_cbranch_scc1 L_ng{k}")
                A(f"s_waitcnt lgkmcnt(0)\n s_cmp_eq_u32 {sCLS}, 0\n s_cselect_b32 {sT}, {bal.get('aoff', 0)}, 0")
                if bal.get("cnt"): A(f"s_add_u32 {sT}, {sT}, s64\n s_sub_u32 {sT}, {sT}, s{68 + (k >> 2)}")
                else:
                    for r in range(64, 72): A(f"s_cmp_eq_u32 s{r}, {sTAG}\n s_addc_u32 {sT}, {sT}, 0")
                A(f"s_cmp_lt_i32 {sT}, {bal['th']}\n s_cselect_b32 {sMODE}, 1, 0")
                if "th2" in bal: A(f"s_cmp_lt_i32 {sT}, {bal['th2']}\n s_cselect_b32 {sMODE}, 2, {sMODE}")
                if one:
                    A(f"v_mov_b32 {v(PGV)}, {sMODE}\n ds_write_b32 {PGA}, {v(PGV)}")
                    A.label(f"L_ng{k}")
                else: setmode()
            iw = bal.get("iw")
            def h1():
                A(f"ds_read_b32 {v(PGV)}, {PGA}")
                if iw: A(f"v_mov_b32 {v(T+15)}, 1\n s_mov_b64 exec, 1\n ds_add_rtn_u32 {v(T+15)}, {PGA}, {v(T+15)} offset:4\n s_mov_b64 exec, -1")
            def h2():
                A(f"s_waitcnt lgkmcnt(0)\n v_readfirstlane_b32 {sMODE}, {v(PGV)}\n s_and_b32 {sMODE}, {sMODE}, 3")
                if iw:
                    A(f"v_readfirstlane_b32 {sT}, {v(T+15)}\n s_and_b32 {sT}, {sT}, 3")
                    if iw & 1: A(f"s_cmp_eq_u32 {sT}, 0\n s_cselect_b32 {sMODE}, 1, {sMODE}")
                    if iw & 2: A(f"s_cmp_eq_u32 {sT}, 3\n s_cselect_b32 {sMODE}, 0, {sMODE}")
                setmode()
            return f, g, h1, h2
        k = 0
        for stp in range(bal["first"], bal["last"] + 1, bal["per"]):
            f, g, h1, h2 = ck(k, stp); lg_ = bal.get("lag", 7)
            extra(stp, f); extra(stp + lg_, g)
            if one: extra(stp + lg_ + 2, h1); extra(stp + lg_ + 3, h2)
            k += 1
        assert k <= 32
    qi = [0]
    def run_items(step, bud):
        while qi[0] < len(items):
            cost, req, ms, fn = items[qi[0]]
            if cost > bud or step < ms: break
            if req is not None and (req >= len(kv) or kv[req] > known[0]): break
            fn(); bud -= cost; qi[0] += 1
    run_items(0, 104)
    nsetup = 9
    def tgt(i, d):
        kvs = set(kv)
        j = i - d
        lo = max(j - ES, NO + D)
        for k in range(lo, j):
            if any(o not in kvs for o in range(kv[k] + 1, kv[k + 1])): return kv[k]
        return kv[j]
    stubs = []
    ool.append(lambda: A.lines.extend(stubs))
    def drain(limit):
        q = qi[0]
        while q < len(items):
            cost, req, ms, fn = items[q]
            if req is not None:
                if req >= limit: break
                wait_for(kv[req])
            fn(); q += 1
    for i in range(D0, NS):
        if i == NO + AK:
            assert qi[0] == nsetup and all(k >= NO + AK for k in extras) and AK % 4 == 0
            A.label("L_J")
        if i == NS - NO:
            assert "L_mlok:" in A.lines
            A(f"s_cmp_eq_u32 {sCLS}, 0\n s_cbranch_scc1 L_adrain")
            sv = (list(ops), known[0], consumed[0], list(A.hist), len(A.lines))
            A.label("L_adrain")
            for j in range(GE): gu_op(j, vm)
            drain(i)
            if warmA:
                A("s_getpc_b64 s[0:1]")
                A.label("L_pca")
                A(f"s_sub_u32 s0, s0, L_pca-L_tail\n s_subb_u32 s1, s1, 0\n v_lshlrev_b32 {v(T+10)}, 4, v0")
                A(f"global_load_dwordx4 {v(228,4)}, {v(T+10)}, s[0:1]")
            A("s_nop 7"); A.raw("    s_branch L_tail")
            cut = A.lines[sv[4]:]; del A.lines[sv[4]:]
            ool.append(lambda: A.lines.extend(cut))
            ops[:] = sv[0]; known[0] = sv[1]; consumed[0] = sv[2]; A.hist = sv[3]
        if offpre: issue(i, 1)
        if bal and bal["first"] + bal.get("lag", 7) + 3 < i < bal["off"]:
            A.raw(f"    s_cbranch_vccnz L_s{i}"); A.raw(f"L_b{i}:")
            lo_ = bal.get('lo2', bal['lo']) if i >= IEND else bal['lo']
            if "th2" in bal:
                stubs.append(f"L_s{i}:\n    s_cmp_eq_u32 {sMODE}, 1\n    s_waitcnt vmcnt({after(kv[i - lo_])})\n    s_cbranch_scc1 L_b{i}\n    s_waitcnt vmcnt({after(kv[i - lo_ + 1])})\n    s_branch L_b{i}")
            else: stubs.append(f"L_s{i}:\n    s_waitcnt vmcnt({after(kv[i - lo_])})\n    s_branch L_b{i}")
        wait_for(tgt(i, DEND if i >= IEND else DST if i < IS else D))
        assert consumed[0] >= prevocc(i), (i, consumed[0])
        issue(i, 2 if offpre else 3)
        for fn in extras.pop(i, []): fn()
        run_items(i, budget)
    assert not extras, extras
    lag = NS - 1 - consumed[0]
    wo_dma(vm); drain(NS)
    A(f"; end lag {lag}")

    A.label("L_tail")
    stamp(6)
    X = 96; DM = 88; BL = 8; PS = 176
    for r in (0, 2): A(f"v_pk_mul_f32 {v(O0+r,2)}, {v(O0+r,2)}, {v(122,2)} op_sel_hi:[1,0]")
    A(f"ds_write_b128 {vT0w}, {v(O0,4)}")
    for r in (0, 2): A(f"v_pk_mul_f32 {v(O1+r,2)}, {v(O1+r,2)}, {v(122,2)} op_sel:[0,1]")
    A(f"ds_write_b128 {vT0w}, {v(O1,4)} offset:1024")
    A("s_waitcnt lgkmcnt(0)\n s_barrier")
    A(f"""ds_read2st64_b64 {v(DM,4)}, {vT0r} offset0:0 offset1:4
          ds_read2st64_b64 {v(DM+4,4)}, {vT0r} offset0:8 offset1:12
          s_waitcnt lgkmcnt(1)
          v_pk_add_f32 {v(DM,2)}, {v(DM,2)}, {v(DM+2,2)}
          s_waitcnt lgkmcnt(0)
          v_pk_add_f32 {v(DM+4,2)}, {v(DM+4,2)}, {v(DM+6,2)}
          v_pk_add_f32 {v(DM,2)}, {v(DM,2)}, {v(DM+4,2)}
          v_bfi_b32 {v(DM)}, {vEM}, {vTAG}, {v(DM)}
""")
    lstore(f"buffer_store_dwordx2 {v(DM,2)}, {vL8}, {sW}, {sOPs} offen", loc[2])
    stamp(1, "t")
    def poll(name, n, loads, body, S, tau, pre_issued=False):
        if pre_issued: A(f"s_branch L_{name}b")
        A.label(f"L_{name}")
        A(f"s_add_u32 {sCNT}, {sCNT}, 1\n s_cmp_lt_u32 {sCNT}, {cap}")
        A.raw(f"    s_cbranch_scc0 L_{name}ok")
        loads(PS)
        A.label(f"L_{name}b")
        body(PS, 0)
        A(f"s_cbranch_vccnz L_{name}")
        A.label(f"L_{name}ok")
    MK = ["s[28:29]", "s[30:31]", "s[32:33]", "s[34:35]"]
    def mpl(name, n, ld, chk, sel, spec, init=None):
        p = PS
        for k in range(n): A(f"s_mov_b64 {MK[k]}, -1")
        if init: init()
        A.label(f"L_{name}")
        for k in range(n): A(f"s_wqm_b64 exec, {MK[k]}\n {ld(p, k)}")
        A("s_mov_b64 exec, -1")
        for k in range(n):
            if k == 0: A("s_waitcnt vmcnt(0)")
            A(chk(p, k))
            A(f"v_cmp_ne_u32_sdwa {MK[k]}, {v(T+k)}, {v(T+15)} src0_sel:{sel} src1_sel:DWORD")
            if k % 2 == 1:
                spec(p, k)
                A(f"s_or_b64 vcc, {MK[k-1]}, {MK[k]}" if k == 1 else f"s_or_b64 vcc, vcc, {MK[k-1]}\n s_or_b64 vcc, vcc, {MK[k]}")
        A(f"s_cbranch_scc0 L_{name}ok\n s_add_u32 {sCNT}, {sCNT}, 1\n s_cmp_lt_u32 {sCNT}, {cap}\n s_cbranch_scc1 L_{name}")
        A.label(f"L_{name}ok")
    def cmp_tag(reg, sel): A(f"v_cmp_ne_u32_sdwa vcc, {reg}, {v(T+15)} src0_sel:{sel} src1_sel:DWORD")
    A(f"v_mov_b32 {v(T+15)}, 0\n ds_write_b32 {vL4}, {v(T+15)} offset:{Z_L}")
    vT2 = "v240"; sM11 = "s30"; sHS = "s31"
    def t2bits(dst):
        A(f"s_and_b32 {sT}, {sTAG}, 1\n s_bfe_u32 {sT3}, {sTAG}, 0x10001\n s_lshl_b32 {sT3}, {sT3}, 16\n s_or_b32 {sT}, {sT}, {sT3}\n v_mov_b32 {dst}, {sT}")
    def l1(p):
        for k in range(4): A(f"buffer_load_dwordx4 {v(p+4*k,4)}, {vVo}, {sW}, {sOPl} offen offset:{k*1024} sc1")
    def tcommon():
        t2bits(vT2)
        A(f"s_mov_b32 {sM11}, 0x10001\n s_and_b32 {sHS}, s2, 7\n s_lshl_b32 {sHS}, {sHS}, 14\n s_add_u32 {sHS}, {sHS}, {HB}")
    A(f"s_cmp_eq_u32 {sCLS}, 0\n s_cbranch_scc1 L_t3")
    l1(PS)
    tcommon()
    A(f"s_waitcnt vmcnt({7 if pre else 5})")
    stamp(3)
    A("s_barrier")
    for ks in range(8):
        for t2 in range(2): A(f"ds_read_b64_tr_b16 {v(WOF+4*ks+2*t2,2)}, {vWOr} offset:{ks*4096 + t2*512}")
        if ks == 5: A("s_waitcnt lgkmcnt(8)")
    A(f"s_xor_b32 {sA}, {sYs}, {2 << 15}")
    A.label("L_t1s")
    def l1(p):
        for k in range(4): A(f"buffer_load_dwordx4 {v(p+4*k,4)}, {vVo}, {sW}, {sOPl} offen offset:{k*1024} sc1")
    def b1(p, n):
        A(f"""s_waitcnt vmcnt({n+2})
              v_xor_b32 {v(p)}, {v(p)}, {vTB}
              v_xor_b32 {v(p+4)}, {v(p+4)}, {vTB}
              v_pk_add_f32 {v(X+2,2)}, {v(p+2,2)}, {v(p+6,2)}
              v_pk_add_f32 {v(X,2)}, {v(p,2)}, {v(p+4,2)}
              v_or_b32 {v(T)}, {v(p)}, {v(p+4)}
              s_waitcnt vmcnt({n})
              v_xor_b32 {v(p+8)}, {v(p+8)}, {vTB}
              v_xor_b32 {v(p+12)}, {v(p+12)}, {vTB}
              v_or3_b32 {v(T)}, {v(T)}, {v(p+8)}, {v(p+12)}""")
        cmp_tag(v(T), "BYTE_0")
        A(f"v_pk_add_f32 {v(X+4,2)}, {v(p+8,2)}, {v(p+12,2)}\n v_pk_add_f32 {v(X+6,2)}, {v(p+10,2)}, {v(p+14,2)}")
    if mpoll[0]:
        mpl("t1", 4, lambda p, k: f"buffer_load_dwordx4 {v(p+4*k,4)}, {vVo}, {sW}, {sOPl} offen offset:{k*1024} sc1",
            lambda p, k: f"v_bitop3_b32 {v(T+k)}, {v(p+4*k)}, {v(p+4*k+2)}, {vTAG} bitop3:0x7e", "BYTE_0",
            lambda p, k: A(f"v_pk_add_f32 {v(X+2*k-2,2)}, {v(p+4*k-4,2)}, {v(p+4*k,2)}\n v_pk_add_f32 {v(X+2*k,2)}, {v(p+4*k-2,2)}, {v(p+4*k+2,2)}"))
    else:
        poll("t1", 4, l1, b1, NS_[0], tau[0], True)
    A(f"""v_pk_add_f32 {v(X,2)}, {v(X,2)}, {v(X+4,2)}
          v_pk_add_f32 {v(X+2,2)}, {v(X+2,2)}, {v(X+6,2)}
          v_cvt_pk_bf16_f32 {v(X)}, {v(X)}, {v(X+1)}
          v_cvt_pk_bf16_f32 {v(X+1)}, {v(X+2)}, {v(X+3)}
          ds_write_b64 {vOw}, {v(X,2)} offset:{O_L}""")
    stamp(2, "t")
    A("s_waitcnt lgkmcnt(0)\n s_barrier")
    for ks in range(4): A(f"ds_read_b128 {v(BL+4*ks,4)}, {vBl} offset:{ks*64}")
    A(f"s_cmp_eq_u32 {sROLE}, 2")
    for ks in range(4):
        if ks in (0, 2): A(f"s_waitcnt lgkmcnt({2-ks})")
        mfma(v(DM+4,4), v(WOF+4*ks,4), v(BL+4*ks,4), v(DM+4,4) if ks else 0)
    for ks in range(4): mfma(v(X+4,4), v(WOF+16+4*ks,4), v(BL+4*ks,4), v(X+4,4) if ks else 0)
    A(f"""v_cvt_pk_bf16_f32 {v(DM+2)}, {v(DM+4)}, {v(DM+5)}
          v_cvt_pk_bf16_f32 {v(DM+3)}, {v(DM+6)}, {v(DM+7)}
          v_bfi_b32 {v(DM+2)}, {sM11}, {vT2}, {v(DM+2)}
          buffer_store_dwordx2 {v(DM+2,2)}, {vYs}, {sW}, {sYs} offen sc1
          s_cbranch_scc0 L_t1one
          v_cvt_pk_bf16_f32 {v(DM+4)}, {v(X+4)}, {v(X+5)}
          v_cvt_pk_bf16_f32 {v(DM+5)}, {v(X+6)}, {v(X+7)}
          v_bfi_b32 {v(DM+4)}, {sM11}, {vT2}, {v(DM+4)}
          buffer_store_dwordx2 {v(DM+4,2)}, {vYs}, {sW}, {sA} offen sc1""")
    stamp(7)
    A("s_branch L_t5s")
    A.label("L_t1one")
    stamp(7)
    Y = X; SA = 108
    vRa, vRb, vRc, vRd, vRe, vRf, vRg, vRh = [v(i) for i in range(240, 248)]
    vK1 = vRg
    def selector():
        A(f"""v_xor_b32 {v(T+2)}, {sM11}, {vT2}
              v_cndmask_b32 {vK1}, {vT2}, {v(T+2)}, {sM8}
              v_and_b32 {v(T+2)}, 1, v0
              v_lshlrev_b32 {v(T+2)}, 4, {v(T+2)}
              v_mov_b32 {v(T+3)}, 0x3f80
              v_lshlrev_b32 {v(T+3)}, {v(T+2)}, {v(T+3)}
              v_bfe_u32 {v(T+1)}, v0, 1, 2""")
        for r in range(4): A(f"v_cmp_eq_u32 vcc, {r}, {v(T+1)}\n v_cndmask_b32 {v(SA+r)}, 0, {v(T+3)}, vcc")
    octet(sT2)
    A(f"""s_lshl_b32 {sA}, {sT2}, 12
          s_add_u32 {sA}, {sA}, {YP}
          s_lshl_b32 {sB}, {sT2}, 8
          s_add_u32 {sB}, {sB}, {sHS}
          s_mov_b32 s32, 0
          s_mov_b32 s33, -1
          v_and_b32 {vRb}, 7, v0
          v_lshlrev_b32 {vRb}, 4, {vRb}
          v_bfe_u32 {v(T)}, v0, 3, 1
          v_lshl_or_b32 {vRb}, {v(T)}, 2, {vRb}
          v_bfe_u32 {v(T)}, v0, 5, 1
          v_lshl_or_b32 {vRb}, {v(T)}, 3, {vRb}
          v_bfe_u32 {v(T)}, v0, 4, 1
          v_lshl_or_b32 {vRb}, {v(T)}, 7, {vRb}
          v_lshlrev_b32 {vXR}, 16, {vXR}""")
    selector()
    def l2(p):
        for k in range(4): A(f"buffer_load_dwordx4 {v(p+4*k,4)}, {vVo}, {sW}, {sA} offen offset:{k*1024} sc1")
    def b2(p, n):
        for k in range(4):
            if k % 2 == 0: A(f"s_waitcnt vmcnt({n + 2 - k})")
            A(f"""v_bitop3_b32 {v(T+k)}, {v(p+4*k)}, {v(p+4*k+2)}, {vT2} bitop3:0x7e
                  v_xor_b32 {v(p+4*k)}, {v(p+4*k)}, {vK1}
                  v_xor_b32 {v(p+4*k+2)}, {v(p+4*k+2)}, {vK1}""")
            if k: mfma(v(Y,4), v(SA,4), v(p+4*k-4,4), v(Y,4) if k > 1 else 0)
        A(f"v_or3_b32 {v(T)}, {v(T)}, {v(T+1)}, {v(T+2)}")
        mfma(v(Y,4), v(SA,4), v(p+12,4), v(Y,4))
        A(f"v_bitop3_b32 {v(T)}, {v(T)}, {v(T+3)}, {sM11} bitop3:0xa8\n v_cmp_ne_u32 vcc, 0, {v(T)}")
    if dlyr == "ack": A("s_waitcnt vmcnt(0)")
    elif dlyr: A(f"s_sleep {dlyr}")
    poll("r", 4, l2, b2, 1, 0)
    stamp(3, "t")
    A(f"""v_cndmask_b32 {v(Y)}, {v(Y)}, {v(Y+2)}, s[32:33]
          v_cndmask_b32 {v(Y+1)}, {v(Y+1)}, {v(Y+3)}, s[32:33]
          v_cndmask_b32 {v(Y+2)}, {v(Y+1)}, {v(Y)}, {sM8}
          v_cndmask_b32 {v(Y)}, {v(Y)}, {v(Y+1)}, {sM8}
          v_add_f32_dpp {v(Y)}, {v(Y+2)}, {v(Y)} row_ror:8 {DPPM}
          v_cvt_pk_bf16_f32 {v(Y)}, {v(Y)}, {v(Y)}
          v_and_b32 {v(Y)}, {sHI}, {v(Y)}
          v_add_f32 {v(Y)}, {v(Y)}, {vXR}
          v_cvt_pk_bf16_f32 {v(Y)}, {v(Y)}, {v(Y)}
          v_bfi_b32 {v(Y)}, {sHI}, {v(Y)}, {vTAG}""")
    lstore(f"buffer_store_dword {v(Y)}, {vRb}, {sW}, {sB} offen", loc[3])
    stamp(4, "t")
    A("s_cmp_lg_u32 s3, 0\n s_cbranch_scc1 L_fin")
    A(f"""s_cmp_lg_u32 {sWV}, 1
          s_cbranch_scc1 L_fin
          v_mov_b32 {v(Y+2)}, {EPOCH}
          s_mov_b64 exec, 1
          buffer_store_dword {vTAG}, {v(Y+2)}, {sW}, 0 offen sc1
          s_mov_b64 exec, -1
          s_branch L_fin""")
    A.label("L_t5s")
    HV = X + 8
    A(f"s_cmp_lg_u32 s3, 0\n s_cbranch_scc1 L_fin")
    A(f"s_mov_b32 s64, s18\n s_and_b32 s65, s19, 0xffff\n s_mov_b32 s66, {0 if 'O' in abl else 8192}\n s_mov_b32 s67, 0x20000")
    A(f"""s_and_b32 {sT2}, s2, 7
          s_lshr_b32 {sT}, s2, 5
          s_lshl3_add_u32 {sT2}, {sT2}, {sT}
          s_mul_i32 {sA}, {sT2}, 7168
          s_add_u32 {sA}, {sA}, {PD}
          s_add_u32 {sB}, {sA}, 4096""")
    def l5(p):
        for k in range(7): A(f"buffer_load_dwordx4 {v(p+4*k,4)}, {vVo}, {sW}, {sA if k < 4 else sB} offen offset:{(k&3)*1024} sc1")
    if dly is None: l5(PS)
    selector()
    A(f"""s_lshl_b32 {sDd}, {sT2}, 4
          s_lshl_b32 {sC}, {sT2}, 8
          s_add_u32 {sC}, {sC}, {sHS}
          s_mov_b32 s32, 0
          s_mov_b32 s33, -1
          v_and_b32 {v(T)}, 7, v0
          v_lshlrev_b32 {vRd}, 4, {v(T)}
          v_lshlrev_b32 {vRc}, 10, {v(T)}
          v_bfe_u32 {v(T)}, v0, 3, 1
          v_lshl_or_b32 {vRd}, {v(T)}, 2, {vRd}
          v_lshl_or_b32 {vRc}, {v(T)}, 1, {vRc}
          v_bfe_u32 {v(T)}, v0, 5, 1
          v_lshl_or_b32 {vRd}, {v(T)}, 3, {vRd}
          v_lshl_or_b32 {vRc}, {v(T)}, 2, {vRc}
          v_bfe_u32 {v(T)}, v0, 4, 1
          v_lshl_or_b32 {vRd}, {v(T)}, 7, {vRd}
          v_lshl_or_b32 {vRc}, {v(T)}, 3, {vRc}""")
    A.label("L_t5h")
    A(f"""buffer_load_dword {v(HV)}, {vRd}, {sW}, {sC} offen sc1
          s_waitcnt vmcnt(0)
          v_xor_b32 {v(T)}, {v(HV)}, {vTAG}""")
    cmp_tag(v(T), "WORD_0")
    A(f"s_cbranch_vccz L_t5hok\n s_add_u32 {sCNT}, {sCNT}, 1\n s_cmp_lt_u32 {sCNT}, {cap}\n s_cbranch_scc1 L_t5h")
    A.label("L_t5hok")
    A(f"v_and_b32 {v(HV)}, {sHI}, {v(HV)}")
    def b5(p, n):
        for k in range(7):
            A(f"""s_waitcnt vmcnt({6 - k})
                  v_bitop3_b32 {v(T+k)}, {v(p+4*k)}, {v(p+4*k+2)}, {vT2} bitop3:0x7e
                  v_xor_b32 {v(p+4*k)}, {v(p+4*k)}, {vK1}
                  v_xor_b32 {v(p+4*k+2)}, {v(p+4*k+2)}, {vK1}""")
            if k: mfma(v(Y,4), v(SA,4), v(p+4*k-4,4), v(Y,4) if k > 1 else 0)
            if k in (2, 4): A(f"v_or3_b32 {v(T)}, {v(T)}, {v(T+k-1)}, {v(T+k)}")
        A(f"v_or_b32 {v(T)}, {v(T)}, {v(T+5)}")
        mfma(v(Y,4), v(SA,4), v(p+24,4), v(Y,4))
        A(f"v_bitop3_b32 {v(T)}, {v(T)}, {v(T+6)}, {sM11} bitop3:0xa8\n v_cmp_ne_u32 vcc, 0, {v(T)}")
    poll("t5", 7, l5, b5, 1, 0)
    stamp(3, "t")
    A(f"""v_cndmask_b32 {v(Y)}, {v(Y)}, {v(Y+2)}, s[32:33]
          v_cndmask_b32 {v(Y+1)}, {v(Y+1)}, {v(Y+3)}, s[32:33]
          v_cndmask_b32 {v(Y+2)}, {v(Y+1)}, {v(Y)}, {sM8}
          v_cndmask_b32 {v(Y)}, {v(Y)}, {v(Y+1)}, {sM8}
          v_add_f32_dpp {v(Y)}, {v(Y+2)}, {v(Y)} row_ror:8 {DPPM}
          v_cvt_pk_bf16_f32 {v(Y)}, {v(Y)}, {v(Y)}
          v_and_b32 {v(Y)}, {sHI}, {v(Y)}
          v_add_f32 {v(Y)}, {v(Y)}, {v(HV)}""")
    if pert:
        import struct
        h_ = hex(struct.unpack("<I", struct.pack("<f", pert[0]))[0])
        if pert[1]: A(f"s_cmp_eq_u32 {sT2}, 5\n s_cselect_b64 exec, 1, 0")
        A(f"v_add_f32 {v(Y)}, {h_}, {v(Y)}\n s_mov_b64 exec, -1")
    A(f"""v_cvt_pk_bf16_f32 {v(Y)}, {v(Y)}, {v(Y)}
          buffer_store_short {v(Y)}, {vRc}, {sOut}, {sDd} offen {osc}""")
    stamp(4, "t")
    A("s_branch L_fin")
    A.label("L_t3")
    A(f"s_cmp_eq_u32 {sROLE}, 0\n s_cbranch_scc1 L_fin")
    for j in range(GE, GM_):
        A(f"s_waitcnt vmcnt({GW - 1})"); gu_op(j, A)
    tcommon()
    vWd = "v248"
    A(f"""v_lshrrev_b32 {v(T)}, 2, {vN}
          v_lshl_add_u32 {v(T)}, {vG}, 3, {v(T)}
          v_lshlrev_b32 {vWd}, 8, {v(T)}
          v_lshlrev_b32 {v(T)}, 6, {v(T)}
          v_bfe_u32 {v(T+1)}, v0, 1, 1
          v_lshl_add_u32 {v(T)}, {v(T+1)}, 13, {v(T)}
          v_bfe_u32 {v(T+2)}, v0, 4, 1
          v_lshl_or_b32 {v(T+1)}, {v(T+2)}, 1, {v(T+1)}
          v_xor_b32 {v(T+1)}, s3, {v(T+1)}
          v_lshl_add_u32 {v(T)}, {v(T+1)}, 4, {v(T)}
          v_and_b32 {v(T+1)}, 1, v0
          v_lshl_add_u32 {v(T)}, {v(T+1)}, 3, {v(T)}
          v_add_u32 {v(T+9)}, {GU_L}, {v(T)}""")
    A(f"""v_and_b32 {v(T+1)}, 1, v0
          v_lshl_or_b32 {vWd}, {v(T+1)}, 4, {vWd}
          v_bfe_u32 {v(T+1)}, v0, 2, 3
          v_bfe_u32 {v(T+2)}, v0, 1, 1
          v_xor_b32 {v(T+1)}, {v(T+1)}, {v(T+2)}
          v_lshl_or_b32 {vWd}, {v(T+1)}, 5, {vWd}
          s_lshl_b32 {sWm}, s3, 13
          s_add_u32 {sWm}, {sWm}, {WD_L}""")
    def wdfrags():
        for k in range(8):
            A(f"v_xor_b32 {v(T)}, {(4*(k>>2) + 2*(k&1))*32}, {vWd}\n v_add_u32 {v(T)}, {sWm}, {v(T)}")
            for t2 in range(2): A(f"ds_read_b64_tr_b16 {a(WDF+4*k+2*t2,2)}, {v(T)} offset:{t2*1024 + ((k>>1)&1)*8}")
            if k in (3, 7): A("s_waitcnt lgkmcnt(4)")
    PK = 96; HF = 8; DG = 144; CS = 116; SS = 120; SR = 72; sSEL = "s28"; sONE = "s29"
    A(f"""v_and_b32 {v(T)}, 7, v0
          v_bfe_u32 {v(T+1)}, v0, 3, 1
          v_mul_u32_u24 {vRc}, {XN_S}, {v(T)}
          v_and_b32 {v(T+2)}, 56, v0
          v_add_u32 {vRb}, {vRc}, {v(T+2)}
          s_lshl_b32 {sT}, s3, 8
          v_add_u32 {vRb}, {sT}, {vRb}
          v_lshl_add_u32 {vRc}, {vG}, 4, {vRc}
          v_mul_u32_u24 {vRe}, 80, {v(T)}
          v_lshl_add_u32 {vRd}, {vG}, 2, {vRe}
          s_lshl_b32 {sT}, s3, 4
          v_add_u32 {vRd}, {sT}, {vRd}
          v_lshlrev_b32 {vRf}, 6, {v(T)}
          v_lshl_or_b32 {v(T+3)}, {vG}, 4, {vRf}
          v_lshl_or_b32 {vRf}, {v(T+1)}, 2, {vRf}
          v_bfe_u32 {v(T+2)}, v0, 4, 1
          v_lshl_or_b32 {vRf}, {v(T+2)}, 3, {vRf}
          v_bfe_u32 {v(T+2)}, v0, 5, 1
          v_lshl_or_b32 {vRf}, {v(T+2)}, 1, {vRf}
          s_lshl_b32 {sT}, s3, 4
          v_add_u32 {vRf}, {sT}, {vRf}
          v_lshl_add_u32 {vRh}, {v(T+1)}, 2, {vG}
          v_mul_u32_u24 {vRh}, 7168, {vRh}
          v_lshl_add_u32 {vRh}, {v(T)}, 4, {vRh}
          s_mul_i32 {sB}, s3, {16*7168}
          s_lshl_b32 {sT}, {sGI}, 7
          s_add_u32 {sB}, {sB}, {sT}
          s_add_u32 {sB}, {sB}, {PD}
          s_add_u32 {sDd}, {sB}, {8*7168}
          v_add_u32 {v(T+3)}, {A_L}, {v(T+3)}
          v_mov_b32 {v(T+4)}, {Z_L}
          v_cndmask_b32 {vB3}, {v(T+3)}, {v(T+4)}, {sM8}
          v_cndmask_b32 {vBh}, {v(T+4)}, {v(T+3)}, {sM8}
          s_lshl_b32 {sA}, s3, 12
          s_add_u32 {sA}, {sA}, {sHS}
          s_mov_b32 {sSEL}, 0x07060302
          s_mov_b32 {sONE}, 0x3f803f80
          s_mov_b32 {sC}, 0""")
    for i in range(8): A(f"v_mov_b32 {v(PK+i)}, {sONE}")
    A("s_branch L_t3lok")
    A.label("L_t3s")
    if dlyb: A(f"s_sleep {dlyb}")
    def l3(p):
        for k in range(4): A(f"buffer_load_dwordx4 {v(p+4*k,4)}, {vNINF if 'H' in abl and k >= 2 else vVo}, {sW}, {sA} offen offset:{k*1024} sc1")
    def pk(p, k): A(f"v_perm_b32 {v(PK+2*k)}, {v(p+4*k+1)}, {v(p+4*k)}, {sSEL}\n v_perm_b32 {v(PK+2*k+1)}, {v(p+4*k+3)}, {v(p+4*k+2)}, {sSEL}")
    def dots(i): A(f"v_dot2_f32_bf16 {v(SS)}, {v(PK+i)}, {sONE}, {v(SS) if i else 0}\n v_dot2_f32_bf16 {v(SS+1)}, {v(PK+i)}, {v(PK+i)}, {v(SS+1) if i else 0}")
    def b3(p, n):
        A(f"s_waitcnt vmcnt({n+2})\n v_bitop3_b32 {v(T)}, {v(p)}, {v(p+4)}, {vTAG} bitop3:0x7e")
        pk(p, 0); pk(p, 1)
        for i in range(4): dots(i)
        A(f"s_waitcnt vmcnt({n})\n v_bitop3_b32 {v(T+1)}, {v(p+8)}, {v(p+12)}, {vTAG} bitop3:0x7e\n v_or_b32 {v(T)}, {v(T)}, {v(T) if 'H' in abl else v(T+1)}")
        cmp_tag(v(T), "WORD_0")
        pk(p, 2); pk(p, 3)
    poll("t3l", 4, l3, b3, NS_[2], tau[2])
    stamp(3, "t")
    for k in range(4): A(f"ds_write_b64 {vRb}, {v(PK+2*k,2)} offset:{H_L + k*64}")
    for i in range(4, 8): dots(i)
    A(f"""s_nop 2
          v_permlane16_swap_b32 {v(SS)}, {v(SS+1)}
          v_add_f32 {v(SS)}, {v(SS)}, {v(SS+1)}
          v_add_f32_dpp {v(SS)}, {v(SS)}, {v(SS)} row_ror:8 {DPPM}
          ds_write_b32 {vRd}, {v(SS)} offset:{ST_L}
          s_waitcnt lgkmcnt(0)
          s_barrier""")
    stamp(4, "t")
    for ks in range(2): A(f"ds_read_b128 {v(HF+4*ks,4)}, {vRc} offset:{H_L + ks*64}")
    for k in range(4): A(f"ds_read_b128 {v(SR+4*k,4)}, {vRe} offset:{ST_L + k*16}")
    for ks in range(2, 10): A(f"ds_read_b128 {v(HF+4*ks,4)}, {vRc} offset:{H_L + ks*64}")
    z = v(T); z2 = v(T+1); mean = v(T+2); mb = v(T+3); rinv = v(T+4)
    sc = f"""v_pk_add_f32 {v(SR,2)}, {v(SR,2)}, {v(SR+2,2)}
          v_pk_add_f32 {v(SR+4,2)}, {v(SR+4,2)}, {v(SR+6,2)}
          v_pk_add_f32 {v(SR+8,2)}, {v(SR+8,2)}, {v(SR+10,2)}
          v_pk_add_f32 {v(SR+12,2)}, {v(SR+12,2)}, {v(SR+14,2)}
          v_pk_add_f32 {v(SR,2)}, {v(SR,2)}, {v(SR+4,2)}
          v_pk_add_f32 {v(SR+8,2)}, {v(SR+8,2)}, {v(SR+12,2)}
          v_pk_add_f32 {v(SR,2)}, {v(SR,2)}, {v(SR+8,2)}
          v_mul_f32 {mean}, 0x3b000000, {v(SR)}
          v_mul_f32 {z}, 0x3b000000, {v(SR+1)}
          v_fma_f32 {z}, -{mean}, {mean}, {z}
          v_max_f32 {z}, 0, {z}
          v_cvt_pk_bf16_f32 {rinv}, {mean}, {z}
          v_lshlrev_b32 {mb}, 16, {rinv}
          v_and_b32 {rinv}, {sHI}, {rinv}
          v_add_f32 {rinv}, 0x3727c5ac, {rinv}
          v_cvt_pk_bf16_f32 {rinv}, {rinv}, {rinv}
          v_lshlrev_b32 {rinv}, 16, {rinv}
          v_sqrt_f32 {rinv}, {rinv}
          v_cvt_pk_bf16_f32 {rinv}, {rinv}, {rinv}
          v_lshlrev_b32 {rinv}, 16, {rinv}
          v_rcp_f32 {rinv}, {rinv}
          v_mul_f32 {mb}, {mb}, {rinv}
          v_mul_f32 {v(T+5)}, {mb}, {v(CS)}
          v_mul_f32 {v(T+6)}, {mb}, {v(CS+1)}""".split("\n")
    if tdiag: A("s_waitcnt lgkmcnt(0)")
    order = [0, 1, "s", "s", "s", "s"] + list(range(2, 10))
    si = 0
    for ks in range(16):
        upto = {0: 1, 2: 5, 6: 9, 10: 12, 13: 15}
        if ks in upto: A(f"s_waitcnt lgkmcnt({len(order) - 1 - order.index(upto[ks])})")
        mfma(v(DG,4), a(GUF+4*ks), v(HF+4*ks,4), v(DG,4) if ks else 0)
        if ks < 6:
            A(f"ds_read_b128 {v(HF+4*(ks+10),4)}, {vRc} offset:{H_L + (ks+10)*64}"); order.append(ks + 10)
        if ks >= 2:
            for _ in range(1 if ks < 6 else 2):
                if si < len(sc): A(sc[si]); si += 1
    while si < len(sc): A(sc[si]); si += 1
    g_, u_ = v(T+7), v(T+8)
    A(f"""v_mov_b32 {z2}, 0xc0135761
          v_permlane32_swap_b32 {v(DG)}, {v(DG+1)}
          v_permlane32_swap_b32 {v(DG+2)}, {v(DG+3)}
          v_cndmask_b32 {v(DG)}, {v(DG)}, {v(DG+2)}, {sM8}
          v_cndmask_b32 {v(DG+1)}, {v(DG+1)}, {v(DG+3)}, {sM8}
          v_fma_f32 {g_}, {v(DG)}, {rinv}, -{v(T+5)}
          v_fma_f32 {u_}, {v(DG+1)}, {rinv}, -{v(T+6)}
          v_cvt_pk_bf16_f32 {u_}, {g_}, {u_}
          v_lshlrev_b32 {g_}, 16, {u_}
          v_mul_f32 {z}, {g_}, {g_}
          v_fmac_f32 {z2}, 0xbdd2d3e8, {z}
          v_mul_f32 {z}, {z2}, {g_}
          v_exp_f32 {z}, {z}
          v_and_b32 {u_}, {sHI}, {u_}
          v_add_f32 {z}, 1.0, {z}
          v_rcp_f32 {z}, {z}
          s_cmp_eq_u32 {sC}, 0
          v_mul_f32 {z}, {z}, {g_}
          v_cvt_pk_bf16_f32 {z}, {z}, {z}
          v_lshlrev_b32 {z}, 16, {z}
          v_mul_f32 {z}, {z}, {u_}
          v_cvt_pk_bf16_f32 {z}, {z}, {z}
          ds_write_b16 {vRf}, {z} offset:{A_L}
          s_cselect_b32 s38, 0, {WS_END}
          s_waitcnt lgkmcnt(0)
          s_barrier
          ds_read_b128 {v(BL,4)}, {vB3}
          ds_read_b128 {v(BL+4,4)}, {vBh}""")
    stamp(5, "t")
    A("s_waitcnt lgkmcnt(0)")
    DP = 148
    for i in range(4):
        mfma(v(DP+4*i,4), a(WDF+8*i), v(BL,4), 0)
        mfma(v(DP+4*i,4), a(WDF+8*i+4), v(BL+4,4), v(DP+4*i,4))
    for p_ in range(2):
        for q_ in range(4): A(f"v_cvt_pk_bf16_f32 {v(164+4*p_+q_)}, {v(DP+8*p_+2*q_)}, {v(DP+8*p_+2*q_+1)}")
        for q_ in (0, 2): A(f"v_bfi_b32 {v(164+4*p_+q_)}, {sM11}, {vT2}, {v(164+4*p_+q_)}")
        A(f"buffer_store_dwordx4 {v(164+4*p_,4)}, {vRh}, {sW}, {(sB, sDd)[p_]} offen sc1")
    stamp(8, "t")
    A(f"""s_cbranch_scc0 L_fin
          s_mov_b32 {sC}, 1
          s_mov_b32 s38, {WS_END}""")
    for j in range(GM_, 16):
        A(f"s_waitcnt vmcnt({GW - 1})"); gu_op(j, A)
    wdloads(GW)
    A("s_waitcnt vmcnt(8)")
    stamp(3)
    A("s_barrier")
    for k in range(16):
        for t2 in range(2): A(f"ds_read_b64_tr_b16 {a(GUF+4*k+2*t2,2)}, {v(T+9)} offset:{(k>>2)*16384 + (k&3)*2048 + t2*256}")
        if k % 4 == 3: A("s_waitcnt lgkmcnt(4)")
    A("s_waitcnt lgkmcnt(0)")
    for k in range(16): mfma(v(DG,4), a(GUF+4*k), v(PK,4), v(DG,4) if k else 0)
    A("s_waitcnt vmcnt(0)")
    wdfrags()
    A(f"""v_permlane32_swap_b32 {v(DG)}, {v(DG+1)}
          v_permlane32_swap_b32 {v(DG+2)}, {v(DG+3)}
          v_cndmask_b32 {v(CS)}, {v(DG)}, {v(DG+2)}, {sM8}
          v_cndmask_b32 {v(CS+1)}, {v(DG+1)}, {v(DG+3)}, {sM8}""")
    stamp(8)
    A("s_branch L_t3s")
    A.label("L_fin")
    if padto:
        if padwg is not None: A(f"s_cmp_lg_u32 s2, {padwg}\n s_cbranch_scc1 L_end")
        A.label("L_pad")
        A(f"s_memrealtime s[82:83]\n s_waitcnt lgkmcnt(0)\n s_sub_u32 s82, s82, s80\n s_cmp_lt_u32 s82, {padto}\n s_cbranch_scc1 L_pad")
    if stamps:
        A("s_waitcnt vmcnt(0)")
        stamp(9)
        A("s_getreg_b32 s0, hwreg(HW_REG_XCC_ID)\n s_waitcnt lgkmcnt(0)\n v_mov_b32 v8, 0")
        for k in range(10): A(f"v_writelane_b32 v8, s{80+2*k}, {k}")
        A(f"v_writelane_b32 v8, s0, 10\n v_writelane_b32 v8, {sCNT}, 11\n v_writelane_b32 v8, {sROLE}, 12\n v_writelane_b32 v8, s100, 13\n v_writelane_b32 v8, s101, 14\n s_getreg_b32 s0, hwreg(HW_REG_HW_ID)\n v_writelane_b32 v8, s0, 15")
        if dbg:
            A(f"s_not_b32 s0, s80\n v_writelane_b32 v8, s0, 10\n s_mov_b64 exec, 0xffff\n buffer_atomic_umax v8, {vL4}, {sDbg}, 0 offen sc1\n s_endpgm")
        A(f"s_lshl_b32 s0, s2, 2\n s_add_u32 s0, s0, s3\n s_lshl_b32 s0, s0, 8\n s_add_u32 s0, s0, 0x10000000\n s_add_u32 s26, s26, s0\n s_addc_u32 s27, s27, 0")
        A(f"v_lshlrev_b32 v9, 2, {vL}\n global_store_dword v9, v8, s[26:27]")
    A.label("L_end")
    A("s_endpgm")
    for o in ool: o()
    if warm0 or warm1: A.raw(".rept 3000\n s_endpgm\n.endr")
    elif roll: A.raw(".rept 520\n s_endpgm\n.endr")
    A.raw('.section .rodata,"a"\n.p2align 6')
    A.raw(f".amdhsa_kernel {NAME}_kernel")
    A.raw("""  .amdhsa_next_free_vgpr 512
  .amdhsa_next_free_sgpr 102
  .amdhsa_accum_offset 256
  .amdhsa_group_segment_fixed_size 0
  .amdhsa_kernarg_size 96
  .amdhsa_user_sgpr_count 2
  .amdhsa_user_sgpr_kernarg_segment_ptr 1
  .amdhsa_system_sgpr_workgroup_id_x 1
  .amdhsa_float_denorm_mode_32 3
.end_amdhsa_kernel""")
    return A.text()

if __name__ == "__main__":
    if len(sys.argv) > 1:
        cfgs = json.loads(sys.argv[1])
        for k, c in cfgs.items(): open(f"k_{k}.s", "w").write(gen(**c))
        print(" ".join(f"work/k_{k}.s" for k in cfgs))
    else:
        open(f"cdna_kernels/{NAME}.s", "w").write(gen())
```

```python
import sys, json
sys.path.insert(0, "work")
from asmlib import Asm
NAME = "sequential_preLN__gqa_block_cached__geglu_ffn__decode"

Q_OFF = 0x0
EPOCH = 0x40000
CLR = 0x100000
YP = CLR
OP = CLR + 0x80000
ML = CLR + 0x100000
HB = CLR + 0x40000
PD = CLR + 0x10C000
WS_END = PD + 64 * 7168
XL = 0x50000
PG = 0x60000
XN_L = 0; XN_S = 1056
P_L = 8448
WO_L = P_L + 4 * 4608
GU_L = WO_L + 16384
WD_L = GU_L + 65536
WQ_L = GU_L
LDS_SZ = WD_L + 32768
T0_L = 0; O_L = P_L; Z_L = P_L + 4096; R_L = 0
H_L = WO_L; ST_L = P_L + 8192; A_L = P_L + 8192 + 768

def mask(f):
    v = 0
    for l in range(64):
        if f(l): v |= 1 << l
    return v

def gen(D=6, D0=8, IQ=52, budget=44, stamps=False, wnt="", IML=214, cap=200000, kvflag="nt",
        sleep=0, IEND=256, DEND=9, IWO=100, sdiag=False, warm0=False, warm1=False, abl="", kpat="p8", dbg=False, tdiag=False, bal="def",
        touch=False, osc="", vflag=None, ES=0, WOS=4, perm=True, VS=2, V0=1, rot=0, pre=False, NS_=(1, 1, 1, 1), tau=(0, 0, 0, 0), gate=0, adum=True, EA=1, kpair=0, vpair=0, GW=5, GE=4, rsh=0, mp=(12, 13, 15, 14), padto=0, padwg=None, ldsx=0, mpoll=(0, 0, 0, 0), otouch=None, loc=(1, 1, 1, 1), XJ=1, stouch="", PB=8, pert=None, IS=0, DST=8, dly=None, dlyr="ack", dlyb=None, early=False, AK=0, warmA=True, half=True, roll=dict(mask=15, dist=1536, first=33, per=28, st=[35, 150]), roll0=15, wd0=0, wds=4, IW2=176, GM_=9, offpre=True, wb=0, gq=None, ph=None, bm=None, BU=(1, 1), BD=(0, 0), fh=(0,), fl=(0,)):
    A = Asm()
    if bal == "def": bal = None if dbg else dict(lo=5, first=46, per=16, last=241, th=4, off=272, lag=8, one=1, aoff=-3, sep=16, lo2=7)
    hdr = [l for l in open("cdna_kernels/" + NAME + ".s.ref").read().split("\n") if l.startswith(";") and "@launch" not in l]
    for l in hdr: A.raw(l)
    A.raw(f"; @launch grid=(256,1,1) block=(256,1,1) lds={LDS_SZ + ldsx}")
    for l in """
; One persistent launch, 256 workgroups x 4 waves (one workgroup per CU, all co-resident).
;   ids: x = wg&7 = kv head, b = wg>>5, split = (wg>>3)&3; the 4 workgroups of a (b, kv head) share its 8192 keys.
;   class A (one per group) first computes LN(x) @ wq for 64 columns and takes 26 of the 128 key rows, the others 34.
;   K phase: 8-key x 128-byte loads straight into an AGPR ring, QK^T by MFMA, scores rounded like the reference.
;   V phase: exact per-wave max, P in LDS, PV by MFMA with a diagonal A operand; (max, sum) exchanged per group.
;   tail: o partials -> o @ wo (per head, 64 columns) -> sum over heads + x (one copy of h per id&7 set) -> class A:
;         LN folded into gate/up, gelu*up, @ w_down partials -> final sum + h.  Every hand-off carries a tag (previous
;         tag in d_ws + 1) that the reader strips again; plain stores only when all readers reported the same XCC id.
;   loads in flight per wave are 6, or 5 while the workgroup is ahead of most of its sampled peers.""".strip().split("\n"): A.raw(l)
    A.raw('.amdgcn_target "amdgcn-amd-amdhsa--gfx950"')
    A.raw(".text"); A.raw(f".globl {NAME}_kernel"); A.raw(".p2align 8"); A.raw(f".type {NAME}_kernel,@function")
    A.label(f"{NAME}_kernel")
    if bm:
        assert sorted(bm) == list(range(8, 21))
        gq = bm[:4]; mp = (bm[4], bm[5], 0, 0)
    NK = 136; NS = 2 * NK; NO = 32
    if dbg: stamps = True
    sK, sV, sW, sX, sQ, sO, sG, sU, sD, sOut, sDbg = [f"s[{b}:{b+3}]" for b in range(28, 72, 4)]
    sKV = "s72"; sROLE = "s73"; sCNT = "s74"; sLOG = "s75"; sMV = "s[76:77]"; sM8 = "s[78:79]"
    sSCALE = "s4"; sHI = "s5"; sTAG = "s6"; sT = "s7"; sT2 = "s8"; sT3 = "s9"; sGI = "s10"; sHEAD = "s11"; sCS = "s12"
    sOPs, sOPl, sOPl2, sYs, sA, sB, sC, sDd = [f"s{i}" for i in range(13, 21)]
    sYs = "s23"
    sOPT = "s[24:25]"; sINC = "s20"; sXV = "s95" if not stamps else "s93"; sLOC = "s96" if not stamps else "s83"; sLC = "s1"; sCLS = "s100" if not stamps else "s99"; sE = "s101" if not stamps else "s97"; sE0 = "s98" if not stamps else "s95"; sWV = "s99" if not stamps else "s81"
    sWo, sWm, sW2o, sW2m = "s44", "s45", "s46", "s47"
    vL = "v1"; vKa = "v2"; vKb = "v3"; vVo = "v4"; vPw = "v5"; vPr = "v6"
    SEL = 8; QA = 16; S = 32; vNINF = "v252"; DS = 68; PP = 156; A0 = 100; A1 = 104; O0 = 108; O1 = 112
    m01, m23, l01, l23, nm01, nm23, f01, f23 = [f"v{i}" for i in range(116, 124)]
    vXR = "v124"; T = 125
    vN = "v141"; vG = "v142"
    BIG = 156; WOF = 144
    vT0w, vT0r, vL4, vL8, vOw, vBl, vBh, vYs = [f"v{i}" for i in range(232, 240)]
    vTAG = "v7"; vWOr = "v143"; sFF = "s15"
    vWa, vWb, vWc = "v240", "v224", "v253"; vWa2, vWb2, vWc2 = "v244", "v225", "v254"; vB3 = "v249"; vT16 = "v255"; vVs = "v226"; vTB, vEM = "v250", "v251"
    v = lambda i, n=1: f"v{i}" if n == 1 else f"v[{i}:{i+n-1}]"
    a = lambda i, n=4: f"a[{i}:{i+n-1}]"
    def stamp(k, diag=False):
        if diag == "t":
            if not tdiag: return
        elif tdiag and k in (1, 2, 3, 4, 5, 8): return
        elif sdiag and k in (5, 6, 7, 8) and not diag: return
        elif diag and not sdiag: return
        if stamps: A(f"s_memrealtime s[{80+2*k}:{81+2*k}]")
    def smov64(dst, val):
        lo = int(dst[2:dst.index(":")])
        A(f"s_mov_b32 s{lo}, 0x{val & 0xffffffff:x}\n s_mov_b32 s{lo+1}, 0x{val >> 32:x}")
    ops = []; known = [-1]
    def vm(text, mandatory=True):
        A(text); ops.append(mandatory); return len(ops) - 1
    def after(idx, r1=False): return sum(1 for m in ops[idx+1:] if m is True or (r1 and m == 'r1'))
    def wait_for(idx):
        if idx <= known[0]: return
        n = after(idx); assert n <= 63
        A(f"s_waitcnt vmcnt({n})"); known[0] = idx
    ool = []
    def mfma(d, x, y, c): A(f"v_mfma_f32_16x16x32_bf16 {d}, {x}, {y}, {c}")
    DPPM = "row_mask:0xf bank_mask:0xf"

    A("s_cmp_ge_u32 s2, 256\n s_cbranch_scc1 L_end")
    A("s_load_dwordx8 s[4:11], s[0:1], 0\n s_load_dwordx8 s[12:19], s[0:1], 32\n s_load_dwordx8 s[20:27], s[0:1], 64")
    if stamps:
        for k in range(1, 11): A(f"s_mov_b32 s{80+2*k}, 0")
        A("s_mov_b32 s101, 0")
    stamp(0)
    if stamps: A("s_waitcnt lgkmcnt(0)")
    if padto: A("s_memrealtime s[80:81]")
    A(f"""v_lshrrev_b32 {v(T)}, 6, v0
          v_and_b32 {vL}, 63, v0
          v_readfirstlane_b32 s3, {v(T)}
          v_lshrrev_b32 {vG}, 4, {vL}
          v_and_b32 {v(T+3)}, 14, v0
          v_lshlrev_b32 {vKa}, 7, {v(T+3)}
          v_lshl_or_b32 {vKa}, {vG}, 4, {vKa}
          v_and_b32 {v(T+4)}, 1, v0
          v_lshl_or_b32 {vKa}, {v(T+4)}, 6, {vKa}
""")
    if gq:
        assert bm or sorted(list(gq) + [mp[0], mp[1], mp[2], mp[2] + 1, mp[3]]) == list(range(8, 17))
        A(f"v_and_b32 {vKa}, 0x7f, {vKa}")
        for lb, ab in ((1, gq[0]), (2, gq[1]), (3, gq[2])): A(f"v_bfe_u32 {v(T+3)}, v0, {lb}, 1\n v_lshl_or_b32 {vKa}, {v(T+3)}, {ab}, {vKa}")
        A(f"v_and_b32 {vVs}, 15, v0\n v_lshlrev_b32 {vVs}, 4, {vVs}")
        for lb, ab in ((4, gq[0]), (5, gq[1])): A(f"v_bfe_u32 {v(T+3)}, v0, {lb}, 1\n v_lshl_or_b32 {vVs}, {v(T+3)}, {ab}, {vVs}")
    A(f"""          v_xor_b32 {vKb}, 64, {vKa}
          s_mov_b32 s31, 0x20000
          s_and_b32 {sWV}, s2, 7
          s_lshl_b32 {sWV}, {sWV}, 2
          s_bfe_u32 s75, s2, 0x20003
          s_or_b32 {sWV}, {sWV}, s75
          s_and_b32 s74, s2, 0xe0
          s_or_b32 {sWV}, {sWV}, s74
          s_lshr_b32 s74, s2, 5
          s_add_u32 s74, s75, s74
          s_and_b32 {sCLS}, s74, 3
          s_add_u32 s74, s74, 3
          s_and_b32 s74, s74, 3
          s_mov_b32 {sE0}, s74
          s_lshl_b32 {sE}, s74, {mp[2]}
          s_and_b32 s73, s3, 1
          s_lshl_b32 s73, s73, {mp[0]}
          s_lshr_b32 s74, s3, 1
          s_lshl_b32 s74, s74, {mp[1]}
          s_add_u32 s73, s73, s74
          s_lshr_b32 s75, {sWV}, 2
          s_lshl_b32 s75, s75, 21
          s_sub_u32 s30, 0x200000, s73
          s_add_u32 s73, s73, s75
          s_waitcnt lgkmcnt(0)
          s_add_u32 s28, s6, s73
          s_addc_u32 s29, s7, 0
          s_and_b32 s29, s29, 0xffff""")
    stamp(5, True)
    if bm: A(f"s_and_b32 {sE}, {sE0}, 1\n s_lshl_b32 {sE}, {sE}, {bm[6]}\n s_lshr_b32 s74, {sE0}, 1\n s_lshl_b32 s74, s74, {bm[7]}\n s_add_u32 {sE}, {sE}, s74")
    bigq = gq and max(gq[2:]) > 11
    if bigq: A("s_mov_b32 s53, s17")
    if ph:
        A("s_mov_b32 s52, s16\n s_mov_b32 s16, 0")
        for (mul, sh, msk, lsl) in ph:
            A(f"s_mul_i32 s74, {sWV}, {mul}\n s_lshr_b32 s74, s74, {sh}\n s_and_b32 s74, s74, {msk}\n s_lshl_b32 s74, s74, {lsl}\n s_xor_b32 s16, s16, s74") if mul == 1 else A(f"s_lshr_b32 s74, {sWV}, 2\n s_mul_i32 s74, s74, {mul}\n s_lshr_b32 s74, s74, {sh}\n s_and_b32 s74, s74, {msk}\n s_lshl_b32 s74, s74, {lsl}\n s_xor_b32 s16, s16, s74")
        A(f"s_and_b32 s16, s16, {sum(1 << x for x in bm[6:])}")
    kv = []; st = {}; uid = [0]
    def lstore(text, on, f=A):
        if not on: return f(text + " sc1")
        uid[0] += 1; u = uid[0]
        A(f"s_cmp_eq_u32 {sLOC}, 0\n s_cbranch_scc1 L_ls{u}")
        r = f(text)
        A.label(f"L_le{u}")
        def o():
            A.label(f"L_ls{u}"); A(text + " sc1"); A(f"s_branch L_le{u}")
        ool.append(o)
        return r
    def xl_pub(f):
        uid[0] += 1; u = uid[0]
        A(f"""s_getreg_b32 {sXV}, hwreg(HW_REG_XCC_ID, 0, 4)
              s_lshl_b32 {sXV}, {sXV}, 28
              s_xor_b32 {sXV}, {sXV}, {sTAG}
              s_cmp_lg_u32 s3, 1
              s_cbranch_scc1 L_xp{u}
              s_and_b32 {sT}, s2, 7
              s_lshl_b32 {sT}, {sT}, 7
              s_lshr_b32 s0, s2, 3
              s_lshl_b32 s0, s0, 2
              s_add_u32 {sT}, {sT}, s0
              s_add_u32 {sT}, {sT}, {XL}
              v_mov_b32 {v(T+10)}, {sXV}
              v_mov_b32 {v(T+11)}, 0
              s_mov_b64 exec, 1""")
        f(f"buffer_store_dword {v(T+10)}, {v(T+11)}, {sW}, {sT} offen")
        A("s_mov_b64 exec, -1")
        A.label(f"L_xp{u}")
    def xl_load(f, dst):
        A(f"""v_and_b32 {v(T+10)}, 31, v0
              v_lshlrev_b32 {v(T+10)}, 2, {v(T+10)}
              s_and_b32 {sT2}, s2, 7
              s_lshl_b32 {sT2}, {sT2}, 7
              s_add_u32 {sT2}, {sT2}, {XL}""")
        return f(f"buffer_load_dword {dst}, {v(T+10)}, {sW}, {sT2} offen sc1")
    def xl_eval(src):
        A(f"v_cmp_ne_u32 s[0:1], {sXV}, {src}\n s_cmp_eq_u64 s[0:1], 0\n s_cselect_b32 {sLOC}, 1, 0")
    def tagfin(f):
        A(f"s_waitcnt lgkmcnt(0)\n s_add_u32 {sTAG}, {sTAG}, 1\n v_mov_b32 {vTAG}, {sTAG}")
        xl_pub(f)
    slot = lambda i: (i % 64) * 4 if i < NK else ((i - NK + 8) % 32) * 4
    def prevocc(i):
        for j in range(i - 1, -1, -1):
            if slot(j) == slot(i): return j
        return -1
    rowoff = lambda p: (3 * p if p < 8 else 24 + 4 * (p - 8)) * 16384
    vorder = list(range(8, 34))
    vorder += list(range(8))
    tileof = lambda i: i >> 2 if i < NK else vorder[(i - NK) >> 2]
    isopt = lambda i: tileof(i) < 8
    def issue(i, part=3):
        p = tileof(i)
        dst = a(slot(i))
        if (i & 3) == 0 and part & 1:
            if bm and p >= 8:
                q = p - 8 + 6
                A(f"s_add_u32 {sKV}, {sE}, {sum(((q >> t) & 1) << bm[8 + t] for t in range(5))}")
            elif bm:
                A(f"s_add_u32 s0, {sE0}, {3 * p}\n s_mov_b32 {sKV}, 0")
                for t in range(5): A(f"s_bfe_u32 s1, s0, {0x10000 + t}\n s_lshl_b32 s1, s1, {bm[6 + t]}\n s_add_u32 {sKV}, {sKV}, s1")
            elif p >= 8:
                q = p - 8 + 6
                A(f"s_add_u32 {sKV}, {sE}, {((q & 1) << mp[3]) + ((q >> 1) << 17)}")
            elif mp[2] == 14 and mp[3] == 16: A(f"s_add_u32 {sKV}, {sE}, {3 * p * 16384}")
            elif mp[2] == 15: A(f"s_add_u32 {sKV}, {sE}, {3 * (p >> 1) * 32768 + ((p & 1) << mp[3])}")
            else:
                A(f"""s_add_u32 s0, {sE0}, {3 * p}
                      s_and_b32 {sKV}, s0, 3
                      s_lshl_b32 {sKV}, {sKV}, {mp[2]}
                      s_bfe_u32 s1, s0, 0x10002
                      s_lshl_b32 s1, s1, {mp[3]}
                      s_add_u32 {sKV}, {sKV}, s1
                      s_lshr_b32 s1, s0, 3
                      s_lshl_b32 s1, s1, 17
                      s_add_u32 {sKV}, {sKV}, s1""")
        if (i & 3) == 0 and part & 1 and ph: A(f"s_xor_b32 {sKV}, {sKV}, s16" if bm else f"s_add_u32 {sKV}, {sKV}, s16\n s_and_b32 {sKV}, {sKV}, 0x1fffff")
        qo = (((i>>1)&1) << (gq[3] if gq else 11)) + ((i&1) * 128 if i < NK else (i&1) << (gq[2] if gq else 10))
        so = sKV
        if qo >> 12:
            so = "s17"
            if part & 1: A(f"s_add_u32 s17, {sKV}, {qo & ~4095}")
        if not part & 2: return
        if i < NK:
            va = vKb if p & 1 else vKa
            kv.append(vm(f"buffer_load_dwordx4 {dst}, {va}, {sK}, {so} offen offset:{qo & 4095} {kvflag}"))
        else:
            kv.append(vm(f"buffer_load_dwordx4 {dst}, {vVs if gq else vVo}, {sV}, {so} offen offset:{qo & 4095} {kvflag if vflag is None else vflag}"))
    A(f"s_cmp_eq_u32 {sCLS}, 0\n s_cbranch_scc1 L_A")
    for i in range(D0):
        issue(i)
        if i == 1: A(f"s_load_dword {sTAG}, s[26:27], {EPOCH}")
    stamp(6, True)
    if roll0 is not None:
        A(f"s_and_b32 s74, s2, {roll0 << 3}\n s_cmp_lg_u32 s74, 8\n s_cbranch_scc1 L_B\n s_getpc_b64 s[0:1]\n v_lshlrev_b32 {vT16}, 5, v0")
        vm(f"global_load_dword {v(228)}, {vT16}, s[0:1]", False)
    A("s_branch L_B")
    A.label("L_A")
    A(f"s_load_dword {sTAG}, s[26:27], {EPOCH}")
    A(f"""s_mov_b32 s40, s4
          s_and_b32 s41, s5, 0xffff
          s_mov_b32 s42, 8192
          s_mov_b32 s43, 0x20000
          v_lshrrev_b32 {v(T+2)}, 5, v0
          v_and_b32 {v(T+4)}, 31, v0
          v_lshlrev_b32 {v(T+4)}, 4, {v(T+4)}
          v_lshl_or_b32 {v(T)}, {v(T+2)}, 10, {v(T+4)}
          buffer_load_dwordx4 {v(BIG,4)}, {v(T)}, {sX}, 0 offen
          buffer_load_dwordx4 {v(BIG+4,4)}, {v(T)}, {sX}, 0 offen offset:512
          s_mov_b32 s44, s10
          s_and_b32 s45, s11, 0xffff
          s_mov_b32 s46, {0 if 'q' in abl else 512*4096*2}
          s_mov_b32 s47, 0x20000
          v_and_b32 {v(T+3)}, 7, v0
          v_lshrrev_b32 {v(T+1)}, 3, {vL}
          v_and_b32 {v(T+5)}, 2, {v(T+1)}
          v_xor_b32 {v(T+3)}, {v(T+3)}, {v(T+5)}
          v_lshlrev_b32 {v(T+1)}, 13, {v(T+1)}
          v_lshl_or_b32 {v(T+1)}, {v(T+3)}, 4, {v(T+1)}
          v_xor_b32 {v(T+3)}, 64, {v(T+1)}
          s_and_b32 s74, s2, 7
          s_lshl_b32 s74, s74, 3
          s_lshr_b32 s75, s2, 5
          s_add_u32 {sLC}, s74, s75
          {"s_xor_b32 " + sLC + ", " + sLC + ", 4" if perm else ""}
          s_lshl_b32 s74, {sLC}, 7
          s_lshl_b32 s75, s3, 20
          s_add_u32 s74, s74, s75
          s_lshl_b32 s75, s3, 14
          s_add_u32 m0, s75, {WQ_L}""")
    for j in range(16):
        A(f"buffer_load_dwordx4 {v(T+3) if j & 1 else v(T+1)}, {sQ}, s74 offen nt lds")
        if j < 15: A(f"s_add_u32 s74, s74, {8*8192}\n s_add_u32 m0, m0, 1024")
        if j == XJ:
            A(f"s_mov_b32 s36, s26\n s_and_b32 s37, s27, 0xffff\n s_mov_b32 s38, {WS_END}\n s_mov_b32 s39, 0x20000")
            tagfin(A)
    stamp(7, True)
    def setupA():
        A(f"v_lshlrev_b32 {vVo}, 4, {vL}\n v_and_b32 {vN}, 15, v0")
        A("s_add_u32 s32, s8, s73\n s_addc_u32 s33, s9, 0\n s_and_b32 s33, s33, 0xffff\n s_mov_b32 s34, s30")
        for b in (32, 36, 40, 48, 52, 56, 60) + ((68,) if dbg else ()): A(f"s_mov_b32 s{b+3}, 0x20000")
        A(f"s_mov_b32 s40, s4\n s_and_b32 s41, s5, 0xffff\n s_mov_b32 s42, 8192")
        A(f"s_mov_b32 s36, s26\n s_and_b32 s37, s27, 0xffff\n s_mov_b32 s38, {WS_END}\n s_mov_b32 {sHI}, 0xffff0000")
        smov64(sM8, mask(lambda l: (l >> 3) & 1))
        A(f"""s_lshr_b32 {sT2}, s2, 5
              s_cmp_lt_u32 {sT2}, 7
              s_cselect_b32 {sROLE}, 1, 0
              s_cmp_eq_u32 {sCLS}, 3
              s_cselect_b32 {sROLE}, 3, {sROLE}
              s_cmp_eq_u32 {sCLS}, 2
              s_cselect_b32 {sROLE}, 2, {sROLE}
              s_cmp_eq_u32 {sCLS}, 1
              s_cselect_b32 {sROLE}, 3, {sROLE}""")
    sMODE = "s21"; PGA = "v243"
    def pgsetup():
        if bal: A(f"s_mov_b32 {sMODE}, 0\n v_mov_b32 {PGA}, {P_L + 4352}\n v_mov_b32 {v(T)}, 0\n ds_write_b32 {PGA}, {v(T)}\n ds_write_b32 {PGA}, {v(T)} offset:4")
        if bal and bal.get("cnt"):
            A(f"""s_and_b32 s0, s2, 7
                  s_mul_i32 s0, s0, {bal.get("mul", 3)}
                  s_lshr_b32 s22, s2, 3
                  s_add_u32 s22, s22, s0
                  s_and_b32 s22, s22, {256 // bal["cnt"] - 1}
                  s_lshl_b32 s22, s22, 7
                  s_lshl_b32 s0, s3, 4
                  s_add_u32 s22, s22, s0
                  s_add_u32 s22, s22, {PG}
                  s_add_u32 s66, s26, s22
                  s_addc_u32 s67, s27, 0
                  s_load_dwordx4 s[68:71], s[66:67], 0 glc""")
    def setup0(isB=True):
        for (b, p, sz) in ((48, 12, 0 if 'o' in abl else 4096*512*2), (52, 16, 0 if 'g' in abl else 512*1792*2), (56, 18, 0 if 'g' in abl else 512*1792*2), (60, 20, 0 if 'd' in abl else 1792*512*2)) + (((68, 24, 256),) if dbg else ()):
            A(f"s_mov_b32 s{b}, s{b if ph and p == 16 else p}\n s_and_b32 s{b+1}, s{b+1 if bigq and p == 16 else p+1}, 0xffff\n s_mov_b32 s{b+2}, {sz}")
        A(f"""s_mov_b64 s[18:19], s[22:23]
              s_mov_b32 {sLOG}, 0x3fb8aa3b
              s_mov_b32 {sSCALE}, 0x3db504f3
              s_mov_b32 {sCNT}, 0
              s_mov_b32 {sFF}, 0xff
              s_bfe_u32 {sCS}, s2, 0x30003
              s_and_b32 {sT}, s2, 7
              s_mul_i32 {sGI}, {sT}, 7
              s_add_u32 {sGI}, {sGI}, {sT2}
              s_lshl_b32 {sHEAD}, {sT}, 2
              s_lshr_b32 {sT}, s2, 6
              s_add_u32 {sHEAD}, {sHEAD}, {sT}""")
        smov64(sMV, mask(lambda l: (l & 1) == ((l >> 4) & 1)))
        A(f"""s_cmp_eq_u32 {sROLE}, 1
              s_cselect_b32 s54, s54, 0
              s_cselect_b32 s58, s58, 0
              s_cselect_b32 s62, s62, 0
              s_cmp_eq_u32 {sCLS}, 0
              s_cselect_b32 s24, -1, 0
              s_mov_b32 s25, s24""")
        if touch and isB:
            A(f"s_cmp_lg_u32 s3, 1\n s_cbranch_scc1 L_nt0\n s_mov_b64 exec, 1\n s_mov_b32 {sT}, 0x100000\n s_mov_b32 {sT2}, 0x200000\n s_lshl_b32 {sT3}, {sHEAD}, 17")
            for (srd, so) in ((sV, "0"), (sOut, "0"), (sW, sT), (sW, sT2), (sO, sT3), (sG, "0"), (sU, "0"), (sD, "0")):
                vm(f"buffer_load_dword v231, {vVo}, {srd}, {so} offen nt", False)
            A("s_mov_b64 exec, -1")
            A.label("L_nt0")
        if warm0 and isB:
            A("s_getpc_b64 s[0:1]")
            A(f"s_lshl_b32 {sT}, {sCS}, 2\n s_add_u32 {sT}, {sT}, s3\n s_lshl_b32 {sT}, {sT}, 10\n s_add_u32 s0, s0, {sT}\n s_addc_u32 s1, s1, 0")
            A(f"s_cmp_ge_u32 s2, 128\n s_cbranch_scc1 L_nw0")
            vm(f"global_load_dwordx4 {v(228,4)}, {vVo}, s[0:1]", False)
            A.label("L_nw0")
    def wsetup():
        A(f"""v_lshrrev_b32 {vWa}, 3, {vL}
              v_and_b32 {v(T+1)}, 2, {vWa}
              v_lshlrev_b32 {vWa}, 10, {vWa}
              v_and_b32 {v(T)}, 7, v0
              v_xor_b32 {v(T)}, {v(T)}, {v(T+1)}
              v_lshl_or_b32 {vWa}, {v(T)}, 4, {vWa}
              v_xor_b32 {vWa2}, 64, {vWa}
              v_lshrrev_b32 {v(T)}, 2, {vL}
              v_mul_u32_u24 {vWb}, 3584, {v(T)}
              v_and_b32 {v(T+1)}, 3, v0
              v_and_b32 {v(T)}, 2, {vG}
              v_xor_b32 {v(T+1)}, {v(T+1)}, {v(T)}
              v_lshl_add_u32 {vWb}, {v(T+1)}, 4, {vWb}
              v_xor_b32 {vWb2}, 16, {vWb}
              v_lshlrev_b32 {vWc}, 10, {vG}
              v_lshlrev_b32 {v(T)}, 1, {vG}
              v_xor_b32 {v(T)}, {v(T)}, {vN}
              v_lshl_or_b32 {vWc}, {v(T)}, 4, {vWc}
              v_xor_b32 {vWc2}, 128, {vWc}
              s_mul_i32 {sW2o}, s3, {128*3584}
              s_lshl_b32 {sT2}, {sGI}, 6
              s_add_u32 {sW2o}, {sW2o}, {sT2}
              s_lshl_b32 {sW2m}, s3, 14
              s_add_u32 {sW2m}, {sW2m}, {GU_L}
              s_lshl_b32 {sWo}, {sHEAD}, 17
              s_lshl_b32 {sT2}, {sCS}, 7
              s_add_u32 {sWo}, {sWo}, {sT2}
              s_lshl_b32 {sT2}, s3, 15
              s_add_u32 {sWo}, {sWo}, {sT2}
              s_lshl_b32 {sWm}, s3, 12
              s_add_u32 {sWm}, {sWm}, {WO_L}""")
    def consts1():
        A(f"""v_and_b32 {v(T)}, 1, v0
              v_cmp_eq_u32 vcc, 1, {v(T)}
              v_mov_b32 {v(T+1)}, 0x0c0c0100
              v_mov_b32 {v(T+2)}, 0x01000c0c
              v_cndmask_b32 {v(T+1)}, {v(T+1)}, {v(T+2)}, vcc
              v_mov_b32 {v(T+2)}, 0x0c0c0302
              v_mov_b32 {v(T+3)}, 0x03020c0c
              v_cndmask_b32 {v(T+2)}, {v(T+2)}, {v(T+3)}, vcc
              v_bfe_u32 {v(T)}, v0, 1, 1
              v_bfe_u32 {v(T+3)}, v0, 3, 1
              v_lshl_or_b32 {v(T)}, {v(T+3)}, 1, {v(T)}
              v_mov_b32 {v(T+3)}, 0x0c0c0c0c""")
        for r in range(4):
            A(f"""v_cmp_eq_u32 vcc, {r}, {v(T)}
                  v_cndmask_b32 {v(SEL+r)}, {v(T+3)}, {v(T+1)}, vcc
                  v_cndmask_b32 {v(SEL+4+r)}, {v(T+3)}, {v(T+2)}, vcc""")
    def consts2():
        A(f"s_mul_i32 {sT}, s3, 4608\n s_add_u32 {sT}, {sT}, {P_L}\n v_mov_b32 {vNINF}, 0xff800000")
        A(f"""v_bfe_u32 {v(T)}, v0, 4, 1
              v_lshlrev_b32 {vPw}, 7, {v(T)}
              v_and_b32 {v(T)}, 7, v0
              v_lshl_or_b32 {vPw}, {v(T)}, 4, {vPw}
              v_bfe_u32 {v(T)}, v0, 5, 1
              v_lshl_or_b32 {vPw}, {v(T)}, 3, {vPw}
              v_bfe_u32 {v(T)}, v0, 3, 1
              v_lshl_or_b32 {vPw}, {v(T)}, 2, {vPw}
              v_add_u32 {vPw}, {sT}, {vPw}
              v_and_b32 {v(T)}, 4, v0
              v_lshlrev_b32 {vPr}, 5, {v(T)}
              v_lshl_or_b32 {vPr}, {vG}, 5, {vPr}
              v_add_u32 {vPr}, {sT}, {vPr}
              v_mov_b32 {m01}, 0xff800000
              v_mov_b32 {m23}, 0xff800000
              v_mov_b32 {l01}, 0
              v_mov_b32 {l23}, 0""")
    def tc1():
        A(f"""s_lshl_b32 {sT}, s3, 11
              s_add_u32 {sT}, {sT}, {T0_L}
              v_bfe_u32 {v(T)}, v0, 4, 1
              v_lshlrev_b32 {vT0w}, 9, {v(T)}
              v_lshl_or_b32 {vT0w}, {vN}, 5, {vT0w}
              v_bfe_u32 {v(T)}, v0, 5, 1
              v_lshl_or_b32 {vT0w}, {v(T)}, 4, {vT0w}
              v_add_u32 {vT0w}, {sT}, {vT0w}
              v_lshlrev_b32 {vT0r}, 3, v0
              v_lshlrev_b32 {vL4}, 2, {vL}
              v_lshlrev_b32 {vL8}, 3, {vL}
              v_lshlrev_b32 {vT16}, 4, v0
              s_and_b32 {sT}, {sWV}, 28
              s_add_u32 {sT}, {sT}, s3
              s_lshl_b32 {sOPs}, {sT}, 14
              s_lshr_b32 {sT}, {sWV}, 6
              s_lshl_b32 {sT}, {sT}, 12
              s_add_u32 {sOPs}, {sOPs}, {sT}
              s_and_b32 {sT}, {sWV}, 3
              s_lshl_b32 {sT}, {sT}, 10
              s_add_u32 {sOPs}, {sOPs}, {sT}
              s_and_b32 {sT}, {sWV}, 32
              s_lshl_b32 {sT}, {sT}, 4
              s_add_u32 {sOPs}, {sOPs}, {sT}
              s_add_u32 {sOPs}, {sOPs}, {OP}
              s_lshl_b32 {sOPl}, {sHEAD}, 14
              s_lshl_b32 {sT}, s3, 12
              s_add_u32 {sOPl}, {sOPl}, {sT}
              s_add_u32 {sOPl}, {sOPl}, {OP}""")
    def tc2():
        A(f"""v_lshrrev_b32 {v(T)}, 5, v0
              v_and_b32 {v(T+1)}, 31, v0
              v_mul_u32_u24 {vOw}, 288, {v(T)}
              v_lshl_add_u32 {vOw}, {v(T+1)}, 3, {vOw}
              v_and_b32 {v(T)}, 7, v0
              v_mul_u32_u24 {v(T+1)}, 288, {v(T)}
              v_lshl_add_u32 {v(T+1)}, {vG}, 4, {v(T+1)}
              v_add_u32 {vBl}, {O_L}, {v(T+1)}
              v_lshlrev_b32 {vYs}, 4, {v(T)}
              v_bfe_u32 {v(T+1)}, v0, 4, 1
              v_lshl_or_b32 {vYs}, {v(T+1)}, 3, {vYs}
              v_and_b32 {v(T+1)}, 32, v0
              v_lshl_or_b32 {vYs}, {v(T+1)}, 7, {vYs}
              v_cndmask_b32 {vYs}, {vYs}, {vNINF}, {sM8}
              s_lshl_b32 {sYs}, {sCS}, 15
              s_lshl_b32 {sT}, {sHEAD}, 7
              s_add_u32 {sYs}, {sYs}, {sT}
              s_lshl_b32 {sT}, s3, 13
              s_add_u32 {sYs}, {sYs}, {sT}
              s_add_u32 {sYs}, {sYs}, {YP}
              v_lshrrev_b32 {v(T)}, 2, {vN}
              v_lshl_add_u32 {v(T)}, {vG}, 3, {v(T)}
              v_and_b32 {v(T+1)}, 3, v0
              v_lshlrev_b32 {vWOr}, 7, {v(T)}
              v_lshl_or_b32 {vWOr}, {v(T+1)}, 3, {vWOr}
              v_bfe_u32 {v(T+1)}, v0, 3, 2
              v_xor_b32 {v(T+1)}, s3, {v(T+1)}
              v_lshl_or_b32 {vWOr}, {v(T+1)}, 5, {vWOr}
              v_add_u32 {vWOr}, {WO_L}, {vWOr}
              v_and_b32 {vTB}, {sFF}, {vTAG}
              v_and_b32 {vEM}, 1, v0
              v_add_u32 {vEM}, {sFF}, {vEM}
              v_and_b32 {vEM}, {sFF}, {vEM}
""")
    def wdloads(thr=None, k0=0, k1=8):
        if k0 >= k1: return
        A(f"""s_lshl_b32 {sT2}, {sGI}, 15
              s_lshl_b32 {sT}, s3, 8
              s_add_u32 {sT2}, {sT2}, {sT}
              s_add_u32 {sT2}, {sT2}, {k0 * 4096}
              s_lshl_b32 {sT}, s3, 13
              s_add_u32 m0, {sT}, {WD_L + k0 * 1024}""")
        for k in range(k0, k1):
            if thr: A(f"s_waitcnt vmcnt({thr - 1})")
            A(f"buffer_load_dwordx4 {vWc2 if k & 2 else vWc}, {sD}, {sT2} offen nt lds")
            if k < k1 - 1: A(f"s_add_u32 {sT2}, {sT2}, 4096\n s_add_u32 m0, m0, 1024")
    setupA(); A(f"s_mov_b32 s75, {sT2}")
    A(f"v_mul_u32_u24 {v(T+2)}, {XN_S}, {v(T+2)}\n v_add_u32 {v(T+2)}, {v(T+2)}, {v(T+4)}")
    F = BIG + 8; G = F + 16
    def rowsum32(r, t):
        for k in (8, 4, 2, 1): A(f"v_add_f32_dpp {r}, {r}, {r} row_ror:{k} {DPPM}")
        A(f"v_mov_b32 {t}, {r}\n v_permlane16_swap_b32 {r}, {t}\n v_add_f32 {r}, {r}, {t}")
    def ln_scalars(mean, var, mb, rinv):
        A(f"""v_cvt_pk_bf16_f32 {rinv}, {mean}, {var}
              v_lshlrev_b32 {mb}, 16, {rinv}
              v_and_b32 {rinv}, {sHI}, {rinv}
              v_add_f32 {rinv}, 0x3727c5ac, {rinv}
              v_cvt_pk_bf16_f32 {rinv}, {rinv}, {rinv}
              v_lshlrev_b32 {rinv}, 16, {rinv}
              v_sqrt_f32 {rinv}, {rinv}
              v_cvt_pk_bf16_f32 {rinv}, {rinv}, {rinv}
              v_lshlrev_b32 {rinv}, 16, {rinv}
              v_rcp_f32 {rinv}, {rinv}""")
    A("s_waitcnt vmcnt(16)")
    stamp(1)
    for i in range(8): A(f"v_lshlrev_b32 {v(F+2*i)}, 16, {v(BIG+i)}\n v_and_b32 {v(F+2*i+1)}, {sHI}, {v(BIG+i)}")
    for i in range(4): A(f"v_pk_add_f32 {v(G+2*i,2)}, {v(F+2*i,2)}, {v(F+8+2*i,2)}")
    for i in range(2): A(f"v_pk_add_f32 {v(G+2*i,2)}, {v(G+2*i,2)}, {v(G+4+2*i,2)}")
    A(f"v_pk_add_f32 {v(G,2)}, {v(G,2)}, {v(G+2,2)}\n v_add_f32 {v(T+5)}, {v(G)}, {v(G+1)}")
    rowsum32(v(T+5), v(T+6))
    A(f"v_mul_f32 {v(T+5)}, 0x3b000000, {v(T+5)}")
    for i in range(16): A(f"v_sub_f32 {v(G+i)}, {v(F+i)}, {v(T+5)}")
    A(f"v_pk_mul_f32 {v(T+7,2)}, {v(G,2)}, {v(G,2)}")
    for i in range(1, 8): A(f"v_pk_fma_f32 {v(T+7,2)}, {v(G+2*i,2)}, {v(G+2*i,2)}, {v(T+7,2)}")
    A(f"v_add_f32 {v(T+7)}, {v(T+7)}, {v(T+8)}")
    rowsum32(v(T+7), v(T+6))
    A(f"v_mul_f32 {v(T+7)}, 0x3b000000, {v(T+7)}")
    ln_scalars(v(T+5), v(T+7), v(T+8), v(T+9))
    for i in range(16): A(f"v_sub_f32 {v(F+i)}, {v(F+i)}, {v(T+8)}")
    for i in range(8): A(f"v_cvt_pk_bf16_f32 {v(BIG+i)}, {v(F+2*i)}, {v(F+2*i+1)}")
    for i in range(8): A(f"v_lshlrev_b32 {v(F+2*i)}, 16, {v(BIG+i)}\n v_and_b32 {v(F+2*i+1)}, {sHI}, {v(BIG+i)}")
    for i in range(16): A(f"v_mul_f32 {v(F+i)}, {v(F+i)}, {v(T+9)}")
    for i in range(8): A(f"v_cvt_pk_bf16_f32 {v(BIG+i)}, {v(F+2*i)}, {v(F+2*i+1)}")
    A(f"ds_write_b128 {v(T+2)}, {v(BIG,4)} offset:{XN_L}\n ds_write_b128 {v(T+2)}, {v(BIG+4,4)} offset:{XN_L+512}")
    if wd0 == 1: setup0(False); wsetup()
    A(f"""v_and_b32 {v(T+3)}, 7, v0
          v_mul_u32_u24 {v(T)}, {XN_S}, {v(T+3)}
          v_lshl_add_u32 {v(T)}, {vG}, 4, {v(T)}
          v_lshrrev_b32 {v(T+1)}, 2, {vN}
          v_lshl_add_u32 {v(T+1)}, {vG}, 3, {v(T+1)}
          v_lshlrev_b32 {v(T+1)}, 7, {v(T+1)}
          v_and_b32 {v(T+3)}, 3, v0
          v_lshl_add_u32 {v(T+1)}, {v(T+3)}, 3, {v(T+1)}
          v_bfe_u32 {v(T+3)}, v0, 3, 2
          v_xor_b32 {v(T+3)}, s3, {v(T+3)}
          v_lshl_add_u32 {v(T+1)}, {v(T+3)}, 5, {v(T+1)}
          v_add_u32 {v(T+1)}, {WQ_L}, {v(T+1)}
          v_lshlrev_b32 {v(T+2)}, 14, {vN}
          v_lshl_add_u32 {v(T+2)}, {vG}, 4, {v(T+2)}
          s_lshl_b32 {sT}, s3, 6
          s_lshl_b32 {sT3}, {sLC}, 8
          s_add_u32 {sT3}, {sT}, {sT3}
          v_mov_b32 {v(O1+1)}, {vTAG}
          v_mov_b32 {v(O1+3)}, {vTAG}
          s_waitcnt vmcnt(0) lgkmcnt(0)""")
    if loc[0]: xl_load(A, v(T+12))
    if wd0 == 1: wdloads()
    for i in range(NO, NO + AK):
        n0 = len(ops); issue(i); del ops[n0:]; kv.pop()
    stamp(8, True)
    A("s_barrier")
    XF = 0; WF = 64
    for ks in range(16):
        A(f"ds_read_b128 {a(XF+4*ks)}, {v(T)} offset:{XN_L + ks*64}")
        A(f"ds_read_b64_tr_b16 {a(WF+4*ks,2)}, {v(T+1)} offset:{ks*4096}")
        A(f"ds_read_b64_tr_b16 {a(WF+4*ks+2,2)}, {v(T+1)} offset:{ks*4096 + 512}")
        if ks % 2 == 1 and ks >= 3:
            A("s_waitcnt lgkmcnt(6)")
            for k2 in range(ks - 3, ks - 1): mfma(v(O0,4), a(WF+4*k2), a(XF+4*k2), v(O0,4) if k2 else 0)
    A("s_waitcnt lgkmcnt(0)")
    for k2 in range(14, 16): mfma(v(O0,4), a(WF+4*k2), a(XF+4*k2), v(O0,4))
    A(f"v_cvt_pk_bf16_f32 {v(O1)}, {v(O0)}, {v(O0+1)}\n v_cvt_pk_bf16_f32 {v(O1+2)}, {v(O0+2)}, {v(O0+3)}")
    if loc[0]:
        A(f"s_waitcnt vmcnt({AK + (8 if wd0 == 1 else 0)})"); xl_eval(v(T+12))
        if stamps: A(f"s_mov_b32 s101, {sLOC}")
    A(f"s_not_b64 exec, {sM8}")
    lstore(f"buffer_store_dwordx4 {v(O1,4)}, {v(T+2)}, {sW}, {sT3} offen", loc[0])
    A("s_mov_b64 exec, -1")
    stamp(2)
    if wd0 != 1:
        A(f"s_mov_b32 {sT2}, s75"); setup0(False); wsetup()
    if wd0 == 2: wdloads()
    for f in (consts1, consts2, tc1, tc2, pgsetup): f()
    A("s_barrier\n s_branch L_J")
    A.label("L_B")
    items = []; consumed = [-1]; extras = {}
    def item(cost, fn, req=None, minstep=0): items.append((cost, req, minstep, fn))
    def extra(step, fn): extras.setdefault(step, []).append(fn)
    def retry_guard(back):
        A(f"s_add_u32 {sCNT}, {sCNT}, 1\n s_cmp_ge_u32 {sCNT}, {cap}\n s_cbranch_scc1 {back}")
        if sleep: A(f"s_sleep {sleep}")

    item(36, setupA); item(44, setup0); item(4, pgsetup); item(20, lambda: tagfin(lambda t: vm(t, False))); item(33, wsetup); item(26, consts1); item(22, consts2); item(28, tc1); item(44, tc2)

    def octet(dst):
        A(f"s_lshr_b32 {dst}, s2, 5\n s_lshl_b32 {dst}, {dst}, 3\n s_and_b32 s0, {sCLS}, 2\n s_lshl_b32 s0, s0, 1\n s_add_u32 {dst}, {dst}, s0\n s_add_u32 {dst}, {dst}, s3")
    def xr():
        A(f"""v_and_b32 {v(T+10)}, 7, v0
              v_lshlrev_b32 {v(T+10)}, 10, {v(T+10)}
              v_bfe_u32 {v(T+11)}, v0, 3, 1
              v_lshl_or_b32 {v(T+10)}, {v(T+11)}, 1, {v(T+10)}
              v_bfe_u32 {v(T+11)}, v0, 5, 1
              v_lshl_or_b32 {v(T+10)}, {v(T+11)}, 2, {v(T+10)}
              v_bfe_u32 {v(T+11)}, v0, 4, 1
              v_lshl_or_b32 {v(T+10)}, {v(T+11)}, 3, {v(T+10)}""")
        octet(sT); A(f"s_lshl_b32 {sT}, {sT}, 4")
        vm(f"buffer_load_ushort {vXR}, {v(T+10)}, {sX}, {sT} offen")
    def gu_op(j, f):
        A(f"s_add_u32 m0, {sW2m}, {(j&1)*8192 + (j>>1)*1024}")
        f(f"buffer_load_dwordx4 {vWb2 if j & 1 else vWb}, {sU if j & 1 else sG}, {sW2o} offen {wnt} lds")
        if j & 1: A(f"s_add_u32 {sW2o}, {sW2o}, {16*3584}")
    def wo_dma(f):
        for j in range(4):
            A(f"s_add_u32 m0, {sWm}, {j*1024}")
            f(f"buffer_load_dwordx4 {vWa2 if j & 1 else vWa}, {sO}, {sWo} offen nt lds")
            A(f"s_add_u32 {sWo}, {sWo}, 8192")
        if pre:
            A(f"""s_lshr_b32 {sT2}, {sWV}, 2
                  s_lshl_b32 {sT2}, {sT2}, 13
                  s_lshl_b32 {sT}, s3, 11
                  s_add_u32 {sT2}, {sT2}, {sT}
                  s_add_u32 {sT2}, {sT2}, {YP}
                  s_cmp_eq_u32 {sROLE}, 3
                  s_cselect_b32 {sT2}, {sT2}, 0x7f000000""")
            f(f"buffer_load_dwordx4 {v(224,4)}, {vVo}, {sW}, {sT2} offen sc1")
            f(f"buffer_load_dwordx4 {v(228,4)}, {vVo}, {sW}, {sT2} offen offset:1024 sc1")
    extra(IWO - 1, xr)
    def wo2(j):
        def f():
            A(f"s_cmp_eq_u32 {sROLE}, 2\n s_cbranch_scc0 L_w2{j}\n s_xor_b32 {sT}, {sWo}, 256\n s_add_u32 {sT}, {sT}, {j*8192}\n s_add_u32 m0, {sWm}, {16384 + j*1024}")
            vm(f"buffer_load_dwordx4 {vWa2 if j & 1 else vWa}, {sO}, {sT} offen nt lds", False)
            A.label(f"L_w2{j}")
        return f
    for j in range(4): extra(IW2 + 7 * j, wo2(j))
    GUF = 128; WDF = 192
    QT = 188; QAD = T + 13
    def qloads(f):
        for k in range(4):
            r = f(f"buffer_load_dwordx4 {v(QT+4*k,4)}, {v(QAD)}, {sW}, {sT3} offen offset:{(k>>1)*256 + (k&1)*16} sc1")
        return r
    def qload():
        A(f"""v_and_b32 {v(QAD)}, 3, v0
              v_lshlrev_b32 {v(QAD)}, 9, {v(QAD)}
              v_and_b32 {v(T+11)}, 4, v0
              v_add_u32 {v(T+11)}, {v(T+11)}, {vG}
              v_lshl_or_b32 {v(QAD)}, {v(T+11)}, 5, {v(QAD)}
              s_lshr_b32 {sT3}, {sWV}, 2
              s_lshl_b32 {sT3}, {sT3}, 11""")
        xl_load(vm, v(QT+16))
        st["q"] = qloads(vm)
    extra(IQ, qload)
    def qprep():
        wait_for(st["q"])
        A.label("L_qchk")
        A(f"""v_max3_u32 {v(T)}, {v(QT+1)}, {v(QT+3)}, {v(QT+5)}
              v_min3_u32 {v(T+1)}, {v(QT+1)}, {v(QT+3)}, {v(QT+5)}
              v_max3_u32 {v(T)}, {v(T)}, {v(QT+7)}, {v(QT+9)}
              v_min3_u32 {v(T+1)}, {v(T+1)}, {v(QT+7)}, {v(QT+9)}
              v_max3_u32 {v(T)}, {v(T)}, {v(QT+11)}, {v(QT+13)}
              v_min3_u32 {v(T+1)}, {v(T+1)}, {v(QT+11)}, {v(QT+13)}
              v_max3_u32 {v(T)}, {v(T)}, {v(QT+15)}, {sTAG}
              v_min3_u32 {v(T+1)}, {v(T+1)}, {v(QT+15)}, {sTAG}
              v_cmp_ne_u32 vcc, {v(T)}, {v(T+1)}
              s_cbranch_vccnz L_qretry""")
        A.label("L_qok")
        if bal: A(f"s_cmp_lg_u32 {sMODE}, 0\n s_cselect_b64 vcc, -1, 0")
        def o():
            A.label("L_qretry"); retry_guard("L_qok"); qloads(A); A("s_waitcnt vmcnt(0)\n s_branch L_qchk")
        ool.append(o)
        xl_eval(v(QT+16))
        stamp(4)
        if stamps and not bal: A(f"s_mov_b32 s100, {sCNT}")
        for c in range(2):
            for r in range(4):
                A(f"v_cndmask_b32 {v(QA+8*c+r)}, {v(QT+8*c+2*r)}, 0, {sM8}\n v_cndmask_b32 {v(QA+8*c+4+r)}, 0, {v(QT+8*c+2*r)}, {sM8}")
    item(32, qprep, minstep=IQ + D + ES + 1)
    def kitem(i):
        def f():
            u = i >> 3; d = DS + 8 * (u & 1) + 4 * ((i >> 2) & 1); o = (i >> 1) & 1; c = i & 1
            if 'm' not in abl: mfma(v(d,4), v(QA+8*c+4*o,4), a(slot(i)), v(d,4) if i & 3 else 0)
            consumed[0] = i
        return f
    def post(u):
        def f():
            d = DS + 8 * (u & 1)
            if 'x' in abl: return
            for r in range(4): A(f"v_cndmask_b32 {v(T+r)}, {v(d+4+r)}, {v(d+r)}, {sMV}")
            A(f"""v_permlane16_swap_b32 {v(T)}, {v(T+1)}
                  v_permlane16_swap_b32 {v(T+2)}, {v(T+3)}
                  v_add_f32_dpp {v(T)}, {v(T+1)}, {v(T)} quad_perm:[1,0,3,2] {DPPM}
                  v_add_f32_dpp {v(T+2)}, {v(T+3)}, {v(T+2)} quad_perm:[1,0,3,2] {DPPM}
                  v_cvt_pk_bf16_f32 {v(T)}, {v(T)}, {v(T+2)}
                  v_and_b32 {v(T+1)}, {sHI}, {v(T)}
                  v_lshlrev_b32 {v(T)}, 16, {v(T)}
                  v_mul_f32 {v(T+1)}, {sSCALE}, {v(T+1)}
                  v_mul_f32 {v(T)}, {sSCALE}, {v(T)}
                  v_cvt_pk_bf16_f32 {v(T)}, {v(T)}, {v(T+1)}
                  v_lshlrev_b32 {v(S+2*u)}, 16, {v(T)}
                  v_and_b32 {v(S+2*u+1)}, {sHI}, {v(T)}""")
            if 8 * u < NO:
                A(f"v_cndmask_b32 {v(S+2*u)}, {v(S+2*u)}, {vNINF}, {sOPT}\n v_cndmask_b32 {v(S+2*u+1)}, {v(S+2*u+1)}, {vNINF}, {sOPT}")
            A(f"""v_max_f32 {m01}, {m01}, {v(S+2*u)}
                  v_max_f32 {m23}, {m23}, {v(S+2*u+1)}""")
        return f
    for i in range(NK):
        item(3, kitem(i), req=i)
        if i >= 8 and (i & 7) == 3: item(22, post((i >> 3) - 1))
    item(26, post(16))
    def allred2(op, x, y):
        for k in (8, 4, 2, 1): A(f"{op}_dpp {x}, {x}, {x} row_ror:{k} {DPPM}\n {op}_dpp {y}, {y}, {y} row_ror:{k} {DPPM}")
    def half2(op, x, y):
        A(f"""v_mov_b32 {v(T)}, {x}
              v_mov_b32 {v(T+1)}, {y}
              v_permlane32_swap_b32 {x}, {v(T)}
              v_permlane32_swap_b32 {y}, {v(T+1)}
              {op} {x}, {x}, {v(T)}
              {op} {y}, {y}, {v(T+1)}""")
    def maxred():
        stamp(5)
        allred2("v_max_f32", m01, m23); half2("v_max_f32", m01, m23)
        A(f"v_mul_f32 {nm01}, {sLOG}, {m01}\n v_mul_f32 {nm23}, {sLOG}, {m23}")
    item(22, maxred)
    done = set()
    def expi(u):
        def f():
            done.add(u)
            A(f"""v_fma_f32 {v(T)}, {v(S+2*u)}, {sLOG}, -{nm01}
                  v_fma_f32 {v(T+1)}, {v(S+2*u+1)}, {sLOG}, -{nm23}
                  v_exp_f32 {v(T)}, {v(T)}
                  v_exp_f32 {v(T+1)}, {v(T+1)}
                  v_add_f32 {l01}, {l01}, {v(T)}
                  v_add_f32 {l23}, {l23}, {v(T+1)}
                  v_cvt_pk_bf16_f32 {v(T+2)}, {v(T)}, {v(T+1)}
                  ds_write_b32 {vPw}, {v(T+2)} offset:{u*256}""")
        return f
    def areg(j):
        k = j - (NK - PB)
        return A0 if k < 0 else (32 + 8 * k if k < 4 else 68 + 8 * (k - 4))
    def rdi(k):
        def f():
            p = vorder[k]; assert (p >> 1) in done
            A(f"ds_read_b128 {v(PP + 4 * (k & 7),4)}, {vPr} offset:{(p >> 1) * 256 + (p & 1) * 16}")
        return f
    def vperm(j):
        def f():
            p = PP + (j & 31)
            if 'x' in abl: return
            if (j & 15) == 0: A("s_waitcnt lgkmcnt(0)")
            for uu in range(2):
                for r in range(4): A(f"v_perm_b32 {v(areg(j)+4*uu+r)}, {v(p)}, {v(p)}, {v(SEL+4*uu+r)}")
        return f
    def vmm(j):
        def f():
            i = NK + j
            if 'm' in abl:
                consumed[0] = i; return
            mfma(v(O0,4), v(areg(j),4), a(slot(i)), v(O0,4) if j else 0)
            mfma(v(O1,4), v(areg(j)+4,4), a(slot(i)), v(O1,4) if j else 0)
            consumed[0] = i
        return f
    def mlpub():
        allred2("v_add_f32", l01, l23); half2("v_add_f32", l01, l23)
        A(f"""v_and_b32 {v(T+2)}, 16, v0
              s_lshl_b32 {sT}, {sWV}, 2
              s_add_u32 {sT}, {sT}, s3
              s_lshl_b32 {sT}, {sT}, 5
              s_add_u32 {sT}, {sT}, {ML}
              v_bfi_b32 {v(220)}, {sHI}, {m01}, {vTAG}
              v_bfi_b32 {v(221)}, {sHI}, {m23}, {vTAG}
              v_bfi_b32 {v(222)}, {sFF}, {vTAG}, {l01}
              v_bfi_b32 {v(223)}, {sFF}, {vTAG}, {l23}
              s_mov_b64 exec, 0x10001""")
        lstore(f"buffer_store_dwordx4 {v(220,4)}, {v(T+2)}, {sW}, {sT} offen", loc[1], vm)
        A("s_mov_b64 exec, -1")
    GM = 188; GA = T + 14
    def mlload():
        A(f"""v_and_b32 {v(GA)}, 16, v0
              v_lshl_or_b32 {v(GA)}, {vN}, 5, {v(GA)}
              s_lshr_b32 {sT3}, {sWV}, 2
              s_lshl_b32 {sT3}, {sT3}, 9
              s_add_u32 {sT3}, {sT3}, {ML}""")
        st["ml"] = vm(f"buffer_load_dwordx4 {v(GM,4)}, {v(GA)}, {sW}, {sT3} offen sc1")
    def mlfac1():
        wait_for(st["ml"])
        A.label("L_mlchk")
        A(f"""v_bitop3_b32 {v(T)}, {v(GM)}, {v(GM+1)}, {vTAG} bitop3:0x7e
              v_bitop3_b32 {v(T+1)}, {v(GM+2)}, {v(GM+3)}, {vTAG} bitop3:0x7e
              v_lshlrev_b32 {v(T)}, 16, {v(T)}
              v_and_or_b32 {v(T)}, {v(T+1)}, {sFF}, {v(T)}
              v_cmp_ne_u32 vcc, 0, {v(T)}
              s_cbranch_vccnz L_mlretry""")
        A.label("L_mlok")
        if bal: A(f"s_cmp_lg_u32 {sMODE}, 0\n s_cselect_b64 vcc, -1, 0")
        def o():
            A.label("L_mlretry"); retry_guard("L_mlok")
            A(f"buffer_load_dwordx4 {v(GM,4)}, {v(GA)}, {sW}, {sT3} offen sc1\n s_waitcnt vmcnt(0)\n s_branch L_mlchk")
        ool.append(o)
        A(f"v_and_b32 {v(GM)}, {sHI}, {v(GM)}\n v_and_b32 {v(GM+1)}, {sHI}, {v(GM+1)}\n v_xor_b32 {v(GM+2)}, {v(GM+2)}, {vTB}\n v_xor_b32 {v(GM+3)}, {v(GM+3)}, {vTB}\n v_mov_b32 {v(GM+4)}, {v(GM)}\n v_mov_b32 {v(GM+5)}, {v(GM+1)}")
        allred2("v_max_f32", v(GM+4), v(GM+5))
        A(f"""v_sub_f32 {v(GM)}, {v(GM)}, {v(GM+4)}
              v_sub_f32 {v(GM+1)}, {v(GM+1)}, {v(GM+5)}
              v_sub_f32 {f01}, {m01}, {v(GM+4)}
              v_sub_f32 {f23}, {m23}, {v(GM+5)}
              v_mul_f32 {v(GM)}, {sLOG}, {v(GM)}
              v_mul_f32 {v(GM+1)}, {sLOG}, {v(GM+1)}
              v_mul_f32 {f01}, {sLOG}, {f01}
              v_mul_f32 {f23}, {sLOG}, {f23}""")
    def mlfac2():
        A(f"""v_exp_f32 {v(GM)}, {v(GM)}
              v_exp_f32 {v(GM+1)}, {v(GM+1)}
              v_exp_f32 {f01}, {f01}
              v_exp_f32 {f23}, {f23}
              v_mul_f32 {v(GM)}, {v(GM)}, {v(GM+2)}
              v_mul_f32 {v(GM+1)}, {v(GM+1)}, {v(GM+3)}""")
        allred2("v_add_f32", v(GM), v(GM+1))
        A(f"""v_rcp_f32 {v(GM)}, {v(GM)}
              v_rcp_f32 {v(GM+1)}, {v(GM+1)}
              v_mul_f32 {f01}, {f01}, {v(GM)}
              v_mul_f32 {f23}, {f23}, {v(GM+1)}""")
    uorder = list(dict.fromkeys(p >> 1 for p in vorder))
    for k in range(3): item(9, expi(uorder[k]))
    for k in range(4): item(1, rdi(k))
    ne = 3
    for j in range(NK):
        t = j & 7
        if j < NK - PB: item(9, vperm(j))
        if PB and NK - PB - 4 <= j < NK - PB: item(9, vperm(NK - PB + 2 * (j - (NK - PB - 4)))); item(9, vperm(NK - PB + 2 * (j - (NK - PB - 4)) + 1))
        item(5, vmm(j), req=NK + j)
        if (j & 15) == (12 if j < 112 or not PB else 4):
            for k in range(4 * (j >> 4) + 4, min(34, 4 * (j >> 4) + 8)): item(1, rdi(k))
        if t in (0, 2, 4, 6) and ne < 17:
            item(9, expi(uorder[ne])); ne += 1
            if ne == 17: item(28, mlpub)
        if NK + j == IML + 2: item(36, mlfac1)
        if NK + j == IML + 4: item(22, mlfac2)
    extra(IML, mlload)
    if warm1:
        def cw():
            A("s_getpc_b64 s[0:1]")
            A.label("L_pc")
            A(f"s_add_u32 s0, s0, L_tail-L_pc\n s_addc_u32 s1, s1, 0\n v_lshlrev_b32 {v(T+10)}, 4, v0")
            vm(f"global_load_dwordx4 {v(228,4)}, {v(T+10)}, s[0:1]")
        extra(IML - 8, cw)

    if roll:
        def rp(k, stubs_):
            def f():
                A(f"s_lshr_b32 {sT}, s2, 3\n s_and_b32 {sT}, {sT}, {roll['mask']}\n s_cmp_lg_u32 {sT}, {(5 * k) & roll['mask']}\n s_cbranch_scc1 L_nr{k}\n s_getpc_b64 s[0:1]")
                A.label(f"L_rp{k}")
                A(f"s_add_u32 s0, s0, {'L_end-L_rp' + str(k) if stubs_ else roll['dist']}\n s_addc_u32 s1, s1, 0")
                vm(f"global_load_dwordx4 {v(228,4)}, {vT16}, s[0:1]", False)
                A.label(f"L_nr{k}")
            return f
        k = 0
        for stp in range(roll["first"], 236, roll["per"]):
            extra(stp, rp(k, False)); k += 1
        for stp in roll.get("st", []):
            extra(stp, rp(k, True)); k += 1
    sMODE = "s21"; sPG = "s22"; PGV = T + 12; PGA = "v243"
    if bal:
        assert not dbg
        one = bal.get("one")
        def ck(k, stp):
            def f():
                if bal.get("cnt"):
                    A(f"s_cmp_lg_u32 s3, {k & 3}\n s_cbranch_scc1 L_np{k}\n s_mov_b32 s64, 1\n s_atomic_add s64, s[66:67], {(k >> 2) * 4} glc")
                    A.label(f"L_np{k}")
                    return
                c = (5 + 3 * k) % 32
                if one: A(f"s_cmp_lg_u32 s3, {k & 3}\n s_cbranch_scc1 L_np{k}")
                A(f"""s_and_b32 {sT}, s2, 7
                      s_mul_i32 {sT2}, {sT}, {c}
                      s_lshr_b32 {sPG}, s2, 3
                      s_add_u32 {sPG}, {sPG}, {sT2}
                      s_add_u32 {sPG}, {sPG}, {(11 * k) % 32}
                      s_and_b32 s0, {sPG}, 31
                      s_and_b32 {sPG}, {sPG}, {bal.get("ns", 32) - 1}
                      s_lshl_b32 {sPG}, {sPG}, 7
                      s_add_u32 {sPG}, {sPG}, {PG + k * 4096}
                      s_load_dwordx8 s[64:71], s[26:27], {sPG} {bal.get("glc", "glc")}""")
                if k == 2 and "v" in stouch: A("s_load_dword s16, s[32:33], 0 glc")
                if k == 8 and "w" in stouch: A(f"s_load_dword s16, s[48:49], {sWo} glc\n s_load_dword s17, s[18:19], {sCS} glc")
                if k == 9 and "w" in stouch: A(f"s_load_dword s16, s[52:53], {sW2o} glc\n s_load_dword s17, s[56:57], {sW2o} glc\n s_load_dword s20, s[60:61], {sW2o} glc")
                if k == 10 and "x" in stouch: A(f"s_lshl_b32 s16, s2, 8\n s_add_u32 s16, s16, 0x210000\n s_load_dword s16, s[26:27], s16 glc")
                if not one: A(f"s_cmp_lg_u32 s3, {k & 3}\n s_cbranch_scc1 L_np{k}")
                if bal.get("ns", 32) < 32: A(f"s_cmp_ge_u32 s0, {bal['ns']}\n s_cbranch_scc1 L_np{k}")
                A(f"""s_lshl_b32 {sT}, {sT}, 2
                      s_xor_b32 {sPG}, {sPG}, {bal.get("sep", 0) * 128}
                      s_add_u32 {sPG}, {sPG}, {sT}""")
                if bal.get("vst"):
                    A("s_mov_b64 exec, 1")
                    vm(f"buffer_store_dword {vTAG}, {vL4}, {sW}, {sPG} offen sc1", False)
                    A("s_mov_b64 exec, -1")
                else: A(f"s_atomic_swap {sTAG}, s[26:27], {sPG}")
                A.label(f"L_np{k}")
            def setmode():
                if bal.get("noA"): A(f"s_min_u32 {sMODE}, {sMODE}, {sCLS}")
                A(f"s_cmp_lg_u32 {sMODE}, 0\n s_cselect_b64 vcc, -1, 0")
                if stamps: A(f"s_add_u32 s100, s100, {sMODE}")
            def g():
                if one: A(f"s_cmp_lg_u32 s3, {k & 3}\n s_cbranch_scc1 L_ng{k}")
                A(f"s_waitcnt lgkmcnt(0)\n s_cmp_eq_u32 {sCLS}, 0\n s_cselect_b32 {sT}, {bal.get('aoff', 0)}, 0")
                if bal.get("cnt"): A(f"s_add_u32 {sT}, {sT}, s64\n s_sub_u32 {sT}, {sT}, s{68 + (k >> 2)}")
                else:
                    for r in range(64, 72): A(f"s_cmp_eq_u32 s{r}, {sTAG}\n s_addc_u32 {sT}, {sT}, 0")
                A(f"s_cmp_lt_i32 {sT}, {bal['th']}\n s_cselect_b32 {sMODE}, 1, 0")
                if "th2" in bal: A(f"s_cmp_lt_i32 {sT}, {bal['th2']}\n s_cselect_b32 {sMODE}, 2, {sMODE}")
                if one:
                    A(f"v_mov_b32 {v(PGV)}, {sMODE}\n ds_write_b32 {PGA}, {v(PGV)}")
                    A.label(f"L_ng{k}")
                else: setmode()
            iw = bal.get("iw")
            def h1():
                A(f"ds_read_b32 {v(PGV)}, {PGA}")
                if iw: A(f"v_mov_b32 {v(T+15)}, 1\n s_mov_b64 exec, 1\n ds_add_rtn_u32 {v(T+15)}, {PGA}, {v(T+15)} offset:4\n s_mov_b64 exec, -1")
            def h2():
                A(f"s_waitcnt lgkmcnt(0)\n v_readfirstlane_b32 {sMODE}, {v(PGV)}\n s_and_b32 {sMODE}, {sMODE}, 3")
                if iw:
                    A(f"v_readfirstlane_b32 {sT}, {v(T+15)}\n s_and_b32 {sT}, {sT}, 3")
                    if iw & 1: A(f"s_cmp_eq_u32 {sT}, 0\n s_cselect_b32 {sMODE}, 1, {sMODE}")
                    if iw & 2: A(f"s_cmp_eq_u32 {sT}, 3\n s_cselect_b32 {sMODE}, 0, {sMODE}")
                setmode()
            return f, g, h1, h2
        k = 0
        for stp in range(bal["first"], bal["last"] + 1, bal["per"]):
            f, g, h1, h2 = ck(k, stp); lg_ = bal.get("lag", 7)
            extra(stp, f); extra(stp + lg_, g)
            if one: extra(stp + lg_ + 2, h1); extra(stp + lg_ + 3, h2)
            k += 1
        assert k <= 32
    qi = [0]
    def run_items(step, bud):
        while qi[0] < len(items):
            cost, req, ms, fn = items[qi[0]]
            if cost > bud or step < ms: break
            if req is not None and (req >= len(kv) or kv[req] > known[0]): break
            fn(); bud -= cost; qi[0] += 1
    run_items(0, 104)
    nsetup = 9
    def tgt(i, d):
        kvs = set(kv)
        j = i - d
        lo = max(j - ES, NO + D)
        for k in range(lo, j):
            if any(o not in kvs for o in range(kv[k] + 1, kv[k + 1])): return kv[k]
        return kv[j]
    stubs = []
    ool.append(lambda: A.lines.extend(stubs))
    def drain(limit):
        q = qi[0]
        while q < len(items):
            cost, req, ms, fn = items[q]
            if req is not None:
                if req >= limit: break
                wait_for(kv[req])
            fn(); q += 1
    for i in range(D0, NS):
        if i == NO + AK:
            assert qi[0] == nsetup and all(k >= NO + AK for k in extras) and AK % 4 == 0
            A.label("L_J")
        if i == NS - NO:
            assert "L_mlok:" in A.lines
            A(f"s_cmp_eq_u32 {sCLS}, 0\n s_cbranch_scc1 L_adrain")
            sv = (list(ops), known[0], consumed[0], list(A.hist), len(A.lines))
            A.label("L_adrain")
            for j in range(GE): gu_op(j, vm)
            drain(i)
            if warmA:
                A("s_getpc_b64 s[0:1]")
                A.label("L_pca")
                A(f"s_sub_u32 s0, s0, L_pca-L_tail\n s_subb_u32 s1, s1, 0\n v_lshlrev_b32 {v(T+10)}, 4, v0")
                A(f"global_load_dwordx4 {v(228,4)}, {v(T+10)}, s[0:1]")
            A("s_nop 7"); A.raw("    s_branch L_tail")
            cut = A.lines[sv[4]:]; del A.lines[sv[4]:]
            ool.append(lambda: A.lines.extend(cut))
            ops[:] = sv[0]; known[0] = sv[1]; consumed[0] = sv[2]; A.hist = sv[3]
        if offpre: issue(i, 1)
        bu = BU[i >= NK]; bd = BD[i >= NK]
        if bal and bal["first"] + bal.get("lag", 7) + 3 < i < bal["off"] and i % bu == 0:
            A.raw(f"    s_cbranch_vccnz L_s{i}"); A.raw(f"L_b{i}:")
            lo_ = (bal.get('lo2', bal['lo']) if i >= IEND else bal['lo']) - bd + fl[(i >> 2) % len(fl)]
            if "th2" in bal:
                stubs.append(f"L_s{i}:\n    s_cmp_eq_u32 {sMODE}, 1\n    s_waitcnt vmcnt({after(kv[i - lo_])})\n    s_cbranch_scc1 L_b{i}\n    s_waitcnt vmcnt({after(kv[i - lo_ + 1])})\n    s_branch L_b{i}")
            else: stubs.append(f"L_s{i}:\n    s_waitcnt vmcnt({after(kv[i - lo_])})\n    s_branch L_b{i}")
        if i % bu == 0: wait_for(tgt(i, (DEND if i >= IEND else DST if i < IS else D) - bd + (fh[(i >> 2) % len(fh)] if i > 64 else 0)))
        assert consumed[0] >= prevocc(i), (i, consumed[0])
        issue(i, 2 if offpre else 3)
        if i % bu == bu - 1:
            for j in range(i - bu + 1, i + 1):
                for fn in extras.pop(j, []): fn()
            run_items(i, budget * bu)
    assert not extras, extras
    lag = NS - 1 - consumed[0]
    wo_dma(vm); drain(NS)
    A(f"; end lag {lag}")

    A.label("L_tail")
    stamp(6)
    X = 96; DM = 88; BL = 8; PS = 176
    for r in (0, 2): A(f"v_pk_mul_f32 {v(O0+r,2)}, {v(O0+r,2)}, {v(122,2)} op_sel_hi:[1,0]")
    A(f"ds_write_b128 {vT0w}, {v(O0,4)}")
    for r in (0, 2): A(f"v_pk_mul_f32 {v(O1+r,2)}, {v(O1+r,2)}, {v(122,2)} op_sel:[0,1]")
    A(f"ds_write_b128 {vT0w}, {v(O1,4)} offset:1024")
    A("s_waitcnt lgkmcnt(0)\n s_barrier")
    A(f"""ds_read2st64_b64 {v(DM,4)}, {vT0r} offset0:0 offset1:4
          ds_read2st64_b64 {v(DM+4,4)}, {vT0r} offset0:8 offset1:12
          s_waitcnt lgkmcnt(1)
          v_pk_add_f32 {v(DM,2)}, {v(DM,2)}, {v(DM+2,2)}
          s_waitcnt lgkmcnt(0)
          v_pk_add_f32 {v(DM+4,2)}, {v(DM+4,2)}, {v(DM+6,2)}
          v_pk_add_f32 {v(DM,2)}, {v(DM,2)}, {v(DM+4,2)}
          v_bfi_b32 {v(DM)}, {vEM}, {vTAG}, {v(DM)}
""")
    lstore(f"buffer_store_dwordx2 {v(DM,2)}, {vL8}, {sW}, {sOPs} offen", loc[2])
    stamp(1, "t")
    def poll(name, n, loads, body, S, tau, pre_issued=False):
        if pre_issued: A(f"s_branch L_{name}b")
        A.label(f"L_{name}")
        A(f"s_add_u32 {sCNT}, {sCNT}, 1\n s_cmp_lt_u32 {sCNT}, {cap}")
        A.raw(f"    s_cbranch_scc0 L_{name}ok")
        loads(PS)
        A.label(f"L_{name}b")
        body(PS, 0)
        A(f"s_cbranch_vccnz L_{name}")
        A.label(f"L_{name}ok")
    MK = ["s[28:29]", "s[30:31]", "s[32:33]", "s[34:35]"]
    def mpl(name, n, ld, chk, sel, spec, init=None):
        p = PS
        for k in range(n): A(f"s_mov_b64 {MK[k]}, -1")
        if init: init()
        A.label(f"L_{name}")
        for k in range(n): A(f"s_wqm_b64 exec, {MK[k]}\n {ld(p, k)}")
        A("s_mov_b64 exec, -1")
        for k in range(n):
            if k == 0: A("s_waitcnt vmcnt(0)")
            A(chk(p, k))
            A(f"v_cmp_ne_u32_sdwa {MK[k]}, {v(T+k)}, {v(T+15)} src0_sel:{sel} src1_sel:DWORD")
            if k % 2 == 1:
                spec(p, k)
                A(f"s_or_b64 vcc, {MK[k-1]}, {MK[k]}" if k == 1 else f"s_or_b64 vcc, vcc, {MK[k-1]}\n s_or_b64 vcc, vcc, {MK[k]}")
        A(f"s_cbranch_scc0 L_{name}ok\n s_add_u32 {sCNT}, {sCNT}, 1\n s_cmp_lt_u32 {sCNT}, {cap}\n s_cbranch_scc1 L_{name}")
        A.label(f"L_{name}ok")
    def cmp_tag(reg, sel): A(f"v_cmp_ne_u32_sdwa vcc, {reg}, {v(T+15)} src0_sel:{sel} src1_sel:DWORD")
    A(f"v_mov_b32 {v(T+15)}, 0\n ds_write_b32 {vL4}, {v(T+15)} offset:{Z_L}")
    vT2 = "v240"; sM11 = "s30"; sHS = "s31"
    def t2bits(dst):
        A(f"s_and_b32 {sT}, {sTAG}, 1\n s_bfe_u32 {sT3}, {sTAG}, 0x10001\n s_lshl_b32 {sT3}, {sT3}, 16\n s_or_b32 {sT}, {sT}, {sT3}\n v_mov_b32 {dst}, {sT}")
    def l1(p):
        for k in range(4): A(f"buffer_load_dwordx4 {v(p+4*k,4)}, {vVo}, {sW}, {sOPl} offen offset:{k*1024} sc1")
    def tcommon():
        t2bits(vT2)
        A(f"s_mov_b32 {sM11}, 0x10001\n s_and_b32 {sHS}, s2, 7\n s_lshl_b32 {sHS}, {sHS}, 14\n s_add_u32 {sHS}, {sHS}, {HB}")
    A(f"s_cmp_eq_u32 {sCLS}, 0\n s_cbranch_scc1 L_t3")
    l1(PS)
    tcommon()
    A(f"s_waitcnt vmcnt({7 if pre else 5})")
    stamp(3)
    A("s_barrier")
    for ks in range(8):
        for t2 in range(2): A(f"ds_read_b64_tr_b16 {v(WOF+4*ks+2*t2,2)}, {vWOr} offset:{ks*4096 + t2*512}")
        if ks == 5: A("s_waitcnt lgkmcnt(8)")
    A(f"s_xor_b32 {sA}, {sYs}, {2 << 15}")
    A.label("L_t1s")
    def l1(p):
        for k in range(4): A(f"buffer_load_dwordx4 {v(p+4*k,4)}, {vVo}, {sW}, {sOPl} offen offset:{k*1024} sc1")
    def b1(p, n):
        A(f"""s_waitcnt vmcnt({n+2})
              v_xor_b32 {v(p)}, {v(p)}, {vTB}
              v_xor_b32 {v(p+4)}, {v(p+4)}, {vTB}
              v_pk_add_f32 {v(X+2,2)}, {v(p+2,2)}, {v(p+6,2)}
              v_pk_add_f32 {v(X,2)}, {v(p,2)}, {v(p+4,2)}
              v_or_b32 {v(T)}, {v(p)}, {v(p+4)}
              s_waitcnt vmcnt({n})
              v_xor_b32 {v(p+8)}, {v(p+8)}, {vTB}
              v_xor_b32 {v(p+12)}, {v(p+12)}, {vTB}
              v_or3_b32 {v(T)}, {v(T)}, {v(p+8)}, {v(p+12)}""")
        cmp_tag(v(T), "BYTE_0")
        A(f"v_pk_add_f32 {v(X+4,2)}, {v(p+8,2)}, {v(p+12,2)}\n v_pk_add_f32 {v(X+6,2)}, {v(p+10,2)}, {v(p+14,2)}")
    if mpoll[0]:
        mpl("t1", 4, lambda p, k: f"buffer_load_dwordx4 {v(p+4*k,4)}, {vVo}, {sW}, {sOPl} offen offset:{k*1024} sc1",
            lambda p, k: f"v_bitop3_b32 {v(T+k)}, {v(p+4*k)}, {v(p+4*k+2)}, {vTAG} bitop3:0x7e", "BYTE_0",
            lambda p, k: A(f"v_pk_add_f32 {v(X+2*k-2,2)}, {v(p+4*k-4,2)}, {v(p+4*k,2)}\n v_pk_add_f32 {v(X+2*k,2)}, {v(p+4*k-2,2)}, {v(p+4*k+2,2)}"))
    else:
        poll("t1", 4, l1, b1, NS_[0], tau[0], True)
    A(f"""v_pk_add_f32 {v(X,2)}, {v(X,2)}, {v(X+4,2)}
          v_pk_add_f32 {v(X+2,2)}, {v(X+2,2)}, {v(X+6,2)}
          v_cvt_pk_bf16_f32 {v(X)}, {v(X)}, {v(X+1)}
          v_cvt_pk_bf16_f32 {v(X+1)}, {v(X+2)}, {v(X+3)}
          ds_write_b64 {vOw}, {v(X,2)} offset:{O_L}""")
    stamp(2, "t")
    A("s_waitcnt lgkmcnt(0)\n s_barrier")
    for ks in range(4): A(f"ds_read_b128 {v(BL+4*ks,4)}, {vBl} offset:{ks*64}")
    A(f"s_cmp_eq_u32 {sROLE}, 2")
    for ks in range(4):
        if ks in (0, 2): A(f"s_waitcnt lgkmcnt({2-ks})")
        mfma(v(DM+4,4), v(WOF+4*ks,4), v(BL+4*ks,4), v(DM+4,4) if ks else 0)
    for ks in range(4): mfma(v(X+4,4), v(WOF+16+4*ks,4), v(BL+4*ks,4), v(X+4,4) if ks else 0)
    A(f"""v_cvt_pk_bf16_f32 {v(DM+2)}, {v(DM+4)}, {v(DM+5)}
          v_cvt_pk_bf16_f32 {v(DM+3)}, {v(DM+6)}, {v(DM+7)}
          v_bfi_b32 {v(DM+2)}, {sM11}, {vT2}, {v(DM+2)}
          buffer_store_dwordx2 {v(DM+2,2)}, {vYs}, {sW}, {sYs} offen sc1
          s_cbranch_scc0 L_t1one
          v_cvt_pk_bf16_f32 {v(DM+4)}, {v(X+4)}, {v(X+5)}
          v_cvt_pk_bf16_f32 {v(DM+5)}, {v(X+6)}, {v(X+7)}
          v_bfi_b32 {v(DM+4)}, {sM11}, {vT2}, {v(DM+4)}
          buffer_store_dwordx2 {v(DM+4,2)}, {vYs}, {sW}, {sA} offen sc1""")
    stamp(7)
    A("s_branch L_t5s")
    A.label("L_t1one")
    stamp(7)
    Y = X; SA = 108
    vRa, vRb, vRc, vRd, vRe, vRf, vRg, vRh = [v(i) for i in range(240, 248)]
    vK1 = vRg
    def selector():
        A(f"""v_xor_b32 {v(T+2)}, {sM11}, {vT2}
              v_cndmask_b32 {vK1}, {vT2}, {v(T+2)}, {sM8}
              v_and_b32 {v(T+2)}, 1, v0
              v_lshlrev_b32 {v(T+2)}, 4, {v(T+2)}
              v_mov_b32 {v(T+3)}, 0x3f80
              v_lshlrev_b32 {v(T+3)}, {v(T+2)}, {v(T+3)}
              v_bfe_u32 {v(T+1)}, v0, 1, 2""")
        for r in range(4): A(f"v_cmp_eq_u32 vcc, {r}, {v(T+1)}\n v_cndmask_b32 {v(SA+r)}, 0, {v(T+3)}, vcc")
    octet(sT2)
    A(f"""s_lshl_b32 {sA}, {sT2}, 12
          s_add_u32 {sA}, {sA}, {YP}
          s_lshl_b32 {sB}, {sT2}, 8
          s_add_u32 {sB}, {sB}, {sHS}
          s_mov_b32 s32, 0
          s_mov_b32 s33, -1
          v_and_b32 {vRb}, 7, v0
          v_lshlrev_b32 {vRb}, 4, {vRb}
          v_bfe_u32 {v(T)}, v0, 3, 1
          v_lshl_or_b32 {vRb}, {v(T)}, 2, {vRb}
          v_bfe_u32 {v(T)}, v0, 5, 1
          v_lshl_or_b32 {vRb}, {v(T)}, 3, {vRb}
          v_bfe_u32 {v(T)}, v0, 4, 1
          v_lshl_or_b32 {vRb}, {v(T)}, 7, {vRb}
          v_lshlrev_b32 {vXR}, 16, {vXR}""")
    selector()
    def l2(p):
        for k in range(4): A(f"buffer_load_dwordx4 {v(p+4*k,4)}, {vVo}, {sW}, {sA} offen offset:{k*1024} sc1")
    def b2(p, n):
        for k in range(4):
            if k % 2 == 0: A(f"s_waitcnt vmcnt({n + 2 - k})")
            A(f"""v_bitop3_b32 {v(T+k)}, {v(p+4*k)}, {v(p+4*k+2)}, {vT2} bitop3:0x7e
                  v_xor_b32 {v(p+4*k)}, {v(p+4*k)}, {vK1}
                  v_xor_b32 {v(p+4*k+2)}, {v(p+4*k+2)}, {vK1}""")
            if k: mfma(v(Y,4), v(SA,4), v(p+4*k-4,4), v(Y,4) if k > 1 else 0)
        A(f"v_or3_b32 {v(T)}, {v(T)}, {v(T+1)}, {v(T+2)}")
        mfma(v(Y,4), v(SA,4), v(p+12,4), v(Y,4))
        A(f"v_bitop3_b32 {v(T)}, {v(T)}, {v(T+3)}, {sM11} bitop3:0xa8\n v_cmp_ne_u32 vcc, 0, {v(T)}")
    if dlyr == "ack": A("s_waitcnt vmcnt(0)")
    elif dlyr: A(f"s_sleep {dlyr}")
    poll("r", 4, l2, b2, 1, 0)
    stamp(3, "t")
    A(f"""v_cndmask_b32 {v(Y)}, {v(Y)}, {v(Y+2)}, s[32:33]
          v_cndmask_b32 {v(Y+1)}, {v(Y+1)}, {v(Y+3)}, s[32:33]
          v_cndmask_b32 {v(Y+2)}, {v(Y+1)}, {v(Y)}, {sM8}
          v_cndmask_b32 {v(Y)}, {v(Y)}, {v(Y+1)}, {sM8}
          v_add_f32_dpp {v(Y)}, {v(Y+2)}, {v(Y)} row_ror:8 {DPPM}
          v_cvt_pk_bf16_f32 {v(Y)}, {v(Y)}, {v(Y)}
          v_and_b32 {v(Y)}, {sHI}, {v(Y)}
          v_add_f32 {v(Y)}, {v(Y)}, {vXR}
          v_cvt_pk_bf16_f32 {v(Y)}, {v(Y)}, {v(Y)}
          v_bfi_b32 {v(Y)}, {sHI}, {v(Y)}, {vTAG}""")
    lstore(f"buffer_store_dword {v(Y)}, {vRb}, {sW}, {sB} offen", loc[3])
    stamp(4, "t")
    if wb == 1: A("s_cmp_lg_u32 s3, 1\n s_cbranch_scc1 L_nwb\n s_cmp_ge_u32 s2, 16\n s_cbranch_scc1 L_fin\n buffer_wbl2 sc1\n s_branch L_fin\nL_nwb:")
    if wb == 2: A("s_cmp_lg_u32 s3, 1\n s_cbranch_scc1 L_nwb\n s_cmp_ge_u32 s2, 16\n s_cbranch_scc1 L_fin\n s_waitcnt vmcnt(0)\n s_nop 15\n s_nop 15\n s_nop 15\n s_nop 15\n s_nop 15\n s_nop 15\n buffer_wbl2 sc1\n s_branch L_fin\nL_nwb:")
    A("s_cmp_lg_u32 s3, 0\n s_cbranch_scc1 L_fin")
    A(f"""s_cmp_lg_u32 {sWV}, 1
          s_cbranch_scc1 L_fin
          v_mov_b32 {v(Y+2)}, {EPOCH}
          s_mov_b64 exec, 1
          buffer_store_dword {vTAG}, {v(Y+2)}, {sW}, 0 offen sc1
          s_mov_b64 exec, -1
          s_branch L_fin""")
    A.label("L_t5s")
    HV = X + 8
    if wb == 3: A("s_cmp_lg_u32 s3, 1\n s_cbranch_scc1 L_nwb\n s_cmp_ge_u32 s2, 32\n s_cbranch_scc1 L_fin\n s_waitcnt vmcnt(0)\n buffer_wbl2 sc1\n s_branch L_fin\nL_nwb:")
    A(f"s_cmp_lg_u32 s3, 0\n s_cbranch_scc1 L_fin")
    A(f"s_mov_b32 s64, s18\n s_and_b32 s65, s19, 0xffff\n s_mov_b32 s66, {0 if 'O' in abl else 8192}\n s_mov_b32 s67, 0x20000")
    A(f"""s_and_b32 {sT2}, s2, 7
          s_lshr_b32 {sT}, s2, 5
          s_lshl3_add_u32 {sT2}, {sT2}, {sT}
          s_mul_i32 {sA}, {sT2}, 7168
          s_add_u32 {sA}, {sA}, {PD}
          s_add_u32 {sB}, {sA}, 4096""")
    def l5(p):
        for k in range(7): A(f"buffer_load_dwordx4 {v(p+4*k,4)}, {vVo}, {sW}, {sA if k < 4 else sB} offen offset:{(k&3)*1024} sc1")
    if dly is None: l5(PS)
    selector()
    A(f"""s_lshl_b32 {sDd}, {sT2}, 4
          s_lshl_b32 {sC}, {sT2}, 8
          s_add_u32 {sC}, {sC}, {sHS}
          s_mov_b32 s32, 0
          s_mov_b32 s33, -1
          v_and_b32 {v(T)}, 7, v0
          v_lshlrev_b32 {vRd}, 4, {v(T)}
          v_lshlrev_b32 {vRc}, 10, {v(T)}
          v_bfe_u32 {v(T)}, v0, 3, 1
          v_lshl_or_b32 {vRd}, {v(T)}, 2, {vRd}
          v_lshl_or_b32 {vRc}, {v(T)}, 1, {vRc}
          v_bfe_u32 {v(T)}, v0, 5, 1
          v_lshl_or_b32 {vRd}, {v(T)}, 3, {vRd}
          v_lshl_or_b32 {vRc}, {v(T)}, 2, {vRc}
          v_bfe_u32 {v(T)}, v0, 4, 1
          v_lshl_or_b32 {vRd}, {v(T)}, 7, {vRd}
          v_lshl_or_b32 {vRc}, {v(T)}, 3, {vRc}""")
    A.label("L_t5h")
    A(f"""buffer_load_dword {v(HV)}, {vRd}, {sW}, {sC} offen sc1
          s_waitcnt vmcnt(0)
          v_xor_b32 {v(T)}, {v(HV)}, {vTAG}""")
    cmp_tag(v(T), "WORD_0")
    A(f"s_cbranch_vccz L_t5hok\n s_add_u32 {sCNT}, {sCNT}, 1\n s_cmp_lt_u32 {sCNT}, {cap}\n s_cbranch_scc1 L_t5h")
    A.label("L_t5hok")
    A(f"v_and_b32 {v(HV)}, {sHI}, {v(HV)}")
    def b5(p, n):
        for k in range(7):
            A(f"""s_waitcnt vmcnt({6 - k})
                  v_bitop3_b32 {v(T+k)}, {v(p+4*k)}, {v(p+4*k+2)}, {vT2} bitop3:0x7e
                  v_xor_b32 {v(p+4*k)}, {v(p+4*k)}, {vK1}
                  v_xor_b32 {v(p+4*k+2)}, {v(p+4*k+2)}, {vK1}""")
            if k: mfma(v(Y,4), v(SA,4), v(p+4*k-4,4), v(Y,4) if k > 1 else 0)
            if k in (2, 4): A(f"v_or3_b32 {v(T)}, {v(T)}, {v(T+k-1)}, {v(T+k)}")
        A(f"v_or_b32 {v(T)}, {v(T)}, {v(T+5)}")
        mfma(v(Y,4), v(SA,4), v(p+24,4), v(Y,4))
        A(f"v_bitop3_b32 {v(T)}, {v(T)}, {v(T+6)}, {sM11} bitop3:0xa8\n v_cmp_ne_u32 vcc, 0, {v(T)}")
    poll("t5", 7, l5, b5, 1, 0)
    stamp(3, "t")
    A(f"""v_cndmask_b32 {v(Y)}, {v(Y)}, {v(Y+2)}, s[32:33]
          v_cndmask_b32 {v(Y+1)}, {v(Y+1)}, {v(Y+3)}, s[32:33]
          v_cndmask_b32 {v(Y+2)}, {v(Y+1)}, {v(Y)}, {sM8}
          v_cndmask_b32 {v(Y)}, {v(Y)}, {v(Y+1)}, {sM8}
          v_add_f32_dpp {v(Y)}, {v(Y+2)}, {v(Y)} row_ror:8 {DPPM}
          v_cvt_pk_bf16_f32 {v(Y)}, {v(Y)}, {v(Y)}
          v_and_b32 {v(Y)}, {sHI}, {v(Y)}
          v_add_f32 {v(Y)}, {v(Y)}, {v(HV)}""")
    if pert:
        import struct
        h_ = hex(struct.unpack("<I", struct.pack("<f", pert[0]))[0])
        if pert[1]: A(f"s_cmp_eq_u32 {sT2}, 5\n s_cselect_b64 exec, 1, 0")
        A(f"v_add_f32 {v(Y)}, {h_}, {v(Y)}\n s_mov_b64 exec, -1")
    A(f"""v_cvt_pk_bf16_f32 {v(Y)}, {v(Y)}, {v(Y)}
          buffer_store_short {v(Y)}, {vRc}, {sOut}, {sDd} offen {osc}""")
    stamp(4, "t")
    A("s_branch L_fin")
    A.label("L_t3")
    A(f"s_cmp_eq_u32 {sROLE}, 0\n s_cbranch_scc1 L_fin")
    for j in range(GE, GM_):
        A(f"s_waitcnt vmcnt({GW - 1})"); gu_op(j, A)
    tcommon()
    vWd = "v248"
    A(f"""v_lshrrev_b32 {v(T)}, 2, {vN}
          v_lshl_add_u32 {v(T)}, {vG}, 3, {v(T)}
          v_lshlrev_b32 {vWd}, 8, {v(T)}
          v_lshlrev_b32 {v(T)}, 6, {v(T)}
          v_bfe_u32 {v(T+1)}, v0, 1, 1
          v_lshl_add_u32 {v(T)}, {v(T+1)}, 13, {v(T)}
          v_bfe_u32 {v(T+2)}, v0, 4, 1
          v_lshl_or_b32 {v(T+1)}, {v(T+2)}, 1, {v(T+1)}
          v_xor_b32 {v(T+1)}, s3, {v(T+1)}
          v_lshl_add_u32 {v(T)}, {v(T+1)}, 4, {v(T)}
          v_and_b32 {v(T+1)}, 1, v0
          v_lshl_add_u32 {v(T)}, {v(T+1)}, 3, {v(T)}
          v_add_u32 {v(T+9)}, {GU_L}, {v(T)}""")
    A(f"""v_and_b32 {v(T+1)}, 1, v0
          v_lshl_or_b32 {vWd}, {v(T+1)}, 4, {vWd}
          v_bfe_u32 {v(T+1)}, v0, 2, 3
          v_bfe_u32 {v(T+2)}, v0, 1, 1
          v_xor_b32 {v(T+1)}, {v(T+1)}, {v(T+2)}
          v_lshl_or_b32 {vWd}, {v(T+1)}, 5, {vWd}
          s_lshl_b32 {sWm}, s3, 13
          s_add_u32 {sWm}, {sWm}, {WD_L}""")
    def wdfrags():
        for k in range(8):
            A(f"v_xor_b32 {v(T)}, {(4*(k>>2) + 2*(k&1))*32}, {vWd}\n v_add_u32 {v(T)}, {sWm}, {v(T)}")
            for t2 in range(2): A(f"ds_read_b64_tr_b16 {a(WDF+4*k+2*t2,2)}, {v(T)} offset:{t2*1024 + ((k>>1)&1)*8}")
            if k in (3, 7): A("s_waitcnt lgkmcnt(4)")
    PK = 96; HF = 8; DG = 144; CS = 116; SS = 120; SR = 72; sSEL = "s28"; sONE = "s29"
    A(f"""v_and_b32 {v(T)}, 7, v0
          v_bfe_u32 {v(T+1)}, v0, 3, 1
          v_mul_u32_u24 {vRc}, {XN_S}, {v(T)}
          v_and_b32 {v(T+2)}, 56, v0
          v_add_u32 {vRb}, {vRc}, {v(T+2)}
          s_lshl_b32 {sT}, s3, 8
          v_add_u32 {vRb}, {sT}, {vRb}
          v_lshl_add_u32 {vRc}, {vG}, 4, {vRc}
          v_mul_u32_u24 {vRe}, 80, {v(T)}
          v_lshl_add_u32 {vRd}, {vG}, 2, {vRe}
          s_lshl_b32 {sT}, s3, 4
          v_add_u32 {vRd}, {sT}, {vRd}
          v_lshlrev_b32 {vRf}, 6, {v(T)}
          v_lshl_or_b32 {v(T+3)}, {vG}, 4, {vRf}
          v_lshl_or_b32 {vRf}, {v(T+1)}, 2, {vRf}
          v_bfe_u32 {v(T+2)}, v0, 4, 1
          v_lshl_or_b32 {vRf}, {v(T+2)}, 3, {vRf}
          v_bfe_u32 {v(T+2)}, v0, 5, 1
          v_lshl_or_b32 {vRf}, {v(T+2)}, 1, {vRf}
          s_lshl_b32 {sT}, s3, 4
          v_add_u32 {vRf}, {sT}, {vRf}
          v_lshl_add_u32 {vRh}, {v(T+1)}, 2, {vG}
          v_mul_u32_u24 {vRh}, 7168, {vRh}
          v_lshl_add_u32 {vRh}, {v(T)}, 4, {vRh}
          s_mul_i32 {sB}, s3, {16*7168}
          s_lshl_b32 {sT}, {sGI}, 7
          s_add_u32 {sB}, {sB}, {sT}
          s_add_u32 {sB}, {sB}, {PD}
          s_add_u32 {sDd}, {sB}, {8*7168}
          v_add_u32 {v(T+3)}, {A_L}, {v(T+3)}
          v_mov_b32 {v(T+4)}, {Z_L}
          v_cndmask_b32 {vB3}, {v(T+3)}, {v(T+4)}, {sM8}
          v_cndmask_b32 {vBh}, {v(T+4)}, {v(T+3)}, {sM8}
          s_lshl_b32 {sA}, s3, 12
          s_add_u32 {sA}, {sA}, {sHS}
          s_mov_b32 {sSEL}, 0x07060302
          s_mov_b32 {sONE}, 0x3f803f80
          s_mov_b32 {sC}, 0""")
    for i in range(8): A(f"v_mov_b32 {v(PK+i)}, {sONE}")
    A("s_branch L_t3lok")
    A.label("L_t3s")
    if dlyb: A(f"s_sleep {dlyb}")
    def l3(p):
        for k in range(4): A(f"buffer_load_dwordx4 {v(p+4*k,4)}, {vNINF if 'H' in abl and k >= 2 else vVo}, {sW}, {sA} offen offset:{k*1024} sc1")
    def pk(p, k): A(f"v_perm_b32 {v(PK+2*k)}, {v(p+4*k+1)}, {v(p+4*k)}, {sSEL}\n v_perm_b32 {v(PK+2*k+1)}, {v(p+4*k+3)}, {v(p+4*k+2)}, {sSEL}")
    def dots(i): A(f"v_dot2_f32_bf16 {v(SS)}, {v(PK+i)}, {sONE}, {v(SS) if i else 0}\n v_dot2_f32_bf16 {v(SS+1)}, {v(PK+i)}, {v(PK+i)}, {v(SS+1) if i else 0}")
    def b3(p, n):
        A(f"s_waitcnt vmcnt({n+2})\n v_bitop3_b32 {v(T)}, {v(p)}, {v(p+4)}, {vTAG} bitop3:0x7e")
        pk(p, 0); pk(p, 1)
        for i in range(4): dots(i)
        A(f"s_waitcnt vmcnt({n})\n v_bitop3_b32 {v(T+1)}, {v(p+8)}, {v(p+12)}, {vTAG} bitop3:0x7e\n v_or_b32 {v(T)}, {v(T)}, {v(T) if 'H' in abl else v(T+1)}")
        cmp_tag(v(T), "WORD_0")
        pk(p, 2); pk(p, 3)
    poll("t3l", 4, l3, b3, NS_[2], tau[2])
    stamp(3, "t")
    for k in range(4): A(f"ds_write_b64 {vRb}, {v(PK+2*k,2)} offset:{H_L + k*64}")
    for i in range(4, 8): dots(i)
    A(f"""s_nop 2
          v_permlane16_swap_b32 {v(SS)}, {v(SS+1)}
          v_add_f32 {v(SS)}, {v(SS)}, {v(SS+1)}
          v_add_f32_dpp {v(SS)}, {v(SS)}, {v(SS)} row_ror:8 {DPPM}
          ds_write_b32 {vRd}, {v(SS)} offset:{ST_L}
          s_waitcnt lgkmcnt(0)
          s_barrier""")
    stamp(4, "t")
    for ks in range(2): A(f"ds_read_b128 {v(HF+4*ks,4)}, {vRc} offset:{H_L + ks*64}")
    for k in range(4): A(f"ds_read_b128 {v(SR+4*k,4)}, {vRe} offset:{ST_L + k*16}")
    for ks in range(2, 10): A(f"ds_read_b128 {v(HF+4*ks,4)}, {vRc} offset:{H_L + ks*64}")
    z = v(T); z2 = v(T+1); mean = v(T+2); mb = v(T+3); rinv = v(T+4)
    sc = f"""v_pk_add_f32 {v(SR,2)}, {v(SR,2)}, {v(SR+2,2)}
          v_pk_add_f32 {v(SR+4,2)}, {v(SR+4,2)}, {v(SR+6,2)}
          v_pk_add_f32 {v(SR+8,2)}, {v(SR+8,2)}, {v(SR+10,2)}
          v_pk_add_f32 {v(SR+12,2)}, {v(SR+12,2)}, {v(SR+14,2)}
          v_pk_add_f32 {v(SR,2)}, {v(SR,2)}, {v(SR+4,2)}
          v_pk_add_f32 {v(SR+8,2)}, {v(SR+8,2)}, {v(SR+12,2)}
          v_pk_add_f32 {v(SR,2)}, {v(SR,2)}, {v(SR+8,2)}
          v_mul_f32 {mean}, 0x3b000000, {v(SR)}
          v_mul_f32 {z}, 0x3b000000, {v(SR+1)}
          v_fma_f32 {z}, -{mean}, {mean}, {z}
          v_max_f32 {z}, 0, {z}
          v_cvt_pk_bf16_f32 {rinv}, {mean}, {z}
          v_lshlrev_b32 {mb}, 16, {rinv}
          v_and_b32 {rinv}, {sHI}, {rinv}
          v_add_f32 {rinv}, 0x3727c5ac, {rinv}
          v_cvt_pk_bf16_f32 {rinv}, {rinv}, {rinv}
          v_lshlrev_b32 {rinv}, 16, {rinv}
          v_sqrt_f32 {rinv}, {rinv}
          v_cvt_pk_bf16_f32 {rinv}, {rinv}, {rinv}
          v_lshlrev_b32 {rinv}, 16, {rinv}
          v_rcp_f32 {rinv}, {rinv}
          v_mul_f32 {mb}, {mb}, {rinv}
          v_mul_f32 {v(T+5)}, {mb}, {v(CS)}
          v_mul_f32 {v(T+6)}, {mb}, {v(CS+1)}""".split("\n")
    if tdiag: A("s_waitcnt lgkmcnt(0)")
    order = [0, 1, "s", "s", "s", "s"] + list(range(2, 10))
    si = 0
    for ks in range(16):
        upto = {0: 1, 2: 5, 6: 9, 10: 12, 13: 15}
        if ks in upto: A(f"s_waitcnt lgkmcnt({len(order) - 1 - order.index(upto[ks])})")
        mfma(v(DG,4), a(GUF+4*ks), v(HF+4*ks,4), v(DG,4) if ks else 0)
        if ks < 6:
            A(f"ds_read_b128 {v(HF+4*(ks+10),4)}, {vRc} offset:{H_L + (ks+10)*64}"); order.append(ks + 10)
        if ks >= 2:
            for _ in range(1 if ks < 6 else 2):
                if si < len(sc): A(sc[si]); si += 1
    while si < len(sc): A(sc[si]); si += 1
    g_, u_ = v(T+7), v(T+8)
    A(f"""v_mov_b32 {z2}, 0xc0135761
          v_permlane32_swap_b32 {v(DG)}, {v(DG+1)}
          v_permlane32_swap_b32 {v(DG+2)}, {v(DG+3)}
          v_cndmask_b32 {v(DG)}, {v(DG)}, {v(DG+2)}, {sM8}
          v_cndmask_b32 {v(DG+1)}, {v(DG+1)}, {v(DG+3)}, {sM8}
          v_fma_f32 {g_}, {v(DG)}, {rinv}, -{v(T+5)}
          v_fma_f32 {u_}, {v(DG+1)}, {rinv}, -{v(T+6)}
          v_cvt_pk_bf16_f32 {u_}, {g_}, {u_}
          v_lshlrev_b32 {g_}, 16, {u_}
          v_mul_f32 {z}, {g_}, {g_}
          v_fmac_f32 {z2}, 0xbdd2d3e8, {z}
          v_mul_f32 {z}, {z2}, {g_}
          v_exp_f32 {z}, {z}
          v_and_b32 {u_}, {sHI}, {u_}
          v_add_f32 {z}, 1.0, {z}
          v_rcp_f32 {z}, {z}
          s_cmp_eq_u32 {sC}, 0
          v_mul_f32 {z}, {z}, {g_}
          v_cvt_pk_bf16_f32 {z}, {z}, {z}
          v_lshlrev_b32 {z}, 16, {z}
          v_mul_f32 {z}, {z}, {u_}
          v_cvt_pk_bf16_f32 {z}, {z}, {z}
          ds_write_b16 {vRf}, {z} offset:{A_L}
          s_cselect_b32 s38, 0, {WS_END}
          s_waitcnt lgkmcnt(0)
          s_barrier
          ds_read_b128 {v(BL,4)}, {vB3}
          ds_read_b128 {v(BL+4,4)}, {vBh}""")
    stamp(5, "t")
    A("s_waitcnt lgkmcnt(0)")
    DP = 148
    for i in range(4):
        mfma(v(DP+4*i,4), a(WDF+8*i), v(BL,4), 0)
        mfma(v(DP+4*i,4), a(WDF+8*i+4), v(BL+4,4), v(DP+4*i,4))
    for p_ in range(2):
        for q_ in range(4): A(f"v_cvt_pk_bf16_f32 {v(164+4*p_+q_)}, {v(DP+8*p_+2*q_)}, {v(DP+8*p_+2*q_+1)}")
        for q_ in (0, 2): A(f"v_bfi_b32 {v(164+4*p_+q_)}, {sM11}, {vT2}, {v(164+4*p_+q_)}")
        A(f"buffer_store_dwordx4 {v(164+4*p_,4)}, {vRh}, {sW}, {(sB, sDd)[p_]} offen sc1")
    stamp(8, "t")
    A(f"""s_cbranch_scc0 L_fin
          s_mov_b32 {sC}, 1
          s_mov_b32 s38, {WS_END}""")
    for j in range(GM_, 16):
        A(f"s_waitcnt vmcnt({GW - 1})"); gu_op(j, A)
    wdloads(GW)
    A("s_waitcnt vmcnt(8)")
    stamp(3)
    A("s_barrier")
    for k in range(16):
        for t2 in range(2): A(f"ds_read_b64_tr_b16 {a(GUF+4*k+2*t2,2)}, {v(T+9)} offset:{(k>>2)*16384 + (k&3)*2048 + t2*256}")
        if k % 4 == 3: A("s_waitcnt lgkmcnt(4)")
    A("s_waitcnt lgkmcnt(0)")
    for k in range(16): mfma(v(DG,4), a(GUF+4*k), v(PK,4), v(DG,4) if k else 0)
    A("s_waitcnt vmcnt(0)")
    wdfrags()
    A(f"""v_permlane32_swap_b32 {v(DG)}, {v(DG+1)}
          v_permlane32_swap_b32 {v(DG+2)}, {v(DG+3)}
          v_cndmask_b32 {v(CS)}, {v(DG)}, {v(DG+2)}, {sM8}
          v_cndmask_b32 {v(CS+1)}, {v(DG+1)}, {v(DG+3)}, {sM8}""")
    stamp(8)
    A("s_branch L_t3s")
    A.label("L_fin")
    if padto:
        if padwg is not None: A(f"s_cmp_lg_u32 s2, {padwg}\n s_cbranch_scc1 L_end")
        A.label("L_pad")
        A(f"s_memrealtime s[82:83]\n s_waitcnt lgkmcnt(0)\n s_sub_u32 s82, s82, s80\n s_cmp_lt_u32 s82, {padto}\n s_cbranch_scc1 L_pad")
    if stamps:
        A("s_waitcnt vmcnt(0)")
        stamp(9)
        A("s_getreg_b32 s0, hwreg(HW_REG_XCC_ID)\n s_waitcnt lgkmcnt(0)\n v_mov_b32 v8, 0")
        for k in range(10): A(f"v_writelane_b32 v8, s{80+2*k}, {k}")
        A(f"v_writelane_b32 v8, s0, 10\n v_writelane_b32 v8, {sCNT}, 11\n v_writelane_b32 v8, {sROLE}, 12\n v_writelane_b32 v8, s100, 13\n v_writelane_b32 v8, s101, 14\n s_getreg_b32 s0, hwreg(HW_REG_HW_ID)\n v_writelane_b32 v8, s0, 15")
        if dbg:
            A(f"s_not_b32 s0, s80\n v_writelane_b32 v8, s0, 10\n s_mov_b64 exec, 0xffff\n buffer_atomic_umax v8, {vL4}, {sDbg}, 0 offen sc1\n s_endpgm")
        A(f"s_lshl_b32 s0, s2, 2\n s_add_u32 s0, s0, s3\n s_lshl_b32 s0, s0, 8\n s_add_u32 s0, s0, 0x10000000\n s_add_u32 s26, s26, s0\n s_addc_u32 s27, s27, 0")
        A(f"v_lshlrev_b32 v9, 2, {vL}\n global_store_dword v9, v8, s[26:27]")
    A.label("L_end")
    A("s_endpgm")
    for o in ool: o()
    if warm0 or warm1: A.raw(".rept 3000\n s_endpgm\n.endr")
    elif roll: A.raw(".rept 520\n s_endpgm\n.endr")
    A.raw('.section .rodata,"a"\n.p2align 6')
    A.raw(f".amdhsa_kernel {NAME}_kernel")
    A.raw("""  .amdhsa_next_free_vgpr 512
  .amdhsa_next_free_sgpr 102
  .amdhsa_accum_offset 256
  .amdhsa_group_segment_fixed_size 0
  .amdhsa_kernarg_size 96
  .amdhsa_user_sgpr_count 2
  .amdhsa_user_sgpr_kernarg_segment_ptr 1
  .amdhsa_system_sgpr_workgroup_id_x 1
  .amdhsa_float_denorm_mode_32 3
.end_amdhsa_kernel""")
    return A.text()

if __name__ == "__main__":
    if len(sys.argv) > 1:
        cfgs = json.loads(sys.argv[1])
        for k, c in cfgs.items(): open(f"k_{k}.s", "w").write(gen(**c))
        print(" ".join(f"work/k_{k}.s" for k in cfgs))
    else:
        open(f"cdna_kernels/{NAME}.s", "w").write(gen())
```
